```python
import torch

def _softmax(x, axis=-1):
    return torch.softmax(x, dim=axis)
def _gelu(x):
    return torch.nn.functional.gelu(x, approximate="tanh")
def _silu(x):
    return torch.nn.functional.silu(x)
def _sigmoid(x):
    return torch.sigmoid(x)
def _layernorm(x, axis=-1, eps=1e-5):
    m = x.mean(dim=axis, keepdim=True)
    v = x.var(dim=axis, keepdim=True, unbiased=False)
    return (x - m) / torch.sqrt(v + eps)
def _scatter_add(tgt, idx, src, axis=0):
    return tgt.clone().index_add_(axis, idx, src)
def _segment_sum(src, seg, n):
    out = torch.zeros((n,) + src.shape[1:], dtype=src.dtype)
    return out.index_add_(0, seg, src)
def _pad(x, pw):
    flat = tuple(v for pair in reversed(pw) for v in pair)
    return torch.nn.functional.pad(x, flat)

kernel_name = 'sequential_preLN__ssm_conv_h3__glu_gated_reglu__prompt'

def setup_inputs():

    _w = (lambda a: (lambda t: t.to(torch.bfloat16) if t.is_floating_point() else t)(torch.as_tensor(a)))
    def _A_setup():
        B, S, D = 1, 2048, 512
        ks = 4
        return {
            "q": _w((lambda *s: torch.randn(*s, dtype=torch.bfloat16) * 0.05)(B, S, D)),
            "k": _w((lambda *s: torch.randn(*s, dtype=torch.bfloat16) * 0.2)(B, S, D)),
            "v": _w((lambda *s: torch.randn(*s, dtype=torch.bfloat16) * 0.2)(B, S, D)),
            "shift_k": _w((lambda *s: torch.randn(*s, dtype=torch.bfloat16) * 0.2)(D, ks) * 0.5),
            "ssm_k": _w((lambda *s: torch.randn(*s, dtype=torch.bfloat16) * 0.4)(D, S) * (1.0 / S ** 0.5)),
            "ssm_D": _w((lambda *s: torch.randn(*s, dtype=torch.bfloat16) * 0.2)(D)),
        }
    _A_in = _A_setup()

    def _B_setup():
        B, S, D, F = 1, 2048, 512, 1376
        return {
            "x": _w((lambda *s: torch.randn(*s, dtype=torch.bfloat16) * 0.05)(B, S, D)),
            "W_gate": _w((lambda *s: torch.randn(*s, dtype=torch.bfloat16) * 0.2)(D, F) * (2.0 / D) ** 0.5),
            "W_up": _w((lambda *s: torch.randn(*s, dtype=torch.bfloat16) * 0.2)(D, F) * (2.0 / D) ** 0.5),
            "W_down": _w((lambda *s: torch.randn(*s, dtype=torch.bfloat16) * 0.2)(F, D) * (1.0 / F) ** 0.5),
        }
    _B_in = _B_setup()

    return {
        "A_q": _A_in["q"],
        "A_k": _A_in["k"],
        "A_v": _A_in["v"],
        "A_shift_k": _A_in["shift_k"],
        "A_ssm_k": _A_in["ssm_k"],
        "A_ssm_D": _A_in["ssm_D"],
        "B_x": _B_in["x"],
        "B_W_gate": _B_in["W_gate"],
        "B_W_up": _B_in["W_up"],
        "B_W_down": _B_in["W_down"],
    }

def reference(A_q, A_k, A_v, A_shift_k, A_ssm_k, A_ssm_D, B_x, B_W_gate, B_W_up, B_W_down):
    def _A_ref(q, k, v, shift_k, ssm_k, ssm_D):
        B, S, D = q.shape
        ks = shift_k.shape[-1]
        k_pad = _pad(k, ((0, 0), (ks - 1, 0), (0, 0)))
        k_shift = torch.zeros_like(k)
        for t in range(ks):
            k_shift = k_shift + k_pad[:, t:t + S, :] * shift_k[:, ks - 1 - t][None, None, :]
        kv = k_shift * v
        L = 2 * S
        kv_pad = _pad(kv, ((0, 0), (0, S), (0, 0)))
        kf_pad = _pad(ssm_k, ((0, 0), (0, S)))
        kv_f = (lambda x, axes=(-2,-1): torch.fft.rfft2(x.float(), dim=axes))(kv_pad[:, None, :, :], axes=(1, 2))
        kf_f = (lambda x, axes=(-2,-1): torch.fft.rfft2(x.float(), dim=axes))(kf_pad[:, None, :], axes=(1, 2))
        kf_f = (lambda x, *d: x.permute(*d))(kf_f, 1, 2, 0)
        y_f = kv_f * kf_f[None, :, :, :]
        y = (lambda x, s, axes=(-2,-1): torch.fft.irfft2(x, s=s, dim=axes).to(torch.bfloat16))(y_f, (1, L), axes=(1, 2))[:, 0, :S, :]
        y = y + kv * ssm_D[None, None, :]
        return q * y

    def _B_ref(x, W_gate, W_up, W_down):
        gate = torch.einsum("bsd,df->bsf", x, W_gate)
        up = torch.einsum("bsd,df->bsf", x, W_up)
        gate = gate * (lambda x, dt: x.to(dt))(gate > 0, gate.dtype)
        h = gate * up
        return torch.einsum("bsf,fd->bsd", h, W_down)

    x = A_q
    h = x + _A_ref(_layernorm(x, axis=-1), A_k, A_v, A_shift_k, A_ssm_k, A_ssm_D)
    h2 = h + _B_ref(_layernorm(h, axis=-1), B_W_gate, B_W_up, B_W_down)
    return h2
```

```python
import re

_RNG = re.compile(r'^([vas])\[(\d+):(\d+)\]$')
_ONE = re.compile(r'^([vas])(\d+)$')

def regs_of(tok):
    tok = tok.strip()
    if tok.startswith('-'): tok = tok[1:]
    m = re.match(r'^abs\((.*)\)$', tok)
    if m: tok = m.group(1)
    m = _RNG.match(tok)
    if m: return [m.group(1) + str(i) for i in range(int(m.group(2)), int(m.group(3)) + 1)]
    m = _ONE.match(tok)
    if m: return [tok]
    if tok in ('vcc', 'exec', 'm0', 'scc'): return [tok]
    if tok in ('vcc_lo', 'vcc_hi'): return ['vcc']
    if tok in ('exec_lo', 'exec_hi'): return ['exec']
    return []

TRANS = ('v_exp_f32', 'v_log_f32', 'v_rcp_f32', 'v_rsq_f32', 'v_sqrt_f32', 'v_sin_f32', 'v_cos_f32')

class Ins:
    def __init__(self, text):
        self.text = text
        t = text.split(';')[0].strip()
        parts = t.split(None, 1)
        self.op = parts[0]
        rest = parts[1] if len(parts) > 1 else ''
        ops = [o.strip() for o in rest.split(',')] if rest else []
        mods = ''
        rest2 = re.sub(r'\b(op_sel|op_sel_hi|neg_lo|neg_hi):\[[^\]]*\]', '', rest)
        ops = [o.strip() for o in rest2.split(',')] if rest2.strip() else []
        if ops:
            last = ops[-1].split()
            ops[-1] = last[0] if last else ''
            mods = ' '.join(last[1:])
        self.ops = ops; self.mods = mods
        op = self.op
        self.w = set(); self.r = set(); self.kind = 'other'
        self.dpp = ('row_' in mods or 'wave_' in mods or 'quad_perm' in mods or op.endswith('_dpp'))
        self.states = 1
        R = lambda i: regs_of(ops[i]) if i < len(ops) else []
        if op == 's_nop':
            self.kind = 'nop'; self.states = int(ops[0], 0) + 1
        elif op.startswith('v_mfma'):
            self.kind = 'mfma'; self.w = set(R(0)); self.ra = set(R(1)) | set(R(2)); self.rc = set(R(3))
            self.r = self.ra | self.rc
        elif op.startswith('v_cmp'):
            self.kind = 'valu'; self.w = set(R(0)); self.r = set(R(1)) | set(R(2))
        elif op in ('v_swap_b32',) or op.startswith('v_permlane'):
            self.kind = 'valu'; self.w = set(R(0)) | set(R(1)); self.r = set(self.w)
        elif op in ('v_readfirstlane_b32', 'v_readlane_b32'):
            self.kind = 'valu'; self.w = set(R(0)); self.r = set(R(1)) | set(R(2))
        elif op.startswith('v_'):
            self.kind = 'valu'; self.w = set(R(0))
            k = 1
            if '_co_' in op:
                self.w |= set(R(1)); k = 2
            for i in range(k, len(ops)): self.r |= set(R(i))
            if op.startswith('v_fmac') or op.startswith('v_dot2c') or op == 'v_writelane_b32' or self.dpp: self.r |= set(R(0))
        elif op.startswith('ds_read') or op.startswith('ds_bpermute') or op.startswith('ds_swizzle'):
            self.kind = 'dsr'; self.w = set(R(0))
            for i in range(1, len(ops)): self.r |= set(R(i))
        elif op.startswith('ds_'):
            self.kind = 'dsw'
            for i in range(len(ops)): self.r |= set(R(i))
        elif op.startswith('buffer_load') or op.startswith('global_load'):
            if 'lds' in mods.split():
                self.kind = 'dma'; self.r |= {'m0'}
                for i in range(len(ops)): self.r |= set(R(i))
            else:
                self.kind = 'vld'; self.w = set(R(0))
                for i in range(1, len(ops)): self.r |= set(R(i))
        elif op.startswith('buffer_store') or op.startswith('buffer_atomic'):
            self.kind = 'vst'; self.data = set(R(0))
            for i in range(len(ops)): self.r |= set(R(i))
            self.wide = ('x4' in op or 'x3' in op)
            if op.startswith('buffer_atomic') and 'sc0' in mods.split(): self.w = set(R(0))
        elif op.startswith('global_store'):
            self.kind = 'vst'; self.data = set(R(1))
            for i in range(len(ops)): self.r |= set(R(i))
            self.wide = ('x4' in op or 'x3' in op)
        elif op.startswith('s_load') or op.startswith('s_memtime') or op.startswith('s_memrealtime'):
            self.kind = 'smem'; self.w = set(R(0))
            for i in range(1, len(ops)): self.r |= set(R(i))
        elif op.startswith('s_'):
            self.kind = 'salu'
            if op.startswith('s_cmp') or op.startswith('s_cbranch') or op in ('s_branch', 's_barrier', 's_waitcnt', 's_sleep', 's_endpgm', 's_setprio', 's_bitcmp1_b32', 's_bitcmp0_b32'):
                for i in range(len(ops)): self.r |= set(R(i))
            else:
                self.w = set(R(0))
                for i in range(1, len(ops)): self.r |= set(R(i))
                if 'saveexec' in op: self.w |= {'exec'}
        self.trans = op.replace('_e32', '').replace('_e64', '') in TRANS

def need(p, c):
    n = 0
    isv = lambda s: {x for x in s if x[0] in 'va' and x not in ('vcc',)}
    iss = lambda s: {x for x in s if x[0] == 's' or x == 'vcc'}
    vm = c.kind in ('vld', 'vst', 'dma')
    if p.kind == 'valu':
        wv = isv(p.w); ws = iss(p.w)
        if c.kind == 'mfma' and wv & c.r: n = max(n, 2)
        if c.kind == 'valu':
            if c.dpp and wv & c.r: n = max(n, 2)
            if c.op.startswith('v_permlane') and wv & c.r: n = max(n, 2)
            if c.op in ('v_readfirstlane_b32', 'v_readlane_b32') and wv & c.r: n = max(n, 1)
            if p.trans and not c.trans and wv & c.r: n = max(n, 1)
            if ws & c.r:
                n = max(n, 4 if c.op in ('v_readlane_b32', 'v_writelane_b32') else 2)
            if p.op.startswith('v_dot') and (wv & (c.r | c.w)):
                same_c = (c.op == p.op) and not (wv & (set(regs_of(c.ops[1])) | set(regs_of(c.ops[2]))))
                if not same_c: n = max(n, 3)
        if p.op.startswith('v_dot') and c.kind in ('vst', 'dsw', 'mfma') and wv & c.r: n = max(n, 3)
        if vm and ws & c.r: n = max(n, 5)
        if c.kind == 'salu' and ws & c.r: n = max(n, 1)
    if p.kind == 'mfma':
        if c.kind == 'mfma':
            if p.w & c.ra: n = max(n, 8)
            if p.w & c.rc and p.w != c.rc: n = max(n, 6)
            if p.w & c.w and p.w != c.rc: n = max(n, 6)
        elif c.kind in ('valu', 'vld', 'vst', 'dsr', 'dsw', 'dma'):
            if p.w & (c.r | c.w): n = max(n, 8)
        if c.kind == 'valu' and p.rc & c.w: n = max(n, 3)
    if p.kind == 'vst' and p.wide:
        if c.kind == 'valu' and p.data & c.w: n = max(n, 2)
        elif c.kind in ('vld', 'dsr', 'mfma') and p.data & c.w: n = max(n, 1)
    if p.kind == 'salu' and 'm0' in p.w and c.kind == 'dma': n = max(n, 1)
    return n

class Asm:
    def __init__(self):
        self.lines = []; self.hist = []; self.nops = 0
    def raw(self, s): self.lines.append(s)
    def label(self, name):
        self.lines.append(name + ':')
    def comment(self, s): self.lines.append('    ; ' + s)
    def __call__(self, text):
        for ln in text.strip().split('\n'):
            ln = ln.strip()
            if not ln: continue
            if ln.startswith(';'): self.lines.append('    ' + ln); continue
            if ln.endswith(':'): self.label(ln[:-1]); continue
            self.ins(ln)
    def ins(self, ln):
        c = Ins(ln)
        dist = 0; pad = 0
        for p in reversed(self.hist[-24:]):
            n = need(p, c)
            if n > dist: pad = max(pad, n - dist)
            dist += p.states
            if dist >= 12: break
        if pad:
            nop = Ins('s_nop %d' % (pad - 1))
            self.lines.append('    s_nop %d' % (pad - 1)); self.hist.append(nop); self.nops += 1
        self.lines.append('    ' + ln); self.hist.append(c)
    def text(self): return '\n'.join(self.lines) + '\n'

def v(i, n=1): return 'v%d' % i if n == 1 else 'v[%d:%d]' % (i, i + n - 1)
def a(i, n=1): return 'a%d' % i if n == 1 else 'a[%d:%d]' % (i, i + n - 1)
def s(i, n=1): return 's%d' % i if n == 1 else 's[%d:%d]' % (i, i + n - 1)
```

```python
import sys
from asm import Asm, v, a, s

NAME = "sequential_preLN__ssm_conv_h3__glu_gated_reglu__prompt"

CNT = 0x0; ST = 0x4000; R2 = 0x8000; TS = 0x10000
UP = 0x100000; QP = 0x300000; HP = 0x500000; WDF = 0x700000; HH = 0x900000
WS_BYTES = 0x1000000
HG = 88064
L_W1 = 0; L_WU = 49152
L_KC = 98304; KC_STR = 4640
L_U = L_KC + 8 * KC_STR; U_STR = 4224
L_CS = L_U + 4 * U_STR
L_STAT = L_CS + 384
LDS_BYTES = L_STAT + 1024
L_SUP = 0; L_SQP = 8192; L_SWD = 16384
L_RED = L_KC
L_RED3 = 0
S_K, S_V, S_Q, S_SK, S_SSM, S_WG, S_WU, S_WD, S_OUT, S_WS, S_DBG = 8, 12, 16, 20, 24, 28, 32, 36, 40, 44, 48
sDP = 52; sD = 54
sPC = 74
sTS = 78
SPIN = 400000
WS = s(S_WS, 4)
MF = "v_mfma_f32_16x16x32_bf16"

def srd(i): return s(i, 4)

def gen(stamp=False):
    A = Asm()
    nst = [0]
    def TSTAMP():
        if stamp:
            A("s_memtime s[80:81]\ns_waitcnt lgkmcnt(0)\ns_sub_u32 s80, s80, s78\nv_writelane_b32 v255, s80, %d" % nst[0]); nst[0] += 1
    A.raw(open('cdna_kernels/%s.s.ref' % NAME).read().split('; @launch grid')[0].rstrip('\n'))
    A.raw("; @launch grid=(256,1,1) block=(256,1,1) lds=%d" % LDS_BYTES)
    A.raw('.amdgcn_target "amdgcn-amd-amdhsa--gfx950"\n.text\n.globl %s_kernel\n.p2align 8\n.type %s_kernel,@function\n%s_kernel:' % (NAME, NAME, NAME))

    def arrive(tag, idx_expr):
        A("s_cmp_lg_u32 s3, 0\ns_cbranch_scc1 L_arr_%s" % tag)
        A(idx_expr)
        A("""
        s_lshl_b32 s55, s55, 8
        v_mov_b32 v250, 0
        v_mov_b32 v251, 1
        s_mov_b64 exec, 1
        buffer_atomic_add v251, v250, %s, s55 offen sc1
        s_mov_b64 exec, -1
        L_arr_%s:
        """ % (WS, tag))
    def poll(tag, base_expr, nlanes, expect, wave0only=True):
        if wave0only: A("s_cmp_lg_u32 s3, 0\ns_cbranch_scc1 L_pd_%s" % tag)
        A(base_expr)
        A("""
        s_lshl_b32 s55, s55, 8
        v_lshlrev_b32 v250, 8, v1
        s_mov_b32 s70, 0
        s_mov_b64 exec, %d
        L_pl_%s:
        buffer_load_dword v251, v250, %s, s55 offen sc1
        s_waitcnt vmcnt(0)
        v_cmp_ne_u32 vcc, %d, v251
        s_add_u32 s70, s70, 1
        s_cmp_gt_u32 s70, %d
        s_cbranch_scc1 L_px_%s
        s_cbranch_vccnz L_pl_%s
        L_px_%s:
        s_mov_b64 exec, -1
        L_pd_%s:
        """ % ((1 << nlanes) - 1, tag, WS, expect, SPIN, tag, tag, tag, tag))

    A("s_cmp_ge_u32 s2, 256\ns_cbranch_scc1 L_end")
    for reg, off in ((S_K, 8), (S_V, 16), (S_Q, 0), (S_SK, 24), (S_WS, 96), (S_DBG, 88), (S_SSM, 32), (S_WD, 72), (sDP, 40), (S_WG, 56), (S_WU, 64), (S_OUT, 80)):
        A("s_load_dwordx2 %s, s[0:1], %d" % (s(reg, 2), off))
    if stamp: A("s_memtime s[78:79]\ns_memrealtime s[82:83]\nv_mov_b32 v255, 0"); nst[0] += 1
    A("s_getpc_b64 %s" % s(sPC, 2))
    A("v_lshlrev_b32 v10, 7, v0")
    A("global_load_dword v11, v10, %s" % s(sPC, 2))
    for reg, nb in ((S_K, 2097152), (S_V, 2097152), (S_Q, 2097152), (S_SK, 4096), (S_WS, WS_BYTES), (S_DBG, 256), (S_SSM, 2097152),
                    (S_WD, 1376 * 1024), (S_WG, 512 * 2752), (S_WU, 512 * 2752), (S_OUT, 2097152)):
        A("s_mov_b32 %s, %d\ns_mov_b32 %s, 0x20000" % (s(reg + 2), nb, s(reg + 3)))
    A("""
    v_lshrrev_b32 v4, 6, v0
    v_and_b32 v1, 63, v0
    v_and_b32 v2, 15, v0
    v_readfirstlane_b32 s3, v4
    v_lshrrev_b32 v3, 4, v0
    v_and_b32 v4, 3, v3
    s_and_b32 s4, s2, 7
    s_lshr_b32 s5, s2, 3
    s_lshl_b32 s55, s5, 16
    s_lshl_b32 s56, s4, 7
    s_add_u32 s55, s55, s56
    v_lshlrev_b32 v5, 12, v3
    v_lshl_add_u32 v5, v2, 3, v5
    v_add_u32 v5, s55, v5
    v_subrev_u32 v6, 0xc00, v5
    v_and_b32 v6, 0x7fffffff, v6
    v_lshrrev_b32 v7, 1, v3
    v_lshlrev_b32 v7, 13, v7
    v_and_b32 v8, 1, v3
    v_lshl_add_u32 v7, v8, 10, v7
    v_lshl_add_u32 v7, v2, 3, v7
    v_add_u32 v7, s55, v7
    s_lshl_b32 s56, s4, 9
    v_lshl_add_u32 v8, v2, 5, s56
    v_lshlrev_b32 v9, 4, v1
    s_lshl_b32 s57, s2, 13
    s_lshl_b32 s58, s3, 11
    s_add_u32 s57, s57, s58
    s_movk_i32 s58, 0x1000
    s_lshl_b32 s66, s4, 5
    s_add_u32 s66, s66, s5
    s_waitcnt lgkmcnt(0)
    """)
    A("""
    s_or_b32 s59, s2, s3
    s_cmp_lg_u32 s59, 0
    s_cbranch_scc1 L_notlead
    v_lshlrev_b32 v12, 8, v1
    v_mov_b32 v13, 0
    buffer_store_dword v13, v12, %s, 0 offen sc0 sc1
    v_mov_b32 v14, 1
    s_waitcnt vmcnt(0)
    buffer_store_dword v14, v13, %s, 0 offen sc0 sc1
    L_notlead:
    """ % (WS, srd(S_DBG)))
    for i in range(3): A("buffer_load_dwordx2 %s, v6, %s, 0 offen offset:%d" % (v(16 + 2 * i, 2), srd(S_K), 1024 * i))
    for j in range(4): A("buffer_load_dwordx2 %s, v5, %s, 0 offen offset:%d" % (v(22 + 2 * j, 2), srd(S_K), 1024 * j))
    A("buffer_load_dwordx4 v[48:51], v8, %s, 0 offen" % srd(S_SK))
    A("buffer_load_dwordx4 v[52:55], v8, %s, 0 offen offset:16" % srd(S_SK))
    for j in range(4): A("buffer_load_dwordx2 %s, v5, %s, 0 offen offset:%d" % (v(30 + 2 * j, 2), srd(S_V), 1024 * j))
    for j in range(4): A("buffer_load_dwordx2 %s, v7, %s, %s offen offset:%d" % (v(38 + 2 * j, 2), srd(S_Q), "s58" if j >= 2 else "0", 2048 * (j & 1)))
    A("buffer_load_dwordx4 v[56:59], v9, %s, s57 offen" % srd(S_Q))
    A("buffer_load_dwordx4 v[60:63], v9, %s, s57 offen offset:1024" % srd(S_Q))
    A("""
    v_lshrrev_b32 v12, 3, v1
    v_lshlrev_b32 v12, 10, v12
    v_and_b32 v13, 7, v1
    v_lshl_add_u32 v12, v13, 4, v12
    s_lshl_b32 s55, s5, 15
    s_lshl_b32 s56, s3, 13
    s_add_u32 s55, s55, s56
    s_lshl_b32 s56, s4, 7
    s_add_u32 s55, s55, s56
    s_lshl_b32 s56, s3, 10
    s_add_u32 m0, s56, %d
    buffer_load_dwordx4 v12, %s, s55 offen lds
    s_add_u32 s55, s55, 0x100000
    s_add_u32 m0, s56, %d
    buffer_load_dwordx4 v12, %s, s55 offen lds
    """ % (L_SWD, srd(S_WD), L_SWD + 4096, srd(S_WD)))
    A("s_lshl_b32 s55, s66, 2\ns_load_dword %s, %s, s55" % (s(sD), s(sDP, 2)))
    A("""
    s_lshr_b32 s55, s3, 1
    s_lshl_b32 s56, s66, 1
    s_add_u32 s56, s56, s55
    s_lshl_b32 s67, s56, 12
    s_and_b32 s55, s3, 1
    s_lshl_b32 s55, s55, 3
    s_add_u32 s56, s67, s55
    s_add_u32 s56, s56, 4
    s_mul_i32 s68, s3, %d
    s_add_u32 s68, s68, %d
    s_add_u32 m0, s68, 512
    """ % (2 * KC_STR, L_KC))
    for i in range(4): A("buffer_load_dwordx4 v9, %s, s56 offen offset:%d lds" % (srd(S_SSM), 1024 * i))
    A("s_add_u32 s56, s56, 4\ns_add_u32 m0, s68, %d" % (512 + KC_STR))
    for i in range(4): A("buffer_load_dwordx4 v9, %s, s56 offen offset:%d lds" % (srd(S_SSM), 1024 * i))
    A("""
    v_and_b32 v12, 31, v1
    v_lshlrev_b32 v12, 4, v12
    v_lshrrev_b32 v13, 5, v1
    v_lshl_add_u32 v14, v13, 2, v12
    s_sub_u32 s55, s55, 508
    v_add_u32 v14, s55, v14
    s_movk_i32 s56, %d
    v_mad_u32_u24 v15, v13, s56, v12
    v_add_u32 v15, s68, v15
    """ % KC_STR)
    for jj in range(4):
        A("v_add_u32 v132, %d, v14\nv_and_b32 v132, 0x7fffffff, v132" % (4 * jj))
        A("buffer_load_dword %s, v132, %s, s67 offen" % (v(136 + jj), srd(S_SSM)))
    A("""
    v_mov_b32 v140, 0
    v_mov_b32 v141, 0
    v_mov_b32 v142, 0
    v_mov_b32 v143, 0
    s_mul_i32 s55, s3, %d
    s_add_u32 s55, s55, %d
    v_add_u32 v132, s55, v9
    ds_write_b128 v132, v[140:143]
    """ % (U_STR, L_U))
    A("""
    v_xor_b32 v132, v3, v2
    v_lshlrev_b32 v132, 4, v132
    v_lshl_add_u32 v132, v2, 9, v132
    v_lshrrev_b32 v133, 1, v3
    v_and_b32 v134, 1, v3
    v_lshl_add_u32 v133, v134, 3, v133
    v_xor_b32 v133, v133, v2
    v_lshlrev_b32 v133, 4, v133
    v_lshl_add_u32 v133, v2, 9, v133
    v_add_u32 v132, %d, v132
    s_mov_b32 s55, 0xffff0000
    """ % L_SQP)
    A("s_waitcnt vmcnt(24)")
    TSTAMP()
    for c in range(4):
        for tap in range(4):
            src = 48 + 2 * c + (tap >> 1); dst = 64 + 4 * tap + c
            A(("v_lshlrev_b32 %s, 16, %s" if tap % 2 == 0 else "v_and_b32 %s, s55, %s") % (v(dst), v(src)))
    for i in range(7):
        for e in range(2):
            src = 16 + 2 * i + e; dst = 80 + 4 * i + 2 * e
            A("v_lshlrev_b32 %s, 16, %s\nv_and_b32 %s, s55, %s" % (v(dst), v(src), v(dst + 1), v(src)))
    for tap in range(4):
        for j in range(4):
            for e in range(2):
                d = v(144 + 4 * j + 2 * e, 2); kk = v(80 + 4 * (j + 3 - tap) + 2 * e, 2); ww = v(64 + 4 * tap + 2 * e, 2)
                if tap == 0: A("v_pk_mul_f32 %s, %s, %s" % (d, kk, ww))
                else: A("v_pk_fma_f32 %s, %s, %s, %s" % (d, kk, ww, d))
    A("s_waitcnt vmcnt(20)")
    for j in range(4):
        for e in range(2):
            src = 30 + 2 * j + e; dst = 108 + 4 * j + 2 * e
            A("v_lshlrev_b32 %s, 16, %s\nv_and_b32 %s, s55, %s" % (v(dst), v(src), v(dst + 1), v(src)))
    for j in range(4):
        for e in range(2):
            d = 144 + 4 * j + 2 * e
            A("v_pk_mul_f32 %s, %s, %s" % (v(d, 2), v(d, 2), v(108 + 4 * j + 2 * e, 2)))
    for j in range(4):
        for e in range(2):
            d = 144 + 4 * j + 2 * e
            A("v_cvt_pk_bf16_f32 %s, %s, %s" % (v(124 + 4 * e + j), v(d), v(d + 1)))
    A("ds_write_b128 v133, v[124:127]\nds_write_b128 v133, v[128:131] offset:256")
    A("s_waitcnt vmcnt(16)")
    for e in range(2):
        A("ds_write2_b32 v132, %s, %s offset0:%d offset1:%d" % (v(38 + e), v(40 + e), 64 * e, 64 * e + 1))
        A("ds_write2_b32 v132, %s, %s offset0:%d offset1:%d" % (v(42 + e), v(44 + e), 64 * e + 2, 64 * e + 3))
    A("v_mov_b32 v64, 0x3f803f80")
    for r in range(65, 69): A("v_mov_b32 %s, 0" % v(r))
    A("s_waitcnt vmcnt(14)")
    for i in range(4):
        for e in range(2):
            A("v_dot2c_f32_bf16 %s, %s, v64" % (v(65 + e), v(56 + 4 * e + i)))
            A("v_dot2c_f32_bf16 %s, %s, %s" % (v(67 + e), v(56 + 4 * e + i), v(56 + 4 * e + i)))
    for m in ("row_shr:1", "row_shr:2", "row_shr:4", "row_shr:8", "row_bcast:15 row_mask:0xa", "row_bcast:31 row_mask:0xc"):
        for r in range(65, 69):
            A("v_add_f32_dpp %s, %s, %s %s" % (v(r), v(r), v(r), m))
    A("s_mov_b32 s56, 0x3b000000\ns_mov_b32 s57, 0x3727c5ac")
    for e in range(2):
        A("v_mul_f32 %s, s56, %s" % (v(65 + e), v(65 + e)))
        A("v_mul_f32 %s, s56, %s" % (v(67 + e), v(67 + e)))
    for e in range(2): A("v_fma_f32 %s, -%s, %s, %s" % (v(67 + e), v(65 + e), v(65 + e), v(67 + e)))
    for e in range(2): A("v_max_f32 %s, 0, %s" % (v(67 + e), v(67 + e)))
    for e in range(2): A("v_add_f32 %s, s57, %s" % (v(67 + e), v(67 + e)))
    for e in range(2): A("v_rsq_f32 %s, %s" % (v(67 + e), v(67 + e)))
    for e in range(2): A("v_mul_f32_e64 %s, -%s, %s" % (v(65 + e), v(65 + e), v(67 + e)))
    A("""
    s_lshl_b32 s56, s3, 2
    s_add_u32 s56, s56, %d
    v_mov_b32 v69, s56
    s_mov_b32 exec_lo, 0
    s_mov_b32 exec_hi, 0x80000000
    ds_write2_b32 v69, v67, v68 offset0:0 offset1:4
    ds_write2_b32 v69, v65, v66 offset0:8 offset1:12
    s_mov_b64 exec, -1
    """ % L_STAT)
    A("""
    v_lshrrev_b32 v132, 1, v3
    v_xor_b32 v132, v132, v2
    v_lshlrev_b32 v132, 4, v132
    v_lshl_add_u32 v132, v3, 8, v132
    v_xor_b32 v133, 0x80, v132
    v_lshrrev_b32 v134, 3, v2
    v_lshlrev_b32 v134, 12, v134
    v_and_b32 v135, 7, v2
    v_lshl_add_u32 v134, v135, 4, v134
    v_lshl_add_u32 v134, v3, 13, v134
    v_lshlrev_b32 v135, 4, v2
    v_lshl_add_u32 v135, v3, 13, v135
    s_lshl_b32 s55, s4, 18
    s_lshl_b32 s56, s5, 7
    s_add_u32 s56, s56, s55
    s_add_u32 s56, s56, %d
    s_lshl_b32 s57, s5, 8
    s_add_u32 s57, s57, s55
    s_add_u32 s57, s57, %d
    s_add_u32 s58, s56, 0x20000
    s_add_u32 s59, s57, 0x20000
    v_lshrrev_b32 v12, 2, v1
    v_lshlrev_b32 v12, 7, v12
    v_and_b32 v13, 3, v1
    v_lshl_add_u32 v12, v13, 4, v12
    s_lshr_b32 s55, s3, 1
    s_lshl_b32 s55, s55, 6
    s_and_b32 s69, s3, 1
    s_lshl_b32 s69, s69, 3
    s_add_u32 s55, s55, s69
    v_add_u32 v12, s55, v12
    s_mul_i32 s69, s4, 44
    s_add_u32 s69, s69, s5
    s_lshl_b32 s69, s69, 2
    s_add_u32 s69, s69, s3
    s_lshl_b32 s69, s69, 10
    s_add_u32 s69, s69, %d
    v_add_u32 v13, %d, v9
    s_waitcnt vmcnt(0)
    ds_write_b128 v15, v[136:139]
    s_waitcnt lgkmcnt(0)
    s_barrier
    """ % (UP, QP, WDF, L_STAT))
    TSTAMP()
    A("""
    ds_read_b128 v[16:19], v132 offset:%d
    ds_read_b128 v[20:23], v133 offset:%d
    ds_read_b128 v[24:27], v132 offset:%d
    ds_read_b128 v[28:31], v133 offset:%d
    ds_read_b64_tr_b16 v[32:33], v12 offset:%d
    ds_read_b64_tr_b16 v[34:35], v12 offset:%d
    ds_read_b64_tr_b16 v[36:37], v12 offset:%d
    ds_read_b64_tr_b16 v[38:39], v12 offset:%d
    ds_read_b128 v[40:43], v13
    """ % (L_SUP, L_SUP + 4096, L_SQP, L_SQP + 4096, L_SWD, L_SWD + 2048, L_SWD + 4096, L_SWD + 6144))
    A("""
    s_waitcnt lgkmcnt(8)
    buffer_store_dwordx4 v[16:19], v134, WS, s56 offen sc0 sc1
    s_waitcnt lgkmcnt(7)
    buffer_store_dwordx4 v[20:23], v134, WS, s58 offen sc0 sc1
    s_waitcnt lgkmcnt(6)
    buffer_store_dwordx4 v[24:27], v135, WS, s57 offen sc0 sc1
    s_waitcnt lgkmcnt(5)
    buffer_store_dwordx4 v[28:31], v135, WS, s59 offen sc0 sc1
    s_waitcnt lgkmcnt(3)
    buffer_store_dwordx4 v[32:35], v9, WS, s69 offen sc0 sc1
    s_waitcnt lgkmcnt(0)
    s_cmp_ge_u32 s5, 12
    s_cbranch_scc1 L_nowd2
    s_add_u32 s69, s69, 0x20000
    buffer_store_dwordx4 v[36:39], v9, WS, s69 offen sc0 sc1
    L_nowd2:
    s_cmp_lg_u32 s3, 0
    s_cbranch_scc1 L_nostat
    s_lshl_b32 s55, s2, 6
    s_add_u32 s55, s55, %d
    s_mov_b64 exec, 15
    buffer_store_dwordx4 v[40:43], v9, WS, s55 offen sc0 sc1
    s_mov_b64 exec, -1
    v_mov_b32 v250, 0
    s_mov_b32 s70, 0
    L_rdy:
    buffer_load_dword v251, v250, %s, 0 offen sc0 sc1
    s_waitcnt vmcnt(0)
    v_readfirstlane_b32 s55, v251
    s_add_u32 s70, s70, 1
    s_cmp_gt_u32 s70, %d
    s_cbranch_scc1 L_nostat
    s_cmp_eq_u32 s55, 0
    s_cbranch_scc1 L_rdy
    L_nostat:
    s_waitcnt vmcnt(0)
    s_barrier
    """.replace("WS", WS) % (ST, srd(S_DBG), SPIN))
    TSTAMP()
    arrive("1", "s_mov_b32 s55, s4")
    A("""
    v_and_b32 v12, 3, v2
    s_movk_i32 s55, %d
    v_mul_lo_u32 v12, v12, s55
    v_lshrrev_b32 v13, 2, v2
    v_lshl_add_u32 v12, v13, 7, v12
    v_lshl_add_u32 v12, v4, 4, v12
    s_lshr_b32 s56, s3, 1
    s_mul_i32 s56, s56, %d
    s_and_b32 s57, s3, 1
    s_lshl_b32 s57, s57, 8
    s_add_u32 s56, s56, s57
    s_add_u32 s56, s56, %d
    v_add_u32 v12, s56, v12
    """ % (KC_STR, 4 * KC_STR, L_KC + 7 * 16))
    n = 0
    for ph in range(4):
        for g in range(8):
            A("ds_read_b128 %s, v12 offset:%d" % (a(128 + 32 * ph + 4 * g, 4), 512 * g + 64 * ph))
            n += 1
            if n % 8 == 0: A("s_waitcnt lgkmcnt(4)")
    A("""
    s_and_b32 s55, s54, 0xffff
    s_lshr_b32 s56, s54, 16
    v_mov_b32 v14, s55
    v_mov_b32 v15, s56
    v_lshl_add_u32 v13, v4, 2, 3
    v_sub_u32 v13, v13, v2
    """)
    for jj in range(4):
        A("v_cmp_eq_u32 vcc, %d, v13" % jj)
        A("v_cndmask_b32 %s, 0, v14, vcc\nv_cndmask_b32 %s, 0, v15, vcc" % (v(184 + jj), v(188 + jj)))
    A("""
    v_and_b32 v5, 1, v2
    s_movk_i32 s55, %d
    v_mul_lo_u32 v5, v5, s55
    v_lshrrev_b32 v14, 1, v2
    v_lshl_add_u32 v5, v14, 4, v5
    v_lshl_add_u32 v6, v4, 7, v5
    v_lshlrev_b32 v14, 4, v4
    v_sub_u32 v5, v5, v14
    s_lshr_b32 s56, s3, 1
    s_mul_i32 s56, s56, %d
    s_and_b32 s57, s3, 1
    s_lshl_b32 s57, s57, 8
    s_sub_u32 s56, s56, s57
    s_add_u32 s56, s56, %d
    v_add_u32 v5, s56, v5
    s_lshl_b32 s56, s3, 10
    s_add_u32 s56, s56, %d
    v_add_u32 v6, s56, v6
    v_lshlrev_b32 v8, 4, v0
    v_add_u32 v7, %d, v8
    v_lshrrev_b32 v10, 1, v1
    v_lshlrev_b32 v10, 6, v10
    v_and_b32 v14, 1, v1
    v_lshl_add_u32 v10, v14, 4, v10
    s_lshl_b32 s56, s3, 13
    s_add_u32 s56, s56, %d
    v_add_u32 v11, s56, v9
    s_lshl_b32 s56, s3, 11
    s_add_u32 s56, s56, %d
    v_add_u32 v12, s56, v9
    v_lshlrev_b32 v13, 4, v2
    v_lshl_add_u32 v13, v4, 12, v13
    v_cmp_eq_u32 s[62:63], 0, v0
    s_mov_b32 s64, 0x05040100
    s_mov_b32 s65, 0x07060302
    s_lshl_b32 s67, s66, 13
    s_add_u32 s68, s67, %d
    s_add_u32 s67, s67, %d
    s_add_u32 s69, s67, 0x1000
    s_lshl_b32 s56, s3, 11
    s_add_u32 s68, s68, s56
    s_lshl_b32 s71, s3, 12
    s_add_u32 s71, s71, %d
    """ % (U_STR, 2 * U_STR, L_U + 20 * 16, L_U + 8 * 16, L_U + 8 * 16, L_RED, L_RED, QP, UP, ST))
    A("s_movk_i32 s55, 0x2aab\ns_movk_i32 s56, 2752")
    for i3 in range(3):
        A("""
        v_add_u32 v14, %d, v1
        v_mul_u32_u24 v15, s55, v14
        v_lshrrev_b32 v15, 16, v15
        v_mul_u32_u24 v243, 6, v15
        v_sub_u32 v14, v14, v243
        v_bfe_u32 v243, v15, 2, 2
        v_lshlrev_b32 v243, 3, v243
        v_lshrrev_b32 v244, 4, v15
        v_lshl_add_u32 v243, v244, 2, v243
        v_and_b32 v15, 3, v15
        v_add_u32 v243, v243, v15
        v_mul_u32_u24 v243, s56, v243
        v_lshl_add_u32 %s, v14, 4, v243
        """ % (64 * i3, v(240 + i3)))
    A("""
    s_lshr_b32 s55, s66, 4
    s_lshl_b32 s72, s55, 14
    s_and_b32 s55, s66, 3
    s_lshl_b32 s55, s55, 10
    s_add_u32 s72, s72, s55
    s_bfe_u32 s55, s66, 0x20002
    s_lshl_b32 s55, s55, 8
    s_add_u32 s72, s72, s55
    s_lshl_b32 s55, s3, 19
    s_add_u32 s72, s72, s55
    s_add_u32 s72, s72, %d
    s_waitcnt lgkmcnt(0)
    """ % HP)
    poll("1", "s_mov_b32 s55, s4", 1, 32)
    A("s_barrier")
    TSTAMP()
    A("""
    buffer_load_dwordx4 v[16:19], v8, WS, s67 offen sc1
    buffer_load_dwordx4 v[20:23], v8, WS, s69 offen sc1
    buffer_load_dword v24, v8, WS, s67 offen offset:4092 sc1
    buffer_load_dwordx4 v[44:47], v9, WS, s68 offen sc1
    buffer_load_dwordx4 v[48:51], v9, WS, s68 offen offset:1024 sc1
    s_waitcnt vmcnt(2)
    v_cndmask_b32 v24, v24, 0, s[62:63]
    """.replace("WS", WS))
    Wd_ = lambda i: v(24) if i < 0 else v(16 + i)
    for c in range(2):
        for pi in range(2):
            for jj in range(4):
                lo = 6 + pi - 2 * jj; hi = lo - 1
                A("v_perm_b32 %s, %s, %s, %s" % (v(28 + 4 * (2 * c + pi) + jj), Wd_(hi), Wd_(lo), "s64" if c == 0 else "s65"))
            A("ds_write_b128 v7, %s offset:%d" % (v(28 + 4 * (2 * c + pi), 4), (2 * c + pi) * U_STR))
    poll("1b", "s_mov_b32 s55, 0", 8, 32, wave0only=False)
    for e in range(2):
        A("buffer_load_dwordx4 %s, v10, %s, s71 offen offset:%d sc1" % (v(52 + 4 * e, 4), WS, 2048 * e))
        A("buffer_load_dwordx4 %s, v10, %s, s71 offen offset:%d sc1" % (v(60 + 4 * e, 4), WS, 2048 * e + 32))
    A("s_waitcnt lgkmcnt(0)\ns_barrier")
    TSTAMP()
    BF = lambda buf, ct: v(72 + 32 * buf + 4 * ct, 4)
    ACC = lambda t: v(136 + 4 * t, 4)
    KF = lambda ph, g: a(128 + 32 * ph + 4 * g, 4)
    def bread(ph, ct): A("ds_read_b128 %s, v5 offset:%d" % (BF(ph & 1, ct), 512 * ct + 64 * (3 - ph)))
    for ct in range(8): bread(0, ct)
    for e in range(2):
        for c in range(2):
            A("ds_read_b128 %s, v6 offset:%d" % (v(192 + 8 * e + 4 * c, 4), 2 * c * U_STR + 512 * e))
    dma = []
    for gi in range(4):
        for arr in range(2):
            for i3 in range(3):
                dma.append((gi, arr, i3))
    A("s_mul_i32 s73, s5, 88\ns_mul_i32 s76, s3, 12288")
    def w1dma(item):
        gi, arr, i3 = item
        if arr == 0 and i3 == 0:
            A("""
            s_lshl_b32 s55, s3, 2
            s_add_u32 s55, s55, s5
            s_add_u32 s55, s55, %d
            s_and_b32 s55, s55, 15
            s_mul_i32 s77, s55, 88064
            s_add_u32 s77, s77, s73
            """ % gi)
        A("s_add_u32 m0, s76, %d" % (arr * L_WU + gi * 3072 + i3 * 1024))
        A("buffer_load_dwordx4 %s, %s, s77 offen lds" % (v(240 + i3), srd(S_WU if arr else S_WG)))
    touched = set()
    for ph in range(4):
        if ph < 3: order = [(g, ct) for ct in range(8) for g in range(8 - ct)]
        else: order = [(t - ct, ct) for t in range(8) for ct in range(t + 1)]
        extra = []
        if ph < 3: extra += [("b", ct) for ct in range(8)]
        seen = set(); k = 0
        for idx, (g, ct) in enumerate(order):
            if ph == 0 and ct not in seen:
                A("s_waitcnt lgkmcnt(%d)" % min(15, (11 - ct) + k)); seen.add(ct)
            if ph > 0 and idx == 0: A("s_waitcnt lgkmcnt(0)")
            t = g + ct
            A("%s %s, %s, %s, %s" % (MF, ACC(t), KF(ph, g), BF(ph & 1, ct), ACC(t) if t in touched else "0"))
            touched.add(t)
            if ph == 0 and idx == 20:
                pass
            if ph < 3 and idx >= (36 - 8 - 4) and idx < 36 - 4 and ph > 0: bread(ph + 1, idx - 24)
            if ph < 3 and idx % 4 == 1 and dma and idx < 33: w1dma(dma.pop(0))
            if ph == 3:
                if ct == 0 and t >= 2: A("ds_write_b128 v11, %s offset:%d" % (ACC(t - 2), 1024 * (t - 2)))
        if ph == 0:
            A("s_waitcnt lgkmcnt(0)")
            for ct in range(8): bread(1, ct)
            for e in range(2):
                for c in range(2):
                    A("%s %s, %s, %s, 0" % (MF, v(168 + 8 * e + 4 * c, 4), v(184 + 4 * c, 4), v(192 + 8 * e + 4 * c, 4)))
        if ph == 1:
            A("s_waitcnt vmcnt(%d)" % (24 - len(dma)))
            A("s_mov_b32 s55, 0xffff0000")
            for e in range(2):
                for j in range(4):
                    A("v_lshlrev_b32 %s, 16, %s" % (v(208 + 8 * e + j), v(44 + 4 * e + j)))
                    A("v_and_b32 %s, s55, %s" % (v(212 + 8 * e + j), v(44 + 4 * e + j)))
            for e in range(2):
                for c in range(2):
                    for j in (0, 2):
                        A("v_pk_fma_f32 %s, %s, %s, %s" % (v(224 + 8 * e + 4 * c + j, 2), v(208 + 8 * e + 4 * c + j, 2), v(52 + 4 * e + j, 2), v(60 + 4 * e + j, 2)))
    assert not dma
    A("ds_write_b128 v11, %s offset:%d" % (ACC(6), 1024 * 6))
    A("ds_write_b128 v11, %s offset:%d" % (ACC(7), 1024 * 7))
    A("s_waitcnt lgkmcnt(0)\ns_barrier")
    TSTAMP()
    for e in range(2):
        for src in range(4):
            A("ds_read_b128 %s, v12 offset:%d" % (v(72 + 16 * e + 4 * src, 4), 8192 * src + 1024 * e))
    for e in range(2):
        for c in range(2):
            A("s_waitcnt lgkmcnt(%d)" % (6 - 4 * e - 2 * c))
            for j in (0, 2):
                d = v(168 + 8 * e + 4 * c + j, 2)
                A("v_pk_add_f32 %s, %s, %s" % (d, d, v(72 + 16 * e + 8 * c + j, 2)))
            for j in (0, 2):
                d = v(168 + 8 * e + 4 * c + j, 2)
                A("v_pk_add_f32 %s, %s, %s" % (d, d, v(76 + 16 * e + 8 * c + j, 2)))
            for j in (0, 2):
                d = v(168 + 8 * e + 4 * c + j, 2)
                A("v_pk_fma_f32 %s, %s, %s, %s" % (d, d, v(224 + 8 * e + 4 * c + j, 2), v(208 + 8 * e + 4 * c + j, 2)))
        for j in range(4):
            A("v_cvt_pk_bf16_f32 %s, %s, %s" % (v(16 + 4 * e + j), v(168 + 8 * e + j), v(172 + 8 * e + j)))
        if e == 1: A("s_add_u32 s72, s72, 0x40000")
        A("buffer_store_dwordx4 %s, v13, %s, s72 offen sc0 sc1" % (v(16 + 4 * e, 4), WS))
    A("""
    s_mul_i32 s55, s3, 12288
    s_add_u32 s55, s55, 88
    s_movk_i32 s56, 96
    v_mul_lo_u32 v14, v1, s56
    v_add_u32 v14, s55, v14
    v_mov_b32 v24, 0x3f803f80
    v_mov_b32 v25, 0x3f803f80
    v_mov_b32 v26, 0x3f803f80
    v_mov_b32 v27, 0x3f803f80
    s_waitcnt vmcnt(0)
    ds_write_b64 v14, v[24:25]
    ds_write_b64 v14, v[24:25] offset:6144
    s_waitcnt lgkmcnt(0)
    s_barrier
    """)
    TSTAMP()
    arrive("2", "s_and_b32 s55, s2, 15\ns_add_u32 s55, s55, 8")
    A("""
    v_lshrrev_b32 v5, 2, v1
    v_mul_u32_u24 v5, 96, v5
    v_and_b32 v14, 3, v1
    v_lshl_add_u32 v5, v14, 3, v5
    v_add_u32 v6, %d, v5
    """ % L_WU)
    A("""
    s_lshl_b32 s55, s3, 5
    s_cmp_eq_u32 s3, 3
    s_cselect_b32 s55, %d, s55
    v_add_u32 v14, s55, v5
    s_and_b32 s56, s3, 1
    s_lshl_b32 s56, s56, 5
    s_add_u32 s56, s56, 32
    v_add_u32 v15, s56, v6
    """ % L_WU)
    for st in range(16):
        b = 32 + 8 * (st & 3)
        for h in range(2):
            A("ds_read_b64_tr_b16 %s, v14 offset:%d" % (v(b + 2 * h, 2), st * 3072 + h * 1536))
        for h in range(2):
            A("ds_read_b64_tr_b16 %s, v15 offset:%d" % (v(b + 4 + 2 * h, 2), st * 3072 + h * 1536))
        if st >= 2:
            pb = 32 + 8 * ((st - 2) & 3)
            A("s_waitcnt lgkmcnt(8)")
            A("%s v[64:67], v[24:27], %s, %s" % (MF, v(pb, 4), "v[64:67]" if st > 2 else "0"))
            A("%s v[68:71], v[24:27], %s, %s" % (MF, v(pb + 4, 4), "v[68:71]" if st > 2 else "0"))
    for st in (14, 15):
        pb = 32 + 8 * (st & 3)
        A("s_waitcnt lgkmcnt(%d)" % (4 if st == 14 else 0))
        A("%s v[64:67], v[24:27], %s, v[64:67]" % (MF, v(pb, 4)))
        A("%s v[68:71], v[24:27], %s, v[68:71]" % (MF, v(pb + 4, 4)))
    A("""
    s_lshl_b32 s55, s3, 6
    s_add_u32 s55, s55, %d
    v_lshl_add_u32 v14, v2, 2, s55
    s_and_b32 s56, s3, 1
    s_lshl_b32 s56, s56, 6
    s_add_u32 s56, s56, %d
    v_lshl_add_u32 v15, v2, 2, s56
    ds_write_b32 v14, v64
    ds_write_b32 v15, v68
    """ % (L_CS, L_CS + 256))
    A("""
    s_and_b32 s55, s3, 1
    s_lshl_b32 s55, s55, 11
    v_add_u32 v15, s55, v9
    v_xor_b32 v14, 0x800, v15
    s_and_b32 s55, s5, 7
    s_mul_i32 s55, s55, 44
    s_mul_i32 s56, s3, 11
    s_add_u32 s55, s55, s56
    s_lshl_b32 s55, s55, 12
    s_add_u32 s56, s55, %d
    """ % WDF)
    for i in range(11):
        for tm in range(4):
            A("buffer_load_dwordx4 %s, %s, %s, s56 offen offset:%d sc1" % (a(16 * i + 4 * tm, 4), "v14" if tm < 2 else "v15", WS, 1024 * (tm & 1)))
        if i < 10: A("s_add_u32 s56, s56, 0x1000")
    A("""
    s_lshl_b32 s55, s3, 12
    v_add_u32 v7, s55, v9
    s_lshl_b32 s67, s4, 18
    s_add_u32 s67, s67, %d
    s_waitcnt lgkmcnt(0)
    """ % HP)
    poll("2", "s_mov_b32 s55, 8", 16, 16)
    A("s_barrier")
    TSTAMP()
    XS = lambda st: 16 + 16 * (st & 3)
    AC = lambda arr, ft, tau: v(80 + 48 * arr + 16 * ft + 4 * tau, 4)
    WF = lambda st, arr, ft: 176 + 24 * (st & 1) + 12 * arr + 4 * ft
    def xload(st):
        A("s_add_u32 s55, s5, %d\ns_and_b32 s55, s55, 15\ns_lshl_b32 s55, s55, 14\ns_add_u32 s55, s55, s67" % st)
        for j in range(4):
            A("buffer_load_dwordx4 %s, v7, %s, s55 offen offset:%d sc1" % (v(XS(st) + 4 * j, 4), WS, 1024 * j))
    def wreads(st):
        r = []
        for arr in range(2):
            for ft in range(3):
                for h in range(2):
                    r.append("ds_read_b64_tr_b16 %s, %s offset:%d" % (a(WF(st, arr, ft) + 2 * h, 2), "v6" if arr else "v5", st * 3072 + h * 1536 + ft * 32))
        return r
    def swaps(st):
        b = XS(st)
        return ["v_swap_b32 %s, %s" % (v(b + 4 * j + t), v(b + 4 * t + j)) for j in range(4) for t in range(j + 1, 4)]
    for st in range(3): xload(st)
    for r in wreads(0): A(r)
    A("s_waitcnt vmcnt(8)")
    for r in swaps(0): A(r)
    A("s_cmp_eq_u32 s5, 31\ns_cbranch_scc1 L_p2alt")
    def p2loop(alt):
        for st in range(16):
            ml = []
            for arr in range(2):
                for ft in range(3):
                    for tau in range(4):
                        xf = v(XS(st) + 4 * tau, 4)
                        wf = a(WF(st, arr, ft), 4)
                        if alt and arr == 1 and ft == 2: wf = xf
                        ml.append("%s %s, %s, %s, %s" % (MF, AC(arr, ft, tau), wf, xf, AC(arr, ft, tau) if st else "0"))
            wr = wreads(st + 1) if st < 15 else []
            if st == 15:
                wr = ["ds_read_b128 %s, v8 offset:%d" % (v(176 + 4 * t, 4), 64 * t) for t in range(6)]
            sw = swaps(st + 1) if st < 15 else []
            A("s_waitcnt lgkmcnt(0)")
            for i, m in enumerate(ml):
                A(m)
                if i == 0 and st + 3 < 16: xload(st + 3)
                if 1 <= i <= 12 and wr: A(wr.pop(0))
                if i == 13 and sw:
                    A("s_waitcnt vmcnt(%d)" % (4 * min(2, 14 - st)))
                if i >= 14 and sw: A(sw.pop(0))
    def p2pre(): A("v_lshlrev_b32 v8, 4, v4\nv_add_u32 v8, %d, v8" % L_CS)
    p2pre(); p2loop(False)
    A("s_branch L_p2join")
    A.label("L_p2alt")
    p2pre(); p2loop(True)
    A.label("L_p2join")
    TSTAMP()
    A("""
    v_lshlrev_b32 v10, 2, v2
    v_add_u32 v10, 0xc0, v10
    s_nop 7
    """)
    for tau in range(4):
        A("ds_bpermute_b32 %s, v10, %s" % (v(200 + 2 * tau), v(80 + 32 + 4 * tau)))
    A("""
    s_lshl_b32 s55, s4, 2
    s_add_u32 s55, s55, s3
    s_mul_i32 s55, s55, %d
    s_mul_i32 s56, s5, 2816
    s_add_u32 s55, s55, s56
    s_add_u32 s68, s55, %d
    s_add_u32 s69, s68, %d
    s_mov_b32 s57, 0xbb000000
    v_mov_b32 v11, 0x40000000
    v_cmp_eq_u32 vcc, 3, v4
    v_cndmask_b32 v12, v9, v11, vcc
    s_cmp_eq_u32 s5, 31
    s_cselect_b64 vcc, -1, 0
    v_cndmask_b32 v13, v9, v12, vcc
    v_cndmask_b32 v14, v9, v11, vcc
    v_cndmask_b32 v15, v12, v11, vcc
    s_waitcnt lgkmcnt(0)
    """ % (2 * HG, HH, HG))
    for tau in range(4): A("v_mul_f32 %s, s57, %s" % (v(200 + 2 * tau), v(200 + 2 * tau)))
    A("s_cmp_lg_u32 s5, 31\ns_cbranch_scc1 L_novar")
    A("v_and_b32 v10, 3, v2")
    for tau in range(4):
        b = 80 + 48 + 32 + 4 * tau
        A("v_mov_b32 %s, %s" % (v(208 + tau), v(b)))
    for j in range(1, 4):
        A("v_cmp_eq_u32 vcc, %d, v10" % j)
        for tau in range(4):
            A("v_cndmask_b32 %s, %s, %s, vcc" % (v(208 + tau), v(208 + tau), v(80 + 48 + 32 + 4 * tau + j)))
    A("s_mov_b32 s56, 0x3b000000\ns_mov_b32 s57, 0x3727c5ac")
    for tau in range(4): A("v_mul_f32 %s, s56, %s" % (v(208 + tau), v(208 + tau)))
    for tau in range(4): A("v_fma_f32 %s, -%s, %s, %s" % (v(208 + tau), v(200 + 2 * tau), v(200 + 2 * tau), v(208 + tau)))
    for tau in range(4): A("v_max_f32 %s, 0, %s" % (v(208 + tau), v(208 + tau)))
    for tau in range(4): A("v_add_f32 %s, s57, %s" % (v(208 + tau), v(208 + tau)))
    for tau in range(4): A("v_rcp_f32 %s, %s" % (v(208 + tau), v(208 + tau)))
    A("""
    v_lshrrev_b32 v10, 2, v2
    v_lshlrev_b32 v212, 4, v2
    v_cmp_eq_u32 vcc, v10, v4
    v_cndmask_b32 v212, v11, v212, vcc
    s_lshl_b32 s55, s4, 10
    s_lshl_b32 s56, s3, 8
    s_add_u32 s55, s55, s56
    s_add_u32 s55, s55, %d
    buffer_store_dwordx4 v[208:211], v212, %s, s55 offen sc0 sc1
    L_novar:
    """ % (R2, WS))
    for ft in range(3):
        for g in range(2):
            o = 16 + 8 * ft + 4 * g
            for e in range(2):
                tau = 2 * g + e
                gb = 80 + 16 * ft + 4 * tau; ub = gb + 48
                M = v(200 + 2 * tau, 2)
                for j in (0, 2):
                    A("v_pk_fma_f32 %s, %s, %s, %s op_sel_hi:[1,0,1]" % (v(gb + j, 2), v(176 + 4 * ft + j, 2), M, v(gb + j, 2)))
                    A("v_pk_fma_f32 %s, %s, %s, %s op_sel_hi:[1,0,1]" % (v(ub + j, 2), v(188 + 4 * ft + j, 2), M, v(ub + j, 2)))
                for j in range(4): A("v_max_f32 %s, 0, %s" % (v(gb + j), v(gb + j)))
                for j in (0, 2): A("v_pk_mul_f32 %s, %s, %s" % (v(gb + j, 2), v(gb + j, 2), v(ub + j, 2)))
                for j in (0, 2): A("v_cvt_pk_bf16_f32 %s, %s, %s" % (v(o + 2 * e + j // 2), v(gb + j), v(gb + j + 1)))
            A("buffer_store_dwordx4 %s, %s, %s, %s offen offset:%d sc0 sc1" % (v(o, 4), v(13 + ft), WS, "s69" if g else "s68", 1024 * ft))
    A("s_waitcnt vmcnt(0)\ns_barrier")
    TSTAMP()
    arrive("3", "s_add_u32 s55, s4, 24")
    A("""
    s_lshr_b32 s71, s5, 3
    s_and_b32 s72, s5, 7
    s_and_b32 s73, s3, 1
    s_lshr_b32 s76, s3, 1
    s_lshl_b32 s55, s72, 1
    s_add_u32 s55, s55, s73
    s_lshl_b32 s55, s55, 14
    s_lshl_b32 s56, s71, 12
    s_add_u32 s55, s55, s56
    s_lshl_b32 s56, s76, 3
    s_add_u32 s55, s55, s56
    s_add_u32 s55, s55, s67
    """)
    for j in range(4):
        A("buffer_load_dwordx2 %s, v9, %s, s55 offen offset:%d sc1" % (v(200 + 2 * j, 2), WS, 1024 * j))
    A("""
    s_lshl_b32 s55, s4, 2
    s_add_u32 s55, s55, s71
    s_lshl_b32 s56, s55, 1
    s_add_u32 s57, s56, s76
    s_xor_b32 s56, s57, 1
    s_mul_i32 s68, s56, %d
    s_mul_i32 s69, s57, %d
    s_mul_i32 s56, s3, 22528
    s_add_u32 s56, s56, %d
    s_add_u32 s68, s68, s56
    s_add_u32 s69, s69, s56
    s_lshl_b32 s77, s55, 16
    s_lshl_b32 s56, s76, 12
    s_add_u32 s77, s77, s56
    s_lshl_b32 s56, s72, 7
    s_add_u32 s77, s77, s56
    s_lshl_b32 s56, s73, 6
    s_add_u32 s77, s77, s56
    v_lshrrev_b32 v5, 1, v2
    v_lshlrev_b32 v5, 13, v5
    v_and_b32 v14, 1, v2
    v_lshl_add_u32 v5, v14, 10, v5
    v_lshl_add_u32 v5, v4, 4, v5
    s_lshl_b32 s67, s55, 8
    s_lshl_b32 s56, s76, 3
    s_add_u32 s67, s67, s56
    s_add_u32 s67, s67, %d
    v_lshlrev_b32 v11, 4, v2
    s_mul_i32 s56, s3, 12288
    v_add_u32 v10, s56, v9
    s_cmp_eq_u32 s3, 3
    s_cselect_b32 s72, 0, 0x800
    """ % (HG, HG, HH, R2))
    for k in (1, 2, 3):
        A("s_xor_b32 s56, s3, %d\ns_mul_i32 s56, s56, 12288\ns_add_u32 s56, s56, %d\nv_add_u32 %s, s56, v9" % (k, L_RED3 + (k - 1) * 4096, v(5 + k)))
    poll("3", "s_add_u32 s55, s4, 24", 1, 32)
    A("s_barrier")
    TSTAMP()
    NR = 6
    HF = lambda q: 16 + 8 * (q % NR)
    def acc3(grp, tm, e):
        if grp == 1 and tm >= 2: return v(80 + 8 * (tm - 2) + 4 * e, 4)
        piece = {(0, 0): 2, (0, 1): 1, (1, 0): 0}[(grp, tm >> 1)]
        return a(176 + 16 * piece + 8 * (tm & 1) + 4 * e, 4)
    def hload(q):
        grp, i = divmod(q, 11)
        sr = "s68" if grp == 0 else "s69"
        for aa in range(2):
            A("buffer_load_dwordx4 %s, v9, %s, %s offen offset:%d sc1" % (v(HF(q) + 4 * aa, 4), WS, sr, 1024 * aa))
        if i < 9: A("s_add_u32 %s, %s, 0x800" % (sr, sr))
        elif i == 9: A("s_add_u32 %s, %s, s72" % (sr, sr))
    A("buffer_load_dwordx2 v[208:209], v11, %s, s67 offen sc1" % WS)
    PF = NR - 1
    for q in range(PF): hload(q)
    for q in range(22):
        grp, i = divmod(q, 11)
        rem = min(PF - 1, 21 - q)
        A("s_waitcnt vmcnt(%d)" % (2 * rem))
        b = HF(q)
        A("v_swap_b32 %s, %s\nv_swap_b32 %s, %s" % (v(b + 2), v(b + 4), v(b + 3), v(b + 5)))
        if q + PF < 22: hload(q + PF)
        for tm in range(4):
            for e in range(2):
                A("%s %s, %s, %s, %s" % (MF, acc3(grp, tm, e), a(16 * i + 4 * tm, 4), v(b + 4 * e, 4), acc3(grp, tm, e) if i else "0"))
            if q in (12, 13):
                piece = 2 if q == 12 else 1
                A("ds_write_b128 %s, %s offset:%d" % (v(6 + piece), a(176 + 16 * piece + 4 * tm, 4), 1024 * tm))
        if q == 14:
            A("s_mov_b32 s55, 0xffff0000")
            for j in range(4):
                for e in range(2):
                    A("v_lshlrev_b32 %s, 16, %s\nv_and_b32 %s, s55, %s" % (v(96 + 8 * e + 2 * j), v(200 + 2 * j + e), v(97 + 8 * e + 2 * j), v(200 + 2 * j + e)))
    for t in range(4):
        A("ds_write_b128 v6, %s offset:%d" % (a(176 + 4 * t, 4), 1024 * t))
    A("s_waitcnt lgkmcnt(0)\ns_barrier")
    TSTAMP()
    for sl in range(3):
        for t in range(4):
            A("ds_read_b128 %s, v10 offset:%d" % (v(112 + 16 * sl + 4 * t, 4), L_RED3 + 4096 * sl + 1024 * t))
    for sl in range(3):
        A("s_waitcnt lgkmcnt(%d)" % (8 - 4 * sl))
        for r in range(0, 16, 2):
            A("v_pk_add_f32 %s, %s, %s" % (v(80 + r, 2), v(80 + r, 2), v(112 + 16 * sl + r, 2)))
    for e in range(2):
        for mt in range(2):
            for j in (0, 2):
                d = v(80 + 8 * mt + 4 * e + j, 2)
                A("v_pk_fma_f32 %s, %s, v[208:209], %s op_sel:[0,%d,0] op_sel_hi:[1,%d,1]" % (d, d, v(96 + 8 * e + 4 * mt + j, 2), e, e))
        for mt in range(2):
            for j in (0, 2):
                A("v_cvt_pk_bf16_f32 %s, %s, %s" % (v(16 + 4 * e + 2 * mt + j // 2), v(80 + 8 * mt + 4 * e + j), v(81 + 8 * mt + 4 * e + j)))
        A("buffer_store_dwordx4 %s, v5, %s, s77 offen offset:%d" % (v(16 + 4 * e, 4), srd(S_OUT), 2048 * e))
    if stamp:
        A("s_waitcnt vmcnt(0)")
        TSTAMP()
        A("s_cmp_lg_u32 s3, 0\ns_cbranch_scc1 L_end")
        A("s_memrealtime s[80:81]\ns_waitcnt lgkmcnt(0)\nv_writelane_b32 v255, s80, 62\nv_writelane_b32 v255, s82, 63")
        A("s_lshl_b32 s55, s2, 8\ns_add_u32 s55, s55, %d\nv_lshlrev_b32 v25, 2, v1\nbuffer_store_dword v255, v25, %s, s55 offen" % (TS, WS))
    A.label("L_end")
    A("s_endpgm")
    A.raw(""".section .rodata,"a"
.p2align 6
.amdhsa_kernel %s_kernel
  .amdhsa_next_free_vgpr 512
  .amdhsa_next_free_sgpr 102
  .amdhsa_accum_offset 256
  .amdhsa_group_segment_fixed_size 0
  .amdhsa_kernarg_size 104
  .amdhsa_user_sgpr_count 2
  .amdhsa_user_sgpr_kernarg_segment_ptr 1
  .amdhsa_system_sgpr_workgroup_id_x 1
  .amdhsa_float_denorm_mode_32 3
.end_amdhsa_kernel""" % NAME)
    return A.text()

if __name__ == "__main__":
    out = sys.argv[1] if len(sys.argv) > 1 else "cdna_kernels/%s.s" % NAME
    stamp = len(sys.argv) > 2 and sys.argv[2] == "stamp"
    open(out, "w").write(gen(stamp))
    print("wrote", out)
```

```python
import sys
from asm import Asm, v, a, s

NAME = "sequential_preLN__ssm_conv_h3__glu_gated_reglu__prompt"

EP = 0x0; FL = 0x1000; ST = 0x4000; R2 = 0x8000; TS = 0x10000
UP = 0x100000; UPB = 0x300000; QP = 0x500000; HP = 0x700000; WDF = 0x900000; HH = 0xB00000
WS_BYTES = 0x1200000
HG = 88064
L_W1 = 0; L_WU = 49152
L_KC = 98304; KC_STR = 4640
L_U = L_KC + 8 * KC_STR; U_STR = 4224
L_CS = L_U + 4 * U_STR
L_STAT = L_CS + 384
LDS_BYTES = L_STAT + 1024
L_SUP = 0; L_SQP = 8192; L_SWD = 16384
L_RED = L_KC
L_RED3 = 0
S_K, S_V, S_Q, S_SK, S_SSM, S_WG, S_WU, S_WD, S_OUT, S_WS, S_T = 8, 12, 16, 20, 24, 28, 32, 36, 40, 44, 48
sDP = 52; sD = 54
sPC = 74
sN = 84
sBUD = 85
sRB = 86; sCB = 87; sROT = 88
sHA = 89; sHB = 90
BUDGET = 200000
WS = s(S_WS, 4)
MF = "v_mfma_f32_16x16x32_bf16"
def srd(i): return s(i, 4)

def gen(stamp=False, RBX=4, ROT=1, NT="nt", TNT="", opt=None):
    opt = opt or {}
    A = Asm()
    stubs = []
    nst = [0]
    def TSTAMP():
        if stamp:
            A("s_memtime s[80:81]\ns_waitcnt lgkmcnt(0)\ns_sub_u32 s80, s80, s78\nv_writelane_b32 v255, s80, %d" % nst[0]); nst[0] += 1
    A.raw(open('cdna_kernels/%s.s.ref' % NAME).read().split('; @launch grid')[0].rstrip('\n'))
    A.raw("; @launch grid=(256,1,1) block=(256,1,1) lds=%d" % LDS_BYTES)
    A.raw('.amdgcn_target "amdgcn-amd-amdhsa--gfx950"\n.text\n.globl %s_kernel\n.p2align 8\n.type %s_kernel,@function\n%s_kernel:' % (NAME, NAME, NAME))
    LRB = {1: 0, 2: 1, 4: 2, 8: 3}[RBX]

    A("s_cmp_ge_u32 s2, 256\ns_cbranch_scc1 L_end")
    for reg, off in ((S_K, 8), (S_V, 16), (S_SK, 24), (S_Q, 0), (S_WS, 96), (S_SSM, 32), (S_WD, 72), (sDP, 40), (S_WG, 56), (S_WU, 64), (S_OUT, 80)):
        A("s_load_dwordx2 %s, s[0:1], %d" % (s(reg, 2), off))
    if stamp: A("s_memtime s[78:79]\ns_memrealtime s[82:83]\nv_mov_b32 v255, 0"); nst[0] += 1
    A("s_getpc_b64 %s" % s(sPC, 2))
    for reg, nb in ((S_K, 2097152), (S_V, 2097152), (S_Q, 2097152), (S_SK, 4096), (S_WS, WS_BYTES), (S_SSM, 2097152),
                    (S_WD, 1376 * 1024), (S_WG, 512 * 2752), (S_WU, 512 * 2752), (S_OUT, 2097152), (S_T, 512 * 2752)):
        A("s_mov_b32 %s, %d\ns_mov_b32 %s, 0x20000" % (s(reg + 2), nb, s(reg + 3)))
    A("""
    v_lshrrev_b32 v4, 6, v0
    v_and_b32 v1, 63, v0
    v_and_b32 v2, 15, v0
    v_readfirstlane_b32 s3, v4
    v_lshrrev_b32 v3, 4, v0
    v_and_b32 v4, 3, v3
    s_and_b32 s4, s2, 7
    s_lshr_b32 s5, s2, 3
    s_lshl_b32 s55, s5, 16
    s_lshl_b32 s56, s4, 7
    s_add_u32 s55, s55, s56
    v_lshlrev_b32 v5, 12, v3
    v_lshl_add_u32 v5, v2, 3, v5
    v_add_u32 v5, s55, v5
    v_subrev_u32 v6, 0xc00, v5
    v_and_b32 v6, 0x7fffffff, v6
    v_lshrrev_b32 v7, 1, v3
    v_lshlrev_b32 v7, 13, v7
    v_and_b32 v8, 1, v3
    v_lshl_add_u32 v7, v8, 10, v7
    v_lshl_add_u32 v7, v2, 3, v7
    v_add_u32 v7, s55, v7
    s_lshl_b32 s56, s4, 9
    v_lshl_add_u32 v8, v2, 5, s56
    v_lshlrev_b32 v9, 4, v1
    s_lshl_b32 s57, s2, 13
    s_lshl_b32 s58, s3, 11
    s_add_u32 s57, s57, s58
    s_movk_i32 s58, 0x1000
    s_lshl_b32 s66, s4, 5
    s_add_u32 s66, s66, s5
    s_waitcnt lgkmcnt(0)
    """)
    for i in range(3): A("buffer_load_dwordx2 %s, v6, %s, 0 offen offset:%d" % (v(16 + 2 * i, 2), srd(S_K), 1024 * i))
    for j in range(4): A("buffer_load_dwordx2 %s, v5, %s, 0 offen offset:%d %s" % (v(22 + 2 * j, 2), srd(S_K), 1024 * j, NT if opt.get('knt', 1) else ""))
    A("buffer_load_dwordx4 v[48:51], v8, %s, 0 offen" % srd(S_SK))
    A("buffer_load_dwordx4 v[52:55], v8, %s, 0 offen offset:16" % srd(S_SK))
    for j in range(4): A("buffer_load_dwordx2 %s, v5, %s, 0 offen offset:%d %s" % (v(30 + 2 * j, 2), srd(S_V), 1024 * j, NT))
    A("""
    s_load_dword %s, %s, 0
    s_lshl_b32 s55, s66, 2
    s_load_dword %s, %s, s55
    s_lshl_b32 s55, s5, 2
    s_add_u32 s55, s55, s3
    s_mul_i32 s55, s55, 384
    v_lshl_add_u32 v10, v1, 7, s55
    s_mov_b64 exec, 7
    global_load_dword v11, v10, %s
    s_mov_b64 exec, -1
    """ % (s(sN), s(S_WS, 2), s(sD), s(sDP, 2), s(sPC, 2)))
    for j in range(4): A("buffer_load_dwordx2 %s, v7, %s, %s offen offset:%d %s" % (v(38 + 2 * j, 2), srd(S_Q), "s58" if j >= 2 else "0", 2048 * (j & 1), NT))
    A("""
    s_lshr_b32 s55, s4, %d
    s_lshl_b32 s55, s55, %d
    s_and_b32 s56, s5, %d
    s_add_u32 s86, s55, s56
    s_and_b32 s55, s4, %d
    s_mul_i32 s55, s55, %d
    s_lshr_b32 s56, s5, %d
    s_add_u32 s87, s55, s56
    s_mul_i32 s88, s56, %d
    s_lshr_b32 s55, s66, 4
    s_lshl_b32 s72, s55, 14
    s_and_b32 s55, s66, 3
    s_lshl_b32 s55, s55, 10
    s_add_u32 s72, s72, s55
    s_bfe_u32 s55, s66, 0x20002
    s_lshl_b32 s55, s55, 8
    s_add_u32 s72, s72, s55
    s_lshl_b32 s55, s3, 19
    s_add_u32 s72, s72, s55
    s_add_u32 s72, s72, %d
    s_add_u32 s73, s72, 0x40000
    v_lshlrev_b32 v249, 4, v2
    v_lshl_add_u32 v249, v4, 12, v249
    v_mov_b32 v244, -1
    v_mov_b32 v245, -1
    v_mov_b32 v246, -1
    v_mov_b32 v247, -1
    s_mov_b32 s85, %d
    """ % (LRB, LRB, RBX - 1, RBX - 1, 32 // RBX, LRB, ROT, HP, BUDGET))
    A("""
    v_mov_b32 v140, 0
    v_mov_b32 v141, 0
    v_mov_b32 v142, 0
    v_mov_b32 v143, 0
    s_mul_i32 s55, s3, %d
    s_add_u32 s55, s55, %d
    v_add_u32 v132, s55, v9
    ds_write_b128 v132, v[140:143]
    v_xor_b32 v132, v3, v2
    v_lshlrev_b32 v132, 4, v132
    v_lshl_add_u32 v132, v2, 9, v132
    v_lshrrev_b32 v133, 1, v3
    v_and_b32 v134, 1, v3
    v_lshl_add_u32 v133, v134, 3, v133
    v_xor_b32 v133, v133, v2
    v_lshlrev_b32 v133, 4, v133
    v_lshl_add_u32 v133, v2, 9, v133
    v_add_u32 v132, %d, v132
    """ % (U_STR, L_U, L_SQP))
    A("""
    v_lshrrev_b32 v12, 3, v1
    v_and_b32 v13, 7, v1
    v_lshlrev_b32 v160, 10, v12
    v_lshl_add_u32 v160, v13, 4, v160
    s_lshl_b32 s59, s5, 15
    s_lshl_b32 s56, s3, 13
    s_add_u32 s59, s59, s56
    s_lshl_b32 s56, s4, 7
    s_add_u32 s59, s59, s56
    s_lshl_b32 s60, s3, 10
    s_lshr_b32 s55, s3, 1
    s_lshl_b32 s56, s66, 1
    s_add_u32 s56, s56, s55
    s_lshl_b32 s67, s56, 12
    s_and_b32 s55, s3, 1
    s_lshl_b32 s55, s55, 3
    s_add_u32 s61, s67, s55
    s_add_u32 s61, s61, 4
    s_mul_i32 s68, s3, %d
    s_add_u32 s68, s68, %d
    v_and_b32 v161, 31, v1
    v_lshlrev_b32 v161, 4, v161
    v_lshrrev_b32 v162, 5, v1
    v_lshl_add_u32 v14, v162, 2, v161
    s_sub_u32 s55, s55, 508
    v_add_u32 v14, s55, v14
    s_movk_i32 s56, %d
    v_mad_u32_u24 v15, v162, s56, v161
    v_add_u32 v15, s68, v15
    """ % (2 * KC_STR, L_KC, KC_STR))
    for jj in range(4):
        A("v_add_u32 %s, %d, v14\nv_and_b32 %s, 0x7fffffff, %s" % (v(164 + jj), 4 * jj, v(164 + jj), v(164 + jj)))
    span = 88 * (32 // RBX)
    A("""
    s_movk_i32 s56, 2752
    v_mul_lo_u32 v163, v12, s56
    s_bitcmp1_b32 s3, 0
    s_cselect_b32 s48, s32, s28
    s_cselect_b32 s49, s33, s29
    s_lshl_b32 s55, s5, 1
    s_lshr_b32 s56, s3, 1
    s_add_u32 s55, s55, s56
    s_mul_i32 s69, s55, 22016
    s_and_b32 s55, s4, %d
    s_mul_i32 s55, s55, %d
    s_add_u32 s69, s69, s55
    s_mov_b32 s55, 0xffff0000
    """ % (RBX - 1, span))
    ntouch = (span + 8 + 127 + 127) // 128
    ntouch = (ntouch + 7) // 8
    for i in range(ntouch):
        A("v_lshlrev_b32 v12, 7, v13\nv_add_u32 v12, %d, v12\nv_min_u32 v12, %d, v12\nv_add_u32 %s, v12, v163" % (1024 * i, span + 4, v(168 + i)))
    def late_loads(part):
        if part == 0:
            A("buffer_load_dwordx4 v[56:59], v9, %s, s57 offen %s" % (srd(S_Q), NT))
            A("buffer_load_dwordx4 v[60:63], v9, %s, s57 offen offset:1024 %s" % (srd(S_Q), NT))
            A("s_add_u32 m0, s68, 512")
            for i in range(4): A("buffer_load_dwordx4 v9, %s, s61 offen offset:%d lds" % (srd(S_SSM), 1024 * i))
            return 6
        if part == 1:
            A("s_add_u32 s61, s61, 4\ns_add_u32 m0, s68, %d" % (512 + KC_STR))
            for i in range(4): A("buffer_load_dwordx4 v9, %s, s61 offen offset:%d lds" % (srd(S_SSM), 1024 * i))
            for jj in range(4): A("buffer_load_dword %s, %s, %s, s67 offen" % (v(136 + jj), v(164 + jj), srd(S_SSM)))
            return 8
        if part == 2:
            A("s_add_u32 m0, s60, %d" % L_SWD)
            A("buffer_load_dwordx4 v160, %s, s59 offen %s lds" % (srd(S_WD), NT))
            A("s_add_u32 s59, s59, 0x100000\ns_add_u32 m0, s60, %d" % (L_SWD + 4096))
            A("buffer_load_dwordx4 v160, %s, s59 offen %s lds" % (srd(S_WD), NT))
            for i in range(ntouch): A("buffer_load_dword v11, %s, %s, s69 offen %s" % (v(168 + i), srd(S_T), TNT))
            A("buffer_store_dwordx4 v[244:247], v249, %s, s72 offen sc0 sc1" % WS)
            A("buffer_store_dwordx4 v[244:247], v249, %s, s73 offen sc0 sc1" % WS)
            return 4 + ntouch
    TSTAMP()
    A("s_waitcnt vmcnt(9)")
    TSTAMP()
    n0 = late_loads(0)
    for c in range(4):
        for tap in range(4):
            src = 48 + 2 * c + (tap >> 1); dst = 64 + 4 * tap + c
            A(("v_lshlrev_b32 %s, 16, %s" if tap % 2 == 0 else "v_and_b32 %s, s55, %s") % (v(dst), v(src)))
    for i in range(7):
        for e in range(2):
            src = 16 + 2 * i + e; dst = 80 + 4 * i + 2 * e
            A("v_lshlrev_b32 %s, 16, %s\nv_and_b32 %s, s55, %s" % (v(dst), v(src), v(dst + 1), v(src)))
    for tap in range(4):
        for j in range(4):
            for e in range(2):
                d = v(144 + 4 * j + 2 * e, 2); kk = v(80 + 4 * (j + 3 - tap) + 2 * e, 2); ww = v(64 + 4 * tap + 2 * e, 2)
                if tap == 0: A("v_pk_mul_f32 %s, %s, %s" % (d, kk, ww))
                else: A("v_pk_fma_f32 %s, %s, %s, %s" % (d, kk, ww, d))
    A("s_waitcnt vmcnt(%d)" % (5 + n0))
    for j in range(4):
        for e in range(2):
            src = 30 + 2 * j + e; dst = 108 + 4 * j + 2 * e
            A("v_lshlrev_b32 %s, 16, %s\nv_and_b32 %s, s55, %s" % (v(dst), v(src), v(dst + 1), v(src)))
    for j in range(4):
        for e in range(2):
            d = 144 + 4 * j + 2 * e
            A("v_pk_mul_f32 %s, %s, %s" % (v(d, 2), v(d, 2), v(108 + 4 * j + 2 * e, 2)))
    for j in range(4):
        for e in range(2):
            d = 144 + 4 * j + 2 * e
            A("v_cvt_pk_bf16_f32 %s, %s, %s" % (v(124 + 4 * e + j), v(d), v(d + 1)))
    A("ds_write_b128 v133, v[124:127]\nds_write_b128 v133, v[128:131] offset:256")
    A("""
    v_lshrrev_b32 v172, 1, v3
    v_xor_b32 v172, v172, v2
    v_lshlrev_b32 v172, 4, v172
    v_lshl_add_u32 v172, v3, 8, v172
    v_xor_b32 v173, 0x80, v172
    v_lshrrev_b32 v134, 3, v2
    v_lshlrev_b32 v134, 12, v134
    v_and_b32 v135, 7, v2
    v_lshl_add_u32 v134, v135, 4, v134
    v_lshl_add_u32 v134, v3, 13, v134
    v_lshlrev_b32 v135, 4, v2
    v_lshl_add_u32 v135, v3, 13, v135
    s_lshl_b32 s55, s4, 18
    s_lshl_b32 s56, s5, 7
    s_add_u32 s56, s56, s55
    s_add_u32 s56, s56, %d
    s_lshl_b32 s57, s5, 8
    s_add_u32 s57, s57, s55
    s_add_u32 s57, s57, %d
    s_add_u32 s58, s56, 0x20000
    s_add_u32 s62, s56, %d
    s_add_u32 s63, s58, %d
    s_add_u32 s64, s57, 0x20000
    s_waitcnt lgkmcnt(0)
    s_add_u32 s84, s84, 1
    s_or_b32 s84, s84, 0x80000000
    s_barrier
    """ % (UP, QP, UPB - UP, UPB - UP))
    TSTAMP()
    A("ds_read_b128 v[16:19], v172 offset:%d\nds_read_b128 v[20:23], v173 offset:%d" % (L_SUP, L_SUP + 4096))
    A("s_waitcnt lgkmcnt(1)")
    A("buffer_store_dwordx4 v[16:19], v134, %s, s56 offen sc0 sc1" % WS)
    for i in range(4): A("v_xor_b32 %s, s84, %s" % (v(24 + i), v(16 + i)))
    A("buffer_store_dwordx4 v[24:27], v134, %s, s62 offen sc0 sc1" % WS)
    A("s_waitcnt lgkmcnt(0)")
    A("buffer_store_dwordx4 v[20:23], v134, %s, s58 offen sc0 sc1" % WS)
    for i in range(4): A("v_xor_b32 %s, s84, %s" % (v(28 + i), v(20 + i)))
    A("buffer_store_dwordx4 v[28:31], v134, %s, s63 offen sc0 sc1" % WS)
    TSTAMP()
    n1 = late_loads(1)
    n2 = late_loads(2)
    A("s_waitcnt vmcnt(%d)" % (n0 + 4 + n1 + n2))
    for e in range(2):
        A("ds_write2_b32 v132, %s, %s offset0:%d offset1:%d" % (v(38 + e), v(40 + e), 64 * e, 64 * e + 1))
        A("ds_write2_b32 v132, %s, %s offset0:%d offset1:%d" % (v(42 + e), v(44 + e), 64 * e + 2, 64 * e + 3))
    A("v_mov_b32 v64, 0x3f803f80")
    for r in range(65, 69): A("v_mov_b32 %s, 0" % v(r))
    A("s_waitcnt vmcnt(%d)" % (n0 - 2 + 4 + n1 + n2))
    for i in range(4):
        for e in range(2):
            A("v_dot2c_f32_bf16 %s, %s, v64" % (v(65 + e), v(56 + 4 * e + i)))
            A("v_dot2c_f32_bf16 %s, %s, %s" % (v(67 + e), v(56 + 4 * e + i), v(56 + 4 * e + i)))
    for m in ("row_shr:1", "row_shr:2", "row_shr:4", "row_shr:8", "row_bcast:15 row_mask:0xa", "row_bcast:31 row_mask:0xc"):
        for r in range(65, 69):
            A("v_add_f32_dpp %s, %s, %s %s" % (v(r), v(r), v(r), m))
    A("s_mov_b32 s56, 0x3b000000\ns_mov_b32 s58, 0x3727c5ac")
    for e in range(2):
        A("v_mul_f32 %s, s56, %s" % (v(65 + e), v(65 + e)))
        A("v_mul_f32 %s, s56, %s" % (v(67 + e), v(67 + e)))
    for e in range(2): A("v_fma_f32 %s, -%s, %s, %s" % (v(67 + e), v(65 + e), v(65 + e), v(67 + e)))
    for e in range(2): A("v_max_f32 %s, 0, %s" % (v(67 + e), v(67 + e)))
    for e in range(2): A("v_add_f32 %s, s58, %s" % (v(67 + e), v(67 + e)))
    for e in range(2): A("v_rsq_f32 %s, %s" % (v(67 + e), v(67 + e)))
    for e in range(2): A("v_mul_f32_e64 %s, -%s, %s" % (v(65 + e), v(65 + e), v(67 + e)))
    A("""
    s_lshl_b32 s56, s3, 2
    s_add_u32 s56, s56, %d
    v_mov_b32 v69, s56
    s_mov_b32 exec_lo, 0
    s_mov_b32 exec_hi, 0x80000000
    ds_write2_b32 v69, v67, v68 offset0:0 offset1:4
    ds_write2_b32 v69, v65, v66 offset0:8 offset1:12
    s_mov_b64 exec, -1
    v_lshrrev_b32 v12, 2, v1
    v_lshlrev_b32 v12, 7, v12
    v_and_b32 v13, 3, v1
    v_lshl_add_u32 v12, v13, 4, v12
    s_lshr_b32 s55, s3, 1
    s_lshl_b32 s55, s55, 6
    s_and_b32 s69, s3, 1
    s_lshl_b32 s69, s69, 3
    s_add_u32 s55, s55, s69
    v_add_u32 v12, s55, v12
    s_mul_i32 s69, s4, 44
    s_add_u32 s69, s69, s5
    s_lshl_b32 s69, s69, 2
    s_add_u32 s69, s69, s3
    s_lshl_b32 s69, s69, 10
    s_add_u32 s69, s69, %d
    v_add_u32 v13, %d, v9
    """ % (L_STAT, WDF, L_STAT))
    A("""
    v_and_b32 v176, 3, v2
    s_movk_i32 s55, %d
    v_mul_lo_u32 v176, v176, s55
    v_lshrrev_b32 v14, 2, v2
    v_lshl_add_u32 v176, v14, 7, v176
    v_lshl_add_u32 v176, v4, 4, v176
    s_lshr_b32 s56, s3, 1
    s_mul_i32 s56, s56, %d
    s_and_b32 s58, s3, 1
    s_lshl_b32 s58, s58, 8
    s_add_u32 s56, s56, s58
    s_add_u32 s56, s56, %d
    v_add_u32 v176, s56, v176
    """ % (KC_STR, 4 * KC_STR, L_KC + 7 * 16))
    A("""
    v_and_b32 v5, 1, v2
    s_movk_i32 s55, %d
    v_mul_lo_u32 v5, v5, s55
    v_lshrrev_b32 v14, 1, v2
    v_lshl_add_u32 v5, v14, 4, v5
    v_lshl_add_u32 v6, v4, 7, v5
    v_lshlrev_b32 v14, 4, v4
    v_sub_u32 v5, v5, v14
    s_lshr_b32 s56, s3, 1
    s_mul_i32 s56, s56, %d
    s_sub_u32 s56, s56, s58
    s_add_u32 s56, s56, %d
    v_add_u32 v5, s56, v5
    s_lshl_b32 s56, s3, 10
    s_add_u32 s56, s56, %d
    v_add_u32 v6, s56, v6
    v_lshlrev_b32 v8, 4, v0
    v_add_u32 v7, %d, v8
    v_lshrrev_b32 v10, 1, v1
    v_lshlrev_b32 v10, 6, v10
    v_and_b32 v14, 1, v1
    v_lshl_add_u32 v10, v14, 4, v10
    s_lshl_b32 s56, s3, 13
    s_add_u32 s56, s56, %d
    v_add_u32 v242, s56, v9
    s_lshl_b32 s56, s3, 11
    s_add_u32 s56, s56, %d
    v_add_u32 v243, s56, v9
    s_lshl_b32 s67, s66, 13
    s_add_u32 s68, s67, %d
    s_add_u32 s67, s67, %d
    s_add_u32 s59, s67, 0x1000
    s_add_u32 s60, s67, %d
    s_add_u32 s61, s59, %d
    s_lshl_b32 s56, s3, 11
    s_add_u32 s68, s68, s56
    s_lshl_b32 s71, s3, 12
    s_add_u32 s71, s71, %d
    """ % (U_STR, 2 * U_STR, L_U + 20 * 16, L_U + 8 * 16, L_U + 8 * 16, L_RED, L_RED, QP, UP, UPB - UP, UPB - UP, ST))
    A("s_waitcnt vmcnt(%d)" % (2 + ntouch))
    A("ds_write_b128 v15, v[136:139]\ns_waitcnt lgkmcnt(0)\ns_barrier")
    TSTAMP()
    def up_loads():
        A("""
        buffer_load_dwordx4 v[16:19], v8, WS, s67 offen sc1
        buffer_load_dwordx4 v[20:23], v8, WS, s59 offen sc1
        buffer_load_dword v24, v8, WS, s67 offen offset:4092 sc1
        buffer_load_dwordx4 v[28:31], v8, WS, s60 offen sc1
        buffer_load_dwordx4 v[32:35], v8, WS, s61 offen sc1
        buffer_load_dword v36, v8, WS, s60 offen offset:4092 sc1
        """.replace("WS", WS))
    def up_check():
        for i in range(9): A("v_bitop3_b32 %s, %s, %s, s84 bitop3:0x96" % (v(28 + i), v(28 + i), v(16 + i)))
        A("v_or3_b32 v28, v28, v29, v30\nv_or3_b32 v31, v31, v32, v33\nv_or3_b32 v34, v34, v35, v36\nv_or3_b32 v28, v28, v31, v34\nv_cmp_ne_u32 vcc, 0, v28")
    up_loads()
    A("""
    ds_read_b128 v[40:43], v172 offset:%d
    ds_read_b128 v[44:47], v173 offset:%d
    ds_read_b64_tr_b16 v[48:49], v12 offset:%d
    ds_read_b64_tr_b16 v[50:51], v12 offset:%d
    ds_read_b64_tr_b16 v[52:53], v12 offset:%d
    ds_read_b64_tr_b16 v[54:55], v12 offset:%d
    ds_read_b128 v[56:59], v13
    s_waitcnt lgkmcnt(6)
    buffer_store_dwordx4 v[40:43], v135, WS, s57 offen sc0 sc1
    s_waitcnt lgkmcnt(5)
    buffer_store_dwordx4 v[44:47], v135, WS, s64 offen sc0 sc1
    s_waitcnt lgkmcnt(3)
    buffer_store_dwordx4 v[48:51], v9, WS, s69 offen sc0 sc1
    s_add_u32 s69, s69, 0x20000
    s_cmp_ge_u32 s5, 12
    s_cselect_b32 s69, 0x40000000, s69
    s_lshl_b32 s55, s2, 6
    s_add_u32 s55, s55, %d
    s_cmp_lg_u32 s3, 0
    s_cselect_b32 s55, 0x40000000, s55
    s_waitcnt lgkmcnt(0)
    buffer_store_dwordx4 v[52:55], v9, WS, s69 offen sc0 sc1
    s_mov_b64 exec, 15
    buffer_store_dwordx4 v[56:59], v9, WS, s55 offen sc0 sc1
    s_mov_b64 exec, -1
    """.replace("WS", WS) % (L_SQP, L_SQP + 4096, L_SWD, L_SWD + 2048, L_SWD + 4096, L_SWD + 6144, ST))
    n = 0
    for ph in range(4):
        for g in range(8):
            A("ds_read_b128 %s, v176 offset:%d" % (a(128 + 32 * ph + 4 * g, 4), 512 * g + 64 * ph))
            n += 1
            if n % 8 == 0 and n < 32: A("s_waitcnt lgkmcnt(4)")
    A("""
    s_and_b32 s55, s54, 0xffff
    s_lshr_b32 s56, s54, 16
    v_mov_b32 v14, s55
    v_mov_b32 v15, s56
    v_lshl_add_u32 v13, v4, 2, 3
    v_sub_u32 v13, v13, v2
    v_cmp_eq_u32 s[62:63], 0, v0
    s_mov_b32 s64, 0x05040100
    s_mov_b32 s65, 0x07060302
    """)
    for jj in range(4):
        A("v_cmp_eq_u32 vcc, %d, v13" % jj)
        A("v_cndmask_b32 %s, 0, v14, vcc\nv_cndmask_b32 %s, 0, v15, vcc" % (v(184 + jj), v(188 + jj)))
    TSTAMP()
    A("s_waitcnt vmcnt(5)")
    up_check()
    A("s_cbranch_vccz L_upok")
    A.label("L_uprt")
    A("s_sub_u32 s85, s85, 1\ns_cbranch_scc1 L_upx")
    up_loads()
    A("s_waitcnt vmcnt(0)")
    up_check()
    A("s_cbranch_vccnz L_uprt\ns_branch L_upok")
    A.label("L_upx")
    A("s_mov_b32 s85, 0")
    A.label("L_upok")
    TSTAMP()
    A("v_cndmask_b32 v24, v24, 0, s[62:63]")
    Wd_ = lambda i: v(24) if i < 0 else v(16 + i)
    for c in range(2):
        for pi in range(2):
            for jj in range(4):
                lo = 6 + pi - 2 * jj; hi = lo - 1
                A("v_perm_b32 %s, %s, %s, %s" % (v(28 + 4 * (2 * c + pi) + jj), Wd_(hi), Wd_(lo), "s64" if c == 0 else "s65"))
            A("ds_write_b128 v7, %s offset:%d" % (v(28 + 4 * (2 * c + pi), 4), (2 * c + pi) * U_STR))
    A("""
    s_lshl_b32 s55, s2, 4
    s_add_u32 s55, s55, %d
    s_cmp_lg_u32 s3, 0
    s_cselect_b32 s55, 0x40000000, s55
    v_mov_b32 v14, s84
    s_waitcnt vmcnt(0) lgkmcnt(0)
    s_barrier
    s_mov_b64 exec, 1
    buffer_store_dword v14, v9, %s, s55 offen sc0 sc1
    s_mov_b64 exec, -1
    """ % (FL, WS))
    TSTAMP()
    BF = lambda buf, ct: v(72 + 32 * buf + 4 * ct, 4)
    ACC = lambda t: v(136 + 4 * t, 4)
    KF = lambda ph, g: a(128 + 32 * ph + 4 * g, 4)
    def bread(ph, ct): A("ds_read_b128 %s, v5 offset:%d" % (BF(ph & 1, ct), 512 * ct + 64 * (3 - ph)))
    for ct in range(8): bread(0, ct)
    for e in range(2):
        for c in range(2):
            A("ds_read_b128 %s, v6 offset:%d" % (v(192 + 8 * e + 4 * c, 4), 2 * c * U_STR + 512 * e))
    side = []
    pre = ["s_movk_i32 s55, 0x2aab", "s_movk_i32 s56, 2752"]
    for i3 in range(3):
        pre += """v_add_u32 v14, %d, v1
        v_mul_u32_u24 v15, s55, v14
        v_lshrrev_b32 v15, 16, v15
        v_mul_u32_u24 v11, 6, v15
        v_sub_u32 v14, v14, v11
        v_bfe_u32 v11, v15, 2, 2
        v_lshlrev_b32 v11, 3, v11
        v_lshrrev_b32 v12, 4, v15
        v_lshl_add_u32 v11, v12, 2, v11
        v_and_b32 v15, 3, v15
        v_add_u32 v11, v11, v15
        v_mul_u32_u24 v11, s56, v11
        v_lshl_add_u32 %s, v14, 4, v11""".replace("        ", "").split("\n")
        pre[-13] = pre[-13] % (64 * i3); pre[-1] = pre[-1] % v(250 + i3)
    hpre = ("""s_lshl_b32 s55, s86, 2
    s_add_u32 s55, s55, s3
    s_mul_i32 s55, s55, %d
    s_mul_i32 s56, s87, 2816
    s_add_u32 s55, s55, s56
    s_add_u32 s89, s55, %d
    s_add_u32 s90, s89, %d
    v_mov_b32 v248, 0x40000000
    v_cmp_eq_u32 vcc, 3, v4
    v_cndmask_b32 v12, v9, v248, vcc
    s_cmp_eq_u32 s87, 31
    s_cselect_b64 vcc, -1, 0
    v_cndmask_b32 v253, v9, v12, vcc
    v_cndmask_b32 v254, v9, v248, vcc
    v_cndmask_b32 v240, v12, v248, vcc
    v_lshrrev_b32 v11, 2, v2
    v_lshlrev_b32 v241, 4, v2
    v_cmp_eq_u32 vcc, v11, v4
    v_cndmask_b32 v241, v248, v241, vcc
    s_lshl_b32 s55, s86, 10
    s_lshl_b32 s56, s3, 8
    s_add_u32 s55, s55, s56
    s_add_u32 s55, s55, %d
    s_cmp_eq_u32 s87, 31
    s_cselect_b32 s91, s55, 0x40000000
    s_mul_i32 s57, s87, 88
    s_mul_i32 s76, s3, 12288""" % (2 * HG, HH, HG, R2)).replace("    ", "").split("\n")
    HV = ["v253", "v254", "v240"]
    fills = ["buffer_store_dwordx4 v[244:247], %s, %s, %s offen offset:%d sc0 sc1" % (HV[ft], WS, "s90" if g else "s89", 1024 * ft) for ft in range(3) for g in range(2)]
    fills.append("buffer_store_dwordx4 v[244:247], v241, %s, s91 offen sc0 sc1" % WS)
    dma = [(gi, arr, i3) for gi in range(4) for arr in range(2) for i3 in range(3)]
    vmq = []
    def w1dma():
        gi, arr, i3 = dma.pop(0)
        if arr == 0 and i3 == 0:
            A("s_lshl_b32 s55, s3, 2\ns_add_u32 s55, s55, s88\ns_add_u32 s55, s55, %d\ns_and_b32 s55, s55, 15\ns_mul_i32 s77, s55, 88064\ns_add_u32 s77, s77, s57" % gi)
        A("s_add_u32 m0, s76, %d" % (arr * L_WU + gi * 3072 + i3 * 1024))
        A("buffer_load_dwordx4 %s, %s, s77 offen lds" % (v(250 + i3), srd(S_WU if arr else S_WG)))
        vmq.append("dma")
    def vmwait(tag):
        idx = max(i for i, t in enumerate(vmq) if t == tag)
        A("s_waitcnt vmcnt(%d)" % (len(vmq) - 1 - idx))
    wdl = [(i, tm) for i in range(11) for tm in range(4)]
    def wdload():
        i, tm = wdl.pop(0)
        A("buffer_load_dwordx4 %s, %s, %s, s92 offen offset:%d sc1" % (a(16 * i + 4 * tm, 4), "v238" if tm < 2 else "v239", WS, 1024 * (tm & 1)))
        if tm == 3: A("s_add_u32 s92, s92, 0x1000")
        vmq.append("wd")
    wdpre = ("""s_and_b32 s55, s3, 1
    s_lshl_b32 s55, s55, 11
    v_add_u32 v239, s55, v9
    v_xor_b32 v238, 0x800, v239
    s_and_b32 s55, s5, 7
    s_mul_i32 s55, s55, 44
    s_mul_i32 s56, s3, 11
    s_add_u32 s55, s55, s56
    s_lshl_b32 s55, s55, 12
    s_add_u32 s92, s55, %d
    s_lshl_b32 s93, s3, 10
    s_add_u32 s93, s93, %d""" % (WDF, FL)).replace("    ", "").split("\n")
    def fl_load(): A("buffer_load_dword v13, v9, %s, s93 offen sc1" % WS)
    touched = set()
    alu = hpre + pre + wdpre
    NDMA1 = opt.get('ndma1', 16)
    for ph in range(4):
        if ph < 3: order = [(g, ct) for ct in range(8) for g in range(8 - ct)]
        else: order = [(t - ct, ct) for t in range(8) for ct in range(t + 1)]
        seen = set()
        for idx, (g, ct) in enumerate(order):
            if ph == 0 and ct not in seen:
                A("s_waitcnt lgkmcnt(%d)" % (11 - ct)); seen.add(ct)
            if ph > 0 and idx == 0: A("s_waitcnt lgkmcnt(0)")
            t = g + ct
            A("%s %s, %s, %s, %s" % (MF, ACC(t), KF(ph, g), BF(ph & 1, ct), ACC(t) if t in touched else "0"))
            touched.add(t)
            if 0 < ph < 3 and 24 <= idx < 32: bread(ph + 1, idx - 24)
            if ph == 0:
                for _ in range(3):
                    if alu:
                        x = alu.pop(0); A(x)
                        while alu and (x.startswith("s_cmp") or x.startswith("v_cmp") or x.startswith("s_cselect_b64") or alu[0].startswith("v_cndmask")):
                            x = alu.pop(0); A(x)
                if not alu and idx >= 24 and fills: A(fills.pop(0)); vmq.append("fill")
            if ph == 1:
                if idx % 4 == 1 and 24 - len(dma) < NDMA1: w1dma()
                if idx == 34: fl_load(); vmq.append("fl")
            if ph == 2:
                if idx == opt.get('flchk', 14):
                    vmwait("fl")
                    A("v_cmp_ne_u32 vcc, s84, v13")
                if idx == opt.get('flchk', 14) + 1:
                    A("s_cbranch_vccnz L_flrt")
                    A.label("L_flok")
                    A("buffer_load_dwordx4 v[44:47], v9, %s, s68 offen sc1\nbuffer_load_dwordx4 v[48:51], v9, %s, s68 offen offset:1024 sc1" % (WS, WS)); vmq.extend(["qp", "qp"])
                if idx in (opt.get('flchk', 14) + 2, opt.get('flchk', 14) + 3):
                    e = idx - opt.get('flchk', 14) - 2
                    A("buffer_load_dwordx4 %s, v10, %s, s71 offen offset:%d sc1" % (v(52 + 4 * e, 4), WS, 2048 * e))
                    A("buffer_load_dwordx4 %s, v10, %s, s71 offen offset:%d sc1" % (v(60 + 4 * e, 4), WS, 2048 * e + 32)); vmq.extend(["qp", "qp"])
                if idx > opt.get('flchk', 14) + 3 and idx % 3 == 1 and 24 - len(dma) < NDMA1: w1dma()
            if ph == 3:
                if ct == 0 and t >= 2: A("ds_write_b128 v242, %s offset:%d" % (ACC(t - 2), 1024 * (t - 2)))
                if idx % 4 == 2 and 24 - len(dma) < NDMA1: w1dma()
        if ph == 0:
            assert not alu
            while fills: A(fills.pop(0)); vmq.append("fill")
            A("s_waitcnt lgkmcnt(0)")
            for ct in range(8): bread(1, ct)
            for e in range(2):
                for c in range(2):
                    A("%s %s, %s, %s, 0" % (MF, v(168 + 8 * e + 4 * c, 4), v(184 + 4 * c, 4), v(192 + 8 * e + 4 * c, 4)))
    stubs.append("""L_flrt:
    s_sub_u32 s85, s85, 1
    s_cbranch_scc1 L_flx
    buffer_load_dword v13, v9, %s, s93 offen sc1
    s_waitcnt vmcnt(0)
    v_cmp_ne_u32 vcc, s84, v13
    s_cbranch_vccnz L_flrt
    s_branch L_flok
    L_flx:
    s_mov_b32 s85, 0
    s_branch L_flok""" % WS)
    A("ds_write_b128 v242, %s offset:%d" % (ACC(6), 1024 * 6))
    vmwait("qp")
    A("s_mov_b32 s55, 0xffff0000")
    for e in range(2):
        for j in range(4):
            A("v_lshlrev_b32 %s, 16, %s" % (v(208 + 8 * e + j), v(44 + 4 * e + j)))
            A("v_and_b32 %s, s55, %s" % (v(212 + 8 * e + j), v(44 + 4 * e + j)))
        if e == 0: A("ds_write_b128 v242, %s offset:%d" % (ACC(7), 1024 * 7))
    A("s_waitcnt lgkmcnt(0)\ns_barrier")
    TSTAMP()
    for e in range(2):
        for src in range(4):
            A("ds_read_b128 %s, v243 offset:%d" % (v(72 + 16 * e + 4 * src, 4), 8192 * src + 1024 * e))
    for e in range(2):
        for c in range(2):
            for j in (0, 2):
                A("v_pk_fma_f32 %s, %s, %s, %s" % (v(104 + 8 * e + 4 * c + j, 2), v(208 + 8 * e + 4 * c + j, 2), v(52 + 4 * e + j, 2), v(60 + 4 * e + j, 2)))
    for e in range(2):
        for c in range(2):
            A("s_waitcnt lgkmcnt(%d)" % (6 - 4 * e - 2 * c))
            for j in (0, 2):
                d = v(168 + 8 * e + 4 * c + j, 2)
                A("v_pk_add_f32 %s, %s, %s" % (d, d, v(72 + 16 * e + 8 * c + j, 2)))
            for j in (0, 2):
                d = v(168 + 8 * e + 4 * c + j, 2)
                A("v_pk_add_f32 %s, %s, %s" % (d, d, v(76 + 16 * e + 8 * c + j, 2)))
            for j in (0, 2):
                d = v(168 + 8 * e + 4 * c + j, 2)
                A("v_pk_fma_f32 %s, %s, %s, %s" % (d, d, v(104 + 8 * e + 4 * c + j, 2), v(208 + 8 * e + 4 * c + j, 2)))
        for j in range(4):
            A("v_cvt_pk_bf16_f32 %s, %s, %s" % (v(16 + 4 * e + j), v(168 + 8 * e + j), v(172 + 8 * e + j)))
        A("buffer_store_dwordx4 %s, v249, %s, %s offen sc0 sc1" % (v(16 + 4 * e, 4), WS, "s73" if e else "s72")); vmq.append("hp")
    TSTAMP()
    while dma: w1dma()
    for _ in range(opt.get('wd_h2', 0)): wdload()
    A("""
    s_add_u32 s55, s76, 88
    s_movk_i32 s56, 96
    v_mul_lo_u32 v14, v1, s56
    v_add_u32 v14, s55, v14
    v_mov_b32 v224, 0x3f803f80
    v_mov_b32 v225, 0x3f803f80
    v_mov_b32 v226, 0x3f803f80
    v_mov_b32 v227, 0x3f803f80
    v_lshrrev_b32 v5, 2, v1
    v_mul_u32_u24 v5, 96, v5
    v_and_b32 v15, 3, v1
    v_lshl_add_u32 v5, v15, 3, v5
    v_add_u32 v6, %d, v5
    s_lshl_b32 s55, s3, 12
    v_add_u32 v7, s55, v9
    s_lshl_b32 s67, s86, 18
    s_add_u32 s67, s67, %d
    s_lshl_b32 s55, s3, 5
    s_cmp_eq_u32 s3, 3
    s_cselect_b32 s55, %d, s55
    v_add_u32 v10, s55, v5
    s_and_b32 s56, s3, 1
    s_lshl_b32 s56, s56, 5
    s_add_u32 s56, s56, 32
    v_add_u32 v15, s56, v6
    v_lshlrev_b32 v8, 4, v4
    v_add_u32 v8, %d, v8
    """ % (L_WU, HP, L_WU, L_CS))
    vmwait("dma")
    A("ds_write_b64 v14, v[224:225]\nds_write_b64 v14, v[224:225] offset:6144\ns_waitcnt lgkmcnt(0)\ns_barrier")
    TSTAMP()
    XS = lambda st: 16 + 16 * (st & 3)
    AC = lambda arr, ft, tau: v(80 + 48 * arr + 16 * ft + 4 * tau, 4)
    WF = lambda st, arr, ft: 176 + 24 * (st & 1) + 12 * arr + 4 * ft
    def xload_txt(st):
        r = ["s_add_u32 s55, s88, %d" % st, "s_and_b32 s55, s55, 15", "s_lshl_b32 s55, s55, 14", "s_add_u32 s55, s55, s67"]
        r += ["buffer_load_dwordx4 %s, v7, %s, s55 offen offset:%d sc1" % (v(XS(st) + 4 * j, 4), WS, 1024 * j) for j in range(4)]
        return "\n".join(r)
    def xload(st):
        A(xload_txt(st)); vmq.extend(["x%d" % st] * 4)
    def xchk(st):
        b = XS(st)
        return ["v_max3_u32 v11, %s, %s, %s" % (v(b), v(b + 4), v(b + 8)), "v_max_u32 v11, v11, %s" % v(b + 12), "v_cmp_eq_u32 vcc, -1, v11"]
    def xstub(st, tag):
        stubs.append("L_xr%s:\ns_sub_u32 s85, s85, 1\ns_cbranch_scc1 L_xx%s\n%s\ns_waitcnt vmcnt(0)\n%s\ns_cbranch_vccnz L_xr%s\ns_branch L_xo%s\nL_xx%s:\ns_mov_b32 s85, 0\ns_branch L_xo%s"
                     % (tag, tag, xload_txt(st), "\n".join(xchk(st)), tag, tag, tag, tag))
    def wreads(st):
        return ["ds_read_b64_tr_b16 %s, %s offset:%d" % (a(WF(st, arr, ft) + 2 * h, 2), "v6" if arr else "v5", st * 3072 + h * 1536 + ft * 32)
                for arr in range(2) for ft in range(3) for h in range(2)]
    def swaps(st):
        b = XS(st)
        return ["v_swap_b32 %s, %s" % (v(b + 4 * j + t), v(b + 4 * t + j)) for j in range(4) for t in range(j + 1, 4)]
    for st in range(3): xload(st)
    for st in range(16):
        b = 176 + 8 * (st & 3)
        for h in range(2): A("ds_read_b64_tr_b16 %s, v10 offset:%d" % (v(b + 2 * h, 2), st * 3072 + h * 1536))
        for h in range(2): A("ds_read_b64_tr_b16 %s, v15 offset:%d" % (v(b + 4 + 2 * h, 2), st * 3072 + h * 1536))
        if st >= 2:
            pb = 176 + 8 * ((st - 2) & 3)
            A("s_waitcnt lgkmcnt(8)")
            A("%s v[208:211], v[224:227], %s, %s" % (MF, v(pb, 4), "v[208:211]" if st > 2 else "0"))
            A("%s v[212:215], v[224:227], %s, %s" % (MF, v(pb + 4, 4), "v[212:215]" if st > 2 else "0"))
    for st in (14, 15):
        pb = 176 + 8 * (st & 3)
        A("s_waitcnt lgkmcnt(%d)" % (4 if st == 14 else 0))
        A("%s v[208:211], v[224:227], %s, v[208:211]" % (MF, v(pb, 4)))
        A("%s v[212:215], v[224:227], %s, v[212:215]" % (MF, v(pb + 4, 4)))
    for r in wreads(0): A(r)
    A("""
    s_lshl_b32 s55, s3, 6
    s_add_u32 s55, s55, %d
    v_lshl_add_u32 v14, v2, 2, s55
    s_and_b32 s56, s3, 1
    s_lshl_b32 s56, s56, 6
    s_add_u32 s56, s56, %d
    v_lshl_add_u32 v15, v2, 2, s56
    ds_write_b32 v14, v208
    ds_write_b32 v15, v212
    """ % (L_CS, L_CS + 256))
    TSTAMP()
    vmwait("x0")
    for r in xchk(0): A(r)
    A("s_cbranch_vccnz L_xrP")
    A.label("L_xoP"); xstub(0, "P")
    TSTAMP()
    for r in swaps(0): A(r)
    A("s_cmp_eq_u32 s87, 31\ns_cbranch_scc1 L_p2alt")
    WD_P2 = opt.get('wd_p2', 1)
    def p2loop(alt):
        for st in range(16):
            ml = []
            for arr in range(2):
                for ft in range(3):
                    for tau in range(4):
                        xf = v(XS(st) + 4 * tau, 4)
                        wf = a(WF(st, arr, ft), 4)
                        if alt and arr == 1 and ft == 2: wf = xf
                        ml.append("%s %s, %s, %s, %s" % (MF, AC(arr, ft, tau), wf, xf, AC(arr, ft, tau) if st else "0"))
            wr = wreads(st + 1) if st < 15 else ["ds_read_b128 %s, v8 offset:%d" % (v(176 + 4 * t, 4), 64 * t) for t in range(6)]
            sw = swaps(st + 1) if st < 15 else []
            ck = xchk(st + 1) if st < 15 else []
            tag = "%s%d" % ("b" if alt else "a", st + 1)
            A("s_waitcnt lgkmcnt(0)")
            if st == 8: A("s_barrier")
            for i, m in enumerate(ml):
                A(m)
                if i == 0 and st + 3 < 16: xload(st + 3)
                if i == 0 and st + 3 >= 16:
                    for _ in range(4):
                        if wdl: wdload()
                if 1 <= i <= 12 and wr: A(wr.pop(0))
                if i == 6:
                    for _ in range(WD_P2):
                        if wdl: wdload()
                if i == 11 and sw: vmwait("x%d" % (st + 1))
                if i >= 11 and ck: A(ck.pop(0))
                if i == 15 and sw:
                    A("s_cbranch_vccnz L_xr%s" % tag); A.label("L_xo%s" % tag); xstub(st + 1, tag)
                if i >= 15 and sw: A(sw.pop(0))
    sv = (list(vmq), list(wdl))
    p2loop(False)
    A("s_branch L_p2join")
    A.label("L_p2alt")
    vmq[:] = sv[0]; wdl[:] = sv[1]
    p2loop(True)
    A.label("L_p2join")
    TSTAMP()
    A("v_lshlrev_b32 v10, 2, v2\nv_add_u32 v10, 0xc0, v10")
    for _ in range(opt.get('wd_ep', 4)):
        if wdl: wdload()
    A("s_nop 3")
    for tau in range(4):
        A("ds_bpermute_b32 %s, v10, %s" % (v(200 + 2 * tau), v(80 + 32 + 4 * tau)))
    A("s_mov_b32 s57, 0xbb000000\ns_waitcnt lgkmcnt(0)")
    for tau in range(4): A("v_mul_f32 %s, s57, %s" % (v(200 + 2 * tau), v(200 + 2 * tau)))
    A("s_cmp_lg_u32 s87, 31\ns_cbranch_scc1 L_novar")
    A("v_and_b32 v10, 3, v2")
    for tau in range(4): A("v_mov_b32 %s, %s" % (v(208 + tau), v(80 + 48 + 32 + 4 * tau)))
    for j in range(1, 4):
        A("v_cmp_eq_u32 vcc, %d, v10" % j)
        for tau in range(4):
            A("v_cndmask_b32 %s, %s, %s, vcc" % (v(208 + tau), v(208 + tau), v(80 + 48 + 32 + 4 * tau + j)))
    A("s_mov_b32 s56, 0x3b000000\ns_mov_b32 s57, 0x3727c5ac")
    for tau in range(4): A("v_mul_f32 %s, s56, %s" % (v(208 + tau), v(208 + tau)))
    for tau in range(4): A("v_fma_f32 %s, -%s, %s, %s" % (v(208 + tau), v(200 + 2 * tau), v(200 + 2 * tau), v(208 + tau)))
    for tau in range(4): A("v_max_f32 %s, 0, %s" % (v(208 + tau), v(208 + tau)))
    for tau in range(4): A("v_add_f32 %s, s57, %s" % (v(208 + tau), v(208 + tau)))
    for tau in range(4): A("v_rcp_f32 %s, %s" % (v(208 + tau), v(208 + tau)))
    A("s_nop 0\nbuffer_store_dwordx4 v[208:211], v241, %s, s91 offen sc0 sc1" % WS)
    A.label("L_novar")
    for ft in range(3):
        for g in range(2):
            o = 16 + 8 * ft + 4 * g
            for e in range(2):
                tau = 2 * g + e
                gb = 80 + 16 * ft + 4 * tau; ub = gb + 48
                M = v(200 + 2 * tau, 2)
                for j in (0, 2):
                    A("v_pk_fma_f32 %s, %s, %s, %s op_sel_hi:[1,0,1]" % (v(gb + j, 2), v(176 + 4 * ft + j, 2), M, v(gb + j, 2)))
                    A("v_pk_fma_f32 %s, %s, %s, %s op_sel_hi:[1,0,1]" % (v(ub + j, 2), v(188 + 4 * ft + j, 2), M, v(ub + j, 2)))
                for j in range(4): A("v_max_f32 %s, 0, %s" % (v(gb + j), v(gb + j)))
                for j in (0, 2): A("v_pk_mul_f32 %s, %s, %s" % (v(gb + j, 2), v(gb + j, 2), v(ub + j, 2)))
                for j in (0, 2): A("v_cvt_pk_bf16_f32 %s, %s, %s" % (v(o + 2 * e + j // 2), v(gb + j), v(gb + j + 1)))
            A("buffer_store_dwordx4 %s, %s, %s, %s offen offset:%d sc0 sc1" % (v(o, 4), HV[ft], WS, "s90" if g else "s89", 1024 * ft))
    TSTAMP()
    while wdl: wdload()
    A("""
    s_lshr_b32 s71, s5, 3
    s_and_b32 s72, s5, 7
    s_and_b32 s73, s3, 1
    s_lshr_b32 s76, s3, 1
    s_lshl_b32 s55, s72, 1
    s_add_u32 s55, s55, s73
    s_lshl_b32 s55, s55, 14
    s_lshl_b32 s56, s71, 12
    s_add_u32 s55, s55, s56
    s_lshl_b32 s56, s76, 3
    s_add_u32 s55, s55, s56
    s_lshl_b32 s56, s4, 18
    s_add_u32 s55, s55, s56
    s_add_u32 s94, s55, %d
    s_lshl_b32 s55, s4, 2
    s_add_u32 s55, s55, s71
    s_lshl_b32 s56, s55, 1
    s_add_u32 s57, s56, s76
    s_xor_b32 s56, s57, 1
    s_mul_i32 s68, s56, %d
    s_mul_i32 s69, s57, %d
    s_mul_i32 s56, s3, 22528
    s_add_u32 s56, s56, %d
    s_add_u32 s68, s68, s56
    s_add_u32 s69, s69, s56
    s_lshl_b32 s77, s55, 16
    s_lshl_b32 s56, s76, 12
    s_add_u32 s77, s77, s56
    s_lshl_b32 s56, s72, 7
    s_add_u32 s77, s77, s56
    s_lshl_b32 s56, s73, 6
    s_add_u32 s77, s77, s56
    v_lshrrev_b32 v5, 1, v2
    v_lshlrev_b32 v5, 13, v5
    v_and_b32 v14, 1, v2
    v_lshl_add_u32 v5, v14, 10, v5
    v_lshl_add_u32 v5, v4, 4, v5
    s_lshl_b32 s67, s55, 8
    s_lshl_b32 s56, s76, 3
    s_add_u32 s67, s67, s56
    s_add_u32 s67, s67, %d
    v_lshlrev_b32 v12, 4, v2
    s_mul_i32 s56, s3, 12288
    v_add_u32 v10, s56, v9
    s_movk_i32 s72, 0x5000
    s_cmp_eq_u32 s3, 3
    s_cselect_b32 s72, 0x4800, s72
    """ % (HP, HG, HG, HH, R2))
    for k in (1, 2, 3):
        A("s_xor_b32 s56, s3, %d\ns_mul_i32 s56, s56, 12288\ns_add_u32 s56, s56, %d\nv_add_u32 %s, s56, v9" % (k, L_RED3 + (k - 1) * 4096, v(5 + k)))
    NR = opt.get('nr', 6)
    HF = lambda q: 40 + 8 * (q % NR) if False else 112 + 8 * (q % NR)
    def acc3(grp, tm, e):
        if grp == 1 and tm >= 2: return v(80 + 8 * (tm - 2) + 4 * e, 4)
        piece = {(0, 0): 2, (0, 1): 1, (1, 0): 0}[(grp, tm >> 1)]
        return a(176 + 16 * piece + 8 * (tm & 1) + 4 * e, 4)
    def hload_txt(q):
        grp, i = divmod(q, 11)
        sr = "s68" if grp == 0 else "s69"
        r = ["s_add_u32 s55, %s, %s" % (sr, ("%d" % (2048 * i)) if i < 10 else "s72")]
        r += ["buffer_load_dwordx4 %s, v9, %s, s55 offen offset:%d sc1" % (v(HF(q) + 4 * aa, 4), WS, 1024 * aa) for aa in range(2)]
        return "\n".join(r)
    def hload(q): A(hload_txt(q)); vmq.extend(["h%d" % q] * 2)
    def hchk(q): return "v_max_u32 v11, %s, %s\nv_cmp_eq_u32 vcc, -1, v11" % (v(HF(q)), v(HF(q) + 4))
    PF = NR - 1
    A("s_barrier")
    for q in range(PF): hload(q)
    TSTAMP()
    for q in range(22):
        grp, i = divmod(q, 11)
        vmwait("h%d" % q)
        A(hchk(q))
        A("s_cbranch_vccnz L_hr%d" % q); A.label("L_ho%d" % q)
        stubs.append("L_hr%d:\ns_sub_u32 s85, s85, 1\ns_cbranch_scc1 L_hx%d\n%s\ns_waitcnt vmcnt(0)\n%s\ns_cbranch_vccnz L_hr%d\ns_branch L_ho%d\nL_hx%d:\ns_mov_b32 s85, 0\ns_branch L_ho%d"
                     % (q, q, hload_txt(q), hchk(q), q, q, q, q))
        if q == 0: TSTAMP()
        b = HF(q)
        A("v_swap_b32 %s, %s\nv_swap_b32 %s, %s" % (v(b + 2), v(b + 4), v(b + 3), v(b + 5)))
        if q + PF < 22: hload(q + PF)
        if q == 22 - PF:
            for j in range(4): A("buffer_load_dwordx2 %s, v9, %s, s94 offen offset:%d sc1" % (v(200 + 2 * j, 2), WS, 1024 * j))
            A("buffer_load_dwordx2 v[208:209], v12, %s, s67 offen sc1" % WS); vmq.extend(["res"] * 5)
        for tm in range(4):
            for e in range(2):
                A("%s %s, %s, %s, %s" % (MF, acc3(grp, tm, e), a(16 * i + 4 * tm, 4), v(b + 4 * e, 4), acc3(grp, tm, e) if i else "0"))
            if q in (12, 13):
                piece = 2 if q == 12 else 1
                A("ds_write_b128 %s, %s offset:%d" % (v(6 + piece), a(176 + 16 * piece + 4 * tm, 4), 1024 * tm))
    for t in range(4):
        A("ds_write_b128 v6, %s offset:%d" % (a(176 + 4 * t, 4), 1024 * t))
    A("s_mov_b32 s55, 0xffff0000\ns_waitcnt vmcnt(0)\nv_cmp_eq_u32 vcc, -1, v208")
    for j in range(4):
        for e in range(2):
            A("v_lshlrev_b32 %s, 16, %s\nv_and_b32 %s, s55, %s" % (v(96 + 8 * e + 2 * j), v(200 + 2 * j + e), v(97 + 8 * e + 2 * j), v(200 + 2 * j + e)))
    A("s_cbranch_vccnz L_rr"); A.label("L_ro")
    stubs.append("L_rr:\ns_sub_u32 s85, s85, 1\ns_cbranch_scc1 L_ro\nbuffer_load_dwordx2 v[208:209], v12, %s, s67 offen sc1\ns_waitcnt vmcnt(0)\nv_cmp_eq_u32 vcc, -1, v208\ns_cbranch_vccnz L_rr\ns_branch L_ro" % WS)
    A("s_waitcnt lgkmcnt(0)\ns_barrier")
    TSTAMP()
    for sl in range(3):
        for t in range(4):
            A("ds_read_b128 %s, v10 offset:%d" % (v(112 + 16 * sl + 4 * t, 4), L_RED3 + 4096 * sl + 1024 * t))
    for sl in range(3):
        A("s_waitcnt lgkmcnt(%d)" % (8 - 4 * sl))
        for r in range(0, 16, 2):
            A("v_pk_add_f32 %s, %s, %s" % (v(80 + r, 2), v(80 + r, 2), v(112 + 16 * sl + r, 2)))
    for e in range(2):
        for mt in range(2):
            for j in (0, 2):
                d = v(80 + 8 * mt + 4 * e + j, 2)
                A("v_pk_fma_f32 %s, %s, v[208:209], %s op_sel:[0,%d,0] op_sel_hi:[1,%d,1]" % (d, d, v(96 + 8 * e + 4 * mt + j, 2), e, e))
        for mt in range(2):
            for j in (0, 2):
                A("v_cvt_pk_bf16_f32 %s, %s, %s" % (v(16 + 4 * e + 2 * mt + j // 2), v(80 + 8 * mt + 4 * e + j), v(81 + 8 * mt + 4 * e + j)))
        A("buffer_store_dwordx4 %s, v5, %s, s77 offen offset:%d" % (v(16 + 4 * e, 4), srd(S_OUT), 2048 * e))
    A("""
    s_or_b32 s55, s2, s3
    s_cmp_lg_u32 s55, 0
    s_cselect_b32 s55, 0x40000000, 0
    v_mov_b32 v14, s84
    s_mov_b64 exec, 1
    buffer_store_dword v14, v9, %s, s55 offen
    s_mov_b64 exec, -1
    """ % WS)
    if stamp:
        A("s_waitcnt vmcnt(0)")
        TSTAMP()
        A("s_cmp_lg_u32 s3, 0\ns_cbranch_scc1 L_end")
        A("s_memrealtime s[80:81]\ns_waitcnt lgkmcnt(0)\nv_writelane_b32 v255, s80, 62\nv_writelane_b32 v255, s82, 63\nv_writelane_b32 v255, s85, 61")
        A("s_lshl_b32 s55, s2, 8\ns_add_u32 s55, s55, %d\nv_lshlrev_b32 v25, 2, v1\nbuffer_store_dword v255, v25, %s, s55 offen" % (TS, WS))
    A.label("L_end")
    A("s_endpgm")
    for st_ in stubs:
        A("s_nop 7")
        A(st_)
    A.raw(""".section .rodata,"a"
.p2align 6
.amdhsa_kernel %s_kernel
  .amdhsa_next_free_vgpr 512
  .amdhsa_next_free_sgpr 102
  .amdhsa_accum_offset 256
  .amdhsa_group_segment_fixed_size 0
  .amdhsa_kernarg_size 104
  .amdhsa_user_sgpr_count 2
  .amdhsa_user_sgpr_kernarg_segment_ptr 1
  .amdhsa_system_sgpr_workgroup_id_x 1
  .amdhsa_float_denorm_mode_32 3
.end_amdhsa_kernel""" % NAME)
    return A.text()

if __name__ == "__main__":
    out = sys.argv[1] if len(sys.argv) > 1 else "cdna_kernels/%s.s" % NAME
    stamp = len(sys.argv) > 2 and sys.argv[2] == "stamp"
    kw = {}; opt = {}
    for x in sys.argv[3:]:
        k, val = x.split("=")
        if k in ("RBX", "ROT"): kw[k] = int(val)
        elif k in ("NT", "TNT"): kw[k] = val
        else: opt[k] = int(val)
    open(out, "w").write(gen(stamp, opt=opt, **kw))
    print("wrote", out)
```

```python
import sys
from asm import Asm, v, a, s

NAME = "sequential_preLN__ssm_conv_h3__glu_gated_reglu__prompt"

EP = 0x0; FL = 0x1000; ST = 0x4000; R2 = 0x8000; TS = 0x10000
UP = 0x100000; UPB = 0x300000; QP = 0x500000; HP = 0x700000; WDF = 0x900000; HH = 0xB00000
WS_BYTES = 0x1200000
HG = 88064
L_W1 = 0; L_WU = 49152
L_KC = 98304; KC_STR = 4640
L_U = L_KC + 8 * KC_STR; U_STR = 4224
L_CS = L_U + 4 * U_STR
L_STAT = L_CS + 384
LDS_BYTES = L_STAT + 1024
L_SUP = 0; L_SQP = 8192; L_SWD = 16384
L_RED = L_KC
L_RED3 = 0
S_K, S_V, S_Q, S_SK, S_SSM, S_WG, S_WU, S_WD, S_OUT, S_WS, S_T = 8, 12, 16, 20, 24, 28, 32, 36, 40, 44, 48
sDP = 52; sD = 54
sPC = 74
sN = 84
sBUD = 85
sRB = 86; sCB = 87; sROT = 88
sHA = 89; sHB = 90
BUDGET = 200000
WS = s(S_WS, 4)
MF = "v_mfma_f32_16x16x32_bf16"
def srd(i): return s(i, 4)

def gen(stamp=False, RBX=4, ROT=1, NT="nt", TNT="", opt=None):
    opt = opt or {}
    A = Asm()
    stubs = []
    nst = [0]
    def TSTAMP():
        if stamp:
            A("s_memtime s[80:81]\ns_waitcnt lgkmcnt(0)\ns_sub_u32 s80, s80, s78\nv_writelane_b32 v255, s80, %d" % nst[0]); nst[0] += 1
    A.raw(open('cdna_kernels/%s.s.ref' % NAME).read().split('; @launch grid')[0].rstrip('\n'))
    A.raw("; @launch grid=(256,1,1) block=(256,1,1) lds=%d" % LDS_BYTES)
    A.raw('.amdgcn_target "amdgcn-amd-amdhsa--gfx950"\n.text\n.globl %s_kernel\n.p2align 8\n.type %s_kernel,@function\n%s_kernel:' % (NAME, NAME, NAME))
    LRB = {1: 0, 2: 1, 4: 2, 8: 3}[RBX]

    A("s_cmp_ge_u32 s2, 256\ns_cbranch_scc1 L_end")
    for reg, off in ((S_K, 8), (S_V, 16), (S_SK, 24), (S_Q, 0), (S_WS, 96), (S_SSM, 32), (S_WD, 72), (sDP, 40), (S_WG, 56), (S_WU, 64), (S_OUT, 80)):
        A("s_load_dwordx2 %s, s[0:1], %d" % (s(reg, 2), off))
    if stamp: A("s_memtime s[78:79]\ns_memrealtime s[82:83]\nv_mov_b32 v255, 0"); nst[0] += 1
    A("s_getpc_b64 %s" % s(sPC, 2))
    for reg, nb in ((S_K, 2097152), (S_V, 2097152), (S_Q, 2097152), (S_SK, 4096), (S_WS, WS_BYTES), (S_SSM, 2097152),
                    (S_WD, 1376 * 1024), (S_WG, 512 * 2752), (S_WU, 512 * 2752), (S_OUT, 2097152), (S_T, 512 * 2752)):
        A("s_mov_b32 %s, %d\ns_mov_b32 %s, 0x20000" % (s(reg + 2), nb, s(reg + 3)))
    A("""
    v_lshrrev_b32 v4, 6, v0
    v_and_b32 v1, 63, v0
    v_and_b32 v2, 15, v0
    v_readfirstlane_b32 s3, v4
    v_lshrrev_b32 v3, 4, v0
    v_and_b32 v4, 3, v3
    s_and_b32 s4, s2, 7
    s_lshr_b32 s5, s2, 3
    s_lshl_b32 s55, s5, 16
    s_lshl_b32 s56, s4, 7
    s_add_u32 s55, s55, s56
    v_lshlrev_b32 v5, 12, v3
    v_lshl_add_u32 v5, v2, 3, v5
    v_add_u32 v5, s55, v5
    v_subrev_u32 v6, 0xc00, v5
    v_and_b32 v6, 0x7fffffff, v6
    v_lshrrev_b32 v7, 1, v3
    v_lshlrev_b32 v7, 13, v7
    v_and_b32 v8, 1, v3
    v_lshl_add_u32 v7, v8, 10, v7
    v_lshl_add_u32 v7, v2, 3, v7
    v_add_u32 v7, s55, v7
    s_lshl_b32 s56, s4, 9
    v_lshl_add_u32 v8, v2, 5, s56
    v_lshlrev_b32 v9, 4, v1
    s_lshl_b32 s57, s2, 13
    s_lshl_b32 s58, s3, 11
    s_add_u32 s57, s57, s58
    s_movk_i32 s58, 0x1000
    s_lshl_b32 s66, s4, 5
    s_add_u32 s66, s66, s5
    s_waitcnt lgkmcnt(0)
    """)
    for i in range(3): A("buffer_load_dwordx2 %s, v6, %s, 0 offen offset:%d" % (v(16 + 2 * i, 2), srd(S_K), 1024 * i))
    for j in range(4): A("buffer_load_dwordx2 %s, v5, %s, 0 offen offset:%d %s" % (v(22 + 2 * j, 2), srd(S_K), 1024 * j, NT if opt.get('knt', 1) else ""))
    A("buffer_load_dwordx4 v[48:51], v8, %s, 0 offen" % srd(S_SK))
    A("buffer_load_dwordx4 v[52:55], v8, %s, 0 offen offset:16" % srd(S_SK))
    for j in range(4): A("buffer_load_dwordx2 %s, v5, %s, 0 offen offset:%d %s" % (v(30 + 2 * j, 2), srd(S_V), 1024 * j, NT))
    A("""
    s_load_dword %s, %s, 0
    s_lshl_b32 s55, s66, 2
    s_load_dword %s, %s, s55
    s_lshl_b32 s55, s5, 2
    s_add_u32 s55, s55, s3
    s_mul_i32 s55, s55, 384
    v_lshl_add_u32 v10, v1, 7, s55
    s_mov_b64 exec, 7
    global_load_dword v11, v10, %s
    s_mov_b64 exec, -1
    """ % (s(sN), s(S_WS, 2), s(sD), s(sDP, 2), s(sPC, 2)))
    for j in range(4): A("buffer_load_dwordx2 %s, v7, %s, %s offen offset:%d %s" % (v(38 + 2 * j, 2), srd(S_Q), "s58" if j >= 2 else "0", 2048 * (j & 1), NT))
    A("""
    s_lshr_b32 s55, s4, %d
    s_lshl_b32 s55, s55, %d
    s_and_b32 s56, s5, %d
    s_add_u32 s86, s55, s56
    s_and_b32 s55, s4, %d
    s_mul_i32 s55, s55, %d
    s_lshr_b32 s56, s5, %d
    s_add_u32 s87, s55, s56
    s_mul_i32 s88, s56, %d
    s_lshr_b32 s55, s66, 4
    s_lshl_b32 s72, s55, 14
    s_and_b32 s55, s66, 3
    s_lshl_b32 s55, s55, 10
    s_add_u32 s72, s72, s55
    s_bfe_u32 s55, s66, 0x20002
    s_lshl_b32 s55, s55, 8
    s_add_u32 s72, s72, s55
    s_lshl_b32 s55, s3, 19
    s_add_u32 s72, s72, s55
    s_add_u32 s72, s72, %d
    s_add_u32 s73, s72, 0x40000
    v_lshlrev_b32 v249, 4, v2
    v_lshl_add_u32 v249, v4, 12, v249
    v_mov_b32 v244, -1
    v_mov_b32 v245, -1
    v_mov_b32 v246, -1
    v_mov_b32 v247, -1
    s_mov_b32 s85, %d
    """ % (LRB, LRB, RBX - 1, RBX - 1, 32 // RBX, LRB, ROT, HP, BUDGET))
    A("""
    v_mov_b32 v140, 0
    v_mov_b32 v141, 0
    v_mov_b32 v142, 0
    v_mov_b32 v143, 0
    s_mul_i32 s55, s3, %d
    s_add_u32 s55, s55, %d
    v_add_u32 v132, s55, v9
    ds_write_b128 v132, v[140:143]
    v_xor_b32 v132, v3, v2
    v_lshlrev_b32 v132, 4, v132
    v_lshl_add_u32 v132, v2, 9, v132
    v_lshrrev_b32 v133, 1, v3
    v_and_b32 v134, 1, v3
    v_lshl_add_u32 v133, v134, 3, v133
    v_xor_b32 v133, v133, v2
    v_lshlrev_b32 v133, 4, v133
    v_lshl_add_u32 v133, v2, 9, v133
    v_add_u32 v132, %d, v132
    """ % (U_STR, L_U, L_SQP))
    A("""
    v_lshrrev_b32 v12, 3, v1
    v_and_b32 v13, 7, v1
    v_lshlrev_b32 v160, 10, v12
    v_lshl_add_u32 v160, v13, 4, v160
    s_lshl_b32 s59, s5, 15
    s_lshl_b32 s56, s3, 13
    s_add_u32 s59, s59, s56
    s_lshl_b32 s56, s4, 7
    s_add_u32 s59, s59, s56
    s_lshl_b32 s60, s3, 10
    s_lshr_b32 s55, s3, 1
    s_lshl_b32 s56, s66, 1
    s_add_u32 s56, s56, s55
    s_lshl_b32 s67, s56, 12
    s_and_b32 s55, s3, 1
    s_lshl_b32 s55, s55, 3
    s_add_u32 s61, s67, s55
    s_add_u32 s61, s61, 4
    s_mul_i32 s68, s3, %d
    s_add_u32 s68, s68, %d
    v_and_b32 v161, 31, v1
    v_lshlrev_b32 v161, 4, v161
    v_lshrrev_b32 v162, 5, v1
    v_lshl_add_u32 v14, v162, 2, v161
    s_sub_u32 s55, s55, 508
    v_add_u32 v14, s55, v14
    s_movk_i32 s56, %d
    v_mad_u32_u24 v15, v162, s56, v161
    v_add_u32 v15, s68, v15
    """ % (2 * KC_STR, L_KC, KC_STR))
    for jj in range(4):
        A("v_add_u32 %s, %d, v14\nv_and_b32 %s, 0x7fffffff, %s" % (v(164 + jj), 4 * jj, v(164 + jj), v(164 + jj)))
    span = 88 * (32 // RBX)
    A("""
    s_movk_i32 s56, 2752
    v_mul_lo_u32 v163, v12, s56
    s_bitcmp1_b32 s3, 0
    s_cselect_b32 s48, s32, s28
    s_cselect_b32 s49, s33, s29
    s_lshl_b32 s55, s5, 1
    s_lshr_b32 s56, s3, 1
    s_add_u32 s55, s55, s56
    s_mul_i32 s69, s55, 22016
    s_and_b32 s55, s4, %d
    s_mul_i32 s55, s55, %d
    s_add_u32 s69, s69, s55
    s_mov_b32 s55, 0xffff0000
    """ % (RBX - 1, span))
    ntouch = (span + 8 + 127 + 127) // 128
    ntouch = (ntouch + 7) // 8
    for i in range(ntouch):
        A("v_lshlrev_b32 v12, 7, v13\nv_add_u32 v12, %d, v12\nv_min_u32 v12, %d, v12\nv_add_u32 %s, v12, v163" % (1024 * i, span + 4, v(168 + i)))
    def late_loads(part):
        if part == 0:
            A("buffer_load_dwordx4 v[56:59], v9, %s, s57 offen %s" % (srd(S_Q), NT))
            A("buffer_load_dwordx4 v[60:63], v9, %s, s57 offen offset:1024 %s" % (srd(S_Q), NT))
            A("s_add_u32 m0, s68, 512")
            for i in range(4): A("buffer_load_dwordx4 v9, %s, s61 offen offset:%d lds" % (srd(S_SSM), 1024 * i))
            return 6
        if part == 1:
            A("s_add_u32 s61, s61, 4\ns_add_u32 m0, s68, %d" % (512 + KC_STR))
            for i in range(4): A("buffer_load_dwordx4 v9, %s, s61 offen offset:%d lds" % (srd(S_SSM), 1024 * i))
            for jj in range(4): A("buffer_load_dword %s, %s, %s, s67 offen" % (v(136 + jj), v(164 + jj), srd(S_SSM)))
            return 8
        if part == 2:
            A("s_add_u32 m0, s60, %d" % L_SWD)
            A("buffer_load_dwordx4 v160, %s, s59 offen %s lds" % (srd(S_WD), NT))
            A("s_add_u32 s59, s59, 0x100000\ns_add_u32 m0, s60, %d" % (L_SWD + 4096))
            A("buffer_load_dwordx4 v160, %s, s59 offen %s lds" % (srd(S_WD), NT))
            for i in range(ntouch): A("buffer_load_dword v11, %s, %s, s69 offen %s" % (v(168 + i), srd(S_T), TNT))
            A("buffer_store_dwordx4 v[244:247], v249, %s, s72 offen sc0 sc1" % WS)
            A("buffer_store_dwordx4 v[244:247], v249, %s, s73 offen sc0 sc1" % WS)
            return 4 + ntouch
    TSTAMP()
    A("s_waitcnt vmcnt(9)")
    TSTAMP()
    n0 = late_loads(0)
    for c in range(4):
        for tap in range(4):
            src = 48 + 2 * c + (tap >> 1); dst = 64 + 4 * tap + c
            A(("v_lshlrev_b32 %s, 16, %s" if tap % 2 == 0 else "v_and_b32 %s, s55, %s") % (v(dst), v(src)))
    for i in range(7):
        for e in range(2):
            src = 16 + 2 * i + e; dst = 80 + 4 * i + 2 * e
            A("v_lshlrev_b32 %s, 16, %s\nv_and_b32 %s, s55, %s" % (v(dst), v(src), v(dst + 1), v(src)))
    for tap in range(4):
        for j in range(4):
            for e in range(2):
                d = v(144 + 4 * j + 2 * e, 2); kk = v(80 + 4 * (j + 3 - tap) + 2 * e, 2); ww = v(64 + 4 * tap + 2 * e, 2)
                if tap == 0: A("v_pk_mul_f32 %s, %s, %s" % (d, kk, ww))
                else: A("v_pk_fma_f32 %s, %s, %s, %s" % (d, kk, ww, d))
    A("s_waitcnt vmcnt(%d)" % (5 + n0))
    for j in range(4):
        for e in range(2):
            src = 30 + 2 * j + e; dst = 108 + 4 * j + 2 * e
            A("v_lshlrev_b32 %s, 16, %s\nv_and_b32 %s, s55, %s" % (v(dst), v(src), v(dst + 1), v(src)))
    for j in range(4):
        for e in range(2):
            d = 144 + 4 * j + 2 * e
            A("v_pk_mul_f32 %s, %s, %s" % (v(d, 2), v(d, 2), v(108 + 4 * j + 2 * e, 2)))
    for j in range(4):
        for e in range(2):
            d = 144 + 4 * j + 2 * e
            A("v_cvt_pk_bf16_f32 %s, %s, %s" % (v(124 + 4 * e + j), v(d), v(d + 1)))
    A("ds_write_b128 v133, v[124:127]\nds_write_b128 v133, v[128:131] offset:256")
    A("""
    v_lshrrev_b32 v172, 1, v3
    v_xor_b32 v172, v172, v2
    v_lshlrev_b32 v172, 4, v172
    v_lshl_add_u32 v172, v3, 8, v172
    v_xor_b32 v173, 0x80, v172
    v_lshrrev_b32 v134, 3, v2
    v_lshlrev_b32 v134, 12, v134
    v_and_b32 v135, 7, v2
    v_lshl_add_u32 v134, v135, 4, v134
    v_lshl_add_u32 v134, v3, 13, v134
    v_lshlrev_b32 v135, 4, v2
    v_lshl_add_u32 v135, v3, 13, v135
    s_lshl_b32 s55, s4, 18
    s_lshl_b32 s56, s5, 7
    s_add_u32 s56, s56, s55
    s_add_u32 s56, s56, %d
    s_lshl_b32 s57, s5, 8
    s_add_u32 s57, s57, s55
    s_add_u32 s57, s57, %d
    s_add_u32 s58, s56, 0x20000
    s_add_u32 s62, s56, %d
    s_add_u32 s63, s58, %d
    s_add_u32 s64, s57, 0x20000
    s_waitcnt lgkmcnt(0)
    s_add_u32 s84, s84, 1
    s_or_b32 s84, s84, 0x80000000
    s_barrier
    """ % (UP, QP, UPB - UP, UPB - UP))
    TSTAMP()
    A("ds_read_b128 v[16:19], v172 offset:%d\nds_read_b128 v[20:23], v173 offset:%d" % (L_SUP, L_SUP + 4096))
    A("s_waitcnt lgkmcnt(1)")
    A("buffer_store_dwordx4 v[16:19], v134, %s, s56 offen sc0 sc1" % WS)
    for i in range(4): A("v_xor_b32 %s, s84, %s" % (v(24 + i), v(16 + i)))
    A("buffer_store_dwordx4 v[24:27], v134, %s, s62 offen sc0 sc1" % WS)
    A("s_waitcnt lgkmcnt(0)")
    A("buffer_store_dwordx4 v[20:23], v134, %s, s58 offen sc0 sc1" % WS)
    for i in range(4): A("v_xor_b32 %s, s84, %s" % (v(28 + i), v(20 + i)))
    A("buffer_store_dwordx4 v[28:31], v134, %s, s63 offen sc0 sc1" % WS)
    TSTAMP()
    n1 = late_loads(1)
    n2 = late_loads(2)
    A("s_waitcnt vmcnt(%d)" % (n0 + 4 + n1 + n2))
    for e in range(2):
        A("ds_write2_b32 v132, %s, %s offset0:%d offset1:%d" % (v(38 + e), v(40 + e), 64 * e, 64 * e + 1))
        A("ds_write2_b32 v132, %s, %s offset0:%d offset1:%d" % (v(42 + e), v(44 + e), 64 * e + 2, 64 * e + 3))
    A("v_mov_b32 v64, 0x3f803f80")
    for r in range(65, 69): A("v_mov_b32 %s, 0" % v(r))
    A("s_waitcnt vmcnt(%d)" % (n0 - 2 + 4 + n1 + n2))
    for i in range(4):
        for e in range(2):
            A("v_dot2c_f32_bf16 %s, %s, v64" % (v(65 + e), v(56 + 4 * e + i)))
            A("v_dot2c_f32_bf16 %s, %s, %s" % (v(67 + e), v(56 + 4 * e + i), v(56 + 4 * e + i)))
    for m in ("row_shr:1", "row_shr:2", "row_shr:4", "row_shr:8", "row_bcast:15 row_mask:0xa", "row_bcast:31 row_mask:0xc"):
        for r in range(65, 69):
            A("v_add_f32_dpp %s, %s, %s %s" % (v(r), v(r), v(r), m))
    A("s_mov_b32 s56, 0x3b000000\ns_mov_b32 s58, 0x3727c5ac")
    for e in range(2):
        A("v_mul_f32 %s, s56, %s" % (v(65 + e), v(65 + e)))
        A("v_mul_f32 %s, s56, %s" % (v(67 + e), v(67 + e)))
    for e in range(2): A("v_fma_f32 %s, -%s, %s, %s" % (v(67 + e), v(65 + e), v(65 + e), v(67 + e)))
    for e in range(2): A("v_max_f32 %s, 0, %s" % (v(67 + e), v(67 + e)))
    for e in range(2): A("v_add_f32 %s, s58, %s" % (v(67 + e), v(67 + e)))
    for e in range(2): A("v_rsq_f32 %s, %s" % (v(67 + e), v(67 + e)))
    for e in range(2): A("v_mul_f32_e64 %s, -%s, %s" % (v(65 + e), v(65 + e), v(67 + e)))
    A("""
    s_lshl_b32 s56, s3, 2
    s_add_u32 s56, s56, %d
    v_mov_b32 v69, s56
    s_mov_b32 exec_lo, 0
    s_mov_b32 exec_hi, 0x80000000
    ds_write2_b32 v69, v67, v68 offset0:0 offset1:4
    ds_write2_b32 v69, v65, v66 offset0:8 offset1:12
    s_mov_b64 exec, -1
    v_lshrrev_b32 v12, 2, v1
    v_lshlrev_b32 v12, 7, v12
    v_and_b32 v13, 3, v1
    v_lshl_add_u32 v12, v13, 4, v12
    s_lshr_b32 s55, s3, 1
    s_lshl_b32 s55, s55, 6
    s_and_b32 s69, s3, 1
    s_lshl_b32 s69, s69, 3
    s_add_u32 s55, s55, s69
    v_add_u32 v12, s55, v12
    s_mul_i32 s69, s4, 44
    s_add_u32 s69, s69, s5
    s_lshl_b32 s69, s69, 2
    s_add_u32 s69, s69, s3
    s_lshl_b32 s69, s69, 10
    s_add_u32 s69, s69, %d
    v_add_u32 v13, %d, v9
    """ % (L_STAT, WDF, L_STAT))
    A("""
    v_and_b32 v176, 3, v2
    s_movk_i32 s55, %d
    v_mul_lo_u32 v176, v176, s55
    v_lshrrev_b32 v14, 2, v2
    v_lshl_add_u32 v176, v14, 7, v176
    v_lshl_add_u32 v176, v4, 4, v176
    s_lshr_b32 s56, s3, 1
    s_mul_i32 s56, s56, %d
    s_and_b32 s58, s3, 1
    s_lshl_b32 s58, s58, 8
    s_add_u32 s56, s56, s58
    s_add_u32 s56, s56, %d
    v_add_u32 v176, s56, v176
    """ % (KC_STR, 4 * KC_STR, L_KC + 7 * 16))
    A("""
    v_and_b32 v5, 1, v2
    s_movk_i32 s55, %d
    v_mul_lo_u32 v5, v5, s55
    v_lshrrev_b32 v14, 1, v2
    v_lshl_add_u32 v5, v14, 4, v5
    v_lshl_add_u32 v6, v4, 7, v5
    v_lshlrev_b32 v14, 4, v4
    v_sub_u32 v5, v5, v14
    s_lshr_b32 s56, s3, 1
    s_mul_i32 s56, s56, %d
    s_sub_u32 s56, s56, s58
    s_add_u32 s56, s56, %d
    v_add_u32 v5, s56, v5
    s_lshl_b32 s56, s3, 10
    s_add_u32 s56, s56, %d
    v_add_u32 v6, s56, v6
    v_lshlrev_b32 v8, 4, v0
    v_add_u32 v7, %d, v8
    v_lshrrev_b32 v10, 1, v1
    v_lshlrev_b32 v10, 6, v10
    v_and_b32 v14, 1, v1
    v_lshl_add_u32 v10, v14, 4, v10
    s_lshl_b32 s56, s3, 13
    s_add_u32 s56, s56, %d
    v_add_u32 v242, s56, v9
    s_lshl_b32 s56, s3, 11
    s_add_u32 s56, s56, %d
    v_add_u32 v243, s56, v9
    s_lshl_b32 s67, s66, 13
    s_add_u32 s68, s67, %d
    s_add_u32 s67, s67, %d
    s_add_u32 s59, s67, 0x1000
    s_add_u32 s60, s67, %d
    s_add_u32 s61, s59, %d
    s_lshl_b32 s56, s3, 11
    s_add_u32 s68, s68, s56
    s_lshl_b32 s71, s3, 12
    s_add_u32 s71, s71, %d
    """ % (U_STR, 2 * U_STR, L_U + 20 * 16, L_U + 8 * 16, L_U + 8 * 16, L_RED, L_RED, QP, UP, UPB - UP, UPB - UP, ST))
    A("s_waitcnt vmcnt(%d)" % (2 + ntouch))
    A("ds_write_b128 v15, v[136:139]\ns_waitcnt lgkmcnt(0)\ns_barrier")
    TSTAMP()
    def up_loads():
        A("""
        buffer_load_dwordx4 v[16:19], v8, WS, s67 offen sc1
        buffer_load_dwordx4 v[20:23], v8, WS, s59 offen sc1
        buffer_load_dword v24, v8, WS, s67 offen offset:4092 sc1
        buffer_load_dwordx4 v[28:31], v8, WS, s60 offen sc1
        buffer_load_dwordx4 v[32:35], v8, WS, s61 offen sc1
        buffer_load_dword v36, v8, WS, s60 offen offset:4092 sc1
        """.replace("WS", WS))
    def up_check():
        for i in range(9): A("v_bitop3_b32 %s, %s, %s, s84 bitop3:0x96" % (v(28 + i), v(28 + i), v(16 + i)))
        A("v_or3_b32 v28, v28, v29, v30\nv_or3_b32 v31, v31, v32, v33\nv_or3_b32 v34, v34, v35, v36\nv_or3_b32 v28, v28, v31, v34\nv_cmp_ne_u32 vcc, 0, v28")
    up_loads()
    A("""
    ds_read_b128 v[40:43], v172 offset:%d
    ds_read_b128 v[44:47], v173 offset:%d
    ds_read_b64_tr_b16 v[48:49], v12 offset:%d
    ds_read_b64_tr_b16 v[50:51], v12 offset:%d
    ds_read_b64_tr_b16 v[52:53], v12 offset:%d
    ds_read_b64_tr_b16 v[54:55], v12 offset:%d
    ds_read_b128 v[56:59], v13
    s_waitcnt lgkmcnt(6)
    buffer_store_dwordx4 v[40:43], v135, WS, s57 offen sc0 sc1
    s_waitcnt lgkmcnt(5)
    buffer_store_dwordx4 v[44:47], v135, WS, s64 offen sc0 sc1
    s_waitcnt lgkmcnt(3)
    buffer_store_dwordx4 v[48:51], v9, WS, s69 offen sc0 sc1
    s_add_u32 s69, s69, 0x20000
    s_cmp_ge_u32 s5, 12
    s_cselect_b32 s69, 0x40000000, s69
    s_lshl_b32 s55, s2, 6
    s_add_u32 s55, s55, %d
    s_cmp_lg_u32 s3, 0
    s_cselect_b32 s55, 0x40000000, s55
    s_waitcnt lgkmcnt(0)
    buffer_store_dwordx4 v[52:55], v9, WS, s69 offen sc0 sc1
    s_mov_b64 exec, 15
    buffer_store_dwordx4 v[56:59], v9, WS, s55 offen sc0 sc1
    s_mov_b64 exec, -1
    """.replace("WS", WS) % (L_SQP, L_SQP + 4096, L_SWD, L_SWD + 2048, L_SWD + 4096, L_SWD + 6144, ST))
    n = 0
    for ph in range(4):
        for g in range(8):
            A("ds_read_b128 %s, v176 offset:%d" % (a(128 + 32 * ph + 4 * g, 4), 512 * g + 64 * ph))
            n += 1
            if n % 8 == 0 and n < 32: A("s_waitcnt lgkmcnt(4)")
    A("""
    s_and_b32 s55, s54, 0xffff
    s_lshr_b32 s56, s54, 16
    v_mov_b32 v14, s55
    v_mov_b32 v15, s56
    v_lshl_add_u32 v13, v4, 2, 3
    v_sub_u32 v13, v13, v2
    v_cmp_eq_u32 s[62:63], 0, v0
    s_mov_b32 s64, 0x05040100
    s_mov_b32 s65, 0x07060302
    """)
    for jj in range(4):
        A("v_cmp_eq_u32 vcc, %d, v13" % jj)
        A("v_cndmask_b32 %s, 0, v14, vcc\nv_cndmask_b32 %s, 0, v15, vcc" % (v(184 + jj), v(188 + jj)))
    TSTAMP()
    A("s_waitcnt vmcnt(5)")
    up_check()
    A("s_cbranch_vccz L_upok")
    A.label("L_uprt")
    A("s_sub_u32 s85, s85, 1\ns_cbranch_scc1 L_upx")
    up_loads()
    A("s_waitcnt vmcnt(0)")
    up_check()
    A("s_cbranch_vccnz L_uprt\ns_branch L_upok")
    A.label("L_upx")
    A("s_mov_b32 s85, 0")
    A.label("L_upok")
    TSTAMP()
    A("v_cndmask_b32 v24, v24, 0, s[62:63]")
    Wd_ = lambda i: v(24) if i < 0 else v(16 + i)
    for c in range(2):
        for pi in range(2):
            for jj in range(4):
                lo = 6 + pi - 2 * jj; hi = lo - 1
                A("v_perm_b32 %s, %s, %s, %s" % (v(28 + 4 * (2 * c + pi) + jj), Wd_(hi), Wd_(lo), "s64" if c == 0 else "s65"))
            A("ds_write_b128 v7, %s offset:%d" % (v(28 + 4 * (2 * c + pi), 4), (2 * c + pi) * U_STR))
    A("""
    s_lshl_b32 s55, s2, 4
    s_add_u32 s55, s55, %d
    s_cmp_lg_u32 s3, 0
    s_cselect_b32 s55, 0x40000000, s55
    v_mov_b32 v14, s84
    s_waitcnt vmcnt(0) lgkmcnt(0)
    s_barrier
    s_mov_b64 exec, 1
    buffer_store_dword v14, v9, %s, s55 offen sc0 sc1
    s_mov_b64 exec, -1
    """ % (FL, WS))
    TSTAMP()
    BF = lambda buf, ct: v(72 + 32 * buf + 4 * ct, 4)
    ACC = lambda t: v(136 + 4 * t, 4)
    KF = lambda ph, g: a(128 + 32 * ph + 4 * g, 4)
    def bread(ph, ct): A("ds_read_b128 %s, v5 offset:%d" % (BF(ph & 1, ct), 512 * ct + 64 * (3 - ph)))
    for ct in range(8): bread(0, ct)
    for e in range(2):
        for c in range(2):
            A("ds_read_b128 %s, v6 offset:%d" % (v(192 + 8 * e + 4 * c, 4), 2 * c * U_STR + 512 * e))
    side = []
    pre = ["s_movk_i32 s55, 0x2aab", "s_movk_i32 s56, 2752"]
    for i3 in range(3):
        pre += """v_add_u32 v14, %d, v1
        v_mul_u32_u24 v15, s55, v14
        v_lshrrev_b32 v15, 16, v15
        v_mul_u32_u24 v11, 6, v15
        v_sub_u32 v14, v14, v11
        v_bfe_u32 v11, v15, 2, 2
        v_lshlrev_b32 v11, 3, v11
        v_lshrrev_b32 v12, 4, v15
        v_lshl_add_u32 v11, v12, 2, v11
        v_and_b32 v15, 3, v15
        v_add_u32 v11, v11, v15
        v_mul_u32_u24 v11, s56, v11
        v_lshl_add_u32 %s, v14, 4, v11""".replace("        ", "").split("\n")
        pre[-13] = pre[-13] % (64 * i3); pre[-1] = pre[-1] % v(250 + i3)
    hpre = ("""s_lshl_b32 s55, s86, 2
    s_add_u32 s55, s55, s3
    s_mul_i32 s55, s55, %d
    s_mul_i32 s56, s87, 2816
    s_add_u32 s55, s55, s56
    s_add_u32 s89, s55, %d
    s_add_u32 s90, s89, %d
    v_mov_b32 v248, 0x40000000
    v_cmp_eq_u32 vcc, 3, v4
    v_cndmask_b32 v12, v9, v248, vcc
    s_cmp_eq_u32 s87, 31
    s_cselect_b64 vcc, -1, 0
    v_cndmask_b32 v253, v9, v12, vcc
    v_cndmask_b32 v254, v9, v248, vcc
    v_cndmask_b32 v240, v12, v248, vcc
    v_lshrrev_b32 v11, 2, v2
    v_lshlrev_b32 v241, 4, v2
    v_cmp_eq_u32 vcc, v11, v4
    v_cndmask_b32 v241, v248, v241, vcc
    s_lshl_b32 s55, s86, 10
    s_lshl_b32 s56, s3, 8
    s_add_u32 s55, s55, s56
    s_add_u32 s55, s55, %d
    s_cmp_eq_u32 s87, 31
    s_cselect_b32 s91, s55, 0x40000000
    s_mul_i32 s57, s87, 88
    s_mul_i32 s76, s3, 12288""" % (2 * HG, HH, HG, R2)).replace("    ", "").split("\n")
    HV = ["v253", "v254", "v240"]
    fills = ["buffer_store_dwordx4 v[244:247], %s, %s, %s offen offset:%d sc0 sc1" % (HV[ft], WS, "s90" if g else "s89", 1024 * ft) for ft in range(3) for g in range(2)]
    fills.append("buffer_store_dwordx4 v[244:247], v241, %s, s91 offen sc0 sc1" % WS)
    dma = [(gi, arr, i3) for gi in range(4) for arr in range(2) for i3 in range(3)]
    vmq = []
    def w1dma():
        gi, arr, i3 = dma.pop(0)
        if arr == 0 and i3 == 0:
            A("s_lshl_b32 s55, s3, 2\ns_add_u32 s55, s55, s88\ns_add_u32 s55, s55, %d\ns_and_b32 s55, s55, 15\ns_mul_i32 s77, s55, 88064\ns_add_u32 s77, s77, s57" % gi)
        A("s_add_u32 m0, s76, %d" % (arr * L_WU + gi * 3072 + i3 * 1024))
        A("buffer_load_dwordx4 %s, %s, s77 offen lds" % (v(250 + i3), srd(S_WU if arr else S_WG)))
        vmq.append("dma")
    def vmwait(tag):
        idx = max(i for i, t in enumerate(vmq) if t == tag)
        A("s_waitcnt vmcnt(%d)" % (len(vmq) - 1 - idx))
    wdl = [(i, tm) for i in range(11) for tm in range(4)]
    def wdload():
        i, tm = wdl.pop(0)
        A("buffer_load_dwordx4 %s, %s, %s, s92 offen offset:%d sc1" % (a(16 * i + 4 * tm, 4), "v238" if tm < 2 else "v239", WS, 1024 * (tm & 1)))
        if tm == 3: A("s_add_u32 s92, s92, 0x1000")
        vmq.append("wd")
    wdpre = ("""s_and_b32 s55, s3, 1
    s_lshl_b32 s55, s55, 11
    v_add_u32 v239, s55, v9
    v_xor_b32 v238, 0x800, v239
    s_and_b32 s55, s5, 7
    s_mul_i32 s55, s55, 44
    s_mul_i32 s56, s3, 11
    s_add_u32 s55, s55, s56
    s_lshl_b32 s55, s55, 12
    s_add_u32 s92, s55, %d
    s_lshl_b32 s93, s3, 10
    s_add_u32 s93, s93, %d""" % (WDF, FL)).replace("    ", "").split("\n")
    def fl_load(): A("buffer_load_dword v13, v9, %s, s93 offen sc1" % WS)
    touched = set()
    alu = hpre + pre + wdpre
    NDMA1 = opt.get('ndma1', 16)
    for ph in range(4):
        if ph < 3: order = [(g, ct) for ct in range(8) for g in range(8 - ct)]
        else: order = [(t - ct, ct) for t in range(8) for ct in range(t + 1)]
        seen = set()
        for idx, (g, ct) in enumerate(order):
            if ph == 0 and ct not in seen:
                A("s_waitcnt lgkmcnt(%d)" % (11 - ct)); seen.add(ct)
            if ph > 0 and idx == 0: A("s_waitcnt lgkmcnt(0)")
            t = g + ct
            A("%s %s, %s, %s, %s" % (MF, ACC(t), KF(ph, g), BF(ph & 1, ct), ACC(t) if t in touched else "0"))
            touched.add(t)
            if 0 < ph < 3 and 24 <= idx < 32: bread(ph + 1, idx - 24)
            if ph == 0:
                for _ in range(3):
                    if alu:
                        x = alu.pop(0); A(x)
                        while alu and (x.startswith("s_cmp") or x.startswith("v_cmp") or x.startswith("s_cselect_b64") or alu[0].startswith("v_cndmask")):
                            x = alu.pop(0); A(x)
                if not alu and idx >= 24 and fills: A(fills.pop(0)); vmq.append("fill")
            if ph == 1:
                if idx % 4 == 1 and 24 - len(dma) < NDMA1: w1dma()
                if idx == 34: fl_load(); vmq.append("fl")
            if ph == 2:
                if idx == opt.get('flchk', 14):
                    vmwait("fl")
                    A("v_cmp_ne_u32 vcc, s84, v13")
                if idx == opt.get('flchk', 14) + 1:
                    A("s_cbranch_vccnz L_flrt")
                    A.label("L_flok")
                    A("buffer_load_dwordx4 v[44:47], v9, %s, s68 offen sc1\nbuffer_load_dwordx4 v[48:51], v9, %s, s68 offen offset:1024 sc1" % (WS, WS)); vmq.extend(["qp", "qp"])
                if idx in (opt.get('flchk', 14) + 2, opt.get('flchk', 14) + 3):
                    e = idx - opt.get('flchk', 14) - 2
                    A("buffer_load_dwordx4 %s, v10, %s, s71 offen offset:%d sc1" % (v(52 + 4 * e, 4), WS, 2048 * e))
                    A("buffer_load_dwordx4 %s, v10, %s, s71 offen offset:%d sc1" % (v(60 + 4 * e, 4), WS, 2048 * e + 32)); vmq.extend(["qp", "qp"])
                if idx > opt.get('flchk', 14) + 3 and idx % 3 == 1 and 24 - len(dma) < NDMA1: w1dma()
            if ph == 3:
                if ct == 0 and t >= 2: A("ds_write_b128 v242, %s offset:%d" % (ACC(t - 2), 1024 * (t - 2)))
                if idx % 4 == 2 and 24 - len(dma) < NDMA1: w1dma()
        if ph == 0:
            assert not alu
            while fills: A(fills.pop(0)); vmq.append("fill")
            A("s_waitcnt lgkmcnt(0)")
            for ct in range(8): bread(1, ct)
            for e in range(2):
                for c in range(2):
                    A("%s %s, %s, %s, 0" % (MF, v(168 + 8 * e + 4 * c, 4), v(184 + 4 * c, 4), v(192 + 8 * e + 4 * c, 4)))
    stubs.append("""L_flrt:
    s_sub_u32 s85, s85, 1
    s_cbranch_scc1 L_flx
    buffer_load_dword v13, v9, %s, s93 offen sc1
    s_waitcnt vmcnt(0)
    v_cmp_ne_u32 vcc, s84, v13
    s_cbranch_vccnz L_flrt
    s_branch L_flok
    L_flx:
    s_mov_b32 s85, 0
    s_branch L_flok""" % WS)
    A("ds_write_b128 v242, %s offset:%d" % (ACC(6), 1024 * 6))
    vmwait("qp")
    A("s_mov_b32 s55, 0xffff0000")
    for e in range(2):
        for j in range(4):
            A("v_lshlrev_b32 %s, 16, %s" % (v(208 + 8 * e + j), v(44 + 4 * e + j)))
            A("v_and_b32 %s, s55, %s" % (v(212 + 8 * e + j), v(44 + 4 * e + j)))
        if e == 0: A("ds_write_b128 v242, %s offset:%d" % (ACC(7), 1024 * 7))
    A("s_waitcnt lgkmcnt(0)\ns_barrier")
    TSTAMP()
    for e in range(2):
        for src in range(4):
            A("ds_read_b128 %s, v243 offset:%d" % (v(72 + 16 * e + 4 * src, 4), 8192 * src + 1024 * e))
    for e in range(2):
        for c in range(2):
            for j in (0, 2):
                A("v_pk_fma_f32 %s, %s, %s, %s" % (v(104 + 8 * e + 4 * c + j, 2), v(208 + 8 * e + 4 * c + j, 2), v(52 + 4 * e + j, 2), v(60 + 4 * e + j, 2)))
    for e in range(2):
        for c in range(2):
            A("s_waitcnt lgkmcnt(%d)" % (6 - 4 * e - 2 * c))
            for j in (0, 2):
                d = v(168 + 8 * e + 4 * c + j, 2)
                A("v_pk_add_f32 %s, %s, %s" % (d, d, v(72 + 16 * e + 8 * c + j, 2)))
            for j in (0, 2):
                d = v(168 + 8 * e + 4 * c + j, 2)
                A("v_pk_add_f32 %s, %s, %s" % (d, d, v(76 + 16 * e + 8 * c + j, 2)))
            for j in (0, 2):
                d = v(168 + 8 * e + 4 * c + j, 2)
                A("v_pk_fma_f32 %s, %s, %s, %s" % (d, d, v(104 + 8 * e + 4 * c + j, 2), v(208 + 8 * e + 4 * c + j, 2)))
        for j in range(4):
            A("v_cvt_pk_bf16_f32 %s, %s, %s" % (v(16 + 4 * e + j), v(168 + 8 * e + j), v(172 + 8 * e + j)))
        A("buffer_store_dwordx4 %s, v249, %s, %s offen sc0 sc1" % (v(16 + 4 * e, 4), WS, "s73" if e else "s72")); vmq.append("hp")
    TSTAMP()
    while dma: w1dma()
    for _ in range(opt.get('wd_h2', 0)): wdload()
    A("""
    s_add_u32 s55, s76, 88
    s_movk_i32 s56, 96
    v_mul_lo_u32 v14, v1, s56
    v_add_u32 v14, s55, v14
    v_mov_b32 v224, 0x3f803f80
    v_mov_b32 v225, 0x3f803f80
    v_mov_b32 v226, 0x3f803f80
    v_mov_b32 v227, 0x3f803f80
    v_lshrrev_b32 v5, 2, v1
    v_mul_u32_u24 v5, 96, v5
    v_and_b32 v15, 3, v1
    v_lshl_add_u32 v5, v15, 3, v5
    v_add_u32 v6, %d, v5
    s_lshl_b32 s55, s3, 12
    v_add_u32 v7, s55, v9
    s_lshl_b32 s67, s86, 18
    s_add_u32 s67, s67, %d
    s_lshl_b32 s55, s3, 5
    s_cmp_eq_u32 s3, 3
    s_cselect_b32 s55, %d, s55
    v_add_u32 v10, s55, v5
    s_and_b32 s56, s3, 1
    s_lshl_b32 s56, s56, 5
    s_add_u32 s56, s56, 32
    v_add_u32 v15, s56, v6
    v_lshlrev_b32 v8, 4, v4
    v_add_u32 v8, %d, v8
    """ % (L_WU, HP, L_WU, L_CS))
    vmwait("dma")
    A("ds_write_b64 v14, v[224:225]\nds_write_b64 v14, v[224:225] offset:6144\ns_waitcnt lgkmcnt(0)\ns_barrier")
    TSTAMP()
    XS = lambda st: 16 + 16 * (st & 3)
    AC = lambda arr, ft, tau: v(80 + 48 * arr + 16 * ft + 4 * tau, 4)
    WF = lambda st, arr, ft: 176 + 24 * (st & 1) + 12 * arr + 4 * ft
    def xload_txt(st):
        r = ["s_add_u32 s55, s88, %d" % st, "s_and_b32 s55, s55, 15", "s_lshl_b32 s55, s55, 14", "s_add_u32 s55, s55, s67"]
        r += ["buffer_load_dwordx4 %s, v7, %s, s55 offen offset:%d sc1" % (v(XS(st) + 4 * j, 4), WS, 1024 * j) for j in range(4)]
        return "\n".join(r)
    def xload(st):
        A(xload_txt(st)); vmq.extend(["x%d" % st] * 4)
    def xchk(st):
        b = XS(st)
        return ["v_max3_u32 v11, %s, %s, %s" % (v(b), v(b + 4), v(b + 8)), "v_max_u32 v11, v11, %s" % v(b + 12), "v_cmp_eq_u32 vcc, -1, v11"]
    def xstub(st, tag):
        stubs.append("L_xr%s:\ns_sub_u32 s85, s85, 1\ns_cbranch_scc1 L_xx%s\n%s\ns_waitcnt vmcnt(0)\n%s\ns_cbranch_vccnz L_xr%s\ns_branch L_xo%s\nL_xx%s:\ns_mov_b32 s85, 0\ns_branch L_xo%s"
                     % (tag, tag, xload_txt(st), "\n".join(xchk(st)), tag, tag, tag, tag))
    def wreads(st):
        return ["ds_read_b64_tr_b16 %s, %s offset:%d" % (a(WF(st, arr, ft) + 2 * h, 2), "v6" if arr else "v5", st * 3072 + h * 1536 + ft * 32)
                for arr in range(2) for ft in range(3) for h in range(2)]
    def swaps(st):
        b = XS(st)
        return ["v_swap_b32 %s, %s" % (v(b + 4 * j + t), v(b + 4 * t + j)) for j in range(4) for t in range(j + 1, 4)]
    for st in range(3): xload(st)
    for st in range(16):
        b = 176 + 8 * (st & 3)
        for h in range(2): A("ds_read_b64_tr_b16 %s, v10 offset:%d" % (v(b + 2 * h, 2), st * 3072 + h * 1536))
        for h in range(2): A("ds_read_b64_tr_b16 %s, v15 offset:%d" % (v(b + 4 + 2 * h, 2), st * 3072 + h * 1536))
        if st >= 2:
            pb = 176 + 8 * ((st - 2) & 3)
            A("s_waitcnt lgkmcnt(8)")
            A("%s v[208:211], v[224:227], %s, %s" % (MF, v(pb, 4), "v[208:211]" if st > 2 else "0"))
            A("%s v[212:215], v[224:227], %s, %s" % (MF, v(pb + 4, 4), "v[212:215]" if st > 2 else "0"))
    for st in (14, 15):
        pb = 176 + 8 * (st & 3)
        A("s_waitcnt lgkmcnt(%d)" % (4 if st == 14 else 0))
        A("%s v[208:211], v[224:227], %s, v[208:211]" % (MF, v(pb, 4)))
        A("%s v[212:215], v[224:227], %s, v[212:215]" % (MF, v(pb + 4, 4)))
    for r in wreads(0): A(r)
    A("""
    s_lshl_b32 s55, s3, 6
    s_add_u32 s55, s55, %d
    v_lshl_add_u32 v14, v2, 2, s55
    s_and_b32 s56, s3, 1
    s_lshl_b32 s56, s56, 6
    s_add_u32 s56, s56, %d
    v_lshl_add_u32 v15, v2, 2, s56
    ds_write_b32 v14, v208
    ds_write_b32 v15, v212
    """ % (L_CS, L_CS + 256))
    TSTAMP()
    vmwait("x0")
    for r in xchk(0): A(r)
    A("s_cbranch_vccnz L_xrP")
    A.label("L_xoP"); xstub(0, "P")
    TSTAMP()
    for r in swaps(0): A(r)
    A("s_cmp_eq_u32 s87, 31\ns_cbranch_scc1 L_p2alt")
    WD_P2 = opt.get('wd_p2', 1)
    def p2loop(alt):
        for st in range(16):
            ml = []
            for arr in range(2):
                for ft in range(3):
                    for tau in range(4):
                        xf = v(XS(st) + 4 * tau, 4)
                        wf = a(WF(st, arr, ft), 4)
                        if alt and arr == 1 and ft == 2: wf = xf
                        ml.append("%s %s, %s, %s, %s" % (MF, AC(arr, ft, tau), wf, xf, AC(arr, ft, tau) if st else "0"))
            wr = wreads(st + 1) if st < 15 else ["ds_read_b128 %s, v8 offset:%d" % (v(176 + 4 * t, 4), 64 * t) for t in range(6)]
            sw = swaps(st + 1) if st < 15 else []
            ck = xchk(st + 1) if st < 15 else []
            tag = "%s%d" % ("b" if alt else "a", st + 1)
            A("s_waitcnt lgkmcnt(0)")
            if st == 8: A("s_barrier")
            for i, m in enumerate(ml):
                A(m)
                if i == 0 and st + 3 < 16: xload(st + 3)
                if i == 0 and st + 3 >= 16:
                    for _ in range(4):
                        if wdl: wdload()
                if 1 <= i <= 12 and wr: A(wr.pop(0))
                if i == 6:
                    for _ in range(WD_P2):
                        if wdl: wdload()
                if i == 11 and sw: vmwait("x%d" % (st + 1))
                if i >= 11 and ck: A(ck.pop(0))
                if i == 15 and sw:
                    A("s_cbranch_vccnz L_xr%s" % tag); A.label("L_xo%s" % tag); xstub(st + 1, tag)
                if i >= 15 and sw: A(sw.pop(0))
    sv = (list(vmq), list(wdl))
    p2loop(False)
    A("s_branch L_p2join")
    A.label("L_p2alt")
    vmq[:] = sv[0]; wdl[:] = sv[1]
    p2loop(True)
    A.label("L_p2join")
    TSTAMP()
    A("v_lshlrev_b32 v10, 2, v2\nv_add_u32 v10, 0xc0, v10")
    for _ in range(opt.get('wd_ep', 4)):
        if wdl: wdload()
    A("s_nop 3")
    for tau in range(4):
        A("ds_bpermute_b32 %s, v10, %s" % (v(200 + 2 * tau), v(80 + 32 + 4 * tau)))
    A("s_mov_b32 s57, 0xbb000000\ns_waitcnt lgkmcnt(0)")
    for tau in range(4): A("v_mul_f32 %s, s57, %s" % (v(200 + 2 * tau), v(200 + 2 * tau)))
    A("s_cmp_lg_u32 s87, 31\ns_cbranch_scc1 L_novar")
    A("v_and_b32 v10, 3, v2")
    for tau in range(4): A("v_mov_b32 %s, %s" % (v(208 + tau), v(80 + 48 + 32 + 4 * tau)))
    for j in range(1, 4):
        A("v_cmp_eq_u32 vcc, %d, v10" % j)
        for tau in range(4):
            A("v_cndmask_b32 %s, %s, %s, vcc" % (v(208 + tau), v(208 + tau), v(80 + 48 + 32 + 4 * tau + j)))
    A("s_mov_b32 s56, 0x3b000000\ns_mov_b32 s57, 0x3727c5ac")
    for tau in range(4): A("v_mul_f32 %s, s56, %s" % (v(208 + tau), v(208 + tau)))
    for tau in range(4): A("v_fma_f32 %s, -%s, %s, %s" % (v(208 + tau), v(200 + 2 * tau), v(200 + 2 * tau), v(208 + tau)))
    for tau in range(4): A("v_max_f32 %s, 0, %s" % (v(208 + tau), v(208 + tau)))
    for tau in range(4): A("v_add_f32 %s, s57, %s" % (v(208 + tau), v(208 + tau)))
    for tau in range(4): A("v_rcp_f32 %s, %s" % (v(208 + tau), v(208 + tau)))
    A("s_nop 0\nbuffer_store_dwordx4 v[208:211], v241, %s, s91 offen sc0 sc1" % WS)
    A.label("L_novar")
    for ft in range(3):
        for g in range(2):
            o = 16 + 8 * ft + 4 * g
            for e in range(2):
                tau = 2 * g + e
                gb = 80 + 16 * ft + 4 * tau; ub = gb + 48
                M = v(200 + 2 * tau, 2)
                for j in (0, 2):
                    A("v_pk_fma_f32 %s, %s, %s, %s op_sel_hi:[1,0,1]" % (v(gb + j, 2), v(176 + 4 * ft + j, 2), M, v(gb + j, 2)))
                    A("v_pk_fma_f32 %s, %s, %s, %s op_sel_hi:[1,0,1]" % (v(ub + j, 2), v(188 + 4 * ft + j, 2), M, v(ub + j, 2)))
                for j in range(4): A("v_max_f32 %s, 0, %s" % (v(gb + j), v(gb + j)))
                for j in (0, 2): A("v_pk_mul_f32 %s, %s, %s" % (v(gb + j, 2), v(gb + j, 2), v(ub + j, 2)))
                for j in (0, 2): A("v_cvt_pk_bf16_f32 %s, %s, %s" % (v(o + 2 * e + j // 2), v(gb + j), v(gb + j + 1)))
            A("buffer_store_dwordx4 %s, %s, %s, %s offen offset:%d sc0 sc1" % (v(o, 4), HV[ft], WS, "s90" if g else "s89", 1024 * ft))
    TSTAMP()
    while wdl: wdload()
    A("""
    s_lshr_b32 s71, s5, 3
    s_and_b32 s72, s5, 7
    s_and_b32 s73, s3, 1
    s_lshr_b32 s76, s3, 1
    s_lshl_b32 s55, s72, 1
    s_add_u32 s55, s55, s73
    s_lshl_b32 s55, s55, 14
    s_lshl_b32 s56, s71, 12
    s_add_u32 s55, s55, s56
    s_lshl_b32 s56, s76, 3
    s_add_u32 s55, s55, s56
    s_lshl_b32 s56, s4, 18
    s_add_u32 s55, s55, s56
    s_add_u32 s94, s55, %d
    s_lshl_b32 s55, s4, 2
    s_add_u32 s55, s55, s71
    s_lshl_b32 s56, s55, 1
    s_add_u32 s57, s56, s76
    s_xor_b32 s56, s57, 1
    s_mul_i32 s68, s56, %d
    s_mul_i32 s69, s57, %d
    s_mul_i32 s56, s3, 22528
    s_add_u32 s56, s56, %d
    s_add_u32 s68, s68, s56
    s_add_u32 s69, s69, s56
    s_lshl_b32 s77, s55, 16
    s_lshl_b32 s56, s76, 12
    s_add_u32 s77, s77, s56
    s_lshl_b32 s56, s72, 7
    s_add_u32 s77, s77, s56
    s_lshl_b32 s56, s73, 6
    s_add_u32 s77, s77, s56
    v_lshrrev_b32 v5, 1, v2
    v_lshlrev_b32 v5, 13, v5
    v_and_b32 v14, 1, v2
    v_lshl_add_u32 v5, v14, 10, v5
    v_lshl_add_u32 v5, v4, 4, v5
    s_lshl_b32 s67, s55, 8
    s_lshl_b32 s56, s76, 3
    s_add_u32 s67, s67, s56
    s_add_u32 s67, s67, %d
    v_lshlrev_b32 v12, 4, v2
    s_mul_i32 s56, s3, 12288
    v_add_u32 v10, s56, v9
    s_movk_i32 s72, 0x5000
    s_cmp_eq_u32 s3, 3
    s_cselect_b32 s72, 0x4800, s72
    """ % (HP, HG, HG, HH, R2))
    for k in (1, 2, 3):
        A("s_xor_b32 s56, s3, %d\ns_mul_i32 s56, s56, 12288\ns_add_u32 s56, s56, %d\nv_add_u32 %s, s56, v9" % (k, L_RED3 + (k - 1) * 4096, v(5 + k)))
    NR = opt.get('nr', 6)
    HF = lambda q: 40 + 8 * (q % NR) if False else 112 + 8 * (q % NR)
    def acc3(grp, tm, e):
        if grp == 1 and tm >= 2: return v(80 + 8 * (tm - 2) + 4 * e, 4)
        piece = {(0, 0): 2, (0, 1): 1, (1, 0): 0}[(grp, tm >> 1)]
        return a(176 + 16 * piece + 8 * (tm & 1) + 4 * e, 4)
    def hload_txt(q):
        grp, i = divmod(q, 11)
        sr = "s68" if grp == 0 else "s69"
        r = ["s_add_u32 s55, %s, %s" % (sr, ("%d" % (2048 * i)) if i < 10 else "s72")]
        r += ["buffer_load_dwordx4 %s, v9, %s, s55 offen offset:%d sc1" % (v(HF(q) + 4 * aa, 4), WS, 1024 * aa) for aa in range(2)]
        return "\n".join(r)
    def hload(q): A(hload_txt(q)); vmq.extend(["h%d" % q] * 2)
    def hchk(q): return "v_max_u32 v11, %s, %s\nv_cmp_eq_u32 vcc, -1, v11" % (v(HF(q)), v(HF(q) + 4))
    PF = NR - 1
    A("s_barrier")
    for q in range(PF): hload(q)
    TSTAMP()
    for q in range(22):
        grp, i = divmod(q, 11)
        vmwait("h%d" % q)
        A(hchk(q))
        A("s_cbranch_vccnz L_hr%d" % q); A.label("L_ho%d" % q)
        stubs.append("L_hr%d:\ns_sub_u32 s85, s85, 1\ns_cbranch_scc1 L_hx%d\n%s\ns_waitcnt vmcnt(0)\n%s\ns_cbranch_vccnz L_hr%d\ns_branch L_ho%d\nL_hx%d:\ns_mov_b32 s85, 0\ns_branch L_ho%d"
                     % (q, q, hload_txt(q), hchk(q), q, q, q, q))
        if q == 0: TSTAMP()
        b = HF(q)
        A("v_swap_b32 %s, %s\nv_swap_b32 %s, %s" % (v(b + 2), v(b + 4), v(b + 3), v(b + 5)))
        if q + PF < 22: hload(q + PF)
        if q == 22 - PF:
            for j in range(4): A("buffer_load_dwordx2 %s, v9, %s, s94 offen offset:%d sc1" % (v(200 + 2 * j, 2), WS, 1024 * j))
            A("buffer_load_dwordx2 v[208:209], v12, %s, s67 offen sc1" % WS); vmq.extend(["res"] * 5)
        for tm in range(4):
            for e in range(2):
                A("%s %s, %s, %s, %s" % (MF, acc3(grp, tm, e), a(16 * i + 4 * tm, 4), v(b + 4 * e, 4), acc3(grp, tm, e) if i else "0"))
            if q in (12, 13):
                piece = 2 if q == 12 else 1
                A("ds_write_b128 %s, %s offset:%d" % (v(6 + piece), a(176 + 16 * piece + 4 * tm, 4), 1024 * tm))
    for t in range(4):
        A("ds_write_b128 v6, %s offset:%d" % (a(176 + 4 * t, 4), 1024 * t))
    A("s_mov_b32 s55, 0xffff0000\ns_waitcnt vmcnt(0)\nv_cmp_eq_u32 vcc, -1, v208")
    for j in range(4):
        for e in range(2):
            A("v_lshlrev_b32 %s, 16, %s\nv_and_b32 %s, s55, %s" % (v(96 + 8 * e + 2 * j), v(200 + 2 * j + e), v(97 + 8 * e + 2 * j), v(200 + 2 * j + e)))
    A("s_cbranch_vccnz L_rr"); A.label("L_ro")
    stubs.append("L_rr:\ns_sub_u32 s85, s85, 1\ns_cbranch_scc1 L_ro\nbuffer_load_dwordx2 v[208:209], v12, %s, s67 offen sc1\ns_waitcnt vmcnt(0)\nv_cmp_eq_u32 vcc, -1, v208\ns_cbranch_vccnz L_rr\ns_branch L_ro" % WS)
    A("s_waitcnt lgkmcnt(0)\ns_barrier")
    TSTAMP()
    for sl in range(3):
        for t in range(4):
            A("ds_read_b128 %s, v10 offset:%d" % (v(112 + 16 * sl + 4 * t, 4), L_RED3 + 4096 * sl + 1024 * t))
    for sl in range(3):
        A("s_waitcnt lgkmcnt(%d)" % (8 - 4 * sl))
        for r in range(0, 16, 2):
            A("v_pk_add_f32 %s, %s, %s" % (v(80 + r, 2), v(80 + r, 2), v(112 + 16 * sl + r, 2)))
    for e in range(2):
        for mt in range(2):
            for j in (0, 2):
                d = v(80 + 8 * mt + 4 * e + j, 2)
                A("v_pk_fma_f32 %s, %s, v[208:209], %s op_sel:[0,%d,0] op_sel_hi:[1,%d,1]" % (d, d, v(96 + 8 * e + 4 * mt + j, 2), e, e))
        for mt in range(2):
            for j in (0, 2):
                A("v_cvt_pk_bf16_f32 %s, %s, %s" % (v(16 + 4 * e + 2 * mt + j // 2), v(80 + 8 * mt + 4 * e + j), v(81 + 8 * mt + 4 * e + j)))
        A("buffer_store_dwordx4 %s, v5, %s, s77 offen offset:%d" % (v(16 + 4 * e, 4), srd(S_OUT), 2048 * e))
    A("""
    s_or_b32 s55, s2, s3
    s_cmp_lg_u32 s55, 0
    s_cselect_b32 s55, 0x40000000, 0
    v_mov_b32 v14, s84
    s_mov_b64 exec, 1
    buffer_store_dword v14, v9, %s, s55 offen
    s_mov_b64 exec, -1
    """ % WS)
    if stamp:
        A("s_waitcnt vmcnt(0)")
        TSTAMP()
        A("s_cmp_lg_u32 s3, 0\ns_cbranch_scc1 L_end")
        A("s_memrealtime s[80:81]\ns_waitcnt lgkmcnt(0)\nv_writelane_b32 v255, s80, 62\nv_writelane_b32 v255, s82, 63\nv_writelane_b32 v255, s85, 61")
        A("s_lshl_b32 s55, s2, 8\ns_add_u32 s55, s55, %d\nv_lshlrev_b32 v25, 2, v1\nbuffer_store_dword v255, v25, %s, s55 offen" % (TS, WS))
        if opt.get('dbg'):
            sel = [2, 4, 5, 7, 8, 9, 11, 13, 14, 15, 17, 18, 19]
            A("s_load_dwordx2 s[48:49], s[0:1], 88\ns_mov_b32 s50, 256\ns_mov_b32 s51, 0x20000\nv_mov_b32 v26, 0")
            for i, x in enumerate(sel): A("v_readlane_b32 s55, v255, %d\ns_nop 3\nv_writelane_b32 v26, s55, %d" % (x, i))
            A("s_not_b32 s55, s82\nv_writelane_b32 v26, s55, 15\nv_writelane_b32 v26, s80, 14\nv_writelane_b32 v26, s82, 13\ns_waitcnt lgkmcnt(0)\ns_mov_b64 exec, 0xffff\nbuffer_atomic_umax v26, v25, s[48:51], 0 offen sc1")
    A.label("L_end")
    A("s_endpgm")
    for st_ in stubs:
        A("s_nop 7")
        A(st_)
    A.raw(""".section .rodata,"a"
.p2align 6
.amdhsa_kernel %s_kernel
  .amdhsa_next_free_vgpr 512
  .amdhsa_next_free_sgpr 102
  .amdhsa_accum_offset 256
  .amdhsa_group_segment_fixed_size 0
  .amdhsa_kernarg_size 104
  .amdhsa_user_sgpr_count 2
  .amdhsa_user_sgpr_kernarg_segment_ptr 1
  .amdhsa_system_sgpr_workgroup_id_x 1
  .amdhsa_float_denorm_mode_32 3
.end_amdhsa_kernel""" % NAME)
    return A.text()

if __name__ == "__main__":
    out = sys.argv[1] if len(sys.argv) > 1 else "cdna_kernels/%s.s" % NAME
    stamp = len(sys.argv) > 2 and sys.argv[2] == "stamp"
    kw = {}; opt = {}
    for x in sys.argv[3:]:
        k, val = x.split("=")
        if k in ("RBX", "ROT"): kw[k] = int(val)
        elif k in ("NT", "TNT"): kw[k] = val
        else: opt[k] = int(val)
    open(out, "w").write(gen(stamp, opt=opt, **kw))
    print("wrote", out)
```

```python
import sys
from asm import Asm, v, a, s

NAME = "sequential_preLN__ssm_conv_h3__glu_gated_reglu__prompt"

EP = 0x0; FL = 0x1000; ST = 0x4000; R2 = 0x8000; TS = 0x10000
UP = 0x100000; UPB = 0x300000; QP = 0x500000; HP = 0x700000; WDF = 0x900000; HH = 0xB00000
WS_BYTES = 0x1200000
HG = 88064
L_W1 = 0; L_WU = 49152
L_KC = 98304; KC_STR = 4640
L_U = L_KC + 8 * KC_STR; U_STR = 4224
L_CS = L_U + 4 * U_STR
L_STAT = L_CS + 384
LDS_BYTES = L_STAT + 1024
L_SUP = 0; L_SQP = 8192; L_SWD = 16384
L_RED = L_KC
L_RED3 = 0
S_K, S_V, S_Q, S_SK, S_SSM, S_WG, S_WU, S_WD, S_OUT, S_WS, S_T = 8, 12, 16, 20, 24, 28, 32, 36, 40, 44, 48
sDP = 52; sD = 54
sPC = 74
sN = 84
sBUD = 85
sRB = 86; sCB = 87; sROT = 88
sHA = 89; sHB = 90
BUDGET = 200000
WS = s(S_WS, 4)
MF = "v_mfma_f32_16x16x32_bf16"
def srd(i): return s(i, 4)

def gen(stamp=False, RBX=4, ROT=1, NT="nt", TNT="", opt=None):
    opt = opt or {}
    A = Asm()
    stubs = []
    nst = [0]
    def TSTAMP():
        if stamp:
            A("s_memtime s[80:81]\ns_waitcnt lgkmcnt(0)\ns_sub_u32 s80, s80, s78\nv_writelane_b32 v255, s80, %d" % nst[0]); nst[0] += 1
    A.raw(open('cdna_kernels/%s.s.ref' % NAME).read().split('; @launch grid')[0].rstrip('\n'))
    A.raw("; @launch grid=(256,1,1) block=(256,1,1) lds=%d" % LDS_BYTES)
    A.raw('.amdgcn_target "amdgcn-amd-amdhsa--gfx950"\n.text\n.globl %s_kernel\n.p2align 8\n.type %s_kernel,@function\n%s_kernel:' % (NAME, NAME, NAME))
    LRB = {1: 0, 2: 1, 4: 2, 8: 3}[RBX]

    A("s_cmp_ge_u32 s2, 256\ns_cbranch_scc1 L_end")
    for reg, off in ((S_K, 8), (S_V, 16), (S_SK, 24), (S_Q, 0), (S_WS, 96), (S_SSM, 32), (S_WD, 72), (sDP, 40), (S_WG, 56), (S_WU, 64), (S_OUT, 80)):
        A("s_load_dwordx2 %s, s[0:1], %d" % (s(reg, 2), off))
    if stamp: A("s_memtime s[78:79]\ns_memrealtime s[82:83]\nv_mov_b32 v255, 0"); nst[0] += 1
    A("s_getpc_b64 %s" % s(sPC, 2))
    for reg, nb in ((S_K, 2097152), (S_V, 2097152), (S_Q, 2097152), (S_SK, 4096), (S_WS, WS_BYTES), (S_SSM, 2097152),
                    (S_WD, 1376 * 1024), (S_WG, 512 * 2752), (S_WU, 512 * 2752), (S_OUT, 2097152), (S_T, 512 * 2752)):
        A("s_mov_b32 %s, %d\ns_mov_b32 %s, 0x20000" % (s(reg + 2), nb, s(reg + 3)))
    A("""
    v_lshrrev_b32 v4, 6, v0
    v_and_b32 v1, 63, v0
    v_and_b32 v2, 15, v0
    v_readfirstlane_b32 s3, v4
    v_lshrrev_b32 v3, 4, v0
    v_and_b32 v4, 3, v3
    s_and_b32 s4, s2, 7
    s_lshr_b32 s5, s2, 3
    s_lshl_b32 s55, s5, 16
    s_lshl_b32 s56, s4, 7
    s_add_u32 s55, s55, s56
    v_lshlrev_b32 v5, 12, v3
    v_lshl_add_u32 v5, v2, 3, v5
    v_add_u32 v5, s55, v5
    v_subrev_u32 v6, 0xc00, v5
    v_and_b32 v6, 0x7fffffff, v6
    v_lshrrev_b32 v7, 1, v3
    v_lshlrev_b32 v7, 13, v7
    v_and_b32 v8, 1, v3
    v_lshl_add_u32 v7, v8, 10, v7
    v_lshl_add_u32 v7, v2, 3, v7
    v_add_u32 v7, s55, v7
    s_lshl_b32 s56, s4, 9
    v_lshl_add_u32 v8, v2, 5, s56
    v_lshlrev_b32 v9, 4, v1
    s_lshl_b32 s57, s2, 13
    s_lshl_b32 s58, s3, 11
    s_add_u32 s57, s57, s58
    s_movk_i32 s58, 0x1000
    s_lshl_b32 s66, s4, 5
    s_add_u32 s66, s66, s5
    s_waitcnt lgkmcnt(0)
    """)
    for i in range(3): A("buffer_load_dwordx2 %s, v6, %s, 0 offen offset:%d" % (v(16 + 2 * i, 2), srd(S_K), 1024 * i))
    for j in range(4): A("buffer_load_dwordx2 %s, v5, %s, 0 offen offset:%d %s" % (v(22 + 2 * j, 2), srd(S_K), 1024 * j, NT if opt.get('knt', 1) else ""))
    A("buffer_load_dwordx4 v[48:51], v8, %s, 0 offen" % srd(S_SK))
    A("buffer_load_dwordx4 v[52:55], v8, %s, 0 offen offset:16" % srd(S_SK))
    for j in range(4): A("buffer_load_dwordx2 %s, v5, %s, 0 offen offset:%d %s" % (v(30 + 2 * j, 2), srd(S_V), 1024 * j, NT))
    A("""
    s_load_dword %s, %s, 0
    s_lshl_b32 s55, s66, 2
    s_load_dword %s, %s, s55
    s_lshl_b32 s55, s5, 2
    s_add_u32 s55, s55, s3
    s_mul_i32 s55, s55, 384
    v_lshl_add_u32 v10, v1, 7, s55
    s_mov_b64 exec, 7
    global_load_dword v11, v10, %s
    s_mov_b64 exec, -1
    """ % (s(sN), s(S_WS, 2), s(sD), s(sDP, 2), s(sPC, 2)))
    for j in range(4): A("buffer_load_dwordx2 %s, v7, %s, %s offen offset:%d %s" % (v(38 + 2 * j, 2), srd(S_Q), "s58" if j >= 2 else "0", 2048 * (j & 1), NT))
    A("""
    s_lshr_b32 s55, s4, %d
    s_lshl_b32 s55, s55, %d
    s_and_b32 s56, s5, %d
    s_add_u32 s86, s55, s56
    s_and_b32 s55, s4, %d
    s_mul_i32 s55, s55, %d
    s_lshr_b32 s56, s5, %d
    s_add_u32 s87, s55, s56
    s_mul_i32 s88, s56, %d
    s_lshr_b32 s55, s66, 4
    s_lshl_b32 s72, s55, 14
    s_and_b32 s55, s66, 3
    s_lshl_b32 s55, s55, 10
    s_add_u32 s72, s72, s55
    s_bfe_u32 s55, s66, 0x20002
    s_lshl_b32 s55, s55, 8
    s_add_u32 s72, s72, s55
    s_lshl_b32 s55, s3, 19
    s_add_u32 s72, s72, s55
    s_add_u32 s72, s72, %d
    s_add_u32 s73, s72, 0x40000
    v_lshlrev_b32 v249, 4, v2
    v_lshl_add_u32 v249, v4, 12, v249
    v_mov_b32 v244, -1
    v_mov_b32 v245, -1
    v_mov_b32 v246, -1
    v_mov_b32 v247, -1
    s_mov_b32 s85, %d
    """ % (LRB, LRB, RBX - 1, RBX - 1, 32 // RBX, LRB, ROT, HP, BUDGET))
    A("""
    v_mov_b32 v140, 0
    v_mov_b32 v141, 0
    v_mov_b32 v142, 0
    v_mov_b32 v143, 0
    s_mul_i32 s55, s3, %d
    s_add_u32 s55, s55, %d
    v_add_u32 v132, s55, v9
    ds_write_b128 v132, v[140:143]
    v_xor_b32 v132, v3, v2
    v_lshlrev_b32 v132, 4, v132
    v_lshl_add_u32 v132, v2, 9, v132
    v_lshrrev_b32 v133, 1, v3
    v_and_b32 v134, 1, v3
    v_lshl_add_u32 v133, v134, 3, v133
    v_xor_b32 v133, v133, v2
    v_lshlrev_b32 v133, 4, v133
    v_lshl_add_u32 v133, v2, 9, v133
    v_add_u32 v132, %d, v132
    """ % (U_STR, L_U, L_SQP))
    A("""
    v_lshrrev_b32 v12, 3, v1
    v_and_b32 v13, 7, v1
    v_lshlrev_b32 v160, 10, v12
    v_lshl_add_u32 v160, v13, 4, v160
    s_lshl_b32 s59, s5, 15
    s_lshl_b32 s56, s3, 13
    s_add_u32 s59, s59, s56
    s_lshl_b32 s56, s4, 7
    s_add_u32 s59, s59, s56
    s_lshl_b32 s60, s3, 10
    s_lshr_b32 s55, s3, 1
    s_lshl_b32 s56, s66, 1
    s_add_u32 s56, s56, s55
    s_lshl_b32 s67, s56, 12
    s_and_b32 s55, s3, 1
    s_lshl_b32 s55, s55, 3
    s_add_u32 s61, s67, s55
    s_add_u32 s61, s61, 4
    s_mul_i32 s68, s3, %d
    s_add_u32 s68, s68, %d
    v_and_b32 v161, 31, v1
    v_lshlrev_b32 v161, 4, v161
    v_lshrrev_b32 v162, 5, v1
    v_lshl_add_u32 v14, v162, 2, v161
    s_sub_u32 s55, s55, 508
    v_add_u32 v14, s55, v14
    s_movk_i32 s56, %d
    v_mad_u32_u24 v15, v162, s56, v161
    v_add_u32 v15, s68, v15
    """ % (2 * KC_STR, L_KC, KC_STR))
    for jj in range(4):
        A("v_add_u32 %s, %d, v14\nv_and_b32 %s, 0x7fffffff, %s" % (v(164 + jj), 4 * jj, v(164 + jj), v(164 + jj)))
    span = 88 * (32 // RBX)
    A("""
    s_movk_i32 s56, 2752
    v_mul_lo_u32 v163, v12, s56
    s_bitcmp1_b32 s3, 0
    s_cselect_b32 s48, s32, s28
    s_cselect_b32 s49, s33, s29
    s_lshl_b32 s55, s5, 1
    s_lshr_b32 s56, s3, 1
    s_add_u32 s55, s55, s56
    s_mul_i32 s69, s55, 22016
    s_and_b32 s55, s4, %d
    s_mul_i32 s55, s55, %d
    s_add_u32 s69, s69, s55
    s_mov_b32 s55, 0xffff0000
    """ % (RBX - 1, span))
    ntouch = (span + 8 + 127 + 127) // 128
    ntouch = (ntouch + 7) // 8
    for i in range(ntouch):
        A("v_lshlrev_b32 v12, 7, v13\nv_add_u32 v12, %d, v12\nv_min_u32 v12, %d, v12\nv_add_u32 %s, v12, v163" % (1024 * i, span + 4, v(168 + i)))
    def late_loads(part):
        if part == 0:
            A("buffer_load_dwordx4 v[56:59], v9, %s, s57 offen %s" % (srd(S_Q), NT))
            A("buffer_load_dwordx4 v[60:63], v9, %s, s57 offen offset:1024 %s" % (srd(S_Q), NT))
            A("s_add_u32 m0, s68, 512")
            for i in range(4): A("buffer_load_dwordx4 v9, %s, s61 offen offset:%d lds" % (srd(S_SSM), 1024 * i))
            return 6
        if part == 1:
            A("s_add_u32 s61, s61, 4\ns_add_u32 m0, s68, %d" % (512 + KC_STR))
            for i in range(4): A("buffer_load_dwordx4 v9, %s, s61 offen offset:%d lds" % (srd(S_SSM), 1024 * i))
            for jj in range(4): A("buffer_load_dword %s, %s, %s, s67 offen" % (v(136 + jj), v(164 + jj), srd(S_SSM)))
            return 8
        if part == 2:
            A("s_add_u32 m0, s60, %d" % L_SWD)
            A("buffer_load_dwordx4 v160, %s, s59 offen %s lds" % (srd(S_WD), NT))
            A("s_add_u32 s59, s59, 0x100000\ns_add_u32 m0, s60, %d" % (L_SWD + 4096))
            A("buffer_load_dwordx4 v160, %s, s59 offen %s lds" % (srd(S_WD), NT))
            for i in range(ntouch): A("buffer_load_dword v11, %s, %s, s69 offen %s" % (v(168 + i), srd(S_T), TNT))
            A("buffer_store_dwordx4 v[244:247], v249, %s, s72 offen sc0 sc1" % WS)
            A("buffer_store_dwordx4 v[244:247], v249, %s, s73 offen sc0 sc1" % WS)
            return 4 + ntouch
    TSTAMP()
    A("s_waitcnt vmcnt(9)")
    TSTAMP()
    n0 = late_loads(0)
    for c in range(4):
        for tap in range(4):
            src = 48 + 2 * c + (tap >> 1); dst = 64 + 4 * tap + c
            A(("v_lshlrev_b32 %s, 16, %s" if tap % 2 == 0 else "v_and_b32 %s, s55, %s") % (v(dst), v(src)))
    for i in range(7):
        for e in range(2):
            src = 16 + 2 * i + e; dst = 80 + 4 * i + 2 * e
            A("v_lshlrev_b32 %s, 16, %s\nv_and_b32 %s, s55, %s" % (v(dst), v(src), v(dst + 1), v(src)))
    for tap in range(4):
        for j in range(4):
            for e in range(2):
                d = v(144 + 4 * j + 2 * e, 2); kk = v(80 + 4 * (j + 3 - tap) + 2 * e, 2); ww = v(64 + 4 * tap + 2 * e, 2)
                if tap == 0: A("v_pk_mul_f32 %s, %s, %s" % (d, kk, ww))
                else: A("v_pk_fma_f32 %s, %s, %s, %s" % (d, kk, ww, d))
    A("s_waitcnt vmcnt(%d)" % (5 + n0))
    for j in range(4):
        for e in range(2):
            src = 30 + 2 * j + e; dst = 108 + 4 * j + 2 * e
            A("v_lshlrev_b32 %s, 16, %s\nv_and_b32 %s, s55, %s" % (v(dst), v(src), v(dst + 1), v(src)))
    for j in range(4):
        for e in range(2):
            d = 144 + 4 * j + 2 * e
            A("v_pk_mul_f32 %s, %s, %s" % (v(d, 2), v(d, 2), v(108 + 4 * j + 2 * e, 2)))
    for j in range(4):
        for e in range(2):
            d = 144 + 4 * j + 2 * e
            A("v_cvt_pk_bf16_f32 %s, %s, %s" % (v(124 + 4 * e + j), v(d), v(d + 1)))
    A("ds_write_b128 v133, v[124:127]\nds_write_b128 v133, v[128:131] offset:256")
    A("""
    v_lshrrev_b32 v172, 1, v3
    v_xor_b32 v172, v172, v2
    v_lshlrev_b32 v172, 4, v172
    v_lshl_add_u32 v172, v3, 8, v172
    v_xor_b32 v173, 0x80, v172
    v_lshrrev_b32 v134, 3, v2
    v_lshlrev_b32 v134, 12, v134
    v_and_b32 v135, 7, v2
    v_lshl_add_u32 v134, v135, 4, v134
    v_lshl_add_u32 v134, v3, 13, v134
    v_lshlrev_b32 v135, 4, v2
    v_lshl_add_u32 v135, v3, 13, v135
    s_lshl_b32 s55, s4, 18
    s_lshl_b32 s56, s5, 7
    s_add_u32 s56, s56, s55
    s_add_u32 s56, s56, %d
    s_lshl_b32 s57, s5, 8
    s_add_u32 s57, s57, s55
    s_add_u32 s57, s57, %d
    s_add_u32 s58, s56, 0x20000
    s_add_u32 s62, s56, %d
    s_add_u32 s63, s58, %d
    s_add_u32 s64, s57, 0x20000
    s_waitcnt lgkmcnt(0)
    s_add_u32 s84, s84, 1
    s_or_b32 s84, s84, 0x80000000
    s_barrier
    """ % (UP, QP, UPB - UP, UPB - UP))
    TSTAMP()
    A("ds_read_b128 v[16:19], v172 offset:%d\nds_read_b128 v[20:23], v173 offset:%d" % (L_SUP, L_SUP + 4096))
    A("s_waitcnt lgkmcnt(1)")
    A("buffer_store_dwordx4 v[16:19], v134, %s, s56 offen sc0 sc1" % WS)
    for i in range(4): A("v_xor_b32 %s, s84, %s" % (v(24 + i), v(16 + i)))
    A("buffer_store_dwordx4 v[24:27], v134, %s, s62 offen sc0 sc1" % WS)
    A("s_waitcnt lgkmcnt(0)")
    A("buffer_store_dwordx4 v[20:23], v134, %s, s58 offen sc0 sc1" % WS)
    for i in range(4): A("v_xor_b32 %s, s84, %s" % (v(28 + i), v(20 + i)))
    A("buffer_store_dwordx4 v[28:31], v134, %s, s63 offen sc0 sc1" % WS)
    TSTAMP()
    n1 = late_loads(1)
    n2 = late_loads(2)
    A("s_waitcnt vmcnt(%d)" % (n0 + 4 + n1 + n2))
    for e in range(2):
        A("ds_write2_b32 v132, %s, %s offset0:%d offset1:%d" % (v(38 + e), v(40 + e), 64 * e, 64 * e + 1))
        A("ds_write2_b32 v132, %s, %s offset0:%d offset1:%d" % (v(42 + e), v(44 + e), 64 * e + 2, 64 * e + 3))
    A("v_mov_b32 v64, 0x3f803f80")
    for r in range(65, 69): A("v_mov_b32 %s, 0" % v(r))
    A("s_waitcnt vmcnt(%d)" % (n0 - 2 + 4 + n1 + n2))
    for i in range(4):
        for e in range(2):
            A("v_dot2c_f32_bf16 %s, %s, v64" % (v(65 + e), v(56 + 4 * e + i)))
            A("v_dot2c_f32_bf16 %s, %s, %s" % (v(67 + e), v(56 + 4 * e + i), v(56 + 4 * e + i)))
    for m in ("row_shr:1", "row_shr:2", "row_shr:4", "row_shr:8", "row_bcast:15 row_mask:0xa", "row_bcast:31 row_mask:0xc"):
        for r in range(65, 69):
            A("v_add_f32_dpp %s, %s, %s %s" % (v(r), v(r), v(r), m))
    A("s_mov_b32 s56, 0x3b000000\ns_mov_b32 s58, 0x3727c5ac")
    for e in range(2):
        A("v_mul_f32 %s, s56, %s" % (v(65 + e), v(65 + e)))
        A("v_mul_f32 %s, s56, %s" % (v(67 + e), v(67 + e)))
    for e in range(2): A("v_fma_f32 %s, -%s, %s, %s" % (v(67 + e), v(65 + e), v(65 + e), v(67 + e)))
    for e in range(2): A("v_max_f32 %s, 0, %s" % (v(67 + e), v(67 + e)))
    for e in range(2): A("v_add_f32 %s, s58, %s" % (v(67 + e), v(67 + e)))
    for e in range(2): A("v_rsq_f32 %s, %s" % (v(67 + e), v(67 + e)))
    for e in range(2): A("v_mul_f32_e64 %s, -%s, %s" % (v(65 + e), v(65 + e), v(67 + e)))
    A("""
    s_lshl_b32 s56, s3, 2
    s_add_u32 s56, s56, %d
    v_mov_b32 v69, s56
    s_mov_b32 exec_lo, 0
    s_mov_b32 exec_hi, 0x80000000
    ds_write2_b32 v69, v67, v68 offset0:0 offset1:4
    ds_write2_b32 v69, v65, v66 offset0:8 offset1:12
    s_mov_b64 exec, -1
    v_lshrrev_b32 v12, 2, v1
    v_lshlrev_b32 v12, 7, v12
    v_and_b32 v13, 3, v1
    v_lshl_add_u32 v12, v13, 4, v12
    s_lshr_b32 s55, s3, 1
    s_lshl_b32 s55, s55, 6
    s_and_b32 s69, s3, 1
    s_lshl_b32 s69, s69, 3
    s_add_u32 s55, s55, s69
    v_add_u32 v12, s55, v12
    s_mul_i32 s69, s4, 44
    s_add_u32 s69, s69, s5
    s_lshl_b32 s69, s69, 2
    s_add_u32 s69, s69, s3
    s_lshl_b32 s69, s69, 10
    s_add_u32 s69, s69, %d
    v_add_u32 v13, %d, v9
    """ % (L_STAT, WDF, L_STAT))
    A("""
    v_and_b32 v176, 3, v2
    s_movk_i32 s55, %d
    v_mul_lo_u32 v176, v176, s55
    v_lshrrev_b32 v14, 2, v2
    v_lshl_add_u32 v176, v14, 7, v176
    v_lshl_add_u32 v176, v4, 4, v176
    s_lshr_b32 s56, s3, 1
    s_mul_i32 s56, s56, %d
    s_and_b32 s58, s3, 1
    s_lshl_b32 s58, s58, 8
    s_add_u32 s56, s56, s58
    s_add_u32 s56, s56, %d
    v_add_u32 v176, s56, v176
    """ % (KC_STR, 4 * KC_STR, L_KC + 7 * 16))
    A("""
    v_and_b32 v5, 1, v2
    s_movk_i32 s55, %d
    v_mul_lo_u32 v5, v5, s55
    v_lshrrev_b32 v14, 1, v2
    v_lshl_add_u32 v5, v14, 4, v5
    v_lshl_add_u32 v6, v4, 7, v5
    v_lshlrev_b32 v14, 4, v4
    v_sub_u32 v5, v5, v14
    s_lshr_b32 s56, s3, 1
    s_mul_i32 s56, s56, %d
    s_sub_u32 s56, s56, s58
    s_add_u32 s56, s56, %d
    v_add_u32 v5, s56, v5
    s_lshl_b32 s56, s3, 10
    s_add_u32 s56, s56, %d
    v_add_u32 v6, s56, v6
    v_lshlrev_b32 v8, 4, v0
    v_add_u32 v7, %d, v8
    v_lshrrev_b32 v10, 1, v1
    v_lshlrev_b32 v10, 6, v10
    v_and_b32 v14, 1, v1
    v_lshl_add_u32 v10, v14, 4, v10
    s_lshl_b32 s56, s3, 13
    s_add_u32 s56, s56, %d
    v_add_u32 v242, s56, v9
    s_lshl_b32 s56, s3, 11
    s_add_u32 s56, s56, %d
    v_add_u32 v243, s56, v9
    s_lshl_b32 s67, s66, 13
    s_add_u32 s68, s67, %d
    s_add_u32 s67, s67, %d
    s_add_u32 s59, s67, 0x1000
    s_add_u32 s60, s67, %d
    s_add_u32 s61, s59, %d
    s_lshl_b32 s56, s3, 11
    s_add_u32 s68, s68, s56
    s_lshl_b32 s71, s3, 12
    s_add_u32 s71, s71, %d
    """ % (U_STR, 2 * U_STR, L_U + 20 * 16, L_U + 8 * 16, L_U + 8 * 16, L_RED, L_RED, QP, UP, UPB - UP, UPB - UP, ST))
    A("s_waitcnt vmcnt(%d)" % (2 + ntouch))
    A("ds_write_b128 v15, v[136:139]\ns_waitcnt lgkmcnt(0)\ns_barrier")
    TSTAMP()
    def up_loads():
        A("""
        buffer_load_dwordx4 v[16:19], v8, WS, s67 offen sc1
        buffer_load_dwordx4 v[20:23], v8, WS, s59 offen sc1
        buffer_load_dword v24, v8, WS, s67 offen offset:4092 sc1
        buffer_load_dwordx4 v[28:31], v8, WS, s60 offen sc1
        buffer_load_dwordx4 v[32:35], v8, WS, s61 offen sc1
        buffer_load_dword v36, v8, WS, s60 offen offset:4092 sc1
        """.replace("WS", WS))
    def up_check():
        for i in range(9): A("v_bitop3_b32 %s, %s, %s, s84 bitop3:0x96" % (v(28 + i), v(28 + i), v(16 + i)))
        A("v_or3_b32 v28, v28, v29, v30\nv_or3_b32 v31, v31, v32, v33\nv_or3_b32 v34, v34, v35, v36\nv_or3_b32 v28, v28, v31, v34\nv_cmp_ne_u32 vcc, 0, v28")
    up_loads()
    A("""
    ds_read_b128 v[40:43], v172 offset:%d
    ds_read_b128 v[44:47], v173 offset:%d
    ds_read_b64_tr_b16 v[48:49], v12 offset:%d
    ds_read_b64_tr_b16 v[50:51], v12 offset:%d
    ds_read_b64_tr_b16 v[52:53], v12 offset:%d
    ds_read_b64_tr_b16 v[54:55], v12 offset:%d
    ds_read_b128 v[56:59], v13
    s_waitcnt lgkmcnt(6)
    buffer_store_dwordx4 v[40:43], v135, WS, s57 offen sc0 sc1
    s_waitcnt lgkmcnt(5)
    buffer_store_dwordx4 v[44:47], v135, WS, s64 offen sc0 sc1
    s_waitcnt lgkmcnt(3)
    buffer_store_dwordx4 v[48:51], v9, WS, s69 offen sc0 sc1
    s_add_u32 s69, s69, 0x20000
    s_cmp_ge_u32 s5, 12
    s_cselect_b32 s69, 0x40000000, s69
    s_lshl_b32 s55, s2, 6
    s_add_u32 s55, s55, %d
    s_cmp_lg_u32 s3, 0
    s_cselect_b32 s55, 0x40000000, s55
    s_waitcnt lgkmcnt(0)
    buffer_store_dwordx4 v[52:55], v9, WS, s69 offen sc0 sc1
    s_mov_b64 exec, 15
    buffer_store_dwordx4 v[56:59], v9, WS, s55 offen sc0 sc1
    s_mov_b64 exec, -1
    """.replace("WS", WS) % (L_SQP, L_SQP + 4096, L_SWD, L_SWD + 2048, L_SWD + 4096, L_SWD + 6144, ST))
    n = 0
    for ph in range(4):
        for g in range(8):
            A("ds_read_b128 %s, v176 offset:%d" % (a(128 + 32 * ph + 4 * g, 4), 512 * g + 64 * ph))
            n += 1
            if n % 8 == 0 and n < 32: A("s_waitcnt lgkmcnt(4)")
    A("""
    s_and_b32 s55, s54, 0xffff
    s_lshr_b32 s56, s54, 16
    v_mov_b32 v14, s55
    v_mov_b32 v15, s56
    v_lshl_add_u32 v13, v4, 2, 3
    v_sub_u32 v13, v13, v2
    v_cmp_eq_u32 s[62:63], 0, v0
    s_mov_b32 s64, 0x05040100
    s_mov_b32 s65, 0x07060302
    """)
    for jj in range(4):
        A("v_cmp_eq_u32 vcc, %d, v13" % jj)
        A("v_cndmask_b32 %s, 0, v14, vcc\nv_cndmask_b32 %s, 0, v15, vcc" % (v(184 + jj), v(188 + jj)))
    TSTAMP()
    A("s_waitcnt vmcnt(5)")
    up_check()
    A("s_cbranch_vccz L_upok")
    A.label("L_uprt")
    A("s_sub_u32 s85, s85, 1\ns_cbranch_scc1 L_upx")
    up_loads()
    A("s_waitcnt vmcnt(0)")
    up_check()
    A("s_cbranch_vccnz L_uprt\ns_branch L_upok")
    A.label("L_upx")
    A("s_mov_b32 s85, 0")
    A.label("L_upok")
    TSTAMP()
    A("v_cndmask_b32 v24, v24, 0, s[62:63]")
    Wd_ = lambda i: v(24) if i < 0 else v(16 + i)
    for c in range(2):
        for pi in range(2):
            for jj in range(4):
                lo = 6 + pi - 2 * jj; hi = lo - 1
                A("v_perm_b32 %s, %s, %s, %s" % (v(28 + 4 * (2 * c + pi) + jj), Wd_(hi), Wd_(lo), "s64" if c == 0 else "s65"))
            A("ds_write_b128 v7, %s offset:%d" % (v(28 + 4 * (2 * c + pi), 4), (2 * c + pi) * U_STR))
    A("""
    s_lshl_b32 s55, s2, 4
    s_add_u32 s55, s55, %d
    s_cmp_lg_u32 s3, 0
    s_cselect_b32 s55, 0x40000000, s55
    v_mov_b32 v14, s84
    s_waitcnt vmcnt(0) lgkmcnt(0)
    s_barrier
    s_mov_b64 exec, 1
    buffer_store_dword v14, v9, %s, s55 offen sc0 sc1
    s_mov_b64 exec, -1
    """ % (FL, WS))
    TSTAMP()
    BF = lambda buf, ct: v(72 + 32 * buf + 4 * ct, 4)
    ACC = lambda t: v(136 + 4 * t, 4)
    KF = lambda ph, g: a(128 + 32 * ph + 4 * g, 4)
    def bread(ph, ct): A("ds_read_b128 %s, v5 offset:%d" % (BF(ph & 1, ct), 512 * ct + 64 * (3 - ph)))
    for ct in range(8): bread(0, ct)
    for e in range(2):
        for c in range(2):
            A("ds_read_b128 %s, v6 offset:%d" % (v(192 + 8 * e + 4 * c, 4), 2 * c * U_STR + 512 * e))
    side = []
    pre = ["s_movk_i32 s55, 0x2aab", "s_movk_i32 s56, 2752"]
    for i3 in range(3):
        pre += """v_add_u32 v14, %d, v1
        v_mul_u32_u24 v15, s55, v14
        v_lshrrev_b32 v15, 16, v15
        v_mul_u32_u24 v11, 6, v15
        v_sub_u32 v14, v14, v11
        v_bfe_u32 v11, v15, 2, 2
        v_lshlrev_b32 v11, 3, v11
        v_lshrrev_b32 v12, 4, v15
        v_lshl_add_u32 v11, v12, 2, v11
        v_and_b32 v15, 3, v15
        v_add_u32 v11, v11, v15
        v_mul_u32_u24 v11, s56, v11
        v_lshl_add_u32 %s, v14, 4, v11""".replace("        ", "").split("\n")
        pre[-13] = pre[-13] % (64 * i3); pre[-1] = pre[-1] % v(250 + i3)
    hpre = ("""s_lshl_b32 s55, s86, 2
    s_add_u32 s55, s55, s3
    s_mul_i32 s55, s55, %d
    s_mul_i32 s56, s87, 2816
    s_add_u32 s55, s55, s56
    s_add_u32 s89, s55, %d
    s_add_u32 s90, s89, %d
    v_mov_b32 v248, 0x40000000
    v_cmp_eq_u32 vcc, 3, v4
    v_cndmask_b32 v12, v9, v248, vcc
    s_cmp_eq_u32 s87, 31
    s_cselect_b64 vcc, -1, 0
    v_cndmask_b32 v253, v9, v12, vcc
    v_cndmask_b32 v254, v9, v248, vcc
    v_cndmask_b32 v240, v12, v248, vcc
    v_lshrrev_b32 v11, 2, v2
    v_lshlrev_b32 v241, 4, v2
    v_cmp_eq_u32 vcc, v11, v4
    v_cndmask_b32 v241, v248, v241, vcc
    s_lshl_b32 s55, s86, 10
    s_lshl_b32 s56, s3, 8
    s_add_u32 s55, s55, s56
    s_add_u32 s55, s55, %d
    s_cmp_eq_u32 s87, 31
    s_cselect_b32 s91, s55, 0x40000000
    s_mul_i32 s57, s87, 88
    s_mul_i32 s76, s3, 12288""" % (2 * HG, HH, HG, R2)).replace("    ", "").split("\n")
    HV = ["v253", "v254", "v240"]
    fills = ["buffer_store_dwordx4 v[244:247], %s, %s, %s offen offset:%d sc0 sc1" % (HV[ft], WS, "s90" if g else "s89", 1024 * ft) for ft in range(3) for g in range(2)]
    fills.append("buffer_store_dwordx4 v[244:247], v241, %s, s91 offen sc0 sc1" % WS)
    dma = [(gi, arr, i3) for gi in range(4) for arr in range(2) for i3 in range(3)]
    vmq = []
    def w1dma():
        gi, arr, i3 = dma.pop(0)
        if arr == 0 and i3 == 0:
            A("s_lshl_b32 s55, s3, 2\ns_add_u32 s55, s55, s88\ns_add_u32 s55, s55, %d\ns_and_b32 s55, s55, 15\ns_mul_i32 s77, s55, 88064\ns_add_u32 s77, s77, s57" % gi)
        A("s_add_u32 m0, s76, %d" % (arr * L_WU + gi * 3072 + i3 * 1024))
        A("buffer_load_dwordx4 %s, %s, s77 offen lds" % (v(250 + i3), srd(S_WU if arr else S_WG)))
        vmq.append("dma")
    def vmwait(tag):
        idx = max(i for i, t in enumerate(vmq) if t == tag)
        A("s_waitcnt vmcnt(%d)" % (len(vmq) - 1 - idx))
    wdl = [(i, tm) for i in range(11) for tm in range(4)]
    def wdload():
        i, tm = wdl.pop(0)
        A("buffer_load_dwordx4 %s, %s, %s, s92 offen offset:%d sc1" % (a(16 * i + 4 * tm, 4), "v238" if tm < 2 else "v239", WS, 1024 * (tm & 1)))
        if tm == 3: A("s_add_u32 s92, s92, 0x1000")
        vmq.append("wd")
    wdpre = ("""s_and_b32 s55, s3, 1
    s_lshl_b32 s55, s55, 11
    v_add_u32 v239, s55, v9
    v_xor_b32 v238, 0x800, v239
    s_and_b32 s55, s5, 7
    s_mul_i32 s55, s55, 44
    s_mul_i32 s56, s3, 11
    s_add_u32 s55, s55, s56
    s_lshl_b32 s55, s55, 12
    s_add_u32 s92, s55, %d
    s_lshl_b32 s93, s3, 10
    s_add_u32 s93, s93, %d""" % (WDF, FL)).replace("    ", "").split("\n")
    def fl_load(): A("buffer_load_dword v13, v9, %s, s93 offen sc1" % WS)
    touched = set()
    alu = hpre + pre + wdpre
    NDMA1 = opt.get('ndma1', 16)
    for ph in range(4):
        if ph < 3: order = [(g, ct) for ct in range(8) for g in range(8 - ct)]
        else: order = [(t - ct, ct) for t in range(8) for ct in range(t + 1)]
        seen = set()
        for idx, (g, ct) in enumerate(order):
            if ph == 0 and ct not in seen:
                A("s_waitcnt lgkmcnt(%d)" % (11 - ct)); seen.add(ct)
            if ph > 0 and idx == 0: A("s_waitcnt lgkmcnt(0)")
            t = g + ct
            A("%s %s, %s, %s, %s" % (MF, ACC(t), KF(ph, g), BF(ph & 1, ct), ACC(t) if t in touched else "0"))
            touched.add(t)
            if 0 < ph < 3 and 24 <= idx < 32: bread(ph + 1, idx - 24)
            if ph == 0:
                for _ in range(3):
                    if alu:
                        x = alu.pop(0); A(x)
                        while alu and (x.startswith("s_cmp") or x.startswith("v_cmp") or x.startswith("s_cselect_b64") or alu[0].startswith("v_cndmask")):
                            x = alu.pop(0); A(x)
                if not alu and idx >= 24 and fills: A(fills.pop(0)); vmq.append("fill")
            if ph == 1:
                if idx % 4 == 1 and 24 - len(dma) < NDMA1: w1dma()
                if idx == 34: fl_load(); vmq.append("fl")
            if ph == 2:
                if idx == opt.get('flchk', 14):
                    vmwait("fl")
                    A("v_cmp_ne_u32 vcc, s84, v13")
                if idx == opt.get('flchk', 14) + 1:
                    A("s_cbranch_vccnz L_flrt")
                    A.label("L_flok")
                    A("buffer_load_dwordx4 v[44:47], v9, %s, s68 offen sc1\nbuffer_load_dwordx4 v[48:51], v9, %s, s68 offen offset:1024 sc1" % (WS, WS)); vmq.extend(["qp", "qp"])
                if idx in (opt.get('flchk', 14) + 2, opt.get('flchk', 14) + 3):
                    e = idx - opt.get('flchk', 14) - 2
                    A("buffer_load_dwordx4 %s, v10, %s, s71 offen offset:%d sc1" % (v(52 + 4 * e, 4), WS, 2048 * e))
                    A("buffer_load_dwordx4 %s, v10, %s, s71 offen offset:%d sc1" % (v(60 + 4 * e, 4), WS, 2048 * e + 32)); vmq.extend(["qp", "qp"])
                if idx > opt.get('flchk', 14) + 3 and idx % 3 == 1 and 24 - len(dma) < NDMA1: w1dma()
            if ph == 3:
                if ct == 0 and t >= 2: A("ds_write_b128 v242, %s offset:%d" % (ACC(t - 2), 1024 * (t - 2)))
                if idx % 4 == 2 and 24 - len(dma) < NDMA1: w1dma()
        if ph == 0:
            assert not alu
            while fills: A(fills.pop(0)); vmq.append("fill")
            A("s_waitcnt lgkmcnt(0)")
            for ct in range(8): bread(1, ct)
            for e in range(2):
                for c in range(2):
                    A("%s %s, %s, %s, 0" % (MF, v(168 + 8 * e + 4 * c, 4), v(184 + 4 * c, 4), v(192 + 8 * e + 4 * c, 4)))
    stubs.append("""L_flrt:
    s_sub_u32 s85, s85, 1
    s_cbranch_scc1 L_flx
    buffer_load_dword v13, v9, %s, s93 offen sc1
    s_waitcnt vmcnt(0)
    v_cmp_ne_u32 vcc, s84, v13
    s_cbranch_vccnz L_flrt
    s_branch L_flok
    L_flx:
    s_mov_b32 s85, 0
    s_branch L_flok""" % WS)
    A("ds_write_b128 v242, %s offset:%d" % (ACC(6), 1024 * 6))
    vmwait("qp")
    A("s_mov_b32 s55, 0xffff0000")
    for e in range(2):
        for j in range(4):
            A("v_lshlrev_b32 %s, 16, %s" % (v(208 + 8 * e + j), v(44 + 4 * e + j)))
            A("v_and_b32 %s, s55, %s" % (v(212 + 8 * e + j), v(44 + 4 * e + j)))
        if e == 0: A("ds_write_b128 v242, %s offset:%d" % (ACC(7), 1024 * 7))
    A("s_waitcnt lgkmcnt(0)\ns_barrier")
    TSTAMP()
    for e in range(2):
        for src in range(4):
            A("ds_read_b128 %s, v243 offset:%d" % (v(72 + 16 * e + 4 * src, 4), 8192 * src + 1024 * e))
    for e in range(2):
        for c in range(2):
            for j in (0, 2):
                A("v_pk_fma_f32 %s, %s, %s, %s" % (v(104 + 8 * e + 4 * c + j, 2), v(208 + 8 * e + 4 * c + j, 2), v(52 + 4 * e + j, 2), v(60 + 4 * e + j, 2)))
    for e in range(2):
        for c in range(2):
            A("s_waitcnt lgkmcnt(%d)" % (6 - 4 * e - 2 * c))
            for j in (0, 2):
                d = v(168 + 8 * e + 4 * c + j, 2)
                A("v_pk_add_f32 %s, %s, %s" % (d, d, v(72 + 16 * e + 8 * c + j, 2)))
            for j in (0, 2):
                d = v(168 + 8 * e + 4 * c + j, 2)
                A("v_pk_add_f32 %s, %s, %s" % (d, d, v(76 + 16 * e + 8 * c + j, 2)))
            for j in (0, 2):
                d = v(168 + 8 * e + 4 * c + j, 2)
                A("v_pk_fma_f32 %s, %s, %s, %s" % (d, d, v(104 + 8 * e + 4 * c + j, 2), v(208 + 8 * e + 4 * c + j, 2)))
        for j in range(4):
            A("v_cvt_pk_bf16_f32 %s, %s, %s" % (v(16 + 4 * e + j), v(168 + 8 * e + j), v(172 + 8 * e + j)))
        A("buffer_store_dwordx4 %s, v249, %s, %s offen sc0 sc1" % (v(16 + 4 * e, 4), WS, "s73" if e else "s72")); vmq.append("hp")
    TSTAMP()
    while dma: w1dma()
    for _ in range(opt.get('wd_h2', 0)): wdload()
    A("""
    s_add_u32 s55, s76, 88
    s_movk_i32 s56, 96
    v_mul_lo_u32 v14, v1, s56
    v_add_u32 v14, s55, v14
    v_mov_b32 v224, 0x3f803f80
    v_mov_b32 v225, 0x3f803f80
    v_mov_b32 v226, 0x3f803f80
    v_mov_b32 v227, 0x3f803f80
    v_lshrrev_b32 v5, 2, v1
    v_mul_u32_u24 v5, 96, v5
    v_and_b32 v15, 3, v1
    v_lshl_add_u32 v5, v15, 3, v5
    v_add_u32 v6, %d, v5
    s_lshl_b32 s55, s3, 12
    v_add_u32 v7, s55, v9
    s_lshl_b32 s67, s86, 18
    s_add_u32 s67, s67, %d
    s_lshl_b32 s55, s3, 5
    s_cmp_eq_u32 s3, 3
    s_cselect_b32 s55, %d, s55
    v_add_u32 v10, s55, v5
    s_and_b32 s56, s3, 1
    s_lshl_b32 s56, s56, 5
    s_add_u32 s56, s56, 32
    v_add_u32 v15, s56, v6
    v_lshlrev_b32 v8, 4, v4
    v_add_u32 v8, %d, v8
    """ % (L_WU, HP, L_WU, L_CS))
    vmwait("dma")
    A("ds_write_b64 v14, v[224:225]\nds_write_b64 v14, v[224:225] offset:6144\ns_waitcnt lgkmcnt(0)\ns_barrier")
    TSTAMP()
    XS = lambda st: 16 + 16 * (st & 3)
    AC = lambda arr, ft, tau: v(80 + 48 * arr + 16 * ft + 4 * tau, 4)
    WF = lambda st, arr, ft: 176 + 24 * (st & 1) + 12 * arr + 4 * ft
    def xload_txt(st):
        r = ["s_add_u32 s55, s88, %d" % st, "s_and_b32 s55, s55, 15", "s_lshl_b32 s55, s55, 14", "s_add_u32 s55, s55, s67"]
        r += ["buffer_load_dwordx4 %s, v7, %s, s55 offen offset:%d sc1" % (v(XS(st) + 4 * j, 4), WS, 1024 * j) for j in range(4)]
        return "\n".join(r)
    def xload(st):
        A(xload_txt(st)); vmq.extend(["x%d" % st] * 4)
    def xchk(st):
        b = XS(st)
        return ["v_max3_u32 v11, %s, %s, %s" % (v(b), v(b + 4), v(b + 8)), "v_max_u32 v11, v11, %s" % v(b + 12), "v_cmp_eq_u32 vcc, -1, v11"]
    def xstub(st, tag):
        stubs.append("L_xr%s:\ns_sub_u32 s85, s85, 1\ns_cbranch_scc1 L_xx%s\n%s\ns_waitcnt vmcnt(0)\n%s\ns_cbranch_vccnz L_xr%s\ns_branch L_xo%s\nL_xx%s:\ns_mov_b32 s85, 0\ns_branch L_xo%s"
                     % (tag, tag, xload_txt(st), "\n".join(xchk(st)), tag, tag, tag, tag))
    def wreads(st):
        return ["ds_read_b64_tr_b16 %s, %s offset:%d" % (a(WF(st, arr, ft) + 2 * h, 2), "v6" if arr else "v5", st * 3072 + h * 1536 + ft * 32)
                for arr in range(2) for ft in range(3) for h in range(2)]
    def swaps(st):
        b = XS(st)
        return ["v_swap_b32 %s, %s" % (v(b + 4 * j + t), v(b + 4 * t + j)) for j in range(4) for t in range(j + 1, 4)]
    for st in range(3): xload(st)
    for st in range(16):
        b = 176 + 8 * (st & 3)
        for h in range(2): A("ds_read_b64_tr_b16 %s, v10 offset:%d" % (v(b + 2 * h, 2), st * 3072 + h * 1536))
        for h in range(2): A("ds_read_b64_tr_b16 %s, v15 offset:%d" % (v(b + 4 + 2 * h, 2), st * 3072 + h * 1536))
        if st >= 2:
            pb = 176 + 8 * ((st - 2) & 3)
            A("s_waitcnt lgkmcnt(8)")
            A("%s v[208:211], v[224:227], %s, %s" % (MF, v(pb, 4), "v[208:211]" if st > 2 else "0"))
            A("%s v[212:215], v[224:227], %s, %s" % (MF, v(pb + 4, 4), "v[212:215]" if st > 2 else "0"))
    for st in (14, 15):
        pb = 176 + 8 * (st & 3)
        A("s_waitcnt lgkmcnt(%d)" % (4 if st == 14 else 0))
        A("%s v[208:211], v[224:227], %s, v[208:211]" % (MF, v(pb, 4)))
        A("%s v[212:215], v[224:227], %s, v[212:215]" % (MF, v(pb + 4, 4)))
    for r in wreads(0): A(r)
    A("""
    s_lshl_b32 s55, s3, 6
    s_add_u32 s55, s55, %d
    v_lshl_add_u32 v14, v2, 2, s55
    s_and_b32 s56, s3, 1
    s_lshl_b32 s56, s56, 6
    s_add_u32 s56, s56, %d
    v_lshl_add_u32 v15, v2, 2, s56
    ds_write_b32 v14, v208
    ds_write_b32 v15, v212
    """ % (L_CS, L_CS + 256))
    TSTAMP()
    vmwait("x0")
    for r in xchk(0): A(r)
    A("s_cbranch_vccnz L_xrP")
    A.label("L_xoP"); xstub(0, "P")
    TSTAMP()
    for r in swaps(0): A(r)
    A("s_cmp_eq_u32 s87, 31\ns_cbranch_scc1 L_p2alt")
    WD_P2 = opt.get('wd_p2', 1)
    def p2loop(alt):
        for st in range(16):
            ml = []
            for arr in range(2):
                for ft in range(3):
                    for tau in range(4):
                        xf = v(XS(st) + 4 * tau, 4)
                        wf = a(WF(st, arr, ft), 4)
                        if alt and arr == 1 and ft == 2: wf = xf
                        ml.append("%s %s, %s, %s, %s" % (MF, AC(arr, ft, tau), wf, xf, AC(arr, ft, tau) if st else "0"))
            wr = wreads(st + 1) if st < 15 else ["ds_read_b128 %s, v8 offset:%d" % (v(176 + 4 * t, 4), 64 * t) for t in range(6)]
            sw = swaps(st + 1) if st < 15 else []
            ck = xchk(st + 1) if st < 15 else []
            tag = "%s%d" % ("b" if alt else "a", st + 1)
            A("s_waitcnt lgkmcnt(0)")
            if st == 8: A("s_barrier")
            for i, m in enumerate(ml):
                A(m)
                if i == 0 and st + 3 < 16: xload(st + 3)
                if i == 0 and st + 3 >= 16:
                    for _ in range(4):
                        if wdl: wdload()
                if 1 <= i <= 12 and wr: A(wr.pop(0))
                if i == 6:
                    for _ in range(WD_P2):
                        if wdl: wdload()
                if i == 11 and sw: vmwait("x%d" % (st + 1))
                if i >= 11 and ck: A(ck.pop(0))
                if i == 15 and sw:
                    A("s_cbranch_vccnz L_xr%s" % tag); A.label("L_xo%s" % tag); xstub(st + 1, tag)
                if i >= 15 and sw: A(sw.pop(0))
    sv = (list(vmq), list(wdl))
    p2loop(False)
    A("s_branch L_p2join")
    A.label("L_p2alt")
    vmq[:] = sv[0]; wdl[:] = sv[1]
    p2loop(True)
    A.label("L_p2join")
    TSTAMP()
    A("v_lshlrev_b32 v10, 2, v2\nv_add_u32 v10, 0xc0, v10")
    for _ in range(opt.get('wd_ep', 4)):
        if wdl: wdload()
    A("s_nop 3")
    for tau in range(4):
        A("ds_bpermute_b32 %s, v10, %s" % (v(200 + 2 * tau), v(80 + 32 + 4 * tau)))
    A("s_mov_b32 s57, 0xbb000000\ns_waitcnt lgkmcnt(0)")
    for tau in range(4): A("v_mul_f32 %s, s57, %s" % (v(200 + 2 * tau), v(200 + 2 * tau)))
    A("s_cmp_lg_u32 s87, 31\ns_cbranch_scc1 L_novar")
    A("v_and_b32 v10, 3, v2")
    for tau in range(4): A("v_mov_b32 %s, %s" % (v(208 + tau), v(80 + 48 + 32 + 4 * tau)))
    for j in range(1, 4):
        A("v_cmp_eq_u32 vcc, %d, v10" % j)
        for tau in range(4):
            A("v_cndmask_b32 %s, %s, %s, vcc" % (v(208 + tau), v(208 + tau), v(80 + 48 + 32 + 4 * tau + j)))
    A("s_mov_b32 s56, 0x3b000000\ns_mov_b32 s57, 0x3727c5ac")
    for tau in range(4): A("v_mul_f32 %s, s56, %s" % (v(208 + tau), v(208 + tau)))
    for tau in range(4): A("v_fma_f32 %s, -%s, %s, %s" % (v(208 + tau), v(200 + 2 * tau), v(200 + 2 * tau), v(208 + tau)))
    for tau in range(4): A("v_max_f32 %s, 0, %s" % (v(208 + tau), v(208 + tau)))
    for tau in range(4): A("v_add_f32 %s, s57, %s" % (v(208 + tau), v(208 + tau)))
    for tau in range(4): A("v_rcp_f32 %s, %s" % (v(208 + tau), v(208 + tau)))
    A("s_nop 0\nbuffer_store_dwordx4 v[208:211], v241, %s, s91 offen sc0 sc1" % WS)
    A.label("L_novar")
    for ft in range(3):
        for g in range(2):
            o = 16 + 8 * ft + 4 * g
            for e in range(2):
                tau = 2 * g + e
                gb = 80 + 16 * ft + 4 * tau; ub = gb + 48
                M = v(200 + 2 * tau, 2)
                for j in (0, 2):
                    A("v_pk_fma_f32 %s, %s, %s, %s op_sel_hi:[1,0,1]" % (v(gb + j, 2), v(176 + 4 * ft + j, 2), M, v(gb + j, 2)))
                    A("v_pk_fma_f32 %s, %s, %s, %s op_sel_hi:[1,0,1]" % (v(ub + j, 2), v(188 + 4 * ft + j, 2), M, v(ub + j, 2)))
                for j in range(4): A("v_max_f32 %s, 0, %s" % (v(gb + j), v(gb + j)))
                for j in (0, 2): A("v_pk_mul_f32 %s, %s, %s" % (v(gb + j, 2), v(gb + j, 2), v(ub + j, 2)))
                for j in (0, 2): A("v_cvt_pk_bf16_f32 %s, %s, %s" % (v(o + 2 * e + j // 2), v(gb + j), v(gb + j + 1)))
            A("buffer_store_dwordx4 %s, %s, %s, %s offen offset:%d sc0 sc1" % (v(o, 4), HV[ft], WS, "s90" if g else "s89", 1024 * ft))
    TSTAMP()
    while wdl: wdload()
    A("""
    s_lshr_b32 s71, s5, 3
    s_and_b32 s72, s5, 7
    s_and_b32 s73, s3, 1
    s_lshr_b32 s76, s3, 1
    s_lshl_b32 s55, s72, 1
    s_add_u32 s55, s55, s73
    s_lshl_b32 s55, s55, 14
    s_lshl_b32 s56, s71, 12
    s_add_u32 s55, s55, s56
    s_lshl_b32 s56, s76, 3
    s_add_u32 s55, s55, s56
    s_lshl_b32 s56, s4, 18
    s_add_u32 s55, s55, s56
    s_add_u32 s94, s55, %d
    s_lshl_b32 s55, s4, 2
    s_add_u32 s55, s55, s71
    s_lshl_b32 s56, s55, 1
    s_add_u32 s57, s56, s76
    s_xor_b32 s56, s57, 1
    s_mul_i32 s68, s56, %d
    s_mul_i32 s69, s57, %d
    s_mul_i32 s56, s3, 22528
    s_add_u32 s56, s56, %d
    s_add_u32 s68, s68, s56
    s_add_u32 s69, s69, s56
    s_lshl_b32 s77, s55, 16
    s_lshl_b32 s56, s76, 12
    s_add_u32 s77, s77, s56
    s_lshl_b32 s56, s72, 7
    s_add_u32 s77, s77, s56
    s_lshl_b32 s56, s73, 6
    s_add_u32 s77, s77, s56
    v_lshrrev_b32 v5, 1, v2
    v_lshlrev_b32 v5, 13, v5
    v_and_b32 v14, 1, v2
    v_lshl_add_u32 v5, v14, 10, v5
    v_lshl_add_u32 v5, v4, 4, v5
    s_lshl_b32 s67, s55, 8
    s_lshl_b32 s56, s76, 3
    s_add_u32 s67, s67, s56
    s_add_u32 s67, s67, %d
    v_lshlrev_b32 v12, 4, v2
    s_mul_i32 s56, s3, 12288
    v_add_u32 v10, s56, v9
    s_movk_i32 s72, 0x5000
    s_cmp_eq_u32 s3, 3
    s_cselect_b32 s72, 0x4800, s72
    """ % (HP, HG, HG, HH, R2))
    for k in (1, 2, 3):
        A("s_xor_b32 s56, s3, %d\ns_mul_i32 s56, s56, 12288\ns_add_u32 s56, s56, %d\nv_add_u32 %s, s56, v9" % (k, L_RED3 + (k - 1) * 4096, v(5 + k)))
    NR = opt.get('nr', 6)
    HF = lambda q: 40 + 8 * (q % NR) if False else 112 + 8 * (q % NR)
    def acc3(grp, tm, e):
        if grp == 1 and tm >= 2: return v(80 + 8 * (tm - 2) + 4 * e, 4)
        piece = {(0, 0): 2, (0, 1): 1, (1, 0): 0}[(grp, tm >> 1)]
        return a(176 + 16 * piece + 8 * (tm & 1) + 4 * e, 4)
    def hload_txt(q):
        grp, i = divmod(q, 11)
        sr = "s68" if grp == 0 else "s69"
        r = ["s_add_u32 s55, %s, %s" % (sr, ("%d" % (2048 * i)) if i < 10 else "s72")]
        r += ["buffer_load_dwordx4 %s, v9, %s, s55 offen offset:%d sc1" % (v(HF(q) + 4 * aa, 4), WS, 1024 * aa) for aa in range(2)]
        return "\n".join(r)
    def hload(q): A(hload_txt(q)); vmq.extend(["h%d" % q] * 2)
    def hchk(q): return "v_max_u32 v11, %s, %s\nv_cmp_eq_u32 vcc, -1, v11" % (v(HF(q)), v(HF(q) + 4))
    PF = NR - 1
    A("s_barrier")
    for q in range(PF): hload(q)
    TSTAMP()
    for q in range(22):
        grp, i = divmod(q, 11)
        vmwait("h%d" % q)
        A(hchk(q))
        A("s_cbranch_vccnz L_hr%d" % q); A.label("L_ho%d" % q)
        stubs.append("L_hr%d:\ns_sub_u32 s85, s85, 1\ns_cbranch_scc1 L_hx%d\n%s\ns_waitcnt vmcnt(0)\n%s\ns_cbranch_vccnz L_hr%d\ns_branch L_ho%d\nL_hx%d:\ns_mov_b32 s85, 0\ns_branch L_ho%d"
                     % (q, q, hload_txt(q), hchk(q), q, q, q, q))
        if q == 0: TSTAMP()
        b = HF(q)
        A("v_swap_b32 %s, %s\nv_swap_b32 %s, %s" % (v(b + 2), v(b + 4), v(b + 3), v(b + 5)))
        if q + PF < 22: hload(q + PF)
        if q == 22 - PF:
            for j in range(4): A("buffer_load_dwordx2 %s, v9, %s, s94 offen offset:%d sc1" % (v(200 + 2 * j, 2), WS, 1024 * j))
            A("buffer_load_dwordx2 v[208:209], v12, %s, s67 offen sc1" % WS); vmq.extend(["res"] * 5)
        for tm in range(4):
            for e in range(2):
                A("%s %s, %s, %s, %s" % (MF, acc3(grp, tm, e), a(16 * i + 4 * tm, 4), v(b + 4 * e, 4), acc3(grp, tm, e) if i else "0"))
            if q in (12, 13):
                piece = 2 if q == 12 else 1
                A("ds_write_b128 %s, %s offset:%d" % (v(6 + piece), a(176 + 16 * piece + 4 * tm, 4), 1024 * tm))
    for t in range(4):
        A("ds_write_b128 v6, %s offset:%d" % (a(176 + 4 * t, 4), 1024 * t))
    A("s_mov_b32 s55, 0xffff0000\ns_waitcnt vmcnt(0)\nv_cmp_eq_u32 vcc, -1, v208")
    for j in range(4):
        for e in range(2):
            A("v_lshlrev_b32 %s, 16, %s\nv_and_b32 %s, s55, %s" % (v(96 + 8 * e + 2 * j), v(200 + 2 * j + e), v(97 + 8 * e + 2 * j), v(200 + 2 * j + e)))
    A("s_cbranch_vccnz L_rr"); A.label("L_ro")
    stubs.append("L_rr:\ns_sub_u32 s85, s85, 1\ns_cbranch_scc1 L_ro\nbuffer_load_dwordx2 v[208:209], v12, %s, s67 offen sc1\ns_waitcnt vmcnt(0)\nv_cmp_eq_u32 vcc, -1, v208\ns_cbranch_vccnz L_rr\ns_branch L_ro" % WS)
    A("s_waitcnt lgkmcnt(0)\ns_barrier")
    TSTAMP()
    for sl in range(3):
        for t in range(4):
            A("ds_read_b128 %s, v10 offset:%d" % (v(112 + 16 * sl + 4 * t, 4), L_RED3 + 4096 * sl + 1024 * t))
    for sl in range(3):
        A("s_waitcnt lgkmcnt(%d)" % (8 - 4 * sl))
        for r in range(0, 16, 2):
            A("v_pk_add_f32 %s, %s, %s" % (v(80 + r, 2), v(80 + r, 2), v(112 + 16 * sl + r, 2)))
    for e in range(2):
        for mt in range(2):
            for j in (0, 2):
                d = v(80 + 8 * mt + 4 * e + j, 2)
                A("v_pk_fma_f32 %s, %s, v[208:209], %s op_sel:[0,%d,0] op_sel_hi:[1,%d,1]" % (d, d, v(96 + 8 * e + 4 * mt + j, 2), e, e))
        for mt in range(2):
            for j in (0, 2):
                A("v_cvt_pk_bf16_f32 %s, %s, %s" % (v(16 + 4 * e + 2 * mt + j // 2), v(80 + 8 * mt + 4 * e + j), v(81 + 8 * mt + 4 * e + j)))
        A("buffer_store_dwordx4 %s, v5, %s, s77 offen offset:%d" % (v(16 + 4 * e, 4), srd(S_OUT), 2048 * e))
    A("""
    s_or_b32 s55, s2, s3
    s_cmp_lg_u32 s55, 0
    s_cselect_b32 s55, 0x40000000, 0
    v_mov_b32 v14, s84
    s_mov_b64 exec, 1
    buffer_store_dword v14, v9, %s, s55 offen
    s_mov_b64 exec, -1
    """ % WS)
    if opt.get('spinto'):
        A("s_cmp_lg_u32 s2, 0\ns_cbranch_scc1 L_nospin")
        if opt.get('spinsel') is not None:
            A("v_readlane_b32 s96, v255, %d\ns_nop 3\ns_lshr_b32 s96, s96, 1\ns_add_u32 s96, s96, %d" % (opt['spinsel'], opt['spinto']))
        else:
            A("s_mov_b32 s96, %d" % opt['spinto'])
        A("L_spin:\ns_memrealtime s[80:81]\ns_waitcnt lgkmcnt(0)\ns_sub_u32 s80, s80, s82\ns_cmp_lt_u32 s80, s96\ns_cbranch_scc1 L_spin\nL_nospin:")
    if stamp:
        A("s_waitcnt vmcnt(0)")
        TSTAMP()
        A("s_cmp_lg_u32 s3, 0\ns_cbranch_scc1 L_end")
        A("s_memrealtime s[80:81]\ns_waitcnt lgkmcnt(0)\nv_writelane_b32 v255, s80, 62\nv_writelane_b32 v255, s82, 63\nv_writelane_b32 v255, s85, 61")
        A("s_lshl_b32 s55, s2, 8\ns_add_u32 s55, s55, %d\nv_lshlrev_b32 v25, 2, v1\nbuffer_store_dword v255, v25, %s, s55 offen" % (TS, WS))
        if opt.get('dbg'):
            sel = [2, 4, 5, 7, 8, 9, 11, 13, 14, 15, 17, 18, 19]
            A("s_load_dwordx2 s[48:49], s[0:1], 88\ns_mov_b32 s50, 256\ns_mov_b32 s51, 0x20000\nv_mov_b32 v26, 0")
            for i, x in enumerate(sel): A("v_readlane_b32 s55, v255, %d\ns_nop 3\nv_writelane_b32 v26, s55, %d" % (x, i))
            A("s_not_b32 s55, s82\nv_writelane_b32 v26, s55, 15\nv_writelane_b32 v26, s80, 14\nv_writelane_b32 v26, s82, 13\ns_waitcnt lgkmcnt(0)\ns_mov_b64 exec, 0xffff\nbuffer_atomic_umax v26, v25, s[48:51], 0 offen sc1")
    A.label("L_end")
    A("s_endpgm")
    for st_ in stubs:
        A("s_nop 7")
        A(st_)
    A.raw(""".section .rodata,"a"
.p2align 6
.amdhsa_kernel %s_kernel
  .amdhsa_next_free_vgpr 512
  .amdhsa_next_free_sgpr 102
  .amdhsa_accum_offset 256
  .amdhsa_group_segment_fixed_size 0
  .amdhsa_kernarg_size 104
  .amdhsa_user_sgpr_count 2
  .amdhsa_user_sgpr_kernarg_segment_ptr 1
  .amdhsa_system_sgpr_workgroup_id_x 1
  .amdhsa_float_denorm_mode_32 3
.end_amdhsa_kernel""" % NAME)
    return A.text()

if __name__ == "__main__":
    out = sys.argv[1] if len(sys.argv) > 1 else "cdna_kernels/%s.s" % NAME
    stamp = len(sys.argv) > 2 and sys.argv[2] == "stamp"
    kw = {}; opt = {}
    for x in sys.argv[3:]:
        k, val = x.split("=")
        if k in ("RBX", "ROT"): kw[k] = int(val)
        elif k in ("NT", "TNT"): kw[k] = val
        else: opt[k] = int(val)
    open(out, "w").write(gen(stamp, opt=opt, **kw))
    print("wrote", out)
```

```python
import sys
from asm import Asm, v, a, s

NAME = "sequential_preLN__ssm_conv_h3__glu_gated_reglu__prompt"
EP = 0x0; R2 = 0x8000; TS = 0x10000; ST = 0x80000; STR = 0x8100; FU = 0x50000; FH = 0x60000
UP = 0x100000; QP = 0x300000; QSTR = 33024; HP = 0x700000; HH = 0xB00000
WS_BYTES = 0x1400000
HG = 88064
L_WU = 49152
L_KC = 98304; KC_STR = 4640
L_U = L_KC + 8 * KC_STR; U_STR = 4224
L_CS = L_U + 4 * U_STR
L_FLG = L_CS + 384
L_TA = L_FLG + 128
LDS_BYTES = L_TA + 8192
L_TB = L_WU + 40960
L_REDA = L_KC; L_REDB = L_KC + 16384
L_SG = L_KC
L_RED3 = 0
S_K, S_V, S_Q, S_SK, S_SSM, S_WG, S_WU, S_WD, S_OUT, S_WS, S_T = 8, 12, 16, 20, 24, 28, 32, 36, 40, 44, 48
sDP = 52; sD = 54; sPC = 74
BUDGET = 200000
WS = s(S_WS, 4)
MF = "v_mfma_f32_16x16x32_bf16"
OOB = "0x40000000"
WT = "sc0 sc1"
def srd(i): return s(i, 4)
def lines(t): return [x.strip() for x in t.strip().split("\n") if x.strip()]

def gen(stamp=False, RBX=4, ROT=0, NT="nt", opt=None):
    opt = opt or {}
    O = lambda k, d: opt.get(k, d)
    A = Asm()
    stubs = []
    nst = [0]
    vmq = []
    def TSTAMP():
        if stamp:
            A("s_memtime s[80:81]\ns_waitcnt lgkmcnt(0)\ns_sub_u32 s80, s80, s78\nv_writelane_b32 v15, s80, %d" % nst[0]); nst[0] += 1
    def dump(off):
        if stamp:
            A("s_waitcnt vmcnt(0)"); TSTAMP()
            A("s_cmp_lg_u32 s3, 0\ns_cbranch_scc1 L_end")
            A("s_memrealtime s[80:81]\ns_waitcnt lgkmcnt(0)\nv_writelane_b32 v15, s80, 62\nv_writelane_b32 v15, s82, 63\nv_writelane_b32 v15, s85, 61")
            A("s_lshl_b32 s55, s2, 8\ns_add_u32 s55, s55, %d\nv_lshlrev_b32 v14, 2, v1\nbuffer_store_dword v15, v14, %s, s55 offen" % (off, WS))
    def VM(txt, tag):
        A(txt); vmq.append(tag)
    def vmwait(tag, extra=""):
        tags = tag if isinstance(tag, tuple) else (tag,)
        idx = max(i for i, t in enumerate(vmq) if t in tags)
        A("s_waitcnt vmcnt(%d)%s" % (min(63, len(vmq) - 1 - idx), extra))
    def retry(name, reload_txt, chk_txt, wait="s_waitcnt vmcnt(0)"):
        A("s_cbranch_vccnz L_r%s" % name); A.label("L_o%s" % name)
        stubs.append("L_r%s:\ns_sub_u32 s85, s85, 1\ns_cbranch_scc1 L_x%s\n%s\n%s\n%s\ns_cbranch_vccnz L_r%s\ns_branch L_o%s\nL_x%s:\ns_mov_b32 s85, 0\ns_branch L_o%s"
                     % (name, name, reload_txt, wait, chk_txt, name, name, name, name))
    A.raw(open('cdna_kernels/%s.s.ref' % NAME).read().split('; @launch grid')[0].rstrip('\n'))
    A.raw("; @launch grid=(256,1,1) block=(512,1,1) lds=%d" % LDS_BYTES)
    A.raw('.amdgcn_target "amdgcn-amd-amdhsa--gfx950"\n.text\n.globl %s_kernel\n.p2align 8\n.type %s_kernel,@function\n%s_kernel:' % (NAME, NAME, NAME))
    LRB = {1: 0, 2: 1, 4: 2, 8: 3}[RBX]

    A("s_cmp_ge_u32 s2, 256\ns_cbranch_scc1 L_end")
    if O('perm', 0):
        A("s_lshr_b32 s4, s2, 3\ns_add_u32 s4, s4, s2\ns_and_b32 s4, s4, 7\ns_and_b32 s2, s2, 0xf8\ns_or_b32 s2, s2, s4")
    for reg, off in ((S_K, 8), (S_V, 16), (S_SK, 24), (S_SSM, 32), (S_Q, 0), (S_WS, 96), (S_WD, 72), (sDP, 40), (S_WG, 56), (S_WU, 64), (S_OUT, 80)):
        A("s_load_dwordx2 %s, s[0:1], %d" % (s(reg, 2), off))
    if stamp: A("s_memtime s[78:79]\ns_memrealtime s[82:83]\nv_mov_b32 v15, 0"); nst[0] += 1
    A("s_getpc_b64 %s" % s(sPC, 2))
    for reg, nb in ((S_K, 2097152), (S_V, 2097152), (S_Q, 2097152), (S_SK, 4096), (S_WS, WS_BYTES), (S_SSM, 2097152),
                    (S_WD, 1376 * 1024), (S_OUT, 2097152), (S_T, 512 * 2752)):
        A("s_mov_b32 %s, %d\ns_mov_b32 %s, 0x20000" % (s(reg + 2), nb, s(reg + 3)))
    A("""
    v_lshrrev_b32 v4, 6, v0
    v_and_b32 v1, 63, v0
    v_and_b32 v2, 15, v0
    v_readfirstlane_b32 s6, v4
    v_lshrrev_b32 v4, 4, v1
    v_lshlrev_b32 v9, 4, v1
    s_and_b32 s4, s2, 7
    s_lshr_b32 s5, s2, 3
    s_and_b32 s3, s6, 3
    s_lshl_b32 s55, s5, 16
    s_lshl_b32 s56, s4, 7
    s_add_u32 s55, s55, s56
    s_lshl_b32 s56, s3, 14
    s_add_u32 s7, s55, s56
    s_lshl_b32 s66, s4, 5
    s_add_u32 s66, s66, s5
    s_and_b32 s99, s3, 1
    s_lshr_b32 s98, s3, 1
    s_mov_b32 s85, %d
    s_mov_b32 s65, 0xffff0000
    s_cmp_ge_u32 s6, 4
    s_cbranch_scc1 L_B
    """ % BUDGET)
    ids = """
    s_lshr_b32 s55, s4, %d
    s_lshl_b32 s55, s55, %d
    s_and_b32 s60, s5, %d
    s_add_u32 s86, s55, s60
    s_and_b32 s55, s4, %d
    s_mul_i32 s55, s55, %d
    s_lshr_b32 s56, s5, %d
    s_add_u32 s87, s55, s56
    s_mul_i32 s88, s56, %d
    s_mul_i32 s60, s60, %d
    s_add_u32 s88, s88, s60
    s_and_b32 s88, s88, 15
    """ % (LRB, LRB, RBX - 1, RBX - 1, 32 // RBX, LRB, ROT, O('rot2', 16 // RBX))
    def haddr(hv, r2v, tmp):
        return """
        s_lshl_b32 s55, s86, 2
        s_add_u32 s55, s55, s3
        s_mul_i32 s55, s55, %d
        s_mul_i32 s56, s87, 2816
        s_add_u32 s55, s55, s56
        s_add_u32 s89, s55, %d
        s_add_u32 s90, s89, %d
        v_mov_b32 T0, %s
        v_cmp_eq_u32 vcc, 3, v4
        v_cndmask_b32 T1, v9, T0, vcc
        s_cmp_eq_u32 s87, 31
        s_cselect_b64 vcc, -1, 0
        v_cndmask_b32 %s, v9, T1, vcc
        v_cndmask_b32 %s, v9, T0, vcc
        v_cndmask_b32 %s, T1, T0, vcc
        v_lshrrev_b32 T1, 2, v2
        v_lshlrev_b32 %s, 4, v2
        v_cmp_eq_u32 vcc, T1, v4
        v_cndmask_b32 %s, T0, %s, vcc
        s_lshl_b32 s55, s86, 10
        s_lshl_b32 s56, s3, 8
        s_add_u32 s55, s55, s56
        s_add_u32 s55, s55, %d
        s_cmp_eq_u32 s87, 31
        s_cselect_b32 s91, s55, %s
        """.replace("T0", tmp[0]).replace("T1", tmp[1]) % (2 * HG, HH, HG, OOB, hv[0], hv[1], hv[2], r2v, r2v, r2v, R2, OOB)
    def xpose_addr(wr, rd, gv, base):
        return """
        v_and_b32 RD, 7, v2
        v_xor_b32 WR, v4, RD
        v_lshl_add_u32 WR, v2, 3, 0
        v_or_b32 WR, WR, v4
        v_xor_b32 WR, WR, RD
        v_lshlrev_b32 WR, 4, WR
        s_lshl_b32 s55, s3, 11
        s_add_u32 s55, s55, %d
        v_add_u32 WR, s55, WR
        v_lshrrev_b32 RD, 3, v1
        v_xor_b32 RD, RD, v1
        v_lshlrev_b32 RD, 4, RD
        v_add_u32 RD, s55, RD
        v_lshrrev_b32 GV, 2, v1
        v_lshlrev_b32 GV, 13, GV
        v_and_b32 v14, 3, v1
        v_lshl_add_u32 GV, v14, 4, GV
        """.replace("WR", wr).replace("RD", rd).replace("GV", gv) % base

    A("""
    v_lshrrev_b32 v5, 3, v1
    v_lshlrev_b32 v5, 12, v5
    v_and_b32 v10, 7, v1
    v_lshl_add_u32 v5, v10, 3, v5
    s_lshl_b32 s56, s98, 15
    s_add_u32 s55, s55, s56
    s_lshl_b32 s56, s99, 6
    s_add_u32 s55, s55, s56
    v_add_u32 v5, s55, v5
    v_subrev_u32 v6, 0xc00, v5
    v_and_b32 v6, 0x7fffffff, v6
    s_lshl_b32 s56, s4, 9
    s_lshl_b32 s57, s99, 8
    s_add_u32 s56, s56, s57
    v_lshl_add_u32 v10, v10, 5, s56
    s_waitcnt lgkmcnt(0)
    """)
    for i in range(3): VM("buffer_load_dwordx2 %s, v6, %s, 0 offen offset:%d %s" % (v(16 + 2 * i, 2), srd(S_K), 1024 * i, NT), "k")
    for j in range(4): VM("buffer_load_dwordx2 %s, v5, %s, 0 offen offset:%d %s" % (v(22 + 2 * j, 2), srd(S_K), 1024 * j, NT), "k")
    VM("buffer_load_dwordx4 v[48:51], v10, %s, 0 offen" % srd(S_SK), "k")
    VM("buffer_load_dwordx4 v[52:55], v10, %s, 0 offen offset:16" % srd(S_SK), "k")
    for j in range(4): VM("buffer_load_dwordx2 %s, v5, %s, 0 offen offset:%d %s" % (v(30 + 2 * j, 2), srd(S_V), 1024 * j, NT), "v")
    A("s_load_dword s84, %s, 0" % s(S_WS, 2))
    A(ids)
    A("s_barrier")
    A("""
    v_and_b32 v133, 7, v1
    v_lshrrev_b32 v134, 3, v1
    v_xor_b32 v132, v134, v133
    v_lshl_add_u32 v132, v133, 4, v132
    v_lshlrev_b32 v132, 4, v132
    s_lshl_b32 s55, s3, 11
    s_add_u32 s55, s55, %d
    v_add_u32 v132, s55, v132
    v_lshlrev_b32 v134, 13, v134
    v_lshl_add_u32 v134, v133, 4, v134
    v_xor_b32 v133, v1, v4
    v_lshlrev_b32 v133, 4, v133
    v_add_u32 v133, s55, v133
    v_xor_b32 v136, 64, v133
    """ % L_TA)
    HV = ["v176", "v177", "v178"]
    A(haddr(HV, "v179", ("v12", "v13")))
    A("""
    s_lshl_b32 s55, s4, 18
    s_lshl_b32 s56, s5, 8
    s_add_u32 s55, s55, s56
    s_lshl_b32 s56, s98, 7
    s_add_u32 s55, s55, s56
    s_lshl_b32 s56, s99, 17
    s_add_u32 s55, s55, s56
    s_add_u32 s95, s55, %d
    s_add_u32 s97, s95, 0x10000
    s_lshl_b32 s67, s66, 13
    s_lshl_b32 s56, s3, 11
    s_add_u32 s67, s67, s56
    s_add_u32 s67, s67, %d
    s_sub_u32 s59, s67, 4
    s_lshl_b32 s62, s66, 7
    s_add_u32 s62, s62, FUADDR
    s_lshl_b32 s63, s4, 12
    s_add_u32 s63, s63, FUADDR
    s_lshl_b32 s56, s3, 3
    s_sub_u32 s56, s56, 1
    v_add_u32 v8, s56, v1
    v_max_i32 v8, 0, v8
    v_lshlrev_b32 v8, 7, v8
    v_mov_b32 v3, FLGADDR
    s_lshl_b32 s56, s3, 7
    v_xor_b32 v7, 1, v1
    v_add_u32 v7, s56, v7
    v_lshlrev_b32 v7, 3, v7
    v_add_u32 v7, %d, v7
    v_cmp_eq_u32 s[100:101], 0, v0
    s_mov_b32 s64, 0x05040100
    s_mov_b32 s71, 0x07060302
    v_and_b32 v180, 3, v2
    s_movk_i32 s55, %d
    v_mul_lo_u32 v180, v180, s55
    v_lshrrev_b32 v14, 2, v2
    v_lshl_add_u32 v180, v14, 7, v180
    v_lshl_add_u32 v180, v4, 4, v180
    s_mul_i32 s56, s98, %d
    s_lshl_b32 s57, s99, 8
    s_add_u32 s56, s56, s57
    s_add_u32 s56, s56, %d
    v_add_u32 v180, s56, v180
    v_and_b32 v181, 1, v2
    s_movk_i32 s55, %d
    v_mul_lo_u32 v181, v181, s55
    v_lshrrev_b32 v14, 1, v2
    v_lshl_add_u32 v181, v14, 4, v181
    v_lshlrev_b32 v14, 4, v4
    v_sub_u32 v181, v181, v14
    s_mul_i32 s56, s98, %d
    s_sub_u32 s56, s56, s57
    s_add_u32 s56, s56, %d
    v_add_u32 v181, s56, v181
    s_mul_i32 s56, s98, %d
    s_lshl_b32 s57, s99, 13
    s_add_u32 s56, s56, s57
    s_add_u32 s56, s56, %d
    v_add_u32 v182, s56, v9
    """.replace("FUADDR", str(FU)).replace("FLGADDR", str(L_FLG)) % (UP, UP, L_U + 8 * 16, KC_STR, 4 * KC_STR, L_KC + 7 * 16,
           U_STR, 2 * U_STR, L_U + 20 * 16, L_REDB - L_REDA, L_REDA))
    TSTAMP()
    vmwait("k")
    TSTAMP()
    for c in range(4):
        for tap in range(4):
            src = 48 + 2 * c + (tap >> 1); dst = 64 + 4 * tap + c
            A(("v_lshlrev_b32 %s, 16, %s" if tap % 2 == 0 else "v_and_b32 %s, s65, %s") % (v(dst), v(src)))
    for i in range(7):
        for e in range(2):
            src = 16 + 2 * i + e; dst = 80 + 4 * i + 2 * e
            A("v_lshlrev_b32 %s, 16, %s\nv_and_b32 %s, s65, %s" % (v(dst), v(src), v(dst + 1), v(src)))
    for tap in range(4):
        for j in range(4):
            for e in range(2):
                d = v(144 + 4 * j + 2 * e, 2); kk = v(80 + 4 * (j + 3 - tap) + 2 * e, 2); ww = v(64 + 4 * tap + 2 * e, 2)
                if tap == 0: A("v_pk_mul_f32 %s, %s, %s" % (d, kk, ww))
                else: A("v_pk_fma_f32 %s, %s, %s, %s" % (d, kk, ww, d))
    vmwait("v")
    for j in range(4):
        for e in range(2):
            src = 30 + 2 * j + e; dst = 108 + 4 * j + 2 * e
            A("v_lshlrev_b32 %s, 16, %s\nv_and_b32 %s, s65, %s" % (v(dst), v(src), v(dst + 1), v(src)))
    for j in range(4):
        for e in range(2):
            d = 144 + 4 * j + 2 * e
            A("v_pk_mul_f32 %s, %s, %s" % (v(d, 2), v(d, 2), v(108 + 4 * j + 2 * e, 2)))
    A("s_waitcnt lgkmcnt(0)\ns_add_u32 s84, s84, 1\ns_or_b32 s84, s84, 0x80000000")
    for e in range(2):
        for j in range(4):
            d = 144 + 4 * j + 2 * e
            A("v_cvt_pk_bf16_f32 %s, %s, %s" % (v(124 + 4 * e + j), v(d), v(d + 1)))
        A("ds_write_b128 v132, %s offset:%d" % (v(124 + 4 * e, 4), 128 * e))
    A("ds_read_b128 v[16:19], v133\nds_read_b128 v[20:23], v136 offset:1024")
    A("v_mov_b32 v24, s84\nv_mov_b32 v25, s84\nv_mov_b32 v26, s84\nv_mov_b32 v27, s84\nv_mov_b32 v14, 1")
    A("s_waitcnt lgkmcnt(1)")
    A("buffer_store_dwordx4 v[16:19], v134, %s, s95 offen %s" % (WS, WT))
    A("s_waitcnt lgkmcnt(0)")
    A("buffer_store_dwordx4 v[20:23], v134, %s, s97 offen %s" % (WS, WT))
    TSTAMP()
    A("""
    s_mov_b64 exec, 1
    s_waitcnt vmcnt(0)
    ds_add_rtn_u32 v14, v3, v14 offset:12
    s_waitcnt lgkmcnt(0)
    v_readfirstlane_b32 s55, v14
    s_mov_b64 exec, 0xff
    s_cmp_lg_u32 s55, 3
    s_cselect_b32 s62, %s, s62
    buffer_store_dwordx4 v[24:27], v9, %s, s62 offen %s
    s_mov_b64 exec, 0x1ff
    """ % (OOB, WS, WT)); vmq.clear()
    TSTAMP()
    if O('fudelay', 0): A("s_sleep %d" % O('fudelay', 0))
    fu_txt = "buffer_load_dword v14, v8, %s, s63 offen sc1" % WS
    fu_chk = "v_cmp_ne_u32 vcc, s84, v14"
    A(fu_txt + "\ns_waitcnt vmcnt(0)\n" + fu_chk)
    retry("up", fu_txt, fu_chk)
    A("s_mov_b64 exec, -1")
    TSTAMP()
    UL = "sc1" if O('upsc', 0) else ""
    A("""buffer_load_dwordx4 v[32:35], v9, WS, s67 offen UL
    buffer_load_dwordx4 v[40:43], v9, WS, s67 offen offset:1024 UL
    buffer_load_dword v36, v9, WS, s59 offen UL
    buffer_load_dword v44, v9, WS, s59 offen offset:1024 UL
    v_mov_b32 v14, 1
    s_mov_b64 exec, 1
    ds_add_u32 v3, v14 offset:24
    s_mov_b64 exec, -1
    s_waitcnt vmcnt(0)""".replace("WS", WS).replace("UL", UL))
    TSTAMP()
    A("v_cndmask_b32 v36, v36, 0, s[100:101]")
    for h in range(2):
        b = 32 + 8 * h
        W_ = lambda i: v(b + 4) if i < 0 else v(b + i)
        for c in range(2):
            for pi in range(2):
                o = 64 + 8 * h + 2 * (2 * c + pi)
                for jj in range(2):
                    lo = 2 + pi - 2 * jj; hi = lo - 1
                    A("v_perm_b32 %s, %s, %s, %s" % (v(o + jj), W_(hi), W_(lo), "s64" if c == 0 else "s71"))
                A("ds_write_b64 v7, %s offset:%d" % (v(o, 2), (2 * c + pi) * U_STR + 512 * h))
    A("s_waitcnt lgkmcnt(0)\ns_barrier")
    TSTAMP()
    BF = lambda buf, ct: v(16 + 32 * buf + 4 * ct, 4)
    ACC = lambda t: v(80 + 4 * t, 4)
    KF = lambda ph, g: a(32 * (ph & 1) + 4 * g, 4)
    bread = lambda ph, ct: "ds_read_b128 %s, v181 offset:%d" % (BF(ph & 1, ct), 512 * ct + 64 * (3 - ph))
    kread = lambda ph, g: "ds_read_b128 %s, v180 offset:%d" % (KF(ph, g), 512 * g + 64 * ph)
    for i in range(7): A(kread(0, i)); A(bread(0, i))
    p2pre = lines("""v_lshrrev_b32 v5, 2, v1
    v_mul_u32_u24 v5, 96, v5
    v_and_b32 v14, 3, v1
    v_lshl_add_u32 v5, v14, 3, v5
    v_add_u32 v6, %d, v5
    s_lshl_b32 s55, s3, 12
    v_add_u32 v7, s55, v9
    s_lshl_b32 s67, s86, 18
    s_add_u32 s67, s67, %d
    v_lshlrev_b32 v8, 4, v4
    v_add_u32 v8, %d, v8
    v_mov_b32 v3, %d
    v_lshlrev_b32 v10, 2, v2
    v_add_u32 v10, 0xc0, v10""" % (L_WU, HP, L_CS, L_FLG))
    touched = set(); issued = 14
    for ph in range(4):
        if ph in (0, 3): order = [(t - ct, ct) for t in range(8) for ct in range(t + 1)]
        else: order = [(g, ct) for ct in range(8) for g in range(8 - ct)]
        nxt = [x for i in range(8) for x in (kread(ph + 1, i), bread(ph + 1, i))] if ph < 3 else []
        for idx, (g, ct) in enumerate(order):
            t = g + ct
            if ph == 0 and ct == 0:
                need = 2 * (t + 1)
                if t < 7 or True: A("s_waitcnt lgkmcnt(%d)" % min(15, issued - need))
            if ph > 0 and idx == 0: A("s_waitcnt lgkmcnt(0)")
            if 36 * ph + idx == O('lpi', 40): A("v_mov_b32 v14, 1\nds_write_b32 v3, v14 offset:32")
            if ph == 3 and idx == 0: A("v_mov_b32 v14, 1\ns_mov_b64 exec, 1\nds_add_u32 v3, v14 offset:16\ns_mov_b64 exec, -1")
            A("%s %s, %s, %s, %s" % (MF, ACC(t), KF(ph, g), BF(ph & 1, ct), ACC(t) if t in touched else "0"))
            touched.add(t)
            if ph == 3 and idx == 6: A("ds_read_b32 v12, v3 offset:16")
            if ph == 3 and idx == 12: A("s_waitcnt lgkmcnt(0)\nv_cmp_ne_u32 vcc, 4, v12")
            if ph == 3 and idx == 14: retry("kc", "ds_read_b32 v12, v3 offset:16", "v_cmp_ne_u32 vcc, 4, v12", wait="s_waitcnt lgkmcnt(0)")
            if ph == 3 and idx in (15, 17, 19, 21): A("ds_write_b128 v182, %s offset:%d" % (ACC((idx - 15) // 2), 1024 * ((idx - 15) // 2)))
            if ph == 0 and idx == 1: A(kread(0, 7)); A(bread(0, 7)); issued += 2
            if idx >= 16 and nxt:
                A(nxt.pop(0))
                if ph == 0: issued += 1
            if ph == 1 and p2pre: A(p2pre.pop(0))
            if ph == 3 and idx in (23, 28): A("ds_write_b128 v182, %s offset:%d" % (ACC(4 if idx == 23 else 5), 1024 * (4 if idx == 23 else 5)))
        assert not nxt
    A("ds_write_b128 v182, %s offset:%d" % (ACC(6), 1024 * 6))
    A("ds_write_b128 v182, %s offset:%d" % (ACC(7), 1024 * 7))
    A("s_waitcnt lgkmcnt(0)")
    TSTAMP()
    A("s_barrier")
    TSTAMP()
    A("s_barrier")
    TSTAMP()
    XS = lambda st: 16 + 16 * (st & 3)
    AC = lambda arr, ft, tau: v(80 + 48 * arr + 16 * ft + 4 * tau, 4)
    WF = lambda st, arr, ft: 24 * (st & 1) + 12 * arr + 4 * ft
    def xaddr(st): return ["s_add_u32 s55, s88, %d" % st, "s_and_b32 s55, s55, 15", "s_lshl_b32 s55, s55, 14", "s_add_u32 s96, s55, s67"]
    def xlds(st): return ["buffer_load_dwordx4 %s, v7, %s, s96 offen offset:%d sc1" % (v(XS(st) + 4 * j, 4), WS, 1024 * j) for j in range(4)]
    def xload_txt(st): return "\n".join(xaddr(st) + xlds(st)).replace("s96", "s97")
    def xload(st):
        A("\n".join(xaddr(st) + xlds(st))); vmq.extend(["x%d" % st] * 4)
    def xchk(st):
        b = XS(st)
        return ["v_max3_u32 v11, %s, %s, %s" % (v(b), v(b + 4), v(b + 8)), "v_max_u32 v11, v11, %s" % v(b + 12), "v_cmp_eq_u32 vcc, -1, v11"]
    def wreads(st):
        return ["ds_read_b64_tr_b16 %s, %s offset:%d" % (a(WF(st, arr, ft) + 2 * h, 2), "v6" if arr else "v5", st * 3072 + h * 1536 + ft * 32)
                for arr in range(2) for ft in range(3) for h in range(2)]
    def swaps(st):
        b = XS(st)
        return ["v_swap_b32 %s, %s" % (v(b + 4 * j + t), v(b + 4 * t + j)) for j in range(4) for t in range(j + 1, 4)]
    if O('xdelay', 0): A("s_sleep %d" % O('xdelay', 0))
    xload(0)
    for r in wreads(0): A(r)
    vmwait("x0")
    for r in xchk(0): A(r)
    retry("xP", xload_txt(0), "\n".join(xchk(0)))
    TSTAMP()
    xload(1); xload(2)
    for r in swaps(0): A(r)
    A("s_cmp_eq_u32 s87, 31\ns_cbranch_scc1 L_p2alt")
    def flagrd(k): return "ds_read_b32 v12, v3 offset:%d" % (4 * k)
    flagchk = "v_cmp_ne_u32 vcc, 4, v12"
    def p2loop(alt):
        for st in range(16):
            ml = []
            for arr in range(2):
                for ft in range(3):
                    for tau in range(4):
                        xf = v(XS(st) + 4 * tau, 4)
                        wf = a(WF(st, arr, ft), 4)
                        if alt and arr == 1 and ft == 2: wf = xf
                        ml.append("%s %s, %s, %s, %s" % (MF, AC(arr, ft, tau), wf, xf, AC(arr, ft, tau) if st else "0"))
            wr = wreads(st + 1) if st < 15 else ["ds_read_b128 %s, v8 offset:%d" % (v(40 + 4 * t, 4), 64 * t) for t in range(6)]
            if st in (8, 14): wr = wr + [flagrd(0 if st == 8 else 1)]
            sw = swaps(st + 1) if st < 15 else []
            ck = xchk(st + 1) if st < 15 else []
            xa = xaddr(st + 3) if st + 3 < 16 else []
            xl = xlds(st + 3) if st + 3 < 16 else []
            tg = "b" if alt else "a"
            A("s_waitcnt lgkmcnt(0)")
            for i, m in enumerate(ml):
                if i == 0 and st in (9, 15): A(flagchk)
                A(m)
                if i == 1 and st in (9, 15): retry("f%s%d" % (tg, st), flagrd(0 if st == 9 else 1), flagchk, wait="s_waitcnt lgkmcnt(0)")
                if i < 2 and xa: A(xa.pop(0)); A(xa.pop(0))
                if i >= 2 and wr: A(wr.pop(0))
                if i in (2, 4, 6, 8) and xl: VM(xl.pop(0), "x%d" % (st + 3))
                if st == O('xsig', 12) and i == 10: A("v_mov_b32 v13, 1\ns_mov_b64 exec, 1\nds_add_u32 v3, v13 offset:28\ns_mov_b64 exec, -1")
                if i == 12 and sw: vmwait("x%d" % (st + 1))
                if i >= 12 and ck: A(ck.pop(0))
                if i == 16 and sw: retry("x%s%d" % (tg, st + 1), xload_txt(st + 1), "\n".join(xchk(st + 1)))
                if i >= 16 and sw: A(sw.pop(0))
            assert not wr and not sw and not xl
    sv = list(vmq)
    p2loop(False)
    A("s_branch L_p2join")
    A.label("L_p2alt")
    vmq[:] = sv
    p2loop(True)
    A.label("L_p2join")
    TSTAMP()
    A("s_nop 3")
    for tau in range(4):
        A("ds_bpermute_b32 %s, v10, %s" % (v(64 + 2 * tau), v(80 + 32 + 4 * tau)))
    A("s_mov_b32 s57, 0xbb000000\ns_waitcnt lgkmcnt(0)")
    for tau in range(4): A("v_mul_f32 %s, s57, %s" % (v(64 + 2 * tau), v(64 + 2 * tau)))
    A("s_cmp_lg_u32 s87, 31\ns_cbranch_scc1 L_novar")
    A("v_and_b32 v10, 3, v2")
    for tau in range(4): A("v_mov_b32 %s, %s" % (v(72 + tau), v(80 + 48 + 32 + 4 * tau)))
    for j in range(1, 4):
        A("v_cmp_eq_u32 vcc, %d, v10" % j)
        for tau in range(4):
            A("v_cndmask_b32 %s, %s, %s, vcc" % (v(72 + tau), v(72 + tau), v(80 + 48 + 32 + 4 * tau + j)))
    A("s_mov_b32 s56, 0x3b000000\ns_mov_b32 s57, 0x3727c5ac")
    for tau in range(4): A("v_mul_f32 %s, s56, %s" % (v(72 + tau), v(72 + tau)))
    for tau in range(4): A("v_fma_f32 %s, -%s, %s, %s" % (v(72 + tau), v(64 + 2 * tau), v(64 + 2 * tau), v(72 + tau)))
    for tau in range(4): A("v_max_f32 %s, 0, %s" % (v(72 + tau), v(72 + tau)))
    for tau in range(4): A("v_add_f32 %s, s57, %s" % (v(72 + tau), v(72 + tau)))
    for tau in range(4): A("v_rcp_f32 %s, %s" % (v(72 + tau), v(72 + tau)))
    A("s_nop 0\nbuffer_store_dwordx4 v[72:75], v179, %s, s91 offen %s" % (WS, WT))
    A.label("L_novar")
    for ft in range(3):
        for g in range(2):
            o = 16 + 8 * ft + 4 * g
            for e in range(2):
                tau = 2 * g + e
                gb = 80 + 16 * ft + 4 * tau; ub = gb + 48
                M = v(64 + 2 * tau, 2)
                for j in (0, 2):
                    A("v_pk_fma_f32 %s, %s, %s, %s op_sel_hi:[1,0,1]" % (v(gb + j, 2), v(40 + 4 * ft + j, 2), M, v(gb + j, 2)))
                    A("v_pk_fma_f32 %s, %s, %s, %s op_sel_hi:[1,0,1]" % (v(ub + j, 2), v(52 + 4 * ft + j, 2), M, v(ub + j, 2)))
                for j in range(4): A("v_max_f32 %s, 0, %s" % (v(gb + j), v(gb + j)))
                for j in (0, 2): A("v_pk_mul_f32 %s, %s, %s" % (v(gb + j, 2), v(gb + j, 2), v(ub + j, 2)))
                for j in (0, 2): A("v_cvt_pk_bf16_f32 %s, %s, %s" % (v(o + 2 * e + j // 2), v(gb + j), v(gb + j + 1)))
            A("buffer_store_dwordx4 %s, %s, %s, %s offen offset:%d %s" % (v(o, 4), HV[ft], WS, "s90" if g else "s89", 1024 * ft, WT))
    TSTAMP()
    A("s_barrier")
    dump(TS)
    A("s_endpgm")

    A.label("L_B")
    vmq.clear(); nst[0] = 1
    if O('bprio', 1): A("s_setprio %d" % O('bprio', 1))
    A("""
    s_lshr_b32 s55, s66, 4
    s_lshl_b32 s72, s55, 14
    s_and_b32 s55, s66, 3
    s_lshl_b32 s55, s55, 10
    s_add_u32 s72, s72, s55
    s_bfe_u32 s55, s66, 0x20002
    s_lshl_b32 s55, s55, 8
    s_add_u32 s72, s72, s55
    s_lshl_b32 s55, s3, 19
    s_add_u32 s72, s72, s55
    s_add_u32 s72, s72, %d
    s_add_u32 s73, s72, 0x40000
    v_lshlrev_b32 v63, 4, v2
    v_lshl_add_u32 v63, v4, 12, v63
    v_mov_b32 v64, -1
    v_mov_b32 v65, -1
    v_mov_b32 v66, -1
    v_mov_b32 v67, -1
    """ % HP)
    A("""
    v_mov_b32 v40, 0
    v_mov_b32 v41, 0
    v_mov_b32 v42, 0
    v_mov_b32 v43, 0
    v_mov_b32 v12, %d
    ds_write_b128 v12, v[40:43]
    ds_write_b128 v12, v[40:43] offset:16
    ds_write_b128 v12, v[40:43] offset:32
    s_lshl_b32 s57, s2, 13
    s_lshl_b32 s56, s99, 12
    s_add_u32 s57, s57, s56
    s_lshl_b32 s56, s98, 10
    s_add_u32 s57, s57, s56
    s_lshl_b32 s61, s66, 13
    s_lshl_b32 s56, s3, 11
    s_add_u32 s61, s61, s56
    s_lshl_b32 s55, s5, 2
    s_add_u32 s55, s55, s3
    s_mul_i32 s55, s55, 384
    v_lshl_add_u32 v10, v1, 7, s55
    s_waitcnt lgkmcnt(0)
    s_barrier
    s_mov_b64 exec, 7
    """ % L_FLG)
    VM("global_load_dword v11, v10, %s" % s(sPC, 2), "code")
    A("s_mov_b64 exec, -1")
    def hpfill():
        VM("buffer_store_dwordx4 v[64:67], v63, %s, s72 offen %s" % (WS, WT), "fill")
        VM("buffer_store_dwordx4 v[64:67], v63, %s, s73 offen %s" % (WS, WT), "fill")
    if O('fillp', 1) == 0: hpfill()
    VM("buffer_load_dwordx4 v[32:35], v9, %s, s57 offen %s" % (srd(S_Q), NT), "stat")
    VM("buffer_load_dwordx4 v[36:39], v9, %s, s57 offen offset:2048 %s" % (srd(S_Q), NT), "stat")
    VM("buffer_load_dwordx4 v[24:27], v9, %s, s61 offen %s" % (srd(S_SSM), NT), "ssm")
    VM("buffer_load_dwordx4 v[28:31], v9, %s, s61 offen offset:1024 %s" % (srd(S_SSM), NT), "ssm")
    if O('fillp', 1) == 1: hpfill()
    A("s_load_dword s84, %s, 0\ns_lshl_b32 s56, s66, 2\ns_load_dword %s, %s, s56" % (s(S_WS, 2), s(sD), s(sDP, 2)))
    A(ids)
    A("""
    v_and_b32 v6, 7, v1
    v_xor_b32 v5, s98, v6
    v_lshlrev_b32 v5, 4, v5
    v_lshl_add_u32 v5, v1, 7, v5
    s_lshl_b32 s55, s99, 3
    s_add_u32 s55, s55, %d
    v_add_u32 v5, s55, v5
    v_lshrrev_b32 v7, 3, v1
    s_mov_b32 s55, %d
    v_mul_lo_u32 v8, v7, s55
    v_lshl_add_u32 v8, v6, 4, v8
    v_xor_b32 v6, v6, v7
    v_lshlrev_b32 v6, 4, v6
    v_lshl_add_u32 v6, v7, 7, v6
    s_lshl_b32 s55, s3, 11
    s_add_u32 s55, s55, %d
    v_add_u32 v6, s55, v6
    v_xor_b32 v16, 32, v5
    v_xor_b32 v17, 64, v5
    v_xor_b32 v18, 0x60, v5
    """ % (L_TB, QSTR, L_TB))
    A("""
    s_mul_i32 s55, s3, %d
    s_add_u32 s55, s55, %d
    v_and_b32 v12, 7, v1
    v_lshl_add_u32 v12, v12, 4, s55
    ds_write_b128 v12, v[40:43]
    s_cmp_lg_u32 s99, 0
    s_cbranch_scc1 L_nohead
    v_and_b32 v12, 31, v1
    v_lshlrev_b32 v12, 4, v12
    v_lshrrev_b32 v13, 5, v1
    s_movk_i32 s56, %d
    v_mad_u32_u24 v12, v13, s56, v12
    s_mul_i32 s55, s98, %d
    s_add_u32 s55, s55, %d
    v_add_u32 v12, s55, v12
    ds_write_b128 v12, v[40:43]
    ds_write_b128 v12, v[40:43] offset:%d
    L_nohead:
    """ % (U_STR, L_U, KC_STR, 4 * KC_STR, L_KC, 2 * KC_STR))
    A("""
    s_mul_i32 s55, s3, %d
    s_lshl_b32 s56, s2, 7
    s_add_u32 s55, s55, s56
    s_add_u32 s95, s55, %d
    s_add_u32 s97, s95, %d
    s_movk_i32 s55, 0x2aab
    s_movk_i32 s56, 2752
    """ % (16 * QSTR, QP, 8 * QSTR))
    for i3 in range(3):
        A("""
        v_add_u32 v14, %d, v1
        v_mul_u32_u24 v3, s55, v14
        v_lshrrev_b32 v3, 16, v3
        v_mul_u32_u24 v13, 6, v3
        v_sub_u32 v14, v14, v13
        v_bfe_u32 v13, v3, 2, 2
        v_lshlrev_b32 v13, 3, v13
        v_lshrrev_b32 v12, 4, v3
        v_lshl_add_u32 v13, v12, 2, v13
        v_and_b32 v3, 3, v3
        v_add_u32 v13, v13, v3
        v_mul_u32_u24 v13, s56, v13
        v_lshl_add_u32 %s, v14, 4, v13
        """ % (64 * i3, v(60 + i3)))
    A("""
    s_bitcmp1_b32 s3, 0
    s_cselect_b32 s48, s32, s28
    s_cselect_b32 s49, s33, s29
    s_add_u32 s69, s88, s98
    s_mul_i32 s70, s87, 88
    s_mul_i32 s76, s99, %d
    s_mul_i32 s56, s98, 3072
    s_add_u32 s76, s76, s56
    s_mul_i32 s56, s98, %d
    s_lshl_b32 s57, s99, 11
    s_add_u32 s56, s56, s57
    s_add_u32 s56, s56, %d
    v_add_u32 v44, s56, v9
    v_add_u32 v45, %d, v44
    v_add_u32 v46, %d, v44
    v_add_u32 v47, %d, v44
    v_mov_b32 v3, FLGA
    """.replace("FLGA", str(L_FLG)) % (L_WU, 4 * KC_STR, L_KC + 512 - 4, KC_STR - 4, 2 * KC_STR - 8, 3 * KC_STR - 12))
    ndma = [0]
    def w1dma(n):
        for _ in range(n):
            i = ndma[0]; ndma[0] += 1
            gi, i3 = divmod(i, 3)
            if i3 == 0: A("s_and_b32 s77, s69, 15\ns_mul_i32 s77, s77, 88064\ns_add_u32 s77, s77, s70\ns_add_u32 s69, s69, 2")
            A("s_add_u32 m0, s76, %d" % (gi * 6144 + i3 * 1024))
            VM("buffer_load_dwordx4 %s, %s, s77 offen lds" % (v(60 + i3), srd(S_T)), "dma")
    span = 88 * (32 // RBX)
    ntouch = ((span + 8 + 127 + 127) // 128 + 7) // 8
    def w1touch(pos):
        if O('w1tp', 9) != pos: return 0
        A("""
        v_lshrrev_b32 v12, 3, v1
        s_movk_i32 s55, 2752
        v_mul_lo_u32 v12, v12, s55
        v_and_b32 v13, 7, v1
        v_lshlrev_b32 v13, 7, v13
        s_lshl_b32 s55, s5, 1
        s_add_u32 s55, s55, s98
        s_mul_i32 s55, s55, 22016
        s_and_b32 s56, s4, %d
        s_mul_i32 s56, s56, %d
        s_add_u32 s55, s55, s56
        """ % (RBX - 1, span))
        for i in range(ntouch):
            A("v_add_u32 v14, %d, v13\nv_min_u32 v14, %d, v14\nv_add_u32 v14, v14, v12" % (1024 * i, span + 4))
            VM("buffer_load_dword v11, v14, %s, s55 offen %s" % (srd(S_T), "nt" if O('tnt', 0) else ""), "tch")
        return ntouch
    def wdtouch(pos):
        if O('wdtp', 1) != pos: return
        if O('wdtm', 1) == 1:
            A("s_lshl_b32 s55, s2, 2\ns_add_u32 s55, s55, s3\ns_mul_i32 s55, s55, 1408\nv_lshlrev_b32 v12, 7, v1\ns_mov_b64 exec, 0x7ff")
            VM("buffer_load_dword v11, v12, %s, s55 offen" % srd(S_WD), "tch")
            A("s_mov_b64 exec, -1")
        else:
            A("s_lshl_b32 s55, s5, 2\ns_add_u32 s55, s55, s3\ns_mul_i32 s55, s55, 11008\nv_lshlrev_b32 v12, 7, v1")
            VM("buffer_load_dword v11, v12, %s, s55 offen" % srd(S_WD), "tch")
            A("s_add_u32 s55, s55, 8192\ns_mov_b64 exec, 0x3fffff")
            VM("buffer_load_dword v11, v12, %s, s55 offen" % srd(S_WD), "tch")
            A("s_mov_b64 exec, -1")
    TSTAMP()
    w1touch(0)
    A("v_mov_b32 v21, 0x3f803f80")
    vmwait("stat")
    TSTAMP()
    w1touch(1)
    for i in range(4): A("ds_write2_b32 %s, %s, %s offset0:0 offset1:1" % (("v5", "v16", "v17", "v18")[i], v(32 + i), v(36 + i)))
    A("v_mov_b32 v14, 1\ns_waitcnt lgkmcnt(0)\ns_mov_b64 exec, 1\nds_add_u32 v3, v14 offset:20\ns_mov_b64 exec, -1\ns_add_u32 s84, s84, 1\ns_or_b32 s84, s84, 0x80000000")
    for i in range(4):
        for e in range(2):
            A("v_dot2c_f32_bf16 %s, %s, v21" % (v(42 + e), v(32 + 4 * e + i)))
            A("v_dot2c_f32_bf16 %s, %s, %s" % (v(40 + e), v(32 + 4 * e + i), v(32 + 4 * e + i)))
    for m in ("row_shr:1", "row_shr:2", "row_shr:4", "row_shr:8", "row_bcast:15 row_mask:0xa", "row_bcast:31 row_mask:0xc"):
        for r in range(40, 44):
            A("v_add_f32_dpp %s, %s, %s %s" % (v(r), v(r), v(r), m))
    A("s_mov_b32 s56, 0x3b000000\ns_mov_b32 s57, 0x3727c5ac")
    for r in range(40, 44): A("v_mul_f32 %s, s56, %s" % (v(r), v(r)))
    for e in range(2): A("v_fma_f32 %s, -%s, %s, %s" % (v(40 + e), v(42 + e), v(42 + e), v(40 + e)))
    for e in range(2): A("v_max_f32 %s, 0, %s" % (v(40 + e), v(40 + e)))
    for e in range(2): A("v_add_f32 %s, s57, %s" % (v(40 + e), v(40 + e)))
    for e in range(2): A("v_rsq_f32 %s, %s" % (v(40 + e), v(40 + e)))
    for e in range(2): A("v_mul_f32_e64 %s, -%s, %s" % (v(42 + e), v(42 + e), v(40 + e)))
    A("v_mov_b32 v19, v6\nv_mov_b32 v20, v8")
    qw_txt = "ds_read2_b32 v[12:13], v3 offset0:%d offset1:5" % O('qwait', 5)
    qw_chk = "v_add_u32 v12, v12, v13\nv_cmp_ne_u32 vcc, 8, v12"
    A(qw_txt + "\ns_waitcnt lgkmcnt(0)\n" + qw_chk)
    retry("qw", "s_sleep 1\n" + qw_txt, qw_chk, wait="s_waitcnt lgkmcnt(0)")
    TSTAMP()
    A("ds_read_b128 v[48:51], v19\nds_read_b128 v[52:55], v19 offset:1024\ns_waitcnt lgkmcnt(1)")
    A("buffer_store_dwordx4 v[48:51], v20, %s, s95 offen %s\ns_waitcnt lgkmcnt(0)" % (WS, WT))
    A("buffer_store_dwordx4 v[52:55], v20, %s, s97 offen %s" % (WS, WT))
    vmq.extend(["st"] * 2)
    nyoung = w1touch(2)
    vmwait("ssm")
    for i in range(2):
        b = 24 + 4 * i
        if i == 1: A("v_add_u32 v44, 0x400, v44\nv_add_u32 v46, 0x400, v46")
        for ad in ("v44", "v46"):
            A("ds_write2_b32 %s, %s, %s offset0:0 offset1:1" % (ad, v(b), v(b + 1)))
            A("ds_write2_b32 %s, %s, %s offset0:2 offset1:3" % (ad, v(b + 2), v(b + 3)))
        A("ds_write2_b64 v45, %s, %s offset0:%d offset1:%d" % (v(b, 2), v(b + 2, 2), 128 * i, 128 * i + 1))
        A("ds_write_b128 v47, %s offset:%d" % (v(b, 4), 1024 * i))
    A("""
    s_lshl_b32 s55, s3, 4
    s_add_u32 s55, s55, %d
    v_mov_b32 v12, s55
    v_mov_b32 v13, %d
    v_mov_b32 v14, 1
    s_mov_b32 exec_lo, 0
    s_mov_b32 exec_hi, 0x80000000
    ds_write_b128 v12, v[40:43]
    s_waitcnt vmcnt(NYOUNG) lgkmcnt(0)
    ds_add_rtn_u32 v14, v13, v14 offset:8
    s_waitcnt lgkmcnt(0)
    v_readfirstlane_b32 s55, v14
    s_mov_b64 exec, -1
    s_cmp_lg_u32 s55, 3
    s_cbranch_scc1 L_nost
    v_and_b32 v12, 3, v1
    v_lshlrev_b32 v12, 4, v12
    ds_read_b128 v[40:43], v12 offset:%%d
    v_and_b32 v13, 7, v1
    v_cmp_lt_u32 vcc, 3, v13
    v_mov_b32 v14, s84
    v_cndmask_b32 v14, 0, v14, vcc
    v_lshrrev_b32 v12, 3, v1
    v_mul_u32_u24 v12, STRIDE, v12
    v_lshl_add_u32 v12, v13, 4, v12
    s_lshl_b32 s55, s2, 7
    s_add_u32 s55, s55, %d
    s_waitcnt lgkmcnt(0)
    v_xor_b32 v40, v14, v40
    v_xor_b32 v41, v14, v41
    v_xor_b32 v42, v14, v42
    v_xor_b32 v43, v14, v43
    s_mov_b64 exec, STEX
    buffer_store_dwordx4 v[40:43], v12, WS, s55 offen WT
    s_mov_b64 exec, -1
    L_nost:
    """.replace("STRIDE", str(STR)).replace("STEX", "-1" if O('strep', 1) else "0xff").replace("WS", WS).replace("WT", WT).replace("NYOUNG", str(nyoung)).replace("v_lshlrev_b32 v12, 4, v12\n    ds_read_b128 v[40:43], v12 offset:%%d", "v_lshlrev_b32 v12, 4, v12\n    v_add_u32 v12, STL, v12\n    ds_read_b128 v[40:43], v12").replace("STL", str(L_FLG + 64)) % (L_FLG + 64, L_FLG, ST)); vmq.clear()
    TSTAMP()
    A("""
    s_and_b32 s55, s54, 0xffff
    s_lshr_b32 s56, s54, 16
    v_mov_b32 v13, s55
    v_mov_b32 v14, s56
    v_lshl_add_u32 v12, v4, 2, 3
    v_sub_u32 v12, v12, v2
    """)
    for jj in range(4):
        A("v_cmp_eq_u32 vcc, %d, v12\nv_cndmask_b32 %s, 0, v13, vcc\nv_cndmask_b32 %s, 0, v14, vcc" % (jj, v(72 + jj), v(76 + jj)))
    A("""
    v_and_b32 v5, 1, v2
    s_movk_i32 s55, %d
    v_mul_lo_u32 v5, v5, s55
    v_lshrrev_b32 v14, 1, v2
    v_lshl_add_u32 v5, v14, 4, v5
    v_lshl_add_u32 v5, v4, 7, v5
    s_lshl_b32 s56, s3, 10
    s_add_u32 s56, s56, %d
    v_add_u32 v5, s56, v5
    s_lshl_b32 s56, s3, 11
    s_add_u32 s57, s56, %d
    v_add_u32 v6, s57, v9
    v_add_u32 v7, %d, v6
    s_lshr_b32 s68, s66, 2
    s_mul_i32 s68, s68, %d
    s_and_b32 s57, s66, 3
    s_lshl_b32 s57, s57, 5
    s_add_u32 s68, s68, s57
    s_lshl_b32 s58, s3, 13
    s_add_u32 s68, s68, s58
    s_add_u32 s68, s68, %d
    s_add_u32 s60, s68, 0x1000
    s_add_u32 s58, s58, %d
    s_mul_i32 s57, s4, STRX
    s_add_u32 s58, s58, s57
    s_add_u32 s59, s58, 0x1000
    v_lshrrev_b32 v8, 1, v1
    v_lshlrev_b32 v8, 7, v8
    v_and_b32 v14, 1, v1
    v_lshl_add_u32 v10, v14, 4, v8
    v_lshl_add_u32 v8, v14, 5, v8
    s_mul_i32 s61, s99, 49152
    s_lshl_b32 s57, s98, 13
    s_add_u32 s61, s61, s57
    s_add_u32 s61, s61, 0x8000
    v_lshlrev_b32 v14, 3, v1
    v_and_b32 v14, 0x70, v14
    v_xor_b32 v8, v8, v14
    v_add_u32 v8, s61, v8
    v_xor_b32 v57, 16, v8
    v_xor_b32 v58, 64, v8
    v_xor_b32 v59, 0x50, v8
    v_lshlrev_b32 v14, 1, v1
    v_and_b32 v14, 0x70, v14
    v_xor_b32 v56, v9, v14
    """.replace("STRX", str(STR if O('strep', 1) else 0)) % (U_STR, L_U + 8 * 16, L_REDA, L_REDB - L_REDA, QSTR, QP, ST))
    if O('nw1e', 6) or O('wdtp', 1) == 1:
        A("ds_read_b32 v12, v3 offset:24\ns_waitcnt lgkmcnt(0)\nv_cmp_ne_u32 vcc, 4, v12")
        retry("uw", "s_sleep 1\nds_read_b32 v12, v3 offset:24", "v_cmp_ne_u32 vcc, 4, v12", wait="s_waitcnt lgkmcnt(0)")
    w1dma(O('nw1e', 6))
    wdtouch(1)
    A("s_waitcnt lgkmcnt(0)\ns_barrier")
    TSTAMP()
    for e in range(2):
        for c in range(2):
            A("ds_read_b128 %s, v5 offset:%d" % (v(80 + 8 * e + 4 * c, 4), 2 * c * U_STR + 512 * e))
    st_dma = "s_mov_b32 m0, s61\n" + "\n".join("buffer_load_dwordx4 v56, %s, s58 offen offset:%d sc1 lds" % (WS, 1024 * i) for i in range(4)) + \
             "\ns_add_u32 m0, s61, 0x1000\n" + "\n".join("buffer_load_dwordx4 v56, %s, s59 offen offset:%d sc1 lds" % (WS, 1024 * i) for i in range(4))
    st_rd = "\n".join("ds_read_b128 %s, %s offset:%d" % (v(16 * (1 + cp) + 8 * e + 4 * h, 4), ("v8", "v57", "v58", "v59")[h + 2 * cp], 4096 * e)
                       for e in range(2) for h in range(2) for cp in range(2))
    st_chk = "\n".join(["v_bitop3_b32 %s, %s, %s, s84 bitop3:0x96" % (v(32 + i), v(32 + i), v(16 + i)) for i in range(16)] +
                       ["v_or3_b32 %s, %s, %s, %s" % (v(32 + i), v(32 + i), v(33 + i), v(34 + i)) for i in (0, 3, 6, 9, 12)] +
                       ["v_or3_b32 v32, v32, v35, v38", "v_or3_b32 v41, v41, v44, v47", "v_or_b32 v32, v32, v41", "v_cmp_ne_u32 vcc, 0, v32"])
    w1dma(O('nw1d', 0))
    A("s_waitcnt lgkmcnt(0)")
    for e in range(2):
        for c in range(2):
            A("%s %s, %s, %s, 0" % (MF, v(96 + 8 * e + 4 * c, 4), v(72 + 4 * c, 4), v(80 + 8 * e + 4 * c, 4)))
    w1dma(O('nw1f', 0))
    if O('lpw', 1):
        A("ds_read_b32 v12, v3 offset:32\ns_waitcnt lgkmcnt(0)\nv_cmp_eq_u32 vcc, 0, v12")
        retry("lw", "s_sleep 1\nds_read_b32 v12, v3 offset:32", "v_cmp_eq_u32 vcc, 0, v12", wait="s_waitcnt lgkmcnt(0)")
    A(st_dma); vmq.extend(["stp"] * 8)
    w1dma(O('nw1i', 3))
    vmwait("stp")
    A(st_rd + "\ns_waitcnt lgkmcnt(0)\n" + st_chk)
    retry("st", "s_sleep %d\n" % O('stsl', 4) + st_dma + "\ns_waitcnt vmcnt(0)\n" + st_rd, st_chk, wait="s_waitcnt lgkmcnt(0)")
    TSTAMP()
    VM("buffer_load_dwordx4 v[48:51], v10, %s, s68 offen sc1" % WS, "qp")
    VM("buffer_load_dwordx4 v[52:55], v10, %s, s60 offen sc1" % WS, "qp")
    wdtouch(2)
    w1dma(min(O('nw1g', 6), 15 - ndma[0]))
    vmwait("qp")
    TSTAMP()
    for e in range(2):
        for j in range(4):
            A("v_lshlrev_b32 %s, 16, %s" % (v(112 + 8 * e + j), v(48 + 4 * e + j)))
            A("v_and_b32 %s, s65, %s" % (v(116 + 8 * e + j), v(48 + 4 * e + j)))
    for e in range(2):
        for c in range(2):
            for j in (0, 2):
                A("v_pk_fma_f32 %s, %s, %s, %s" % (v(128 + 8 * e + 4 * c + j, 2), v(112 + 8 * e + 4 * c + j, 2), v(16 + 8 * e + 2 * j, 2), v(18 + 8 * e + 2 * j, 2)))
    w1dma(O('nw1h', 0))
    TSTAMP()
    A("s_barrier")
    TSTAMP()
    for e in range(2):
        for src in range(4):
            A("ds_read_b128 %s, %s offset:%d" % (v(16 + 16 * e + 4 * src, 4), "v7" if src >= 2 else "v6", 8192 * (src & 1) + 1024 * e))
    for e in range(2):
        for c in range(2):
            A("s_waitcnt lgkmcnt(%d)" % (6 - 4 * e - 2 * c))
            for j in (0, 2):
                d = v(96 + 8 * e + 4 * c + j, 2)
                A("v_pk_add_f32 %s, %s, %s" % (d, d, v(16 + 16 * e + 8 * c + j, 2)))
            for j in (0, 2):
                d = v(96 + 8 * e + 4 * c + j, 2)
                A("v_pk_add_f32 %s, %s, %s" % (d, d, v(20 + 16 * e + 8 * c + j, 2)))
            for j in (0, 2):
                d = v(96 + 8 * e + 4 * c + j, 2)
                A("v_pk_fma_f32 %s, %s, %s, %s" % (d, d, v(128 + 8 * e + 4 * c + j, 2), v(112 + 8 * e + 4 * c + j, 2)))
        for j in range(4):
            A("v_cvt_pk_bf16_f32 %s, %s, %s" % (v(48 + 4 * e + j), v(96 + 8 * e + j), v(100 + 8 * e + j)))
        VM("buffer_store_dwordx4 %s, v63, %s, %s offen %s" % (v(48 + 4 * e, 4), WS, "s73" if e else "s72", WT), "hp")
    TSTAMP()
    NB6 = O('nb6', 15)
    wdtouch(3)
    w1dma(NB6 - ndma[0])
    A("""
    v_mov_b32 v56, 0x3f803f80
    v_mov_b32 v57, 0x3f803f80
    v_mov_b32 v58, 0x3f803f80
    v_mov_b32 v59, 0x3f803f80
    v_and_b32 v14, 31, v1
    v_mul_u32_u24 v14, 96, v14
    s_add_u32 s55, s76, 88
    v_add_u32 v14, s55, v14
    v_mov_b32 v3, %d
    v_mov_b32 v13, 1
    """ % L_FLG)
    vmwait("dma")
    for i in range(NB6 // 3): A("ds_write_b64 v14, v[56:57] offset:%d" % (6144 * i))
    A("s_waitcnt lgkmcnt(0)\ns_barrier")
    TSTAMP()
    w1dma(24 - NB6)
    A("""
    s_and_b32 s72, s5, 7
    s_lshr_b32 s71, s5, 3
    s_mul_i32 s56, s71, %d
    s_mul_i32 s55, s72, %d
    s_add_u32 s55, s55, s56
    s_sub_u32 s56, s55, 11
    s_cmp_ge_u32 s55, 11
    s_cselect_b32 s55, s56, s55
    s_mul_i32 s56, s3, 11
    s_add_u32 s57, s56, 11
    s_add_u32 s55, s55, s56
    """ % (O('rot4', 0), O('rot3', 0)))
    for i in range(11):
        A("s_lshl_b32 %s, s55, 11\ns_add_u32 s55, s55, 1\ns_cmp_eq_u32 s55, s57\ns_cselect_b32 s55, s56, s55" % s(8 + i))
    A("""
    v_lshrrev_b32 v5, 3, v1
    v_and_b32 v6, 2, v5
    v_lshlrev_b32 v6, 1, v6
    v_and_b32 v7, 7, v1
    v_xor_b32 v6, v6, v7
    v_lshlrev_b32 v5, 10, v5
    v_lshl_add_u32 v5, v6, 4, v5
    s_mul_i32 s92, s3, 12288
    s_add_u32 s92, s92, %d
    v_lshrrev_b32 v6, 2, v1
    v_and_b32 v7, 2, v6
    v_lshlrev_b32 v7, 5, v7
    v_lshlrev_b32 v6, 7, v6
    v_and_b32 v8, 3, v1
    v_lshl_add_u32 v6, v8, 4, v6
    v_add_u32 v6, v6, v7
    s_lshl_b32 s55, s99, 6
    v_xor_b32 v7, s55, v6
    v_xor_b32 v6, 64, v7
    v_add_u32 v6, s92, v6
    v_add_u32 v7, s92, v7
    s_lshl_b32 s93, s72, 7
    v_lshrrev_b32 v10, 2, v1
    v_mul_u32_u24 v10, 96, v10
    v_lshl_add_u32 v10, v8, 3, v10
    s_lshl_b32 s56, s99, 5
    s_add_u32 s56, s56, %d
    v_add_u32 v11, s56, v10
    s_lshl_b32 s55, s3, 5
    s_cmp_eq_u32 s3, 3
    s_cselect_b32 s55, %d, s55
    v_add_u32 v10, s55, v10
    """ % (L_SG, L_WU + 32, L_WU))
    WDR = lambda i, tm: a(16 * i + 4 * tm, 4) if i < 4 else v(72 + 16 * (i - 4) + 4 * tm, 4)
    WDH = lambda i, tm, h: a(16 * i + 4 * tm + 2 * h, 2) if i < 4 else v(72 + 16 * (i - 4) + 4 * tm + 2 * h, 2)
    def wd_issue(i):
        A("s_lshl_b32 s94, %s, 4\ns_add_u32 s94, s94, s93" % s(8 + i))
        for r in range(4):
            A("s_add_u32 m0, s92, %d" % (4096 * (i % 3) + 1024 * r))
            VM("buffer_load_dwordx4 v5, %s, s94 offen lds" % srd(S_WD), "wd%d" % i)
            if r < 3: A("s_add_u32 s94, s94, 0x2000")
    def wd_read(i):
        vmwait("wd%d" % i)
        for tm in range(4):
            for h in range(2):
                A("ds_read_b64_tr_b16 %s, %s offset:%d" % (WDH(i, tm, h), "v6" if tm < 2 else "v7", 4096 * (i % 3) + 2048 * h + 8 * (tm & 1)))
        A("s_waitcnt lgkmcnt(0)")
    def hfill():
        A(haddr(["v68", "v69", "v70"], "v71", ("v12", "v8")))
        for ft in range(3):
            for g in range(2):
                VM("buffer_store_dwordx4 v[64:67], %s, %s, %s offen offset:%d %s" % (v(68 + ft), WS, "s90" if g else "s89", 1024 * ft, WT), "fill")
        VM("buffer_store_dwordx4 v[64:67], v71, %s, s91 offen %s" % (WS, WT), "fill")
    def hflag():
        A("""
        s_lshl_b32 s55, s86, 2
        s_add_u32 s55, s55, s3
        s_lshl_b32 s55, s55, 5
        s_add_u32 s55, s55, s87
        s_lshl_b32 s55, s55, 7
        s_add_u32 s55, s55, %d
        v_mov_b32 v64, s84
        v_mov_b32 v65, s84
        v_mov_b32 v66, s84
        v_mov_b32 v67, s84
        s_mov_b64 exec, 0xff
        """ % FH)
        vmwait("fill")
        VM("buffer_store_dwordx4 v[64:67], v9, %s, s55 offen %s" % (WS, WT), "fhs")
        A("s_mov_b64 exec, -1")
    wd_issue(0)
    vmwait("dma")
    for i in range(NB6 // 3, 8): A("ds_write_b64 v14, v[56:57] offset:%d" % (6144 * i))
    A("s_waitcnt lgkmcnt(0)\ns_mov_b64 exec, 1\nds_add_u32 v3, v13\ns_mov_b64 exec, -1")
    TSTAMP()
    wd_issue(1)
    wd_read(0); wd_issue(2); wd_read(1)
    A("ds_read_b32 v12, v3\ns_waitcnt lgkmcnt(0)\n" + flagchk)
    retry("fB", "ds_read_b32 v12, v3", flagchk, wait="s_waitcnt lgkmcnt(0)")
    hfill()
    wd_issue(3)
    for st in range(16):
        b = 16 + 8 * (st & 3)
        for h in range(2): A("ds_read_b64_tr_b16 %s, v10 offset:%d" % (v(b + 2 * h, 2), st * 3072 + h * 1536))
        for h in range(2): A("ds_read_b64_tr_b16 %s, v11 offset:%d" % (v(b + 4 + 2 * h, 2), st * 3072 + h * 1536))
        if st >= 2:
            pb = 16 + 8 * ((st - 2) & 3)
            A("s_waitcnt lgkmcnt(8)")
            A("%s v[48:51], v[56:59], %s, %s" % (MF, v(pb, 4), "v[48:51]" if st > 2 else "0"))
            A("%s v[52:55], v[56:59], %s, %s" % (MF, v(pb + 4, 4), "v[52:55]" if st > 2 else "0"))
    for st in (14, 15):
        pb = 16 + 8 * (st & 3)
        A("s_waitcnt lgkmcnt(%d)" % (4 if st == 14 else 0))
        A("%s v[48:51], v[56:59], %s, v[48:51]" % (MF, v(pb, 4)))
        A("%s v[52:55], v[56:59], %s, v[52:55]" % (MF, v(pb + 4, 4)))
    hflag()
    A("""
    s_lshl_b32 s55, s3, 6
    s_add_u32 s55, s55, %d
    v_lshl_add_u32 v10, v2, 2, s55
    s_lshl_b32 s56, s99, 6
    s_add_u32 s56, s56, %d
    v_lshl_add_u32 v11, v2, 2, s56
    ds_write_b32 v10, v48
    ds_write_b32 v11, v52
    s_waitcnt lgkmcnt(0)
    s_mov_b64 exec, 1
    ds_add_u32 v3, v13 offset:4
    s_mov_b64 exec, -1
    """ % (L_CS, L_CS + 256))
    TSTAMP()
    for i in range(2, 11):
        if O('wdsl', 0): A("s_sleep %d" % O('wdsl', 0))
        wd_read(i)
        if i + 2 == O('wdhold', 5):
            TSTAMP()
            if O('wdt2', 2):
                A("s_lshl_b32 s55, s5, 2\ns_add_u32 s55, s55, s3\ns_mul_i32 s55, s55, 11008\nv_lshlrev_b32 v12, 7, v1\ns_mov_b64 exec, 0x3fffff")
                for k in range(4):
                    VM("buffer_load_dword v11, v12, %s, s55 offen" % srd(S_WD), "tch")
                    A("s_add_u32 s55, s55, 2816")
                    if O('wdt2', 2) == 2: A("s_waitcnt vmcnt(0)")
                A("s_mov_b64 exec, -1")
            A("ds_read_b32 v12, v3 offset:28\ns_waitcnt lgkmcnt(0)\n" + flagchk)
            retry("wh", "s_sleep 2\nds_read_b32 v12, v3 offset:28", flagchk, wait="s_waitcnt lgkmcnt(0)")
            A("""
            s_lshl_b32 s64, s4, 2
            s_add_u32 s64, s64, s71
            s_lshl_b32 s64, s64, 12
            s_add_u32 s64, s64, %d
            s_lshl_b32 s56, s3, 3
            v_add_u32 v8, s56, v1
            v_cmp_lt_u32 vcc, 7, v1
            v_cndmask_b32 v8, v8, 31, vcc
            v_lshlrev_b32 v8, 7, v8
            """ % FH)
            VM("buffer_load_dword v10, v8, %s, s64 offen sc1" % WS, "fh")
            TSTAMP()
        if i + 2 < 11: wd_issue(i + 2)
    TSTAMP()
    A("s_waitcnt vmcnt(0)\nv_cmp_ne_u32 vcc, s84, v10")
    retry("fh", "buffer_load_dword v10, v8, %s, s64 offen sc1" % WS, "v_cmp_ne_u32 vcc, s84, v10")
    A("""
    s_lshl_b32 s55, s72, 1
    s_add_u32 s55, s55, s99
    s_lshl_b32 s55, s55, 14
    s_lshl_b32 s56, s71, 12
    s_add_u32 s55, s55, s56
    s_lshl_b32 s56, s98, 3
    s_add_u32 s55, s55, s56
    s_lshl_b32 s56, s4, 18
    s_add_u32 s55, s55, s56
    s_add_u32 s94, s55, %d
    s_lshl_b32 s55, s4, 2
    s_add_u32 s55, s55, s71
    s_lshl_b32 s56, s55, 1
    s_add_u32 s57, s56, s98
    s_xor_b32 s56, s57, 1
    s_mul_i32 s68, s56, %d
    s_mul_i32 s69, s57, %d
    s_add_u32 s68, s68, %d
    s_add_u32 s69, s69, %d
    s_lshl_b32 s77, s55, 16
    s_lshl_b32 s56, s98, 12
    s_add_u32 s77, s77, s56
    s_lshl_b32 s56, s72, 7
    s_add_u32 s77, s77, s56
    s_lshl_b32 s56, s99, 6
    s_add_u32 s77, s77, s56
    v_lshrrev_b32 v5, 1, v2
    v_lshlrev_b32 v5, 13, v5
    v_and_b32 v14, 1, v2
    v_lshl_add_u32 v5, v14, 10, v5
    v_lshl_add_u32 v5, v4, 4, v5
    s_lshl_b32 s67, s55, 8
    s_lshl_b32 s56, s98, 3
    s_add_u32 s67, s67, s56
    s_add_u32 s67, s67, %d
    v_lshlrev_b32 v12, 4, v2
    s_mul_i32 s56, s3, 12288
    v_add_u32 v10, s56, v9
    """ % (HP, HG, HG, HH, HH, R2))
    for i in range(11): A("s_min_u32 %s, %s, %d" % (s(8 + i), s(8 + i), 42 * 2048))
    for k in (1, 2, 3):
        A("s_xor_b32 s56, s3, %d\ns_mul_i32 s56, s56, 12288\ns_add_u32 s56, s56, %d\nv_add_u32 %s, s56, v9" % (k, L_RED3 + (k - 1) * 4096, v(5 + k)))
    A("v_add_u32 v14, s92, v9")
    A("s_barrier")
    TSTAMP()
    NR = 6
    HFR = lambda q, o, n: v(16 + 8 * (q % 3) + o, n)
    def acc3(grp, tm, e):
        t = 2 * (tm & 1) + e
        if grp == 1 and tm >= 2: return v(40 + 4 * t, 4)
        if tm < 2: return v(56 + 4 * t, 4)
        return v(40 + 4 * t, 4)
    def hdma_txt(q):
        grp, i = divmod(q, 11)
        return "s_add_u32 s96, %s, %s\ns_add_u32 m0, s92, %d\nbuffer_load_dwordx4 v9, %s, s96 offen sc1 lds\nbuffer_load_dwordx4 v9, %s, s96 offen offset:1024 sc1 lds" % (
            "s68" if grp == 0 else "s69", s(8 + i), 2048 * (q % NR), WS, WS)
    def hdma(q): A(hdma_txt(q)); vmq.extend(["h%d" % q] * 2)
    def hrd(q): return ["ds_read_b64 %s, %s offset:%d" % (HFR(q, 4 * e + 2 * aa, 2), "v14", 2048 * (q % NR) + 1024 * aa + 8 * e) for e in range(2) for aa in range(2)]
    if O('htouch', 0):
        A("""
        s_mul_i32 s55, s3, 22528
        s_mul_i32 s56, s72, 2816
        s_add_u32 s55, s55, s56
        s_add_u32 s56, s55, s68
        s_add_u32 s55, s55, s69
        v_lshlrev_b32 v14, 7, v1
        s_mov_b64 exec, 0x3fffff
        """)
        VM("buffer_load_dword v11, v14, %s, s56 offen sc1" % WS, "tch")
        VM("buffer_load_dword v11, v14, %s, s55 offen sc1" % WS, "tch")
        A("s_mov_b64 exec, -1")
    def hchk(q): return "v_max_u32 v11, %s, %s\nv_cmp_eq_u32 vcc, -1, v11" % (HFR(q, 0, 1), HFR(q, 2, 1))
    def hretry(q): retry("h%d" % q, hdma_txt(q) + "\ns_waitcnt vmcnt(0)\n" + "\n".join(hrd(q)), hchk(q), wait="s_waitcnt lgkmcnt(0)")
    NH0 = O('nh0', 1)
    for q in range(NH0): hdma(q)
    vmwait("h0"); A("\n".join(hrd(0))); A("s_waitcnt lgkmcnt(0)"); A(hchk(0)); hretry(0)
    TSTAMP()
    for q in range(NH0, NR): hdma(q)
    vmwait("h1"); A("\n".join(hrd(1)))
    for q in range(22):
        grp, i = divmod(q, 11)
        if q == 11:
            A("s_nop 7")
            for t in range(4): A("ds_write_b128 v8, %s offset:%d" % (v(56 + 4 * t, 4), 1024 * t))
            for t in range(4): A("ds_write_b128 v7, %s offset:%d" % (v(40 + 4 * t, 4), 1024 * t))
            A("s_waitcnt lgkmcnt(0)")
        rd = hrd(q + 2) if q + 2 < 22 else []
        n = 0
        for tm in range(4):
            for e in range(2):
                A("%s %s, %s, %s, %s" % (MF, acc3(grp, tm, e), WDR(i, tm), HFR(q, 4 * e, 4), acc3(grp, tm, e) if i else "0"))
                if n == 0 and q + NR < 22: hdma(q + NR)
                if n == 1 and q < 21: A("s_waitcnt lgkmcnt(0)"); A(hchk(q + 1))
                if n == 3 and q < 21: hretry(q + 1)
                if n == 3 and rd: vmwait("h%d" % (q + 2))
                if n >= 3 and rd: A(rd.pop(0))
                if n == 2 and q == 17:
                    for j in range(4): A("buffer_load_dwordx2 %s, v9, %s, s94 offen offset:%d sc1" % (v(72 + 2 * j, 2), WS, 1024 * j))
                    A("buffer_load_dwordx2 v[80:81], v12, %s, s67 offen sc1" % WS); vmq.extend(["res"] * 5)
                n += 1
    for t in range(4):
        A("ds_write_b128 v6, %s offset:%d" % (v(56 + 4 * t, 4), 1024 * t))
    A("s_waitcnt vmcnt(0)\nv_cmp_eq_u32 vcc, -1, v80")
    for j in range(4):
        for e in range(2):
            A("v_lshlrev_b32 %s, 16, %s\nv_and_b32 %s, s65, %s" % (v(88 + 8 * e + 2 * j), v(72 + 2 * j + e), v(89 + 8 * e + 2 * j), v(72 + 2 * j + e)))
    retry("r2", "buffer_load_dwordx2 v[80:81], v12, %s, s67 offen sc1" % WS, "v_cmp_eq_u32 vcc, -1, v80")
    A("s_waitcnt lgkmcnt(0)\ns_barrier")
    TSTAMP()
    for sl in range(3):
        for t in range(4):
            A("ds_read_b128 %s, v10 offset:%d" % (v(112 + 16 * sl + 4 * t, 4), L_RED3 + 4096 * sl + 1024 * t))
    for sl in range(3):
        A("s_waitcnt lgkmcnt(%d)" % (8 - 4 * sl))
        for r in range(0, 16, 2):
            A("v_pk_add_f32 %s, %s, %s" % (v(40 + r, 2), v(40 + r, 2), v(112 + 16 * sl + r, 2)))
    for e in range(2):
        for mt in range(2):
            for j in (0, 2):
                d = v(40 + 8 * mt + 4 * e + j, 2)
                A("v_pk_fma_f32 %s, %s, v[80:81], %s op_sel:[0,%d,0] op_sel_hi:[1,%d,1]" % (d, d, v(88 + 8 * e + 4 * mt + j, 2), e, e))
        for mt in range(2):
            for j in (0, 2):
                A("v_cvt_pk_bf16_f32 %s, %s, %s" % (v(16 + 4 * e + 2 * mt + j // 2), v(40 + 8 * mt + 4 * e + j), v(41 + 8 * mt + 4 * e + j)))
        A("buffer_store_dwordx4 %s, v5, %s, s77 offen offset:%d %s" % (v(16 + 4 * e, 4), srd(S_OUT), 2048 * e, {0: "", 1: "sc0 sc1", 2: "nt"}[O('outf', 0)]))
    A("""
    s_or_b32 s55, s2, s3
    s_cmp_lg_u32 s55, 0
    s_cselect_b32 s55, %s, 0
    v_mov_b32 v14, s84
    s_mov_b64 exec, 1
    buffer_store_dword v14, v9, %s, s55 offen
    s_mov_b64 exec, -1
    """ % (OOB, WS))
    dump(TS + 0x10000)
    A.label("L_end")
    A("s_endpgm")
    for st_ in stubs:
        A("s_nop 7")
        A(st_)
    A.raw(""".section .rodata,"a"
.p2align 6
.amdhsa_kernel %s_kernel
  .amdhsa_next_free_vgpr 256
  .amdhsa_next_free_sgpr 102
  .amdhsa_accum_offset 184
  .amdhsa_group_segment_fixed_size 0
  .amdhsa_kernarg_size 104
  .amdhsa_user_sgpr_count 2
  .amdhsa_user_sgpr_kernarg_segment_ptr 1
  .amdhsa_system_sgpr_workgroup_id_x 1
  .amdhsa_float_denorm_mode_32 3
.end_amdhsa_kernel""" % NAME)
    return A.text()

def parse(args):
    kw = {}; opt = {}
    for x in args:
        k, val = x.split("=")
        if k in ("RBX", "ROT"): kw[k] = int(val)
        elif k in ("NT",): kw[k] = val
        else: opt[k] = int(val)
    return kw, opt

if __name__ == "__main__":
    out = sys.argv[1] if len(sys.argv) > 1 else "cdna_kernels/%s.s" % NAME
    stamp = len(sys.argv) > 2 and sys.argv[2] == "stamp"
    kw, opt = parse(sys.argv[3:])
    open(out, "w").write(gen(stamp, opt=opt, **kw))
    print("wrote", out)
```

```python
import sys
from asm import Asm, v, a, s

NAME = "sequential_preLN__ssm_conv_h3__glu_gated_reglu__prompt"
EP = 0x0; R2 = 0x8000; TS = 0x10000; ST = 0x80000; STR = 0x8100; FU = 0x50000; FH = 0x60000
UP = 0x100000; QP = 0x300000; QSTR = 33024; HP = 0x700000; HH = 0xB00000
WS_BYTES = 0x1400000
HG = 88064
L_WU = 49152
L_KC = 98304; KC_STR = 4640
L_U = L_KC + 8 * KC_STR; U_STR = 4224
L_CS = L_U + 4 * U_STR
L_FLG = L_CS + 384
L_TA = L_FLG + 128
LDS_BYTES = L_TA + 8192
L_TB = L_WU + 40960
L_REDA = L_KC; L_REDB = L_KC + 16384
L_SG = L_KC
L_RED3 = 0
S_K, S_V, S_Q, S_SK, S_SSM, S_WG, S_WU, S_WD, S_OUT, S_WS, S_T = 8, 12, 16, 20, 24, 28, 32, 36, 40, 44, 48
sDP = 52; sD = 54; sPC = 74
BUDGET = 200000
WS = s(S_WS, 4)
MF = "v_mfma_f32_16x16x32_bf16"
OOB = "0x40000000"
WT = "sc0 sc1"
def srd(i): return s(i, 4)
def lines(t): return [x.strip() for x in t.strip().split("\n") if x.strip()]

def gen(stamp=False, RBX=4, ROT=0, NT="nt", opt=None):
    opt = opt or {}
    O = lambda k, d: opt.get(k, d)
    A = Asm()
    stubs = []
    nst = [0]
    vmq = []
    def TSTAMP():
        if stamp:
            A("s_memtime s[80:81]\ns_waitcnt lgkmcnt(0)\ns_sub_u32 s80, s80, s78\nv_writelane_b32 v15, s80, %d" % nst[0]); nst[0] += 1
    def dump(off):
        if stamp:
            A("s_waitcnt vmcnt(0)"); TSTAMP()
            A("s_cmp_lg_u32 s3, 0\ns_cbranch_scc1 L_end")
            A("s_memrealtime s[80:81]\ns_waitcnt lgkmcnt(0)\nv_writelane_b32 v15, s80, 62\nv_writelane_b32 v15, s82, 63\nv_writelane_b32 v15, s85, 61")
            A("s_lshl_b32 s55, s2, 8\ns_add_u32 s55, s55, %d\nv_lshlrev_b32 v14, 2, v1\nbuffer_store_dword v15, v14, %s, s55 offen" % (off, WS))
    def VM(txt, tag):
        A(txt); vmq.append(tag)
    def vmwait(tag, extra=""):
        tags = tag if isinstance(tag, tuple) else (tag,)
        idx = max(i for i, t in enumerate(vmq) if t in tags)
        A("s_waitcnt vmcnt(%d)%s" % (min(63, len(vmq) - 1 - idx), extra))
    def retry(name, reload_txt, chk_txt, wait="s_waitcnt vmcnt(0)"):
        A("s_cbranch_vccnz L_r%s" % name); A.label("L_o%s" % name)
        stubs.append("L_r%s:\ns_sub_u32 s85, s85, 1\ns_cbranch_scc1 L_x%s\n%s\n%s\n%s\ns_cbranch_vccnz L_r%s\ns_branch L_o%s\nL_x%s:\ns_mov_b32 s85, 0\ns_branch L_o%s"
                     % (name, name, reload_txt, wait, chk_txt, name, name, name, name))
    A.raw(open('cdna_kernels/%s.s.ref' % NAME).read().split('; @launch grid')[0].rstrip('\n'))
    A.raw("; @launch grid=(256,1,1) block=(512,1,1) lds=%d" % LDS_BYTES)
    A.raw('.amdgcn_target "amdgcn-amd-amdhsa--gfx950"\n.text\n.globl %s_kernel\n.p2align 8\n.type %s_kernel,@function\n%s_kernel:' % (NAME, NAME, NAME))
    LRB = {1: 0, 2: 1, 4: 2, 8: 3}[RBX]

    A("s_cmp_ge_u32 s2, 256\ns_cbranch_scc1 L_end")
    if O('perm', 0):
        A("s_lshr_b32 s4, s2, 3\ns_add_u32 s4, s4, s2\ns_and_b32 s4, s4, 7\ns_and_b32 s2, s2, 0xf8\ns_or_b32 s2, s2, s4")
    for reg, off in ((S_K, 8), (S_V, 16), (S_SK, 24), (S_SSM, 32), (S_Q, 0), (S_WS, 96), (S_WD, 72), (sDP, 40), (S_WG, 56), (S_WU, 64), (S_OUT, 80)):
        A("s_load_dwordx2 %s, s[0:1], %d" % (s(reg, 2), off))
    if stamp: A("s_memtime s[78:79]\ns_memrealtime s[82:83]\nv_mov_b32 v15, 0"); nst[0] += 1
    A("s_getpc_b64 %s" % s(sPC, 2))
    for reg, nb in ((S_K, 2097152), (S_V, 2097152), (S_Q, 2097152), (S_SK, 4096), (S_WS, WS_BYTES), (S_SSM, 2097152),
                    (S_WD, 1376 * 1024), (S_OUT, 2097152), (S_T, 512 * 2752)):
        A("s_mov_b32 %s, %d\ns_mov_b32 %s, 0x20000" % (s(reg + 2), nb, s(reg + 3)))
    A("""
    v_lshrrev_b32 v4, 6, v0
    v_and_b32 v1, 63, v0
    v_and_b32 v2, 15, v0
    v_readfirstlane_b32 s6, v4
    v_lshrrev_b32 v4, 4, v1
    v_lshlrev_b32 v9, 4, v1
    s_and_b32 s4, s2, 7
    s_lshr_b32 s5, s2, 3
    s_and_b32 s3, s6, 3
    s_lshl_b32 s55, s5, 16
    s_lshl_b32 s56, s4, 7
    s_add_u32 s55, s55, s56
    s_lshl_b32 s56, s3, 14
    s_add_u32 s7, s55, s56
    s_lshl_b32 s66, s4, 5
    s_add_u32 s66, s66, s5
    s_and_b32 s99, s3, 1
    s_lshr_b32 s98, s3, 1
    s_mov_b32 s85, %d
    s_mov_b32 s65, 0xffff0000
    s_cmp_ge_u32 s6, 4
    s_cbranch_scc1 L_B
    """ % BUDGET)
    ids = """
    s_lshr_b32 s55, s4, %d
    s_lshl_b32 s55, s55, %d
    s_and_b32 s60, s5, %d
    s_add_u32 s86, s55, s60
    s_and_b32 s55, s4, %d
    s_mul_i32 s55, s55, %d
    s_lshr_b32 s56, s5, %d
    s_add_u32 s87, s55, s56
    s_mul_i32 s88, s56, %d
    s_mul_i32 s60, s60, %d
    s_add_u32 s88, s88, s60
    s_and_b32 s88, s88, 15
    """ % (LRB, LRB, RBX - 1, RBX - 1, 32 // RBX, LRB, ROT, O('rot2', 16 // RBX))
    def haddr(hv, r2v, tmp):
        return """
        s_lshl_b32 s55, s86, 2
        s_add_u32 s55, s55, s3
        s_mul_i32 s55, s55, %d
        s_mul_i32 s56, s87, 2816
        s_add_u32 s55, s55, s56
        s_add_u32 s89, s55, %d
        s_add_u32 s90, s89, %d
        v_mov_b32 T0, %s
        v_cmp_eq_u32 vcc, 3, v4
        v_cndmask_b32 T1, v9, T0, vcc
        s_cmp_eq_u32 s87, 31
        s_cselect_b64 vcc, -1, 0
        v_cndmask_b32 %s, v9, T1, vcc
        v_cndmask_b32 %s, v9, T0, vcc
        v_cndmask_b32 %s, T1, T0, vcc
        v_lshrrev_b32 T1, 2, v2
        v_lshlrev_b32 %s, 4, v2
        v_cmp_eq_u32 vcc, T1, v4
        v_cndmask_b32 %s, T0, %s, vcc
        s_lshl_b32 s55, s86, 10
        s_lshl_b32 s56, s3, 8
        s_add_u32 s55, s55, s56
        s_add_u32 s55, s55, %d
        s_cmp_eq_u32 s87, 31
        s_cselect_b32 s91, s55, %s
        """.replace("T0", tmp[0]).replace("T1", tmp[1]) % (2 * HG, HH, HG, OOB, hv[0], hv[1], hv[2], r2v, r2v, r2v, R2, OOB)
    def xpose_addr(wr, rd, gv, base):
        return """
        v_and_b32 RD, 7, v2
        v_xor_b32 WR, v4, RD
        v_lshl_add_u32 WR, v2, 3, 0
        v_or_b32 WR, WR, v4
        v_xor_b32 WR, WR, RD
        v_lshlrev_b32 WR, 4, WR
        s_lshl_b32 s55, s3, 11
        s_add_u32 s55, s55, %d
        v_add_u32 WR, s55, WR
        v_lshrrev_b32 RD, 3, v1
        v_xor_b32 RD, RD, v1
        v_lshlrev_b32 RD, 4, RD
        v_add_u32 RD, s55, RD
        v_lshrrev_b32 GV, 2, v1
        v_lshlrev_b32 GV, 13, GV
        v_and_b32 v14, 3, v1
        v_lshl_add_u32 GV, v14, 4, GV
        """.replace("WR", wr).replace("RD", rd).replace("GV", gv) % base

    A("""
    v_lshrrev_b32 v5, 3, v1
    v_lshlrev_b32 v5, 12, v5
    v_and_b32 v10, 7, v1
    v_lshl_add_u32 v5, v10, 3, v5
    s_lshl_b32 s56, s98, 15
    s_add_u32 s55, s55, s56
    s_lshl_b32 s56, s99, 6
    s_add_u32 s55, s55, s56
    v_add_u32 v5, s55, v5
    v_subrev_u32 v6, 0xc00, v5
    v_and_b32 v6, 0x7fffffff, v6
    s_lshl_b32 s56, s4, 9
    s_lshl_b32 s57, s99, 8
    s_add_u32 s56, s56, s57
    v_lshl_add_u32 v10, v10, 5, s56
    s_waitcnt lgkmcnt(0)
    """)
    for i in range(3): VM("buffer_load_dwordx2 %s, v6, %s, 0 offen offset:%d %s" % (v(16 + 2 * i, 2), srd(S_K), 1024 * i, NT), "k")
    for j in range(4): VM("buffer_load_dwordx2 %s, v5, %s, 0 offen offset:%d %s" % (v(22 + 2 * j, 2), srd(S_K), 1024 * j, NT), "k")
    VM("buffer_load_dwordx4 v[48:51], v10, %s, 0 offen" % srd(S_SK), "k")
    VM("buffer_load_dwordx4 v[52:55], v10, %s, 0 offen offset:16" % srd(S_SK), "k")
    for j in range(4): VM("buffer_load_dwordx2 %s, v5, %s, 0 offen offset:%d %s" % (v(30 + 2 * j, 2), srd(S_V), 1024 * j, NT), "v")
    A("s_load_dword s84, %s, 0" % s(S_WS, 2))
    A(ids)
    A("s_barrier")
    A("""
    v_and_b32 v133, 7, v1
    v_lshrrev_b32 v134, 3, v1
    v_xor_b32 v132, v134, v133
    v_lshl_add_u32 v132, v133, 4, v132
    v_lshlrev_b32 v132, 4, v132
    s_lshl_b32 s55, s3, 11
    s_add_u32 s55, s55, %d
    v_add_u32 v132, s55, v132
    v_lshlrev_b32 v134, 13, v134
    v_lshl_add_u32 v134, v133, 4, v134
    v_xor_b32 v133, v1, v4
    v_lshlrev_b32 v133, 4, v133
    v_add_u32 v133, s55, v133
    v_xor_b32 v136, 64, v133
    """ % L_TA)
    HV = ["v176", "v177", "v178"]
    A(haddr(HV, "v179", ("v12", "v13")))
    A("""
    s_lshl_b32 s55, s4, 18
    s_lshl_b32 s56, s5, 8
    s_add_u32 s55, s55, s56
    s_lshl_b32 s56, s98, 7
    s_add_u32 s55, s55, s56
    s_lshl_b32 s56, s99, 17
    s_add_u32 s55, s55, s56
    s_add_u32 s95, s55, %d
    s_add_u32 s97, s95, 0x10000
    s_lshl_b32 s67, s66, 13
    s_lshl_b32 s56, s3, 11
    s_add_u32 s67, s67, s56
    s_add_u32 s67, s67, %d
    s_sub_u32 s59, s67, 4
    s_lshl_b32 s62, s66, 7
    s_add_u32 s62, s62, FUADDR
    s_lshl_b32 s63, s4, 12
    s_add_u32 s63, s63, FUADDR
    s_lshl_b32 s56, s3, 3
    s_sub_u32 s56, s56, 1
    v_add_u32 v8, s56, v1
    v_max_i32 v8, 0, v8
    v_lshlrev_b32 v8, 7, v8
    v_mov_b32 v3, FLGADDR
    s_lshl_b32 s56, s3, 7
    v_xor_b32 v7, 1, v1
    v_add_u32 v7, s56, v7
    v_lshlrev_b32 v7, 3, v7
    v_add_u32 v7, %d, v7
    v_cmp_eq_u32 s[100:101], 0, v0
    s_mov_b32 s64, 0x05040100
    s_mov_b32 s71, 0x07060302
    v_and_b32 v180, 3, v2
    s_movk_i32 s55, %d
    v_mul_lo_u32 v180, v180, s55
    v_lshrrev_b32 v14, 2, v2
    v_lshl_add_u32 v180, v14, 7, v180
    v_lshl_add_u32 v180, v4, 4, v180
    s_mul_i32 s56, s98, %d
    s_lshl_b32 s57, s99, 8
    s_add_u32 s56, s56, s57
    s_add_u32 s56, s56, %d
    v_add_u32 v180, s56, v180
    v_and_b32 v181, 1, v2
    s_movk_i32 s55, %d
    v_mul_lo_u32 v181, v181, s55
    v_lshrrev_b32 v14, 1, v2
    v_lshl_add_u32 v181, v14, 4, v181
    v_lshlrev_b32 v14, 4, v4
    v_sub_u32 v181, v181, v14
    s_mul_i32 s56, s98, %d
    s_sub_u32 s56, s56, s57
    s_add_u32 s56, s56, %d
    v_add_u32 v181, s56, v181
    s_mul_i32 s56, s98, %d
    s_lshl_b32 s57, s99, 13
    s_add_u32 s56, s56, s57
    s_add_u32 s56, s56, %d
    v_add_u32 v182, s56, v9
    """.replace("FUADDR", str(FU)).replace("FLGADDR", str(L_FLG)) % (UP, UP, L_U + 8 * 16, KC_STR, 4 * KC_STR, L_KC + 7 * 16,
           U_STR, 2 * U_STR, L_U + 20 * 16, L_REDB - L_REDA, L_REDA))
    TSTAMP()
    vmwait("k")
    TSTAMP()
    for c in range(4):
        for tap in range(4):
            src = 48 + 2 * c + (tap >> 1); dst = 64 + 4 * tap + c
            A(("v_lshlrev_b32 %s, 16, %s" if tap % 2 == 0 else "v_and_b32 %s, s65, %s") % (v(dst), v(src)))
    for i in range(7):
        for e in range(2):
            src = 16 + 2 * i + e; dst = 80 + 4 * i + 2 * e
            A("v_lshlrev_b32 %s, 16, %s\nv_and_b32 %s, s65, %s" % (v(dst), v(src), v(dst + 1), v(src)))
    for tap in range(4):
        for j in range(4):
            for e in range(2):
                d = v(144 + 4 * j + 2 * e, 2); kk = v(80 + 4 * (j + 3 - tap) + 2 * e, 2); ww = v(64 + 4 * tap + 2 * e, 2)
                if tap == 0: A("v_pk_mul_f32 %s, %s, %s" % (d, kk, ww))
                else: A("v_pk_fma_f32 %s, %s, %s, %s" % (d, kk, ww, d))
    vmwait("v")
    for j in range(4):
        for e in range(2):
            src = 30 + 2 * j + e; dst = 108 + 4 * j + 2 * e
            A("v_lshlrev_b32 %s, 16, %s\nv_and_b32 %s, s65, %s" % (v(dst), v(src), v(dst + 1), v(src)))
    for j in range(4):
        for e in range(2):
            d = 144 + 4 * j + 2 * e
            A("v_pk_mul_f32 %s, %s, %s" % (v(d, 2), v(d, 2), v(108 + 4 * j + 2 * e, 2)))
    A("s_waitcnt lgkmcnt(0)\ns_add_u32 s84, s84, 1\ns_or_b32 s84, s84, 0x80000000")
    for e in range(2):
        for j in range(4):
            d = 144 + 4 * j + 2 * e
            A("v_cvt_pk_bf16_f32 %s, %s, %s" % (v(124 + 4 * e + j), v(d), v(d + 1)))
        A("ds_write_b128 v132, %s offset:%d" % (v(124 + 4 * e, 4), 128 * e))
    A("ds_read_b128 v[16:19], v133\nds_read_b128 v[20:23], v136 offset:1024")
    A("v_mov_b32 v24, s84\nv_mov_b32 v25, s84\nv_mov_b32 v26, s84\nv_mov_b32 v27, s84\nv_mov_b32 v14, 1")
    A("s_waitcnt lgkmcnt(1)")
    A("buffer_store_dwordx4 v[16:19], v134, %s, s95 offen %s" % (WS, WT))
    A("s_waitcnt lgkmcnt(0)")
    A("buffer_store_dwordx4 v[20:23], v134, %s, s97 offen %s" % (WS, WT))
    TSTAMP()
    A("""
    s_mov_b64 exec, 1
    s_waitcnt vmcnt(0)
    ds_add_rtn_u32 v14, v3, v14 offset:12
    s_waitcnt lgkmcnt(0)
    v_readfirstlane_b32 s55, v14
    s_mov_b64 exec, 0xff
    s_cmp_lg_u32 s55, 3
    s_cselect_b32 s62, %s, s62
    buffer_store_dwordx4 v[24:27], v9, %s, s62 offen %s
    s_mov_b64 exec, 0x1ff
    """ % (OOB, WS, WT)); vmq.clear()
    TSTAMP()
    if O('fudelay', 0): A("s_sleep %d" % O('fudelay', 0))
    fu_txt = "buffer_load_dword v14, v8, %s, s63 offen sc1" % WS
    fu_chk = "v_cmp_ne_u32 vcc, s84, v14"
    A(fu_txt + "\ns_waitcnt vmcnt(0)\n" + fu_chk)
    retry("up", fu_txt, fu_chk)
    A("s_mov_b64 exec, -1")
    TSTAMP()
    UL = "sc1" if O('upsc', 0) else ""
    A("""buffer_load_dwordx4 v[32:35], v9, WS, s67 offen UL
    buffer_load_dwordx4 v[40:43], v9, WS, s67 offen offset:1024 UL
    buffer_load_dword v36, v9, WS, s59 offen UL
    buffer_load_dword v44, v9, WS, s59 offen offset:1024 UL
    v_mov_b32 v14, 1
    s_mov_b64 exec, 1
    ds_add_u32 v3, v14 offset:24
    s_mov_b64 exec, -1
    s_waitcnt vmcnt(0)""".replace("WS", WS).replace("UL", UL))
    TSTAMP()
    A("v_cndmask_b32 v36, v36, 0, s[100:101]")
    for h in range(2):
        b = 32 + 8 * h
        W_ = lambda i: v(b + 4) if i < 0 else v(b + i)
        for c in range(2):
            for pi in range(2):
                o = 64 + 8 * h + 2 * (2 * c + pi)
                for jj in range(2):
                    lo = 2 + pi - 2 * jj; hi = lo - 1
                    A("v_perm_b32 %s, %s, %s, %s" % (v(o + jj), W_(hi), W_(lo), "s64" if c == 0 else "s71"))
                A("ds_write_b64 v7, %s offset:%d" % (v(o, 2), (2 * c + pi) * U_STR + 512 * h))
    A("v_mov_b32 v14, 1\ns_mov_b64 exec, 1\nds_add_u32 v3, v14 offset:40\ns_mov_b64 exec, -1\nds_read_b32 v12, v3 offset:40\ns_waitcnt lgkmcnt(0)\nv_cmp_ne_u32 vcc, 8, v12")
    retry("b4a", "ds_read_b32 v12, v3 offset:40", "v_cmp_ne_u32 vcc, 8, v12", wait="s_waitcnt lgkmcnt(0)")
    TSTAMP()
    BF = lambda buf, ct: v(16 + 32 * buf + 4 * ct, 4)
    ACC = lambda t: v(80 + 4 * t, 4)
    KF = lambda ph, g: a(32 * (ph & 1) + 4 * g, 4)
    bread = lambda ph, ct: "ds_read_b128 %s, v181 offset:%d" % (BF(ph & 1, ct), 512 * ct + 64 * (3 - ph))
    kread = lambda ph, g: "ds_read_b128 %s, v180 offset:%d" % (KF(ph, g), 512 * g + 64 * ph)
    for i in range(7): A(kread(0, i)); A(bread(0, i))
    p2pre = lines("""v_lshrrev_b32 v5, 2, v1
    v_mul_u32_u24 v5, 96, v5
    v_and_b32 v14, 3, v1
    v_lshl_add_u32 v5, v14, 3, v5
    v_add_u32 v6, %d, v5
    s_lshl_b32 s55, s3, 12
    v_add_u32 v7, s55, v9
    s_lshl_b32 s67, s86, 18
    s_add_u32 s67, s67, %d
    v_lshlrev_b32 v8, 4, v4
    v_add_u32 v8, %d, v8
    v_mov_b32 v3, %d
    v_lshlrev_b32 v10, 2, v2
    v_add_u32 v10, 0xc0, v10""" % (L_WU, HP, L_CS, L_FLG))
    touched = set(); issued = 14
    for ph in range(4):
        if ph in (0, 3): order = [(t - ct, ct) for t in range(8) for ct in range(t + 1)]
        else: order = [(g, ct) for ct in range(8) for g in range(8 - ct)]
        nxt = [x for i in range(8) for x in (kread(ph + 1, i), bread(ph + 1, i))] if ph < 3 else []
        for idx, (g, ct) in enumerate(order):
            t = g + ct
            if ph == 0 and ct == 0:
                need = 2 * (t + 1)
                if t < 7 or True: A("s_waitcnt lgkmcnt(%d)" % min(15, issued - need))
            if ph > 0 and idx == 0: A("s_waitcnt lgkmcnt(0)")
            if 36 * ph + idx == O('lpi', 40): A("v_mov_b32 v14, 1\nds_write_b32 v3, v14 offset:32")
            if ph == 3 and idx == 0: A("v_mov_b32 v14, 1\ns_mov_b64 exec, 1\nds_add_u32 v3, v14 offset:16\ns_mov_b64 exec, -1")
            A("%s %s, %s, %s, %s" % (MF, ACC(t), KF(ph, g), BF(ph & 1, ct), ACC(t) if t in touched else "0"))
            touched.add(t)
            if ph == 3 and idx == 6: A("ds_read_b32 v12, v3 offset:16")
            if ph == 3 and idx == 12: A("s_waitcnt lgkmcnt(0)\nv_cmp_ne_u32 vcc, 4, v12")
            if ph == 3 and idx == 14: retry("kc", "ds_read_b32 v12, v3 offset:16", "v_cmp_ne_u32 vcc, 4, v12", wait="s_waitcnt lgkmcnt(0)")
            if ph == 3 and idx in (15, 17, 19, 21): A("ds_write_b128 v182, %s offset:%d" % (ACC((idx - 15) // 2), 1024 * ((idx - 15) // 2)))
            if ph == 0 and idx == 1: A(kread(0, 7)); A(bread(0, 7)); issued += 2
            if idx >= 16 and nxt:
                A(nxt.pop(0))
                if ph == 0: issued += 1
            if ph == 1 and p2pre: A(p2pre.pop(0))
            if ph == 3 and idx in (23, 28): A("ds_write_b128 v182, %s offset:%d" % (ACC(4 if idx == 23 else 5), 1024 * (4 if idx == 23 else 5)))
        assert not nxt
    A("ds_write_b128 v182, %s offset:%d" % (ACC(6), 1024 * 6))
    A("ds_write_b128 v182, %s offset:%d" % (ACC(7), 1024 * 7))
    A("s_waitcnt lgkmcnt(0)")
    TSTAMP()
    A("s_barrier")
    TSTAMP()
    A("s_barrier")
    TSTAMP()
    XS = lambda st: 16 + 16 * (st & 3)
    AC = lambda arr, ft, tau: v(80 + 48 * arr + 16 * ft + 4 * tau, 4)
    WF = lambda st, arr, ft: 24 * (st & 1) + 12 * arr + 4 * ft
    def xaddr(st): return ["s_add_u32 s55, s88, %d" % st, "s_and_b32 s55, s55, 15", "s_lshl_b32 s55, s55, 14", "s_add_u32 s96, s55, s67"]
    def xlds(st): return ["buffer_load_dwordx4 %s, v7, %s, s96 offen offset:%d sc1" % (v(XS(st) + 4 * j, 4), WS, 1024 * j) for j in range(4)]
    def xload_txt(st): return "\n".join(xaddr(st) + xlds(st)).replace("s96", "s97")
    def xload(st):
        A("\n".join(xaddr(st) + xlds(st))); vmq.extend(["x%d" % st] * 4)
    def xchk(st):
        b = XS(st)
        return ["v_max3_u32 v11, %s, %s, %s" % (v(b), v(b + 4), v(b + 8)), "v_max_u32 v11, v11, %s" % v(b + 12), "v_cmp_eq_u32 vcc, -1, v11"]
    def wreads(st):
        return ["ds_read_b64_tr_b16 %s, %s offset:%d" % (a(WF(st, arr, ft) + 2 * h, 2), "v6" if arr else "v5", st * 3072 + h * 1536 + ft * 32)
                for arr in range(2) for ft in range(3) for h in range(2)]
    def swaps(st):
        b = XS(st)
        return ["v_swap_b32 %s, %s" % (v(b + 4 * j + t), v(b + 4 * t + j)) for j in range(4) for t in range(j + 1, 4)]
    if O('xdelay', 0): A("s_sleep %d" % O('xdelay', 0))
    if O('x3', 0):
        xload(0); xload(1); xload(2)
        for r in wreads(0): A(r)
        vmwait("x0")
        for r in xchk(0): A(r)
        retry("xP", "\n".join(xload_txt(i) for i in range(3)), "\n".join(xchk(0)), wait="s_waitcnt vmcnt(8)")
        TSTAMP()
    else:
        xload(0)
        for r in wreads(0): A(r)
        vmwait("x0")
        for r in xchk(0): A(r)
        if O('xr3', 0):
            A("s_cbranch_vccnz L_rxP")
            xload(1); xload(2)
            A.label("L_oxP")
            stubs.append("L_rxP:\n%s\ns_waitcnt vmcnt(8)\n%s\ns_cbranch_vccz L_oxP\ns_sub_u32 s85, s85, 1\ns_cbranch_scc0 L_rxP\ns_mov_b32 s85, 0\ns_branch L_oxP"
                         % ("\n".join(xload_txt(i) for i in range(3)), "\n".join(xchk(0))))
            TSTAMP()
        else:
            retry("xP", xload_txt(0), "\n".join(xchk(0)))
            TSTAMP()
            xload(1); xload(2)
    for r in swaps(0): A(r)
    A("s_cmp_eq_u32 s87, 31\ns_cbranch_scc1 L_p2alt")
    def flagrd(k): return "ds_read_b32 v12, v3 offset:%d" % (4 * k)
    flagchk = "v_cmp_ne_u32 vcc, 4, v12"
    def p2loop(alt):
        for st in range(16):
            ml = []
            for arr in range(2):
                for ft in range(3):
                    for tau in range(4):
                        xf = v(XS(st) + 4 * tau, 4)
                        wf = a(WF(st, arr, ft), 4)
                        if alt and arr == 1 and ft == 2: wf = xf
                        ml.append("%s %s, %s, %s, %s" % (MF, AC(arr, ft, tau), wf, xf, AC(arr, ft, tau) if st else "0"))
            wr = wreads(st + 1) if st < 15 else ["ds_read_b128 %s, v8 offset:%d" % (v(40 + 4 * t, 4), 64 * t) for t in range(6)]
            if st in (8, 14): wr = wr + [flagrd(0 if st == 8 else 1)]
            sw = swaps(st + 1) if st < 15 else []
            ck = xchk(st + 1) if st < 15 else []
            xa = xaddr(st + 3) if st + 3 < 16 else []
            xl = xlds(st + 3) if st + 3 < 16 else []
            tg = "b" if alt else "a"
            if O('fine2', 0) and st > 0:
                if alt and st == 1: nst[0] -= 15
                TSTAMP()
            A("s_waitcnt lgkmcnt(0)")
            for i, m in enumerate(ml):
                if i == 0 and st in (9, 15): A(flagchk)
                A(m)
                if i == 1 and st in (9, 15): retry("f%s%d" % (tg, st), flagrd(0 if st == 9 else 1), flagchk, wait="s_waitcnt lgkmcnt(0)")
                if i < 2 and xa: A(xa.pop(0)); A(xa.pop(0))
                if i >= 2 and wr: A(wr.pop(0))
                if i in (2, 4, 6, 8) and xl: VM(xl.pop(0).replace(" sc1", "" if O('xplain', 0) else " sc1"), "x%d" % (st + 3))
                if st <= 12 and i == 9: A("v_mov_b32 v13, %d" % (st + 1))
                if st <= 12 and i == 15: A("ds_write_b32 v3, v13 offset:36")
                if i == 12 and sw: vmwait("x%d" % (st + 1))
                if i >= 12 and ck: A(ck.pop(0))
                if i == 16 and sw: retry("x%s%d" % (tg, st + 1), xload_txt(st + 1), "\n".join(xchk(st + 1)))
                if i >= 16 and sw: A(sw.pop(0))
            assert not wr and not sw and not xl
    sv = list(vmq)
    p2loop(False)
    A("s_branch L_p2join")
    A.label("L_p2alt")
    vmq[:] = sv
    p2loop(True)
    A.label("L_p2join")
    TSTAMP()
    A("s_nop 3")
    for tau in range(4):
        A("ds_bpermute_b32 %s, v10, %s" % (v(64 + 2 * tau), v(80 + 32 + 4 * tau)))
    A("s_mov_b32 s57, 0xbb000000\ns_waitcnt lgkmcnt(0)")
    for tau in range(4): A("v_mul_f32 %s, s57, %s" % (v(64 + 2 * tau), v(64 + 2 * tau)))
    A("s_cmp_lg_u32 s87, 31\ns_cbranch_scc1 L_novar")
    A("v_and_b32 v10, 3, v2")
    for tau in range(4): A("v_mov_b32 %s, %s" % (v(72 + tau), v(80 + 48 + 32 + 4 * tau)))
    for j in range(1, 4):
        A("v_cmp_eq_u32 vcc, %d, v10" % j)
        for tau in range(4):
            A("v_cndmask_b32 %s, %s, %s, vcc" % (v(72 + tau), v(72 + tau), v(80 + 48 + 32 + 4 * tau + j)))
    A("s_mov_b32 s56, 0x3b000000\ns_mov_b32 s57, 0x3727c5ac")
    for tau in range(4): A("v_mul_f32 %s, s56, %s" % (v(72 + tau), v(72 + tau)))
    for tau in range(4): A("v_fma_f32 %s, -%s, %s, %s" % (v(72 + tau), v(64 + 2 * tau), v(64 + 2 * tau), v(72 + tau)))
    for tau in range(4): A("v_max_f32 %s, 0, %s" % (v(72 + tau), v(72 + tau)))
    for tau in range(4): A("v_add_f32 %s, s57, %s" % (v(72 + tau), v(72 + tau)))
    for tau in range(4): A("v_rcp_f32 %s, %s" % (v(72 + tau), v(72 + tau)))
    A("s_nop 0\nbuffer_store_dwordx4 v[72:75], v179, %s, s91 offen %s" % (WS, WT))
    A.label("L_novar")
    for ft in range(3):
        for g in range(2):
            o = 16 + 8 * ft + 4 * g
            for e in range(2):
                tau = 2 * g + e
                gb = 80 + 16 * ft + 4 * tau; ub = gb + 48
                M = v(64 + 2 * tau, 2)
                for j in (0, 2):
                    A("v_pk_fma_f32 %s, %s, %s, %s op_sel_hi:[1,0,1]" % (v(gb + j, 2), v(40 + 4 * ft + j, 2), M, v(gb + j, 2)))
                    A("v_pk_fma_f32 %s, %s, %s, %s op_sel_hi:[1,0,1]" % (v(ub + j, 2), v(52 + 4 * ft + j, 2), M, v(ub + j, 2)))
                for j in range(4): A("v_max_f32 %s, 0, %s" % (v(gb + j), v(gb + j)))
                for j in (0, 2): A("v_pk_mul_f32 %s, %s, %s" % (v(gb + j, 2), v(gb + j, 2), v(ub + j, 2)))
                for j in (0, 2): A("v_cvt_pk_bf16_f32 %s, %s, %s" % (v(o + 2 * e + j // 2), v(gb + j), v(gb + j + 1)))
            A("buffer_store_dwordx4 %s, %s, %s, %s offen offset:%d %s" % (v(o, 4), HV[ft], WS, "s90" if g else "s89", 1024 * ft, WT))
    TSTAMP()
    A("s_barrier")
    dump(TS)
    A("s_endpgm")

    A.label("L_B")
    vmq.clear(); nst[0] = 1
    if O('bprio', 1): A("s_setprio %d" % O('bprio', 1))
    A("""
    s_lshr_b32 s55, s66, 4
    s_lshl_b32 s72, s55, 14
    s_and_b32 s55, s66, 3
    s_lshl_b32 s55, s55, 10
    s_add_u32 s72, s72, s55
    s_bfe_u32 s55, s66, 0x20002
    s_lshl_b32 s55, s55, 8
    s_add_u32 s72, s72, s55
    s_lshl_b32 s55, s3, 19
    s_add_u32 s72, s72, s55
    s_add_u32 s72, s72, %d
    s_add_u32 s73, s72, 0x40000
    v_lshlrev_b32 v63, 4, v2
    v_lshl_add_u32 v63, v4, 12, v63
    v_mov_b32 v64, -1
    v_mov_b32 v65, -1
    v_mov_b32 v66, -1
    v_mov_b32 v67, -1
    """ % HP)
    A("""
    v_mov_b32 v40, 0
    v_mov_b32 v41, 0
    v_mov_b32 v42, 0
    v_mov_b32 v43, 0
    v_mov_b32 v12, %d
    ds_write_b128 v12, v[40:43]
    ds_write_b128 v12, v[40:43] offset:16
    ds_write_b128 v12, v[40:43] offset:32
    s_lshl_b32 s57, s2, 13
    s_lshl_b32 s56, s99, 12
    s_add_u32 s57, s57, s56
    s_lshl_b32 s56, s98, 10
    s_add_u32 s57, s57, s56
    s_lshl_b32 s61, s66, 13
    s_lshl_b32 s56, s3, 11
    s_add_u32 s61, s61, s56
    s_lshl_b32 s55, s5, 2
    s_add_u32 s55, s55, s3
    s_mul_i32 s55, s55, 384
    v_lshl_add_u32 v10, v1, 7, s55
    s_waitcnt lgkmcnt(0)
    s_barrier
    s_mov_b64 exec, 7
    """ % L_FLG)
    VM("global_load_dword v11, v10, %s" % s(sPC, 2), "code")
    A("s_mov_b64 exec, -1")
    def hpfill():
        VM("buffer_store_dwordx4 v[64:67], v63, %s, s72 offen %s" % (WS, WT), "fill")
        VM("buffer_store_dwordx4 v[64:67], v63, %s, s73 offen %s" % (WS, WT), "fill")
    if O('fillp', 1) == 0: hpfill()
    VM("buffer_load_dwordx4 v[32:35], v9, %s, s57 offen %s" % (srd(S_Q), NT), "stat")
    VM("buffer_load_dwordx4 v[36:39], v9, %s, s57 offen offset:2048 %s" % (srd(S_Q), NT), "stat")
    VM("buffer_load_dwordx4 v[24:27], v9, %s, s61 offen %s" % (srd(S_SSM), NT), "ssm")
    VM("buffer_load_dwordx4 v[28:31], v9, %s, s61 offen offset:1024 %s" % (srd(S_SSM), NT), "ssm")
    if O('fillp', 1) == 1: hpfill()
    A("s_load_dword s84, %s, 0\ns_lshl_b32 s56, s66, 2\ns_load_dword %s, %s, s56" % (s(S_WS, 2), s(sD), s(sDP, 2)))
    if O('tlb', 0) == 1:
        for i, (b, off) in enumerate(((S_WG, 0), (S_WU, 0), (S_WD, 0), (S_OUT, 0))):
            A("s_load_dword s%d, %s, %d" % (89 + (i & 1), s(b, 2), off))
    if O('tlb', 0) == 2:
        A("v_mov_b32 v12, 0\ns_mov_b64 exec, 1")
        for b in (S_WG, S_WU, S_WD, S_OUT): VM("global_load_dword v11, v12, %s" % s(b, 2), "code")
        A("s_mov_b64 exec, 0xffff\nv_lshlrev_b32 v12, 20, v1")
        VM("buffer_load_dword v11, v12, %s, 0 offen" % WS, "code")
        A("s_mov_b64 exec, -1")
    A(ids)
    A("""
    v_and_b32 v6, 7, v1
    v_xor_b32 v5, s98, v6
    v_lshlrev_b32 v5, 4, v5
    v_lshl_add_u32 v5, v1, 7, v5
    s_lshl_b32 s55, s99, 3
    s_add_u32 s55, s55, %d
    v_add_u32 v5, s55, v5
    v_lshrrev_b32 v7, 3, v1
    s_mov_b32 s55, %d
    v_mul_lo_u32 v8, v7, s55
    v_lshl_add_u32 v8, v6, 4, v8
    v_xor_b32 v6, v6, v7
    v_lshlrev_b32 v6, 4, v6
    v_lshl_add_u32 v6, v7, 7, v6
    s_lshl_b32 s55, s3, 11
    s_add_u32 s55, s55, %d
    v_add_u32 v6, s55, v6
    v_xor_b32 v16, 32, v5
    v_xor_b32 v17, 64, v5
    v_xor_b32 v18, 0x60, v5
    """ % (L_TB, QSTR, L_TB))
    A("""
    s_mul_i32 s55, s3, %d
    s_add_u32 s55, s55, %d
    v_and_b32 v12, 7, v1
    v_lshl_add_u32 v12, v12, 4, s55
    ds_write_b128 v12, v[40:43]
    s_cmp_lg_u32 s99, 0
    s_cbranch_scc1 L_nohead
    v_and_b32 v12, 31, v1
    v_lshlrev_b32 v12, 4, v12
    v_lshrrev_b32 v13, 5, v1
    s_movk_i32 s56, %d
    v_mad_u32_u24 v12, v13, s56, v12
    s_mul_i32 s55, s98, %d
    s_add_u32 s55, s55, %d
    v_add_u32 v12, s55, v12
    ds_write_b128 v12, v[40:43]
    ds_write_b128 v12, v[40:43] offset:%d
    L_nohead:
    """ % (U_STR, L_U, KC_STR, 4 * KC_STR, L_KC, 2 * KC_STR))
    A("""
    s_mul_i32 s55, s3, %d
    s_lshl_b32 s56, s2, 7
    s_add_u32 s55, s55, s56
    s_add_u32 s95, s55, %d
    s_add_u32 s97, s95, %d
    s_movk_i32 s55, 0x2aab
    s_movk_i32 s56, 2752
    """ % (16 * QSTR, QP, 8 * QSTR))
    for i3 in range(3):
        A("""
        v_add_u32 v14, %d, v1
        v_mul_u32_u24 v3, s55, v14
        v_lshrrev_b32 v3, 16, v3
        v_mul_u32_u24 v13, 6, v3
        v_sub_u32 v14, v14, v13
        v_bfe_u32 v13, v3, 2, 2
        v_lshlrev_b32 v13, 3, v13
        v_lshrrev_b32 v12, 4, v3
        v_lshl_add_u32 v13, v12, 2, v13
        v_and_b32 v3, 3, v3
        v_add_u32 v13, v13, v3
        v_mul_u32_u24 v13, s56, v13
        v_lshl_add_u32 %s, v14, 4, v13
        """ % (64 * i3, v(60 + i3)))
    A("""
    s_bitcmp1_b32 s3, 0
    s_cselect_b32 s48, s32, s28
    s_cselect_b32 s49, s33, s29
    s_add_u32 s69, s88, s98
    s_mul_i32 s70, s87, 88
    s_mul_i32 s76, s99, %d
    s_mul_i32 s56, s98, 3072
    s_add_u32 s76, s76, s56
    s_mul_i32 s56, s98, %d
    s_lshl_b32 s57, s99, 11
    s_add_u32 s56, s56, s57
    s_add_u32 s56, s56, %d
    v_add_u32 v44, s56, v9
    v_add_u32 v45, %d, v44
    v_add_u32 v46, %d, v44
    v_add_u32 v47, %d, v44
    v_mov_b32 v3, FLGA
    """.replace("FLGA", str(L_FLG)) % (L_WU, 4 * KC_STR, L_KC + 512 - 4, KC_STR - 4, 2 * KC_STR - 8, 3 * KC_STR - 12))
    ndma = [0]
    def w1dma(n):
        for _ in range(n):
            i = ndma[0]; ndma[0] += 1
            gi, i3 = divmod(i, 3)
            if i3 == 0: A("s_and_b32 s77, s69, 15\ns_mul_i32 s77, s77, 88064\ns_add_u32 s77, s77, s70\ns_add_u32 s69, s69, 2")
            A("s_add_u32 m0, s76, %d" % (gi * 6144 + i3 * 1024))
            VM("buffer_load_dwordx4 %s, %s, s77 offen %s lds" % (v(60 + i3), srd(S_T), "nt" if i < O('w1nt', 0) else ""), "dma")
    span = 88 * (32 // RBX)
    ntouch = ((span + 8 + 127 + 127) // 128 + 7) // 8
    def w1touch(pos):
        if O('w1tp', 9) != pos: return 0
        A("""
        v_lshrrev_b32 v12, 3, v1
        s_movk_i32 s55, 2752
        v_mul_lo_u32 v12, v12, s55
        v_and_b32 v13, 7, v1
        v_lshlrev_b32 v13, 7, v13
        s_lshl_b32 s55, s5, 1
        s_add_u32 s55, s55, s98
        s_mul_i32 s55, s55, 22016
        s_and_b32 s56, s4, %d
        s_mul_i32 s56, s56, %d
        s_add_u32 s55, s55, s56
        """ % (RBX - 1, span))
        for i in range(ntouch):
            A("v_add_u32 v14, %d, v13\nv_min_u32 v14, %d, v14\nv_add_u32 v14, v14, v12" % (1024 * i, span + 4))
            VM("buffer_load_dword v11, v14, %s, s55 offen %s" % (srd(S_T), "nt" if O('tnt', 0) else ""), "tch")
        return ntouch
    def hfill(pos):
        if O('hfp', 0) != pos: return
        A(haddr(["v68", "v69", "v70"], "v71", ("v12", "v13")))
        for ft in range(3):
            for g in range(2):
                VM("buffer_store_dwordx4 v[64:67], %s, %s, %s offen offset:%d %s" % (v(68 + ft), WS, "s90" if g else "s89", 1024 * ft, WT), "fill")
        VM("buffer_store_dwordx4 v[64:67], v71, %s, s91 offen %s" % (WS, WT), "fill")
        A("v_mov_b32 v13, 1")
    def wdtouch(pos):
        if O('wdtp', 1) != pos: return
        if O('wdtm', 1) == 1:
            A("s_lshl_b32 s55, s2, 2\ns_add_u32 s55, s55, s3\ns_mul_i32 s55, s55, 1408\nv_lshlrev_b32 v12, 7, v1\ns_mov_b64 exec, 0x7ff")
            VM("buffer_load_dword %s, v12, %s, s55 offen" % ("v63" if pos == 4 else "v11", srd(S_WD)), "tch")
            A("s_mov_b64 exec, -1")
        else:
            A("s_lshl_b32 s55, s5, 2\ns_add_u32 s55, s55, s3\ns_mul_i32 s55, s55, 11008\nv_lshlrev_b32 v12, 7, v1")
            VM("buffer_load_dword v11, v12, %s, s55 offen" % srd(S_WD), "tch")
            A("s_add_u32 s55, s55, 8192\ns_mov_b64 exec, 0x3fffff")
            VM("buffer_load_dword v11, v12, %s, s55 offen" % srd(S_WD), "tch")
            A("s_mov_b64 exec, -1")
    TSTAMP()
    w1dma(O('nw1a', 0))
    A("v_mov_b32 v21, 0x3f803f80")
    vmwait("stat")
    TSTAMP()
    w1touch(1)
    for i in range(4): A("ds_write2_b32 %s, %s, %s offset0:0 offset1:1" % (("v5", "v16", "v17", "v18")[i], v(32 + i), v(36 + i)))
    A("v_mov_b32 v14, 1\ns_waitcnt lgkmcnt(0)\ns_mov_b64 exec, 1\nds_add_u32 v3, v14 offset:20\ns_mov_b64 exec, -1\ns_add_u32 s84, s84, 1\ns_or_b32 s84, s84, 0x80000000")
    for i in range(4):
        for e in range(2):
            A("v_dot2c_f32_bf16 %s, %s, v21" % (v(42 + e), v(32 + 4 * e + i)))
            A("v_dot2c_f32_bf16 %s, %s, %s" % (v(40 + e), v(32 + 4 * e + i), v(32 + 4 * e + i)))
    for m in ("row_shr:1", "row_shr:2", "row_shr:4", "row_shr:8", "row_bcast:15 row_mask:0xa", "row_bcast:31 row_mask:0xc"):
        for r in range(40, 44):
            A("v_add_f32_dpp %s, %s, %s %s" % (v(r), v(r), v(r), m))
    A("s_mov_b32 s56, 0x3b000000\ns_mov_b32 s57, 0x3727c5ac")
    for r in range(40, 44): A("v_mul_f32 %s, s56, %s" % (v(r), v(r)))
    for e in range(2): A("v_fma_f32 %s, -%s, %s, %s" % (v(40 + e), v(42 + e), v(42 + e), v(40 + e)))
    for e in range(2): A("v_max_f32 %s, 0, %s" % (v(40 + e), v(40 + e)))
    for e in range(2): A("v_add_f32 %s, s57, %s" % (v(40 + e), v(40 + e)))
    for e in range(2): A("v_rsq_f32 %s, %s" % (v(40 + e), v(40 + e)))
    for e in range(2): A("v_mul_f32_e64 %s, -%s, %s" % (v(42 + e), v(42 + e), v(40 + e)))
    A("v_mov_b32 v19, v6\nv_mov_b32 v20, v8")
    qw_txt = "ds_read2_b32 v[12:13], v3 offset0:%d offset1:5" % O('qwait', 5)
    qw_chk = "v_add_u32 v12, v12, v13\nv_cmp_ne_u32 vcc, 8, v12"
    A(qw_txt + "\ns_waitcnt lgkmcnt(0)\n" + qw_chk)
    retry("qw", "s_sleep 1\n" + qw_txt, qw_chk, wait="s_waitcnt lgkmcnt(0)")
    TSTAMP()
    A("ds_read_b128 v[48:51], v19\nds_read_b128 v[52:55], v19 offset:1024\ns_waitcnt lgkmcnt(1)")
    A("buffer_store_dwordx4 v[48:51], v20, %s, s95 offen %s\ns_waitcnt lgkmcnt(0)" % (WS, WT))
    A("buffer_store_dwordx4 v[52:55], v20, %s, s97 offen %s" % (WS, WT))
    vmq.extend(["st"] * 2)
    w1dma(O('nw1b', 0)); nyoung = O('nw1b', 0)
    vmwait("ssm")
    for i in range(2):
        b = 24 + 4 * i
        if i == 1: A("v_add_u32 v44, 0x400, v44\nv_add_u32 v46, 0x400, v46")
        for ad in ("v44", "v46"):
            A("ds_write2_b32 %s, %s, %s offset0:0 offset1:1" % (ad, v(b), v(b + 1)))
            A("ds_write2_b32 %s, %s, %s offset0:2 offset1:3" % (ad, v(b + 2), v(b + 3)))
        A("ds_write2_b64 v45, %s, %s offset0:%d offset1:%d" % (v(b, 2), v(b + 2, 2), 128 * i, 128 * i + 1))
        A("ds_write_b128 v47, %s offset:%d" % (v(b, 4), 1024 * i))
    A("v_mov_b32 v14, 1\ns_mov_b64 exec, 1\nds_add_u32 v3, v14 offset:40\ns_mov_b64 exec, -1")
    A("""
    s_lshl_b32 s55, s3, 4
    s_add_u32 s55, s55, %d
    v_mov_b32 v12, s55
    v_mov_b32 v13, %d
    v_mov_b32 v14, 1
    s_mov_b32 exec_lo, 0
    s_mov_b32 exec_hi, 0x80000000
    ds_write_b128 v12, v[40:43]
    s_waitcnt vmcnt(NYOUNG) lgkmcnt(0)
    ds_add_rtn_u32 v14, v13, v14 offset:8
    s_waitcnt lgkmcnt(0)
    v_readfirstlane_b32 s55, v14
    s_mov_b64 exec, -1
    s_cmp_lg_u32 s55, 3
    s_cbranch_scc1 L_nost
    v_and_b32 v12, 3, v1
    v_lshlrev_b32 v12, 4, v12
    ds_read_b128 v[40:43], v12 offset:%%d
    v_and_b32 v13, 7, v1
    v_cmp_lt_u32 vcc, 3, v13
    v_mov_b32 v14, s84
    v_cndmask_b32 v14, 0, v14, vcc
    v_lshrrev_b32 v12, 3, v1
    v_mul_u32_u24 v12, STRIDE, v12
    v_lshl_add_u32 v12, v13, 4, v12
    s_lshl_b32 s55, s2, 7
    s_add_u32 s55, s55, %d
    s_waitcnt lgkmcnt(0)
    v_xor_b32 v40, v14, v40
    v_xor_b32 v41, v14, v41
    v_xor_b32 v42, v14, v42
    v_xor_b32 v43, v14, v43
    s_mov_b64 exec, STEX
    buffer_store_dwordx4 v[40:43], v12, WS, s55 offen WT
    s_mov_b64 exec, -1
    L_nost:
    """.replace("STRIDE", str(STR)).replace("STEX", "-1" if O('strep', 1) else "0xff").replace("WS", WS).replace("WT", WT).replace("NYOUNG", str(nyoung)).replace("v_lshlrev_b32 v12, 4, v12\n    ds_read_b128 v[40:43], v12 offset:%%d", "v_lshlrev_b32 v12, 4, v12\n    v_add_u32 v12, STL, v12\n    ds_read_b128 v[40:43], v12").replace("STL", str(L_FLG + 64)) % (L_FLG + 64, L_FLG, ST)); vmq.clear()
    TSTAMP()
    w1dma(O('nw1c', 0))
    A("""
    s_and_b32 s55, s54, 0xffff
    s_lshr_b32 s56, s54, 16
    v_mov_b32 v13, s55
    v_mov_b32 v14, s56
    v_lshl_add_u32 v12, v4, 2, 3
    v_sub_u32 v12, v12, v2
    """)
    for jj in range(4):
        A("v_cmp_eq_u32 vcc, %d, v12\nv_cndmask_b32 %s, 0, v13, vcc\nv_cndmask_b32 %s, 0, v14, vcc" % (jj, v(72 + jj), v(76 + jj)))
    A("""
    v_and_b32 v5, 1, v2
    s_movk_i32 s55, %d
    v_mul_lo_u32 v5, v5, s55
    v_lshrrev_b32 v14, 1, v2
    v_lshl_add_u32 v5, v14, 4, v5
    v_lshl_add_u32 v5, v4, 7, v5
    s_lshl_b32 s56, s3, 10
    s_add_u32 s56, s56, %d
    v_add_u32 v5, s56, v5
    s_lshl_b32 s56, s3, 11
    s_add_u32 s57, s56, %d
    v_add_u32 v6, s57, v9
    v_add_u32 v7, %d, v6
    s_lshr_b32 s68, s66, 2
    s_mul_i32 s68, s68, %d
    s_and_b32 s57, s66, 3
    s_lshl_b32 s57, s57, 5
    s_add_u32 s68, s68, s57
    s_lshl_b32 s58, s3, 13
    s_add_u32 s68, s68, s58
    s_add_u32 s68, s68, %d
    s_add_u32 s60, s68, 0x1000
    s_add_u32 s58, s58, %d
    s_mul_i32 s57, s4, STRX
    s_add_u32 s58, s58, s57
    s_add_u32 s59, s58, 0x1000
    v_lshrrev_b32 v8, 1, v1
    v_lshlrev_b32 v8, 7, v8
    v_and_b32 v14, 1, v1
    v_lshl_add_u32 v10, v14, 4, v8
    v_lshl_add_u32 v8, v14, 5, v8
    s_mul_i32 s61, s99, 49152
    s_lshl_b32 s57, s98, 13
    s_add_u32 s61, s61, s57
    s_add_u32 s61, s61, 0x8000
    v_lshlrev_b32 v14, 3, v1
    v_and_b32 v14, 0x70, v14
    v_xor_b32 v8, v8, v14
    v_add_u32 v8, s61, v8
    v_xor_b32 v57, 16, v8
    v_xor_b32 v58, 64, v8
    v_xor_b32 v59, 0x50, v8
    v_lshlrev_b32 v14, 1, v1
    v_and_b32 v14, 0x70, v14
    v_xor_b32 v56, v9, v14
    """.replace("STRX", str(STR if O('strep', 1) else 0)) % (U_STR, L_U + 8 * 16, L_REDA, L_REDB - L_REDA, QSTR, QP, ST))
    if O('nw1e', 6) or O('wdtp', 1) == 1:
        A("ds_read_b32 v12, v3 offset:24\ns_waitcnt lgkmcnt(0)\nv_cmp_ne_u32 vcc, 4, v12")
        retry("uw", "s_sleep 1\nds_read_b32 v12, v3 offset:24", "v_cmp_ne_u32 vcc, 4, v12", wait="s_waitcnt lgkmcnt(0)")
    st_dma = "s_mov_b32 m0, s61\n" + "\n".join("buffer_load_dwordx4 v56, %s, s58 offen offset:%d sc1 lds" % (WS, 1024 * i) for i in range(4)) + \
             "\ns_add_u32 m0, s61, 0x1000\n" + "\n".join("buffer_load_dwordx4 v56, %s, s59 offen offset:%d sc1 lds" % (WS, 1024 * i) for i in range(4))
    st_rd = "\n".join("ds_read_b128 %s, %s offset:%d" % (v(16 * (1 + cp) + 8 * e + 4 * h, 4), ("v8", "v57", "v58", "v59")[h + 2 * cp], 4096 * e)
                       for e in range(2) for h in range(2) for cp in range(2))
    st_chk = "\n".join(["v_bitop3_b32 %s, %s, %s, s84 bitop3:0x96" % (v(32 + i), v(32 + i), v(16 + i)) for i in range(16)] +
                       ["v_or3_b32 %s, %s, %s, %s" % (v(32 + i), v(32 + i), v(33 + i), v(34 + i)) for i in (0, 3, 6, 9, 12)] +
                       ["v_or3_b32 v32, v32, v35, v38", "v_or3_b32 v41, v41, v44, v47", "v_or_b32 v32, v32, v41", "v_cmp_ne_u32 vcc, 0, v32"])
    if O('stf', 0):
        A("ds_read_b32 v12, v3 offset:8\ns_waitcnt lgkmcnt(0)\nv_cmp_ne_u32 vcc, 4, v12")
        retry("s8", "ds_read_b32 v12, v3 offset:8", "v_cmp_ne_u32 vcc, 4, v12", wait="s_waitcnt lgkmcnt(0)")
        A(st_dma); vmq.extend(["stp"] * 8)
    w1dma(min(O('nw1e', 6), 15 - ndma[0]))
    wdtouch(1)
    A("ds_read_b32 v12, v3 offset:40\ns_waitcnt lgkmcnt(0)\nv_cmp_ne_u32 vcc, 8, v12")
    retry("b4b", "s_sleep 1\nds_read_b32 v12, v3 offset:40", "v_cmp_ne_u32 vcc, 8, v12", wait="s_waitcnt lgkmcnt(0)")
    TSTAMP()
    for e in range(2):
        for c in range(2):
            A("ds_read_b128 %s, v5 offset:%d" % (v(80 + 8 * e + 4 * c, 4), 2 * c * U_STR + 512 * e))
    hfill(1)
    w1dma(O('nw1d', 0))
    A("s_waitcnt lgkmcnt(0)")
    for e in range(2):
        for c in range(2):
            A("%s %s, %s, %s, 0" % (MF, v(96 + 8 * e + 4 * c, 4), v(72 + 4 * c, 4), v(80 + 8 * e + 4 * c, 4)))
    w1dma(O('nw1f', 0))
    if O('lpw', 1) and not O('stf', 0):
        A("ds_read_b32 v12, v3 offset:32\ns_waitcnt lgkmcnt(0)\nv_cmp_eq_u32 vcc, 0, v12")
        retry("lw", "s_sleep 1\nds_read_b32 v12, v3 offset:32", "v_cmp_eq_u32 vcc, 0, v12", wait="s_waitcnt lgkmcnt(0)")
    if not O('stf', 0): A(st_dma); vmq.extend(["stp"] * 8)
    w1dma(min(O('nw1i', 3), 15 - ndma[0]))
    vmwait("stp")
    A(st_rd + "\ns_waitcnt lgkmcnt(0)\n" + st_chk)
    retry("st", "s_sleep %d\n" % O('stsl', 4) + st_dma + "\ns_waitcnt vmcnt(0)\n" + st_rd, st_chk, wait="s_waitcnt lgkmcnt(0)")
    TSTAMP()
    VM("buffer_load_dwordx4 v[48:51], v10, %s, s68 offen sc1" % WS, "qp")
    VM("buffer_load_dwordx4 v[52:55], v10, %s, s60 offen sc1" % WS, "qp")
    wdtouch(2)
    hfill(2)
    w1dma(min(O('nw1g', 6), 15 - ndma[0]))
    vmwait("qp")
    TSTAMP()
    for e in range(2):
        for j in range(4):
            A("v_lshlrev_b32 %s, 16, %s" % (v(112 + 8 * e + j), v(48 + 4 * e + j)))
            A("v_and_b32 %s, s65, %s" % (v(116 + 8 * e + j), v(48 + 4 * e + j)))
    for e in range(2):
        for c in range(2):
            for j in (0, 2):
                A("v_pk_fma_f32 %s, %s, %s, %s" % (v(128 + 8 * e + 4 * c + j, 2), v(112 + 8 * e + 4 * c + j, 2), v(16 + 8 * e + 2 * j, 2), v(18 + 8 * e + 2 * j, 2)))
    w1dma(O('nw1h', 0))
    TSTAMP()
    A("s_barrier")
    TSTAMP()
    for e in range(2):
        for src in range(4):
            A("ds_read_b128 %s, %s offset:%d" % (v(16 + 16 * e + 4 * src, 4), "v7" if src >= 2 else "v6", 8192 * (src & 1) + 1024 * e))
    for e in range(2):
        for c in range(2):
            A("s_waitcnt lgkmcnt(%d)" % (6 - 4 * e - 2 * c))
            for j in (0, 2):
                d = v(96 + 8 * e + 4 * c + j, 2)
                A("v_pk_add_f32 %s, %s, %s" % (d, d, v(16 + 16 * e + 8 * c + j, 2)))
            for j in (0, 2):
                d = v(96 + 8 * e + 4 * c + j, 2)
                A("v_pk_add_f32 %s, %s, %s" % (d, d, v(20 + 16 * e + 8 * c + j, 2)))
            for j in (0, 2):
                d = v(96 + 8 * e + 4 * c + j, 2)
                A("v_pk_fma_f32 %s, %s, %s, %s" % (d, d, v(128 + 8 * e + 4 * c + j, 2), v(112 + 8 * e + 4 * c + j, 2)))
        for j in range(4):
            A("v_cvt_pk_bf16_f32 %s, %s, %s" % (v(48 + 4 * e + j), v(96 + 8 * e + j), v(100 + 8 * e + j)))
        VM("buffer_store_dwordx4 %s, v63, %s, %s offen %s" % (v(48 + 4 * e, 4), WS, "s73" if e else "s72", WT), "hp")
    TSTAMP()
    NB6 = O('nb6', 15)
    wdtouch(3)
    hfill(3)
    w1dma(NB6 - ndma[0])
    A("""
    v_mov_b32 v56, 0x3f803f80
    v_mov_b32 v57, 0x3f803f80
    v_mov_b32 v58, 0x3f803f80
    v_mov_b32 v59, 0x3f803f80
    v_and_b32 v14, 31, v1
    v_mul_u32_u24 v14, 96, v14
    s_add_u32 s55, s76, 88
    v_add_u32 v14, s55, v14
    v_mov_b32 v3, %d
    v_mov_b32 v13, 1
    """ % L_FLG)
    vmwait("dma")
    for i in range(NB6 // 3): A("ds_write_b64 v14, v[56:57] offset:%d" % (6144 * i))
    A("s_waitcnt lgkmcnt(0)\ns_barrier")
    TSTAMP()
    def xtouch(pos):
        if O('xtp', 9) != pos: return
        A("""
        s_and_b32 s55, s87, %d
        s_lshl_b32 s55, s55, 2
        s_add_u32 s55, s55, s3
        s_lshl_b32 s55, s55, 7
        s_lshl_b32 s56, s86, 18
        s_add_u32 s55, s55, s56
        s_add_u32 s55, s55, %d
        v_lshlrev_b32 v12, 12, v1
        """ % (32 // RBX - 1, HP))
        VM("buffer_load_dword v63, v12, %s, s55 offen sc1" % WS, "tch")
    xtouch(0)
    w1dma(24 - NB6)
    xtouch(1)
    A("""
    s_and_b32 s72, s5, 7
    s_lshr_b32 s71, s5, 3
    s_mul_i32 s56, s71, %d
    s_mul_i32 s55, s72, %d
    s_add_u32 s55, s55, s56
    s_sub_u32 s56, s55, 11
    s_cmp_ge_u32 s55, 11
    s_cselect_b32 s55, s56, s55
    s_mul_i32 s56, s3, 11
    s_add_u32 s57, s56, 11
    s_add_u32 s55, s55, s56
    """ % (O('rot4', 0), O('rot3', 0)))
    for i in range(11):
        A("s_lshl_b32 %s, s55, 11\ns_add_u32 s55, s55, 1\ns_cmp_eq_u32 s55, s57\ns_cselect_b32 s55, s56, s55" % s(8 + i))
    A("""
    v_lshrrev_b32 v5, 3, v1
    v_and_b32 v6, 2, v5
    v_lshlrev_b32 v6, 1, v6
    v_and_b32 v7, 7, v1
    v_xor_b32 v6, v6, v7
    v_lshlrev_b32 v5, 10, v5
    v_lshl_add_u32 v5, v6, 4, v5
    s_mul_i32 s92, s3, 12288
    s_add_u32 s92, s92, %d
    v_lshrrev_b32 v6, 2, v1
    v_and_b32 v7, 2, v6
    v_lshlrev_b32 v7, 5, v7
    v_lshlrev_b32 v6, 7, v6
    v_and_b32 v8, 3, v1
    v_lshl_add_u32 v6, v8, 4, v6
    v_add_u32 v6, v6, v7
    s_lshl_b32 s55, s99, 6
    v_xor_b32 v7, s55, v6
    v_xor_b32 v6, 64, v7
    v_add_u32 v6, s92, v6
    v_add_u32 v7, s92, v7
    s_lshl_b32 s93, s72, 7
    v_lshrrev_b32 v10, 2, v1
    v_mul_u32_u24 v10, 96, v10
    v_lshl_add_u32 v10, v8, 3, v10
    s_lshl_b32 s56, s99, 5
    s_add_u32 s56, s56, %d
    v_add_u32 v11, s56, v10
    s_lshl_b32 s55, s3, 5
    s_cmp_eq_u32 s3, 3
    s_cselect_b32 s55, %d, s55
    v_add_u32 v10, s55, v10
    """ % (L_SG, L_WU + 32, L_WU))
    WDR = lambda i, tm: a(16 * i + 4 * tm, 4) if i < 4 else v(72 + 16 * (i - 4) + 4 * tm, 4)
    WDH = lambda i, tm, h: a(16 * i + 4 * tm + 2 * h, 2) if i < 4 else v(72 + 16 * (i - 4) + 4 * tm + 2 * h, 2)
    def wd_issue(i):
        if O('nowd', 0): A("s_mov_b32 s93, %s" % OOB)
        A("s_lshl_b32 s94, %s, 4\ns_add_u32 s94, s94, s93" % s(8 + i))
        for r in range(4):
            A("s_add_u32 m0, s92, %d" % (4096 * (i % 3) + 1024 * r))
            VM("buffer_load_dwordx4 v5, %s, s94 offen lds" % srd(S_WD), "wd%d" % i)
            if r < 3: A("s_add_u32 s94, s94, 0x2000")
    def wd_read(i):
        vmwait("wd%d" % i)
        for tm in range(4):
            for h in range(2):
                A("ds_read_b64_tr_b16 %s, %s offset:%d" % (WDH(i, tm, h), "v6" if tm < 2 else "v7", 4096 * (i % 3) + 2048 * h + 8 * (tm & 1)))
        A("s_waitcnt lgkmcnt(0)")
    def hflag():
        A("""
        s_lshl_b32 s55, s86, 2
        s_add_u32 s55, s55, s3
        s_lshl_b32 s55, s55, 5
        s_add_u32 s55, s55, s87
        s_lshl_b32 s55, s55, 7
        s_add_u32 s55, s55, %d
        v_mov_b32 v64, s84
        v_mov_b32 v65, s84
        v_mov_b32 v66, s84
        v_mov_b32 v67, s84
        s_mov_b64 exec, 0xff
        """ % FH)
        vmwait("fill")
        VM("buffer_store_dwordx4 v[64:67], v9, %s, s55 offen %s" % (WS, WT), "fhs")
        A("s_mov_b64 exec, -1")
    def colsum(k0, k1):
        for st in range(k0, k1 + 2):
            if st < k1:
                b = 16 + 8 * (st & 3)
                for h in range(2): A("ds_read_b64_tr_b16 %s, v10 offset:%d" % (v(b + 2 * h, 2), st * 3072 + h * 1536))
                for h in range(2): A("ds_read_b64_tr_b16 %s, v11 offset:%d" % (v(b + 4 + 2 * h, 2), st * 3072 + h * 1536))
            if st >= k0 + 2:
                pb = 16 + 8 * ((st - 2) & 3)
                A("s_waitcnt lgkmcnt(%d)" % (4 * (min(st, k1 - 1) - (st - 2))))
                A("%s v[48:51], v[56:59], %s, %s" % (MF, v(pb, 4), "v[48:51]" if st > 2 else "0"))
                A("%s v[52:55], v[56:59], %s, %s" % (MF, v(pb + 4, 4), "v[52:55]" if st > 2 else "0"))
    K1 = 2 * (NB6 // 3)
    NWD0 = O('nwd0', 1)
    colsum(0, K1)
    wdtouch(4)
    for i in range(NWD0): wd_issue(i)
    vmwait("dma")
    for i in range(NB6 // 3, 8): A("ds_write_b64 v14, v[56:57] offset:%d" % (6144 * i))
    A("s_waitcnt lgkmcnt(0)\ns_mov_b64 exec, 1\nds_add_u32 v3, v13\ns_mov_b64 exec, -1")
    TSTAMP()
    for i in range(NWD0): wd_read(i)
    A("ds_read_b32 v12, v3\ns_waitcnt lgkmcnt(0)\n" + flagchk)
    retry("fB", "ds_read_b32 v12, v3", flagchk, wait="s_waitcnt lgkmcnt(0)")
    if K1 < 16: colsum(K1, 16)
    HOLD = O('wdhold', 5); LATE = O('late', 3); NE = 11 - LATE
    A("""
    s_lshl_b32 s55, s72, 1
    s_add_u32 s55, s55, s99
    s_lshl_b32 s55, s55, 14
    s_lshl_b32 s56, s71, 12
    s_add_u32 s55, s55, s56
    s_lshl_b32 s56, s98, 3
    s_add_u32 s55, s55, s56
    s_lshl_b32 s56, s4, 18
    s_add_u32 s55, s55, s56
    s_add_u32 s95, s55, %d
    s_lshl_b32 s55, s4, 2
    s_add_u32 s55, s55, s71
    s_lshl_b32 s64, s55, 12
    s_add_u32 s64, s64, %d
    s_lshl_b32 s56, s55, 1
    s_add_u32 s57, s56, s98
    s_xor_b32 s56, s57, 1
    s_mul_i32 s68, s56, %d
    s_mul_i32 s69, s57, %d
    s_add_u32 s68, s68, %d
    s_add_u32 s69, s69, %d
    s_lshl_b32 s77, s55, 16
    s_lshl_b32 s56, s98, 12
    s_add_u32 s77, s77, s56
    s_lshl_b32 s56, s72, 7
    s_add_u32 s77, s77, s56
    s_lshl_b32 s56, s99, 6
    s_add_u32 s77, s77, s56
    s_lshl_b32 s67, s55, 8
    s_lshl_b32 s56, s98, 3
    s_add_u32 s67, s67, s56
    s_add_u32 s67, s67, %d
    s_mul_i32 s97, s3, 12288
    s_add_u32 s97, s97, 49152
    v_add_u32 v14, s97, v9
    s_lshl_b32 s56, s3, 3
    v_add_u32 v8, s56, v1
    v_cmp_lt_u32 vcc, 7, v1
    v_cndmask_b32 v8, v8, 31, vcc
    v_lshlrev_b32 v8, 7, v8
    """ % (HP, FH, HG, HG, HH, HH, R2))
    for i in range(11): A("s_min_u32 %s, %s, %d" % (s(20 + i), s(8 + i), 42 * 2048))
    for k in (1, 2, 3): A("s_xor_b32 s56, s3, %d\ns_mul_i32 s56, s56, 12288\ns_add_u32 %s, s56, %d" % (k, s(31 + k), L_RED3 + (k - 1) * 4096))
    def waitstep(k):
        chk = "v_cmp_gt_u32 vcc, %d, v12" % k
        A("ds_read_b32 v12, v3 offset:36\ns_waitcnt lgkmcnt(0)\n" + chk)
        retry("ws%d" % k, "s_sleep 1\nds_read_b32 v12, v3 offset:36", chk, wait="s_waitcnt lgkmcnt(0)")
    A(haddr(["v68", "v69", "v70"], "v71", ("v12", "v13")))
    A("v_mov_b32 v13, 1")
    fl = ["buffer_store_dwordx4 v[64:67], %s, %s, %s offen offset:%d %s" % (v(68 + ft), WS, "s90" if g else "s89", 1024 * ft, WT) for ft in range(3) for g in range(2)]
    fl.append("buffer_store_dwordx4 v[64:67], v71, %s, s91 offen %s" % (WS, WT))
    NP = O('np', 3)
    pieces = [(i, r) for i in range(NWD0, NWD0 + NP) for r in range(4)]
    P0 = O('p0', 1); PEND = O('pend', 13)
    nsteps = PEND - P0
    done_cs = False
    for k in range(P0, PEND):
        waitstep(k)
        if fl:
            VM(fl.pop(0), "fill")
            if len(fl) == 1: VM(fl.pop(0), "fill")
        elif not done_cs and k >= P0 + 7:
            hflag()
            A("""
    s_lshl_b32 s55, s3, 6
    s_add_u32 s55, s55, %d
    v_lshl_add_u32 v10, v2, 2, s55
    s_lshl_b32 s56, s99, 6
    s_add_u32 s56, s56, %d
    v_lshl_add_u32 v11, v2, 2, s56
    ds_write_b32 v10, v48
    ds_write_b32 v11, v52
    s_waitcnt lgkmcnt(0)
    s_mov_b64 exec, 1
    ds_add_u32 v3, v13 offset:4
    s_mov_b64 exec, -1
    """ % (L_CS, L_CS + 256))
            TSTAMP()
            done_cs = True
        want = (len(pieces) + (PEND - k) - 1) // (PEND - k) if (not fl or O('mix', 0)) else 0
        for _ in range(want):
            i, r = pieces.pop(0)
            if r == 0: A("s_lshl_b32 s94, %s, 4\ns_add_u32 s94, s94, s93" % s(8 + i))
            A("s_add_u32 m0, s92, %d" % (4096 * (i % 3) + 1024 * r))
            VM("buffer_load_dwordx4 v5, %s, s94 offen lds" % srd(S_WD), "wd%d" % i)
            if r < 3: A("s_add_u32 s94, s94, 0x2000")
    assert done_cs and not pieces
    TSTAMP()
    waitstep(PEND)
    VM("buffer_load_dword v10, v8, %s, s64 offen sc1" % WS, "fh")
    TSTAMP()
    nx = NWD0 + NP
    for i in range(NWD0, NE):
        wd_read(i)
        while nx < NE and nx <= i + 3: wd_issue(nx); nx += 1
    TSTAMP()
    A("s_waitcnt vmcnt(0)\nv_cmp_ne_u32 vcc, s84, v10")
    retry("fh", "buffer_load_dword v10, v8, %s, s64 offen sc1" % WS, "v_cmp_ne_u32 vcc, s84, v10")
    LB = O('lateb', 0)
    for i in range(NE, NE + LB): wd_issue(i)
    A("s_barrier")
    TSTAMP()
    for i in range(NE + LB, 11): wd_issue(i)
    def late_part():
        for i in range(NE, 11): wd_read(i)
        A("""
        v_lshrrev_b32 v5, 1, v2
        v_lshlrev_b32 v5, 13, v5
        v_and_b32 v12, 1, v2
        v_lshl_add_u32 v5, v12, 10, v5
        v_lshl_add_u32 v5, v4, 4, v5
        v_lshlrev_b32 v12, 4, v2
        v_subrev_u32 v10, 0xc000, v14
        v_add_u32 v6, s32, v9
        v_add_u32 v7, s33, v9
        v_add_u32 v8, s34, v9
        """)
    NR = 6
    HFR = lambda q, o, n: v(16 + 8 * (q % 3) + o, n)
    def acc3(grp, tm, e):
        t = 2 * (tm & 1) + e
        if grp == 1 and tm >= 2: return v(40 + 4 * t, 4)
        if tm < 2: return v(56 + 4 * t, 4)
        return v(40 + 4 * t, 4)
    def hdma_txt(q):
        grp, i = divmod(q, 11)
        return "s_add_u32 s96, %s, %s\ns_add_u32 m0, s97, %d\nbuffer_load_dwordx4 v9, %s, s96 offen sc1 lds\nbuffer_load_dwordx4 v9, %s, s96 offen offset:1024 sc1 lds" % (
            "s68" if grp == 0 else "s69", s(20 + i), 2048 * (q % NR), WS, WS)
    def hdma(q): A(hdma_txt(q)); vmq.extend(["h%d" % q] * 2)
    def hrd(q): return ["ds_read_b64 %s, %s offset:%d" % (HFR(q, 4 * e + 2 * aa, 2), "v14", 2048 * (q % NR) + 1024 * aa + 8 * e) for e in range(2) for aa in range(2)]
    def hchk(q): return "v_max_u32 v11, %s, %s\nv_cmp_eq_u32 vcc, -1, v11" % (HFR(q, 0, 1), HFR(q, 2, 1))
    def hretry(q):
        last = min(21, q + NR - 1) if O('hre', 1) else q
        if q == 0: last = O('nh0', 6) - 1
        n = 2 * (last - q) if q < 17 else 0
        retry("h%d" % q, "\n".join(hdma_txt(k) for k in range(q, last + 1)) + "\ns_waitcnt vmcnt(%d)\n" % n + "\n".join(hrd(q)), hchk(q), wait="s_waitcnt lgkmcnt(0)")
    NH0 = O('nh0', 6)
    for q in range(NH0): hdma(q)
    late_part()
    vmwait("h0"); A("\n".join(hrd(0))); A("s_waitcnt lgkmcnt(0)"); A(hchk(0)); hretry(0)
    TSTAMP()
    for q in range(NH0, NR): hdma(q)
    vmwait("h1"); A("\n".join(hrd(1)))
    for q in range(22):
        grp, i = divmod(q, 11)
        if q == 11:
            if O('psw', 1):
                for t in range(4): A("ds_write_b128 v7, %s offset:%d" % (v(40 + 4 * t, 4), 1024 * t))
            else:
                A("s_nop 7")
                for t in range(4): A("ds_write_b128 v8, %s offset:%d" % (v(56 + 4 * t, 4), 1024 * t))
                for t in range(4): A("ds_write_b128 v7, %s offset:%d" % (v(40 + 4 * t, 4), 1024 * t))
                A("s_waitcnt lgkmcnt(0)")
        rd = hrd(q + 2) if q + 2 < 22 else []
        if O('fine3', 0) and q % 2 == 0: TSTAMP()
        n = 0
        for tm in range(4):
            for e in range(2):
                sw = O('psw', 1) and q == 11
                if sw: A("s_waitcnt lgkmcnt(%d)" % (7 - n))
                A("%s %s, %s, %s, %s" % (MF, acc3(grp, tm, e), WDR(i, tm), HFR(q, 4 * e, 4), acc3(grp, tm, e) if i else "0"))
                if n == 0 and q + NR < 22: hdma(q + NR)
                if sw:
                    if n == 1: A(hchk(q + 1))
                    if n == 3: hretry(q + 1)
                    if n == 7:
                        vmwait("h%d" % (q + 2))
                        while rd: A(rd.pop(0))
                else:
                    if n == 1 and q < 21: A("s_waitcnt lgkmcnt(0)"); A(hchk(q + 1))
                    if n == 3 and q < 21: hretry(q + 1)
                    if n == 3 and rd: vmwait("h%d" % (q + 2))
                    if O('psw', 1) and q == 10:
                        if n == 3:
                            while rd: A(rd.pop(0))
                        if n >= 4: A("ds_write_b128 v8, %s offset:%d" % (v(56 + 4 * (n - 4), 4), 1024 * (n - 4)))
                    if n >= 3 and rd: A(rd.pop(0))
                if n == 2 and q == 17:
                    for j in range(4): A("buffer_load_dwordx2 %s, v9, %s, s95 offen offset:%d sc1" % (v(72 + 2 * j, 2), WS, 1024 * j))
                    A("buffer_load_dwordx2 v[80:81], v12, %s, s67 offen sc1" % WS); vmq.extend(["res"] * 5)
                n += 1
    if O('fine3', 0): TSTAMP()
    for t in range(4):
        A("ds_write_b128 v6, %s offset:%d" % (v(56 + 4 * t, 4), 1024 * t))
    A("s_waitcnt vmcnt(0)\nv_cmp_eq_u32 vcc, -1, v80")
    for j in range(4):
        for e in range(2):
            A("v_lshlrev_b32 %s, 16, %s\nv_and_b32 %s, s65, %s" % (v(88 + 8 * e + 2 * j), v(72 + 2 * j + e), v(89 + 8 * e + 2 * j), v(72 + 2 * j + e)))
    retry("r2", "buffer_load_dwordx2 v[80:81], v12, %s, s67 offen sc1" % WS, "v_cmp_eq_u32 vcc, -1, v80")
    if O('fine3', 0): TSTAMP()
    A("s_waitcnt lgkmcnt(0)\ns_barrier")
    TSTAMP()
    for sl in range(3):
        for t in range(4):
            A("ds_read_b128 %s, v10 offset:%d" % (v(112 + 16 * sl + 4 * t, 4), L_RED3 + 4096 * sl + 1024 * t))
    for sl in range(3):
        A("s_waitcnt lgkmcnt(%d)" % (8 - 4 * sl))
        for r in range(0, 16, 2):
            A("v_pk_add_f32 %s, %s, %s" % (v(40 + r, 2), v(40 + r, 2), v(112 + 16 * sl + r, 2)))
    for e in range(2):
        for mt in range(2):
            for j in (0, 2):
                d = v(40 + 8 * mt + 4 * e + j, 2)
                A("v_pk_fma_f32 %s, %s, v[80:81], %s op_sel:[0,%d,0] op_sel_hi:[1,%d,1]" % (d, d, v(88 + 8 * e + 4 * mt + j, 2), e, e))
        for mt in range(2):
            for j in (0, 2):
                A("v_cvt_pk_bf16_f32 %s, %s, %s" % (v(16 + 4 * e + 2 * mt + j // 2), v(40 + 8 * mt + 4 * e + j), v(41 + 8 * mt + 4 * e + j)))
        A("buffer_store_dwordx4 %s, v5, %s, s77 offen offset:%d %s" % (v(16 + 4 * e, 4), srd(S_OUT), 2048 * e, {0: "", 1: "sc0 sc1", 2: "nt"}[O('outf', 0)]))
    A("""
    s_or_b32 s55, s2, s3
    s_cmp_lg_u32 s55, 0
    s_cselect_b32 s55, %s, 0
    v_mov_b32 v14, s84
    s_mov_b64 exec, 1
    buffer_store_dword v14, v9, %s, s55 offen
    s_mov_b64 exec, -1
    """ % (OOB, WS))
    dump(TS + 0x10000)
    A.label("L_end")
    A("s_endpgm")
    for st_ in stubs:
        A("s_nop 7")
        A(st_)
    A.raw(""".section .rodata,"a"
.p2align 6
.amdhsa_kernel %s_kernel
  .amdhsa_next_free_vgpr 256
  .amdhsa_next_free_sgpr 102
  .amdhsa_accum_offset 184
  .amdhsa_group_segment_fixed_size 0
  .amdhsa_kernarg_size 104
  .amdhsa_user_sgpr_count 2
  .amdhsa_user_sgpr_kernarg_segment_ptr 1
  .amdhsa_system_sgpr_workgroup_id_x 1
  .amdhsa_float_denorm_mode_32 3
.end_amdhsa_kernel""" % NAME)
    return A.text()

def parse(args):
    kw = {}; opt = {}
    for x in args:
        k, val = x.split("=")
        if k in ("RBX", "ROT"): kw[k] = int(val)
        elif k in ("NT",): kw[k] = val
        else: opt[k] = int(val)
    return kw, opt

if __name__ == "__main__":
    out = sys.argv[1] if len(sys.argv) > 1 else "cdna_kernels/%s.s" % NAME
    stamp = len(sys.argv) > 2 and sys.argv[2] == "stamp"
    kw, opt = parse(sys.argv[3:])
    open(out, "w").write(gen(stamp, opt=opt, **kw))
    print("wrote", out)
```

```python
import sys
from asm import Asm, v, a, s

NAME = "sequential_preLN__ssm_conv_h3__glu_gated_reglu__prompt"
EP = 0x0; R2 = 0x8000; TS = 0x10000; ST = 0x80000; STR = 0x8100; FU = 0x50000; FH = 0x60000
UP = 0x100000; QP = 0x300000; QSTR = 33024; HP = 0x700000; HH = 0xB00000
WS_BYTES = 0x1400000
HG = 88064
L_WU = 49152
L_KC = 98304; KC_STR = 4640
L_U = L_KC + 8 * KC_STR; U_STR = 4224
L_CS = L_U + 4 * U_STR
L_FLG = L_CS + 384
L_TA = L_FLG + 128
LDS_BYTES = L_TA + 8192
L_TB = L_WU + 40960
L_REDA = L_KC; L_REDB = L_KC + 16384
L_SG = L_KC
L_RED3 = 0
S_K, S_V, S_Q, S_SK, S_SSM, S_WG, S_WU, S_WD, S_OUT, S_WS, S_T = 8, 12, 16, 20, 24, 28, 32, 36, 40, 44, 48
sDP = 52; sD = 54; sPC = 74
BUDGET = 200000
WS = s(S_WS, 4)
MF = "v_mfma_f32_16x16x32_bf16"
OOB = "0x40000000"
WT = "sc0 sc1"
def srd(i): return s(i, 4)
def lines(t): return [x.strip() for x in t.strip().split("\n") if x.strip()]

def gen(stamp=False, RBX=4, ROT=0, NT="nt", opt=None):
    opt = opt or {}
    O = lambda k, d: opt.get(k, d)
    A = Asm()
    stubs = []
    nst = [0]
    vmq = []
    def TSTAMP():
        if stamp:
            A("s_memtime s[80:81]\ns_waitcnt lgkmcnt(0)\ns_sub_u32 s80, s80, s78\nv_writelane_b32 v15, s80, %d" % nst[0]); nst[0] += 1
    def dump(off):
        if stamp:
            A("s_waitcnt vmcnt(0)"); TSTAMP()
            A("s_cmp_lg_u32 s3, 0\ns_cbranch_scc1 L_end")
            A("s_memrealtime s[80:81]\ns_waitcnt lgkmcnt(0)\nv_writelane_b32 v15, s80, 62\nv_writelane_b32 v15, s82, 63\nv_writelane_b32 v15, s85, 61")
            A("s_lshl_b32 s55, s2, 8\ns_add_u32 s55, s55, %d\nv_lshlrev_b32 v14, 2, v1\nbuffer_store_dword v15, v14, %s, s55 offen" % (off, WS))
    def VM(txt, tag):
        A(txt); vmq.append(tag)
    def vmwait(tag, extra=""):
        tags = tag if isinstance(tag, tuple) else (tag,)
        idx = max(i for i, t in enumerate(vmq) if t in tags)
        A("s_waitcnt vmcnt(%d)%s" % (min(63, len(vmq) - 1 - idx), extra))
    def retry(name, reload_txt, chk_txt, wait="s_waitcnt vmcnt(0)"):
        A("s_cbranch_vccnz L_r%s" % name); A.label("L_o%s" % name)
        stubs.append("L_r%s:\ns_sub_u32 s85, s85, 1\ns_cbranch_scc1 L_x%s\n%s\n%s\n%s\ns_cbranch_vccnz L_r%s\ns_branch L_o%s\nL_x%s:\ns_mov_b32 s85, 0\ns_branch L_o%s"
                     % (name, name, reload_txt, wait, chk_txt, name, name, name, name))
    A.raw(open('cdna_kernels/%s.s.ref' % NAME).read().split('; @launch grid')[0].rstrip('\n'))
    A.raw("; @launch grid=(256,1,1) block=(512,1,1) lds=%d" % LDS_BYTES)
    A.raw('.amdgcn_target "amdgcn-amd-amdhsa--gfx950"\n.text\n.globl %s_kernel\n.p2align 8\n.type %s_kernel,@function\n%s_kernel:' % (NAME, NAME, NAME))
    LRB = {1: 0, 2: 1, 4: 2, 8: 3}[RBX]

    A("s_cmp_ge_u32 s2, 256\ns_cbranch_scc1 L_end")
    if O('perm', 0):
        A("s_lshr_b32 s4, s2, 3\ns_add_u32 s4, s4, s2\ns_and_b32 s4, s4, 7\ns_and_b32 s2, s2, 0xf8\ns_or_b32 s2, s2, s4")
    for reg, off in ((S_K, 8), (S_V, 16), (S_SK, 24), (S_SSM, 32), (S_Q, 0), (S_WS, 96), (S_WD, 72), (sDP, 40), (S_WG, 56), (S_WU, 64), (S_OUT, 80)):
        A("s_load_dwordx2 %s, s[0:1], %d" % (s(reg, 2), off))
    if stamp: A("s_memtime s[78:79]\ns_memrealtime s[82:83]\nv_mov_b32 v15, 0"); nst[0] += 1
    A("s_getpc_b64 %s" % s(sPC, 2))
    for reg, nb in ((S_K, 2097152), (S_V, 2097152), (S_Q, 2097152), (S_SK, 4096), (S_WS, WS_BYTES), (S_SSM, 2097152),
                    (S_WD, 1376 * 1024), (S_OUT, 2097152), (S_T, 512 * 2752)):
        A("s_mov_b32 %s, %d\ns_mov_b32 %s, 0x20000" % (s(reg + 2), nb, s(reg + 3)))
    A("""
    v_lshrrev_b32 v4, 6, v0
    v_and_b32 v1, 63, v0
    v_and_b32 v2, 15, v0
    v_readfirstlane_b32 s6, v4
    v_lshrrev_b32 v4, 4, v1
    v_lshlrev_b32 v9, 4, v1
    s_and_b32 s4, s2, 7
    s_lshr_b32 s5, s2, 3
    s_and_b32 s3, s6, 3
    s_lshl_b32 s55, s5, 16
    s_lshl_b32 s56, s4, 7
    s_add_u32 s55, s55, s56
    s_lshl_b32 s56, s3, 14
    s_add_u32 s7, s55, s56
    s_lshl_b32 s66, s4, 5
    s_add_u32 s66, s66, s5
    s_and_b32 s99, s3, 1
    s_lshr_b32 s98, s3, 1
    s_mov_b32 s85, %d
    s_mov_b32 s65, 0xffff0000
    s_cmp_ge_u32 s6, 4
    s_cbranch_scc1 L_B
    """ % BUDGET)
    ids = """
    s_lshr_b32 s55, s4, %d
    s_lshl_b32 s55, s55, %d
    s_and_b32 s60, s5, %d
    s_add_u32 s86, s55, s60
    s_and_b32 s55, s4, %d
    s_mul_i32 s55, s55, %d
    s_lshr_b32 s56, s5, %d
    s_add_u32 s87, s55, s56
    s_mul_i32 s88, s56, %d
    s_mul_i32 s60, s60, %d
    s_add_u32 s88, s88, s60
    s_and_b32 s88, s88, 15
    """ % (LRB, LRB, RBX - 1, RBX - 1, 32 // RBX, LRB, ROT, O('rot2', 16 // RBX))
    def haddr(hv, r2v, tmp):
        return """
        s_lshl_b32 s55, s86, 2
        s_add_u32 s55, s55, s3
        s_mul_i32 s55, s55, %d
        s_mul_i32 s56, s87, 2816
        s_add_u32 s55, s55, s56
        s_add_u32 s89, s55, %d
        s_add_u32 s90, s89, %d
        v_mov_b32 T0, %s
        v_cmp_eq_u32 vcc, 3, v4
        v_cndmask_b32 T1, v9, T0, vcc
        s_cmp_eq_u32 s87, 31
        s_cselect_b64 vcc, -1, 0
        v_cndmask_b32 %s, v9, T1, vcc
        v_cndmask_b32 %s, v9, T0, vcc
        v_cndmask_b32 %s, T1, T0, vcc
        v_lshrrev_b32 T1, 2, v2
        v_lshlrev_b32 %s, 4, v2
        v_cmp_eq_u32 vcc, T1, v4
        v_cndmask_b32 %s, T0, %s, vcc
        s_lshl_b32 s55, s86, 10
        s_lshl_b32 s56, s3, 8
        s_add_u32 s55, s55, s56
        s_add_u32 s55, s55, %d
        s_cmp_eq_u32 s87, 31
        s_cselect_b32 s91, s55, %s
        """.replace("T0", tmp[0]).replace("T1", tmp[1]) % (2 * HG, HH, HG, OOB, hv[0], hv[1], hv[2], r2v, r2v, r2v, R2, OOB)
    def xpose_addr(wr, rd, gv, base):
        return """
        v_and_b32 RD, 7, v2
        v_xor_b32 WR, v4, RD
        v_lshl_add_u32 WR, v2, 3, 0
        v_or_b32 WR, WR, v4
        v_xor_b32 WR, WR, RD
        v_lshlrev_b32 WR, 4, WR
        s_lshl_b32 s55, s3, 11
        s_add_u32 s55, s55, %d
        v_add_u32 WR, s55, WR
        v_lshrrev_b32 RD, 3, v1
        v_xor_b32 RD, RD, v1
        v_lshlrev_b32 RD, 4, RD
        v_add_u32 RD, s55, RD
        v_lshrrev_b32 GV, 2, v1
        v_lshlrev_b32 GV, 13, GV
        v_and_b32 v14, 3, v1
        v_lshl_add_u32 GV, v14, 4, GV
        """.replace("WR", wr).replace("RD", rd).replace("GV", gv) % base

    A("""
    v_lshrrev_b32 v5, 3, v1
    v_lshlrev_b32 v5, 12, v5
    v_and_b32 v10, 7, v1
    v_lshl_add_u32 v5, v10, 3, v5
    s_lshl_b32 s56, s98, 15
    s_add_u32 s55, s55, s56
    s_lshl_b32 s56, s99, 6
    s_add_u32 s55, s55, s56
    v_add_u32 v5, s55, v5
    v_subrev_u32 v6, 0xc00, v5
    v_and_b32 v6, 0x7fffffff, v6
    s_lshl_b32 s56, s4, 9
    s_lshl_b32 s57, s99, 8
    s_add_u32 s56, s56, s57
    v_lshl_add_u32 v10, v10, 5, s56
    s_waitcnt lgkmcnt(0)
    """)
    for i in range(3): VM("buffer_load_dwordx2 %s, v6, %s, 0 offen offset:%d %s" % (v(16 + 2 * i, 2), srd(S_K), 1024 * i, NT), "k")
    for j in range(4): VM("buffer_load_dwordx2 %s, v5, %s, 0 offen offset:%d %s" % (v(22 + 2 * j, 2), srd(S_K), 1024 * j, NT), "k")
    VM("buffer_load_dwordx4 v[48:51], v10, %s, 0 offen" % srd(S_SK), "k")
    VM("buffer_load_dwordx4 v[52:55], v10, %s, 0 offen offset:16" % srd(S_SK), "k")
    for j in range(4): VM("buffer_load_dwordx2 %s, v5, %s, 0 offen offset:%d %s" % (v(30 + 2 * j, 2), srd(S_V), 1024 * j, NT), "v")
    A("s_load_dword s84, %s, 0" % s(S_WS, 2))
    A(ids)
    A("s_barrier")
    A("""
    v_and_b32 v133, 7, v1
    v_lshrrev_b32 v134, 3, v1
    v_xor_b32 v132, v134, v133
    v_lshl_add_u32 v132, v133, 4, v132
    v_lshlrev_b32 v132, 4, v132
    s_lshl_b32 s55, s3, 11
    s_add_u32 s55, s55, %d
    v_add_u32 v132, s55, v132
    v_lshlrev_b32 v134, 13, v134
    v_lshl_add_u32 v134, v133, 4, v134
    v_xor_b32 v133, v1, v4
    v_lshlrev_b32 v133, 4, v133
    v_add_u32 v133, s55, v133
    v_xor_b32 v136, 64, v133
    """ % L_TA)
    HV = ["v176", "v177", "v178"]
    A(haddr(HV, "v179", ("v12", "v13")))
    A("""
    s_lshl_b32 s55, s4, 18
    s_lshl_b32 s56, s5, 8
    s_add_u32 s55, s55, s56
    s_lshl_b32 s56, s98, 7
    s_add_u32 s55, s55, s56
    s_lshl_b32 s56, s99, 17
    s_add_u32 s55, s55, s56
    s_add_u32 s95, s55, %d
    s_add_u32 s97, s95, 0x10000
    s_lshl_b32 s67, s66, 13
    s_lshl_b32 s56, s3, 11
    s_add_u32 s67, s67, s56
    s_add_u32 s67, s67, %d
    s_sub_u32 s59, s67, 4
    s_lshl_b32 s62, s66, 7
    s_add_u32 s62, s62, FUADDR
    s_lshl_b32 s63, s4, 12
    s_add_u32 s63, s63, FUADDR
    s_lshl_b32 s56, s3, 3
    s_sub_u32 s56, s56, 1
    v_add_u32 v8, s56, v1
    v_max_i32 v8, 0, v8
    v_lshlrev_b32 v8, 7, v8
    v_mov_b32 v3, FLGADDR
    s_lshl_b32 s56, s3, 7
    v_xor_b32 v7, 1, v1
    v_add_u32 v7, s56, v7
    v_lshlrev_b32 v7, 3, v7
    v_add_u32 v7, %d, v7
    v_cmp_eq_u32 s[100:101], 0, v0
    s_mov_b32 s64, 0x05040100
    s_mov_b32 s71, 0x07060302
    v_and_b32 v180, 3, v2
    s_movk_i32 s55, %d
    v_mul_lo_u32 v180, v180, s55
    v_lshrrev_b32 v14, 2, v2
    v_lshl_add_u32 v180, v14, 7, v180
    v_lshl_add_u32 v180, v4, 4, v180
    s_mul_i32 s56, s98, %d
    s_lshl_b32 s57, s99, 8
    s_add_u32 s56, s56, s57
    s_add_u32 s56, s56, %d
    v_add_u32 v180, s56, v180
    v_and_b32 v181, 1, v2
    s_movk_i32 s55, %d
    v_mul_lo_u32 v181, v181, s55
    v_lshrrev_b32 v14, 1, v2
    v_lshl_add_u32 v181, v14, 4, v181
    v_lshlrev_b32 v14, 4, v4
    v_sub_u32 v181, v181, v14
    s_mul_i32 s56, s98, %d
    s_sub_u32 s56, s56, s57
    s_add_u32 s56, s56, %d
    v_add_u32 v181, s56, v181
    s_mul_i32 s56, s98, %d
    s_lshl_b32 s57, s99, 13
    s_add_u32 s56, s56, s57
    s_add_u32 s56, s56, %d
    v_add_u32 v182, s56, v9
    """.replace("FUADDR", str(FU)).replace("FLGADDR", str(L_FLG)) % (UP, UP, L_U + 8 * 16, KC_STR, 4 * KC_STR, L_KC + 7 * 16,
           U_STR, 2 * U_STR, L_U + 20 * 16, L_REDB - L_REDA, L_REDA))
    TSTAMP()
    vmwait("k")
    TSTAMP()
    for c in range(4):
        for tap in range(4):
            src = 48 + 2 * c + (tap >> 1); dst = 64 + 4 * tap + c
            A(("v_lshlrev_b32 %s, 16, %s" if tap % 2 == 0 else "v_and_b32 %s, s65, %s") % (v(dst), v(src)))
    for i in range(7):
        for e in range(2):
            src = 16 + 2 * i + e; dst = 80 + 4 * i + 2 * e
            A("v_lshlrev_b32 %s, 16, %s\nv_and_b32 %s, s65, %s" % (v(dst), v(src), v(dst + 1), v(src)))
    for tap in range(4):
        for j in range(4):
            for e in range(2):
                d = v(144 + 4 * j + 2 * e, 2); kk = v(80 + 4 * (j + 3 - tap) + 2 * e, 2); ww = v(64 + 4 * tap + 2 * e, 2)
                if tap == 0: A("v_pk_mul_f32 %s, %s, %s" % (d, kk, ww))
                else: A("v_pk_fma_f32 %s, %s, %s, %s" % (d, kk, ww, d))
    vmwait("v")
    for j in range(4):
        for e in range(2):
            src = 30 + 2 * j + e; dst = 108 + 4 * j + 2 * e
            A("v_lshlrev_b32 %s, 16, %s\nv_and_b32 %s, s65, %s" % (v(dst), v(src), v(dst + 1), v(src)))
    for j in range(4):
        for e in range(2):
            d = 144 + 4 * j + 2 * e
            A("v_pk_mul_f32 %s, %s, %s" % (v(d, 2), v(d, 2), v(108 + 4 * j + 2 * e, 2)))
    A("s_waitcnt lgkmcnt(0)\ns_add_u32 s84, s84, 1\ns_or_b32 s84, s84, 0x80000000")
    for e in range(2):
        for j in range(4):
            d = 144 + 4 * j + 2 * e
            A("v_cvt_pk_bf16_f32 %s, %s, %s" % (v(124 + 4 * e + j), v(d), v(d + 1)))
        A("ds_write_b128 v132, %s offset:%d" % (v(124 + 4 * e, 4), 128 * e))
    A("ds_read_b128 v[16:19], v133\nds_read_b128 v[20:23], v136 offset:1024")
    A("v_mov_b32 v24, s84\nv_mov_b32 v25, s84\nv_mov_b32 v26, s84\nv_mov_b32 v27, s84\nv_mov_b32 v14, 1")
    A("s_waitcnt lgkmcnt(1)")
    A("buffer_store_dwordx4 v[16:19], v134, %s, s95 offen %s" % (WS, WT))
    A("s_waitcnt lgkmcnt(0)")
    A("buffer_store_dwordx4 v[20:23], v134, %s, s97 offen %s" % (WS, WT))
    TSTAMP()
    A("""
    s_mov_b64 exec, 1
    s_waitcnt vmcnt(0)
    ds_add_rtn_u32 v14, v3, v14 offset:12
    s_waitcnt lgkmcnt(0)
    v_readfirstlane_b32 s55, v14
    s_mov_b64 exec, 0xff
    s_cmp_lg_u32 s55, 3
    s_cselect_b32 s62, %s, s62
    buffer_store_dwordx4 v[24:27], v9, %s, s62 offen %s
    s_mov_b64 exec, 0x1ff
    """ % (OOB, WS, WT)); vmq.clear()
    TSTAMP()
    if O('fudelay', 0): A("s_sleep %d" % O('fudelay', 0))
    fu_txt = "buffer_load_dword v14, v8, %s, s63 offen sc1" % WS
    fu_chk = "v_cmp_ne_u32 vcc, s84, v14"
    A(fu_txt + "\ns_waitcnt vmcnt(0)\n" + fu_chk)
    retry("up", fu_txt, fu_chk)
    A("s_mov_b64 exec, -1")
    TSTAMP()
    UL = "sc1" if O('upsc', 0) else ""
    A("""buffer_load_dwordx4 v[32:35], v9, WS, s67 offen UL
    buffer_load_dwordx4 v[40:43], v9, WS, s67 offen offset:1024 UL
    buffer_load_dword v36, v9, WS, s59 offen UL
    buffer_load_dword v44, v9, WS, s59 offen offset:1024 UL
    v_mov_b32 v14, 1
    s_mov_b64 exec, 1
    ds_add_u32 v3, v14 offset:24
    s_mov_b64 exec, -1
    s_waitcnt vmcnt(0)""".replace("WS", WS).replace("UL", UL))
    TSTAMP()
    A("v_cndmask_b32 v36, v36, 0, s[100:101]")
    for h in range(2):
        b = 32 + 8 * h
        W_ = lambda i: v(b + 4) if i < 0 else v(b + i)
        for c in range(2):
            for pi in range(2):
                o = 64 + 8 * h + 2 * (2 * c + pi)
                for jj in range(2):
                    lo = 2 + pi - 2 * jj; hi = lo - 1
                    A("v_perm_b32 %s, %s, %s, %s" % (v(o + jj), W_(hi), W_(lo), "s64" if c == 0 else "s71"))
                A("ds_write_b64 v7, %s offset:%d" % (v(o, 2), (2 * c + pi) * U_STR + 512 * h))
    A("v_mov_b32 v14, 1\ns_mov_b64 exec, 1\nds_add_u32 v3, v14 offset:40\ns_mov_b64 exec, -1\nds_read_b32 v12, v3 offset:40\ns_waitcnt lgkmcnt(0)\nv_cmp_ne_u32 vcc, 8, v12")
    retry("b4a", "ds_read_b32 v12, v3 offset:40", "v_cmp_ne_u32 vcc, 8, v12", wait="s_waitcnt lgkmcnt(0)")
    TSTAMP()
    BF = lambda buf, ct: v(16 + 32 * buf + 4 * ct, 4)
    ACC = lambda t: v(80 + 4 * t, 4)
    KF = lambda ph, g: a(32 * (ph & 1) + 4 * g, 4)
    bread = lambda ph, ct: "ds_read_b128 %s, v181 offset:%d" % (BF(ph & 1, ct), 512 * ct + 64 * (3 - ph))
    kread = lambda ph, g: "ds_read_b128 %s, v180 offset:%d" % (KF(ph, g), 512 * g + 64 * ph)
    for i in range(7): A(kread(0, i)); A(bread(0, i))
    p2pre = lines("""v_lshrrev_b32 v5, 2, v1
    v_mul_u32_u24 v5, 96, v5
    v_and_b32 v14, 3, v1
    v_lshl_add_u32 v5, v14, 3, v5
    v_add_u32 v6, %d, v5
    s_lshl_b32 s55, s3, 12
    v_add_u32 v7, s55, v9
    s_lshl_b32 s67, s86, 18
    s_add_u32 s67, s67, %d
    v_lshlrev_b32 v8, 4, v4
    v_add_u32 v8, %d, v8
    v_mov_b32 v3, %d
    v_lshlrev_b32 v10, 2, v2
    v_add_u32 v10, 0xc0, v10""" % (L_WU, HP, L_CS, L_FLG))
    touched = set(); issued = 14
    for ph in range(4):
        if ph in (0, 3): order = [(t - ct, ct) for t in range(8) for ct in range(t + 1)]
        else: order = [(g, ct) for ct in range(8) for g in range(8 - ct)]
        nxt = [x for i in range(8) for x in (kread(ph + 1, i), bread(ph + 1, i))] if ph < 3 else []
        for idx, (g, ct) in enumerate(order):
            t = g + ct
            if ph == 0 and ct == 0:
                need = 2 * (t + 1)
                if t < 7 or True: A("s_waitcnt lgkmcnt(%d)" % min(15, issued - need))
            if ph > 0 and idx == 0: A("s_waitcnt lgkmcnt(0)")
            if 36 * ph + idx == O('lpi', 40): A("v_mov_b32 v14, 1\nds_write_b32 v3, v14 offset:32")
            if ph == 3 and idx == 0: A("v_mov_b32 v14, 1\ns_mov_b64 exec, 1\nds_add_u32 v3, v14 offset:16\ns_mov_b64 exec, -1")
            A("%s %s, %s, %s, %s" % (MF, ACC(t), KF(ph, g), BF(ph & 1, ct), ACC(t) if t in touched else "0"))
            touched.add(t)
            if ph == 3 and idx == 6: A("ds_read_b32 v12, v3 offset:16")
            if ph == 3 and idx == 12: A("s_waitcnt lgkmcnt(0)\nv_cmp_ne_u32 vcc, 4, v12")
            if ph == 3 and idx == 14: retry("kc", "ds_read_b32 v12, v3 offset:16", "v_cmp_ne_u32 vcc, 4, v12", wait="s_waitcnt lgkmcnt(0)")
            if ph == 3 and idx in (15, 17, 19, 21): A("ds_write_b128 v182, %s offset:%d" % (ACC((idx - 15) // 2), 1024 * ((idx - 15) // 2)))
            if ph == 0 and idx == 1: A(kread(0, 7)); A(bread(0, 7)); issued += 2
            if idx >= 16 and nxt:
                A(nxt.pop(0))
                if ph == 0: issued += 1
            if ph == 1 and p2pre: A(p2pre.pop(0))
            if ph == 3 and idx in (23, 28): A("ds_write_b128 v182, %s offset:%d" % (ACC(4 if idx == 23 else 5), 1024 * (4 if idx == 23 else 5)))
        assert not nxt
    A("ds_write_b128 v182, %s offset:%d" % (ACC(6), 1024 * 6))
    A("ds_write_b128 v182, %s offset:%d" % (ACC(7), 1024 * 7))
    A("s_waitcnt lgkmcnt(0)")
    TSTAMP()
    A("s_barrier")
    TSTAMP()
    A("s_barrier")
    TSTAMP()
    XS = lambda st: 16 + 16 * (st & 3)
    AC = lambda arr, ft, tau: v(80 + 48 * arr + 16 * ft + 4 * tau, 4)
    WF = lambda st, arr, ft: 24 * (st & 1) + 12 * arr + 4 * ft
    def xaddr(st): return ["s_add_u32 s55, s88, %d" % st, "s_and_b32 s55, s55, 15", "s_lshl_b32 s55, s55, 14", "s_add_u32 s96, s55, s67"]
    def xlds(st): return ["buffer_load_dwordx4 %s, v7, %s, s96 offen offset:%d sc1" % (v(XS(st) + 4 * j, 4), WS, 1024 * j) for j in range(4)]
    def xload_txt(st): return "\n".join(xaddr(st) + xlds(st)).replace("s96", "s97")
    def xload(st):
        A("\n".join(xaddr(st) + xlds(st))); vmq.extend(["x%d" % st] * 4)
    def xchk(st):
        b = XS(st)
        return ["v_max3_u32 v11, %s, %s, %s" % (v(b), v(b + 4), v(b + 8)), "v_max_u32 v11, v11, %s" % v(b + 12), "v_cmp_eq_u32 vcc, -1, v11"]
    def wreads(st):
        return ["ds_read_b64_tr_b16 %s, %s offset:%d" % (a(WF(st, arr, ft) + 2 * h, 2), "v6" if arr else "v5", st * 3072 + h * 1536 + ft * 32)
                for arr in range(2) for ft in range(3) for h in range(2)]
    def swaps(st):
        b = XS(st)
        return ["v_swap_b32 %s, %s" % (v(b + 4 * j + t), v(b + 4 * t + j)) for j in range(4) for t in range(j + 1, 4)]
    if O('xdelay', 0): A("s_sleep %d" % O('xdelay', 0))
    if O('x3', 0):
        xload(0); xload(1); xload(2)
        for r in wreads(0): A(r)
        vmwait("x0")
        for r in xchk(0): A(r)
        retry("xP", "\n".join(xload_txt(i) for i in range(3)), "\n".join(xchk(0)), wait="s_waitcnt vmcnt(8)")
        TSTAMP()
    else:
        xload(0)
        for r in wreads(0): A(r)
        vmwait("x0")
        for r in xchk(0): A(r)
        if O('xr3', 0):
            A("s_cbranch_vccnz L_rxP")
            xload(1); xload(2)
            A.label("L_oxP")
            stubs.append("L_rxP:\n%s\ns_waitcnt vmcnt(8)\n%s\ns_cbranch_vccz L_oxP\ns_sub_u32 s85, s85, 1\ns_cbranch_scc0 L_rxP\ns_mov_b32 s85, 0\ns_branch L_oxP"
                         % ("\n".join(xload_txt(i) for i in range(3)), "\n".join(xchk(0))))
            TSTAMP()
        else:
            retry("xP", xload_txt(0), "\n".join(xchk(0)))
            TSTAMP()
            xload(1); xload(2)
    for r in swaps(0): A(r)
    A("s_cmp_eq_u32 s87, 31\ns_cbranch_scc1 L_p2alt")
    def flagrd(k): return "ds_read_b32 v12, v3 offset:%d" % (4 * k)
    flagchk = "v_cmp_ne_u32 vcc, 4, v12"
    def p2loop(alt):
        for st in range(16):
            ml = []
            for arr in range(2):
                for ft in range(3):
                    for tau in range(4):
                        xf = v(XS(st) + 4 * tau, 4)
                        wf = a(WF(st, arr, ft), 4)
                        if alt and arr == 1 and ft == 2: wf = xf
                        ml.append("%s %s, %s, %s, %s" % (MF, AC(arr, ft, tau), wf, xf, AC(arr, ft, tau) if st else "0"))
            wr = wreads(st + 1) if st < 15 else ["ds_read_b128 %s, v8 offset:%d" % (v(40 + 4 * t, 4), 64 * t) for t in range(6)]
            if st in (8, 14): wr = wr + [flagrd(0 if st == 8 else 1)]
            sw = swaps(st + 1) if st < 15 else []
            ck = xchk(st + 1) if st < 15 else []
            xa = xaddr(st + 3) if st + 3 < 16 else []
            xl = xlds(st + 3) if st + 3 < 16 else []
            tg = "b" if alt else "a"
            if O('fine2', 0) and st > 0:
                if alt and st == 1: nst[0] -= 15
                TSTAMP()
            A("s_waitcnt lgkmcnt(0)")
            for i, m in enumerate(ml):
                if i == 0 and st in (9, 15): A(flagchk)
                A(m)
                if i == 1 and st in (9, 15): retry("f%s%d" % (tg, st), flagrd(0 if st == 9 else 1), flagchk, wait="s_waitcnt lgkmcnt(0)")
                if i < 2 and xa: A(xa.pop(0)); A(xa.pop(0))
                if i >= 2 and wr: A(wr.pop(0))
                if i in (2, 4, 6, 8) and xl: VM(xl.pop(0).replace(" sc1", "" if O('xplain', 0) else " sc1"), "x%d" % (st + 3))
                if st <= 12 and i == 9: A("v_mov_b32 v13, %d" % (st + 1))
                if st <= 12 and i == 15: A("ds_write_b32 v3, v13 offset:36")
                if i == 12 and sw: vmwait("x%d" % (st + 1))
                if i >= 12 and ck: A(ck.pop(0))
                if i == 16 and sw: retry("x%s%d" % (tg, st + 1), xload_txt(st + 1), "\n".join(xchk(st + 1)))
                if i >= 16 and sw: A(sw.pop(0))
            assert not wr and not sw and not xl
    sv = list(vmq)
    p2loop(False)
    A("s_branch L_p2join")
    A.label("L_p2alt")
    vmq[:] = sv
    p2loop(True)
    A.label("L_p2join")
    TSTAMP()
    A("s_nop 3")
    for tau in range(4):
        A("ds_bpermute_b32 %s, v10, %s" % (v(64 + 2 * tau), v(80 + 32 + 4 * tau)))
    A("s_mov_b32 s57, 0xbb000000\ns_waitcnt lgkmcnt(0)")
    for tau in range(4): A("v_mul_f32 %s, s57, %s" % (v(64 + 2 * tau), v(64 + 2 * tau)))
    A("s_cmp_lg_u32 s87, 31\ns_cbranch_scc1 L_novar")
    A("v_and_b32 v10, 3, v2")
    for tau in range(4): A("v_mov_b32 %s, %s" % (v(72 + tau), v(80 + 48 + 32 + 4 * tau)))
    for j in range(1, 4):
        A("v_cmp_eq_u32 vcc, %d, v10" % j)
        for tau in range(4):
            A("v_cndmask_b32 %s, %s, %s, vcc" % (v(72 + tau), v(72 + tau), v(80 + 48 + 32 + 4 * tau + j)))
    A("s_mov_b32 s56, 0x3b000000\ns_mov_b32 s57, 0x3727c5ac")
    for tau in range(4): A("v_mul_f32 %s, s56, %s" % (v(72 + tau), v(72 + tau)))
    for tau in range(4): A("v_fma_f32 %s, -%s, %s, %s" % (v(72 + tau), v(64 + 2 * tau), v(64 + 2 * tau), v(72 + tau)))
    for tau in range(4): A("v_max_f32 %s, 0, %s" % (v(72 + tau), v(72 + tau)))
    for tau in range(4): A("v_add_f32 %s, s57, %s" % (v(72 + tau), v(72 + tau)))
    for tau in range(4): A("v_rcp_f32 %s, %s" % (v(72 + tau), v(72 + tau)))
    A("s_nop 0\nbuffer_store_dwordx4 v[72:75], v179, %s, s91 offen %s" % (WS, WT))
    A.label("L_novar")
    for ft in range(3):
        for g in range(2):
            o = 16 + 8 * ft + 4 * g
            for e in range(2):
                tau = 2 * g + e
                gb = 80 + 16 * ft + 4 * tau; ub = gb + 48
                M = v(64 + 2 * tau, 2)
                for j in (0, 2):
                    A("v_pk_fma_f32 %s, %s, %s, %s op_sel_hi:[1,0,1]" % (v(gb + j, 2), v(40 + 4 * ft + j, 2), M, v(gb + j, 2)))
                    A("v_pk_fma_f32 %s, %s, %s, %s op_sel_hi:[1,0,1]" % (v(ub + j, 2), v(52 + 4 * ft + j, 2), M, v(ub + j, 2)))
                for j in range(4): A("v_max_f32 %s, 0, %s" % (v(gb + j), v(gb + j)))
                for j in (0, 2): A("v_pk_mul_f32 %s, %s, %s" % (v(gb + j, 2), v(gb + j, 2), v(ub + j, 2)))
                for j in (0, 2): A("v_cvt_pk_bf16_f32 %s, %s, %s" % (v(o + 2 * e + j // 2), v(gb + j), v(gb + j + 1)))
            A("buffer_store_dwordx4 %s, %s, %s, %s offen offset:%d %s" % (v(o, 4), HV[ft], WS, "s90" if g else "s89", 1024 * ft, WT))
    TSTAMP()
    A("s_barrier")
    dump(TS)
    A("s_endpgm")

    A.label("L_B")
    vmq.clear(); nst[0] = 1
    if O('bprio', 1): A("s_setprio %d" % O('bprio', 1))
    A("""
    s_lshr_b32 s55, s66, 4
    s_lshl_b32 s72, s55, 14
    s_and_b32 s55, s66, 3
    s_lshl_b32 s55, s55, 10
    s_add_u32 s72, s72, s55
    s_bfe_u32 s55, s66, 0x20002
    s_lshl_b32 s55, s55, 8
    s_add_u32 s72, s72, s55
    s_lshl_b32 s55, s3, 19
    s_add_u32 s72, s72, s55
    s_add_u32 s72, s72, %d
    s_add_u32 s73, s72, 0x40000
    v_lshlrev_b32 v63, 4, v2
    v_lshl_add_u32 v63, v4, 12, v63
    v_mov_b32 v64, -1
    v_mov_b32 v65, -1
    v_mov_b32 v66, -1
    v_mov_b32 v67, -1
    """ % HP)
    A("""
    v_mov_b32 v40, 0
    v_mov_b32 v41, 0
    v_mov_b32 v42, 0
    v_mov_b32 v43, 0
    v_mov_b32 v12, %d
    ds_write_b128 v12, v[40:43]
    ds_write_b128 v12, v[40:43] offset:16
    ds_write_b128 v12, v[40:43] offset:32
    s_lshl_b32 s57, s2, 13
    s_lshl_b32 s56, s99, 12
    s_add_u32 s57, s57, s56
    s_lshl_b32 s56, s98, 10
    s_add_u32 s57, s57, s56
    s_lshl_b32 s61, s66, 13
    s_lshl_b32 s56, s3, 11
    s_add_u32 s61, s61, s56
    s_lshl_b32 s55, s5, 2
    s_add_u32 s55, s55, s3
    s_mul_i32 s55, s55, 384
    v_lshl_add_u32 v10, v1, 7, s55
    s_waitcnt lgkmcnt(0)
    s_barrier
    s_mov_b64 exec, 7
    """ % L_FLG)
    VM("global_load_dword v11, v10, %s" % s(sPC, 2), "code")
    A("s_mov_b64 exec, -1")
    def hpfill():
        VM("buffer_store_dwordx4 v[64:67], v63, %s, s72 offen %s" % (WS, WT), "fill")
        VM("buffer_store_dwordx4 v[64:67], v63, %s, s73 offen %s" % (WS, WT), "fill")
    if O('fillp', 1) == 0: hpfill()
    VM("buffer_load_dwordx4 v[32:35], v9, %s, s57 offen %s" % (srd(S_Q), NT), "stat")
    VM("buffer_load_dwordx4 v[36:39], v9, %s, s57 offen offset:2048 %s" % (srd(S_Q), NT), "stat")
    VM("buffer_load_dwordx4 v[24:27], v9, %s, s61 offen %s" % (srd(S_SSM), NT), "ssm")
    VM("buffer_load_dwordx4 v[28:31], v9, %s, s61 offen offset:1024 %s" % (srd(S_SSM), NT), "ssm")
    if O('fillp', 1) == 1: hpfill()
    A("s_load_dword s84, %s, 0\ns_lshl_b32 s56, s66, 2\ns_load_dword %s, %s, s56" % (s(S_WS, 2), s(sD), s(sDP, 2)))
    if O('tlb', 0) == 1:
        for i, (b, off) in enumerate(((S_WG, 0), (S_WU, 0), (S_WD, 0), (S_OUT, 0))):
            A("s_load_dword s%d, %s, %d" % (89 + (i & 1), s(b, 2), off))
    if O('tlb', 0) == 2:
        A("v_mov_b32 v12, 0\ns_mov_b64 exec, 1")
        for b in (S_WG, S_WU, S_WD, S_OUT): VM("global_load_dword v11, v12, %s" % s(b, 2), "code")
        A("s_mov_b64 exec, 0xffff\nv_lshlrev_b32 v12, 20, v1")
        VM("buffer_load_dword v11, v12, %s, 0 offen" % WS, "code")
        A("s_mov_b64 exec, -1")
    A(ids)
    A("""
    v_and_b32 v6, 7, v1
    v_xor_b32 v5, s98, v6
    v_lshlrev_b32 v5, 4, v5
    v_lshl_add_u32 v5, v1, 7, v5
    s_lshl_b32 s55, s99, 3
    s_add_u32 s55, s55, %d
    v_add_u32 v5, s55, v5
    v_lshrrev_b32 v7, 3, v1
    s_mov_b32 s55, %d
    v_mul_lo_u32 v8, v7, s55
    v_lshl_add_u32 v8, v6, 4, v8
    v_xor_b32 v6, v6, v7
    v_lshlrev_b32 v6, 4, v6
    v_lshl_add_u32 v6, v7, 7, v6
    s_lshl_b32 s55, s3, 11
    s_add_u32 s55, s55, %d
    v_add_u32 v6, s55, v6
    v_xor_b32 v16, 32, v5
    v_xor_b32 v17, 64, v5
    v_xor_b32 v18, 0x60, v5
    """ % (L_TB, QSTR, L_TB))
    A("""
    s_mul_i32 s55, s3, %d
    s_add_u32 s55, s55, %d
    v_and_b32 v12, 7, v1
    v_lshl_add_u32 v12, v12, 4, s55
    ds_write_b128 v12, v[40:43]
    s_cmp_lg_u32 s99, 0
    s_cbranch_scc1 L_nohead
    v_and_b32 v12, 31, v1
    v_lshlrev_b32 v12, 4, v12
    v_lshrrev_b32 v13, 5, v1
    s_movk_i32 s56, %d
    v_mad_u32_u24 v12, v13, s56, v12
    s_mul_i32 s55, s98, %d
    s_add_u32 s55, s55, %d
    v_add_u32 v12, s55, v12
    ds_write_b128 v12, v[40:43]
    ds_write_b128 v12, v[40:43] offset:%d
    L_nohead:
    """ % (U_STR, L_U, KC_STR, 4 * KC_STR, L_KC, 2 * KC_STR))
    A("""
    s_mul_i32 s55, s3, %d
    s_lshl_b32 s56, s2, 7
    s_add_u32 s55, s55, s56
    s_add_u32 s95, s55, %d
    s_add_u32 s97, s95, %d
    s_movk_i32 s55, 0x2aab
    s_movk_i32 s56, 2752
    """ % (16 * QSTR, QP, 8 * QSTR))
    for i3 in range(3):
        A("""
        v_add_u32 v14, %d, v1
        v_mul_u32_u24 v3, s55, v14
        v_lshrrev_b32 v3, 16, v3
        v_mul_u32_u24 v13, 6, v3
        v_sub_u32 v14, v14, v13
        v_bfe_u32 v13, v3, 2, 2
        v_lshlrev_b32 v13, 3, v13
        v_lshrrev_b32 v12, 4, v3
        v_lshl_add_u32 v13, v12, 2, v13
        v_and_b32 v3, 3, v3
        v_add_u32 v13, v13, v3
        v_mul_u32_u24 v13, s56, v13
        v_lshl_add_u32 %s, v14, 4, v13
        """ % (64 * i3, v(60 + i3)))
    A("""
    s_bitcmp1_b32 s3, 0
    s_cselect_b32 s48, s32, s28
    s_cselect_b32 s49, s33, s29
    s_add_u32 s69, s88, s98
    s_mul_i32 s70, s87, 88
    s_mul_i32 s76, s99, %d
    s_mul_i32 s56, s98, 3072
    s_add_u32 s76, s76, s56
    s_mul_i32 s56, s98, %d
    s_lshl_b32 s57, s99, 11
    s_add_u32 s56, s56, s57
    s_add_u32 s56, s56, %d
    v_add_u32 v44, s56, v9
    v_add_u32 v45, %d, v44
    v_add_u32 v46, %d, v44
    v_add_u32 v47, %d, v44
    v_mov_b32 v3, FLGA
    """.replace("FLGA", str(L_FLG)) % (L_WU, 4 * KC_STR, L_KC + 512 - 4, KC_STR - 4, 2 * KC_STR - 8, 3 * KC_STR - 12))
    ndma = [0]
    def w1dma(n):
        for _ in range(n):
            i = ndma[0]; ndma[0] += 1
            gi, i3 = divmod(i, 3)
            if i3 == 0: A("s_and_b32 s77, s69, 15\ns_mul_i32 s77, s77, 88064\ns_add_u32 s77, s77, s70\ns_add_u32 s69, s69, 2")
            A("s_add_u32 m0, s76, %d" % (gi * 6144 + i3 * 1024))
            VM("buffer_load_dwordx4 %s, %s, s77 offen %s lds" % (v(60 + i3), srd(S_T), "nt" if i < O('w1nt', 0) else ""), "dma")
    span = 88 * (32 // RBX)
    ntouch = ((span + 8 + 127 + 127) // 128 + 7) // 8
    def w1touch(pos):
        if O('w1tp', 9) != pos: return 0
        A("""
        v_lshrrev_b32 v12, 3, v1
        s_movk_i32 s55, 2752
        v_mul_lo_u32 v12, v12, s55
        v_and_b32 v13, 7, v1
        v_lshlrev_b32 v13, 7, v13
        s_lshl_b32 s55, s5, 1
        s_add_u32 s55, s55, s98
        s_mul_i32 s55, s55, 22016
        s_and_b32 s56, s4, %d
        s_mul_i32 s56, s56, %d
        s_add_u32 s55, s55, s56
        """ % (RBX - 1, span))
        for i in range(ntouch):
            A("v_add_u32 v14, %d, v13\nv_min_u32 v14, %d, v14\nv_add_u32 v14, v14, v12" % (1024 * i, span + 4))
            VM("buffer_load_dword v11, v14, %s, s55 offen %s" % (srd(S_T), "nt" if O('tnt', 0) else ""), "tch")
        return ntouch
    def hfill(pos):
        if O('hfp', 0) != pos: return
        A(haddr(["v68", "v69", "v70"], "v71", ("v12", "v13")))
        for ft in range(3):
            for g in range(2):
                VM("buffer_store_dwordx4 v[64:67], %s, %s, %s offen offset:%d %s" % (v(68 + ft), WS, "s90" if g else "s89", 1024 * ft, WT), "fill")
        VM("buffer_store_dwordx4 v[64:67], v71, %s, s91 offen %s" % (WS, WT), "fill")
        A("v_mov_b32 v13, 1")
    def wdtouch(pos):
        if O('wdtp', 1) != pos: return
        if O('wdtm', 1) == 1:
            A("s_lshl_b32 s55, s2, 2\ns_add_u32 s55, s55, s3\ns_mul_i32 s55, s55, 1408\nv_lshlrev_b32 v12, 7, v1\ns_mov_b64 exec, 0x7ff")
            VM("buffer_load_dword %s, v12, %s, s55 offen" % ("v63" if pos == 4 else "v11", srd(S_WD)), "tch")
            A("s_mov_b64 exec, -1")
        else:
            A("s_lshl_b32 s55, s5, 2\ns_add_u32 s55, s55, s3\ns_mul_i32 s55, s55, 11008\nv_lshlrev_b32 v12, 7, v1")
            VM("buffer_load_dword v11, v12, %s, s55 offen" % srd(S_WD), "tch")
            A("s_add_u32 s55, s55, 8192\ns_mov_b64 exec, 0x3fffff")
            VM("buffer_load_dword v11, v12, %s, s55 offen" % srd(S_WD), "tch")
            A("s_mov_b64 exec, -1")
    TSTAMP()
    w1dma(O('nw1a', 0))
    A("v_mov_b32 v21, 0x3f803f80")
    vmwait("stat")
    TSTAMP()
    w1touch(1)
    for i in range(4): A("ds_write2_b32 %s, %s, %s offset0:0 offset1:1" % (("v5", "v16", "v17", "v18")[i], v(32 + i), v(36 + i)))
    A("v_mov_b32 v14, 1\ns_waitcnt lgkmcnt(0)\ns_mov_b64 exec, 1\nds_add_u32 v3, v14 offset:20\ns_mov_b64 exec, -1\ns_add_u32 s84, s84, 1\ns_or_b32 s84, s84, 0x80000000")
    for i in range(4):
        for e in range(2):
            A("v_dot2c_f32_bf16 %s, %s, v21" % (v(42 + e), v(32 + 4 * e + i)))
            A("v_dot2c_f32_bf16 %s, %s, %s" % (v(40 + e), v(32 + 4 * e + i), v(32 + 4 * e + i)))
    for m in ("row_shr:1", "row_shr:2", "row_shr:4", "row_shr:8", "row_bcast:15 row_mask:0xa", "row_bcast:31 row_mask:0xc"):
        for r in range(40, 44):
            A("v_add_f32_dpp %s, %s, %s %s" % (v(r), v(r), v(r), m))
    A("s_mov_b32 s56, 0x3b000000\ns_mov_b32 s57, 0x3727c5ac")
    for r in range(40, 44): A("v_mul_f32 %s, s56, %s" % (v(r), v(r)))
    for e in range(2): A("v_fma_f32 %s, -%s, %s, %s" % (v(40 + e), v(42 + e), v(42 + e), v(40 + e)))
    for e in range(2): A("v_max_f32 %s, 0, %s" % (v(40 + e), v(40 + e)))
    for e in range(2): A("v_add_f32 %s, s57, %s" % (v(40 + e), v(40 + e)))
    for e in range(2): A("v_rsq_f32 %s, %s" % (v(40 + e), v(40 + e)))
    for e in range(2): A("v_mul_f32_e64 %s, -%s, %s" % (v(42 + e), v(42 + e), v(40 + e)))
    A("v_mov_b32 v19, v6\nv_mov_b32 v20, v8")
    qw_txt = "ds_read2_b32 v[12:13], v3 offset0:%d offset1:5" % O('qwait', 5)
    qw_chk = "v_add_u32 v12, v12, v13\nv_cmp_ne_u32 vcc, 8, v12"
    A(qw_txt + "\ns_waitcnt lgkmcnt(0)\n" + qw_chk)
    retry("qw", "s_sleep 1\n" + qw_txt, qw_chk, wait="s_waitcnt lgkmcnt(0)")
    TSTAMP()
    A("ds_read_b128 v[48:51], v19\nds_read_b128 v[52:55], v19 offset:1024\ns_waitcnt lgkmcnt(1)")
    A("buffer_store_dwordx4 v[48:51], v20, %s, s95 offen %s\ns_waitcnt lgkmcnt(0)" % (WS, WT))
    A("buffer_store_dwordx4 v[52:55], v20, %s, s97 offen %s" % (WS, WT))
    vmq.extend(["st"] * 2)
    w1dma(O('nw1b', 0)); nyoung = O('nw1b', 0)
    vmwait("ssm")
    for i in range(2):
        b = 24 + 4 * i
        if i == 1: A("v_add_u32 v44, 0x400, v44\nv_add_u32 v46, 0x400, v46")
        for ad in ("v44", "v46"):
            A("ds_write2_b32 %s, %s, %s offset0:0 offset1:1" % (ad, v(b), v(b + 1)))
            A("ds_write2_b32 %s, %s, %s offset0:2 offset1:3" % (ad, v(b + 2), v(b + 3)))
        A("ds_write2_b64 v45, %s, %s offset0:%d offset1:%d" % (v(b, 2), v(b + 2, 2), 128 * i, 128 * i + 1))
        A("ds_write_b128 v47, %s offset:%d" % (v(b, 4), 1024 * i))
    A("v_mov_b32 v14, 1\ns_mov_b64 exec, 1\nds_add_u32 v3, v14 offset:40\ns_mov_b64 exec, -1")
    A("""
    s_lshl_b32 s55, s3, 4
    s_add_u32 s55, s55, %d
    v_mov_b32 v12, s55
    v_mov_b32 v13, %d
    v_mov_b32 v14, 1
    s_mov_b32 exec_lo, 0
    s_mov_b32 exec_hi, 0x80000000
    ds_write_b128 v12, v[40:43]
    s_waitcnt vmcnt(NYOUNG) lgkmcnt(0)
    ds_add_rtn_u32 v14, v13, v14 offset:8
    s_waitcnt lgkmcnt(0)
    v_readfirstlane_b32 s55, v14
    s_mov_b64 exec, -1
    s_cmp_lg_u32 s55, 3
    s_cbranch_scc1 L_nost
    v_and_b32 v12, 3, v1
    v_lshlrev_b32 v12, 4, v12
    ds_read_b128 v[40:43], v12 offset:%%d
    v_and_b32 v13, 7, v1
    v_cmp_lt_u32 vcc, 3, v13
    v_mov_b32 v14, s84
    v_cndmask_b32 v14, 0, v14, vcc
    v_lshrrev_b32 v12, 3, v1
    v_mul_u32_u24 v12, STRIDE, v12
    v_lshl_add_u32 v12, v13, 4, v12
    s_lshl_b32 s55, s2, 7
    s_add_u32 s55, s55, %d
    s_waitcnt lgkmcnt(0)
    v_xor_b32 v40, v14, v40
    v_xor_b32 v41, v14, v41
    v_xor_b32 v42, v14, v42
    v_xor_b32 v43, v14, v43
    s_mov_b64 exec, STEX
    buffer_store_dwordx4 v[40:43], v12, WS, s55 offen WT
    s_mov_b64 exec, -1
    L_nost:
    """.replace("STRIDE", str(STR)).replace("STEX", "-1" if O('strep', 1) else "0xff").replace("WS", WS).replace("WT", WT).replace("NYOUNG", str(nyoung)).replace("v_lshlrev_b32 v12, 4, v12\n    ds_read_b128 v[40:43], v12 offset:%%d", "v_lshlrev_b32 v12, 4, v12\n    v_add_u32 v12, STL, v12\n    ds_read_b128 v[40:43], v12").replace("STL", str(L_FLG + 64)) % (L_FLG + 64, L_FLG, ST)); vmq.clear()
    TSTAMP()
    w1dma(O('nw1c', 0))
    A("""
    s_and_b32 s55, s54, 0xffff
    s_lshr_b32 s56, s54, 16
    v_mov_b32 v13, s55
    v_mov_b32 v14, s56
    v_lshl_add_u32 v12, v4, 2, 3
    v_sub_u32 v12, v12, v2
    """)
    for jj in range(4):
        A("v_cmp_eq_u32 vcc, %d, v12\nv_cndmask_b32 %s, 0, v13, vcc\nv_cndmask_b32 %s, 0, v14, vcc" % (jj, v(72 + jj), v(76 + jj)))
    A("""
    v_and_b32 v5, 1, v2
    s_movk_i32 s55, %d
    v_mul_lo_u32 v5, v5, s55
    v_lshrrev_b32 v14, 1, v2
    v_lshl_add_u32 v5, v14, 4, v5
    v_lshl_add_u32 v5, v4, 7, v5
    s_lshl_b32 s56, s3, 10
    s_add_u32 s56, s56, %d
    v_add_u32 v5, s56, v5
    s_lshl_b32 s56, s3, 11
    s_add_u32 s57, s56, %d
    v_add_u32 v6, s57, v9
    v_add_u32 v7, %d, v6
    s_lshr_b32 s68, s66, 2
    s_mul_i32 s68, s68, %d
    s_and_b32 s57, s66, 3
    s_lshl_b32 s57, s57, 5
    s_add_u32 s68, s68, s57
    s_lshl_b32 s58, s3, 13
    s_add_u32 s68, s68, s58
    s_add_u32 s68, s68, %d
    s_add_u32 s60, s68, 0x1000
    s_add_u32 s58, s58, %d
    s_mul_i32 s57, s4, STRX
    s_add_u32 s58, s58, s57
    s_add_u32 s59, s58, 0x1000
    v_lshrrev_b32 v8, 1, v1
    v_lshlrev_b32 v8, 7, v8
    v_and_b32 v14, 1, v1
    v_lshl_add_u32 v10, v14, 4, v8
    v_lshl_add_u32 v8, v14, 5, v8
    s_mul_i32 s61, s99, 49152
    s_lshl_b32 s57, s98, 13
    s_add_u32 s61, s61, s57
    s_add_u32 s61, s61, 0x8000
    v_lshlrev_b32 v14, 3, v1
    v_and_b32 v14, 0x70, v14
    v_xor_b32 v8, v8, v14
    v_add_u32 v8, s61, v8
    v_xor_b32 v57, 16, v8
    v_xor_b32 v58, 64, v8
    v_xor_b32 v59, 0x50, v8
    v_lshlrev_b32 v14, 1, v1
    v_and_b32 v14, 0x70, v14
    v_xor_b32 v56, v9, v14
    """.replace("STRX", str(STR if O('strep', 1) else 0)) % (U_STR, L_U + 8 * 16, L_REDA, L_REDB - L_REDA, QSTR, QP, ST))
    if O('nw1e', 6) or O('wdtp', 1) == 1:
        A("ds_read_b32 v12, v3 offset:24\ns_waitcnt lgkmcnt(0)\nv_cmp_ne_u32 vcc, 4, v12")
        retry("uw", "s_sleep 1\nds_read_b32 v12, v3 offset:24", "v_cmp_ne_u32 vcc, 4, v12", wait="s_waitcnt lgkmcnt(0)")
    st_dma = "s_mov_b32 m0, s61\n" + "\n".join("buffer_load_dwordx4 v56, %s, s58 offen offset:%d sc1 lds" % (WS, 1024 * i) for i in range(4)) + \
             "\ns_add_u32 m0, s61, 0x1000\n" + "\n".join("buffer_load_dwordx4 v56, %s, s59 offen offset:%d sc1 lds" % (WS, 1024 * i) for i in range(4))
    st_rd = "\n".join("ds_read_b128 %s, %s offset:%d" % (v(16 * (1 + cp) + 8 * e + 4 * h, 4), ("v8", "v57", "v58", "v59")[h + 2 * cp], 4096 * e)
                       for e in range(2) for h in range(2) for cp in range(2))
    st_chk = "\n".join(["v_bitop3_b32 %s, %s, %s, s84 bitop3:0x96" % (v(32 + i), v(32 + i), v(16 + i)) for i in range(16)] +
                       ["v_or3_b32 %s, %s, %s, %s" % (v(32 + i), v(32 + i), v(33 + i), v(34 + i)) for i in (0, 3, 6, 9, 12)] +
                       ["v_or3_b32 v32, v32, v35, v38", "v_or3_b32 v41, v41, v44, v47", "v_or_b32 v32, v32, v41", "v_cmp_ne_u32 vcc, 0, v32"])
    if O('stf', 0):
        A("ds_read_b32 v12, v3 offset:8\ns_waitcnt lgkmcnt(0)\nv_cmp_ne_u32 vcc, 4, v12")
        retry("s8", "ds_read_b32 v12, v3 offset:8", "v_cmp_ne_u32 vcc, 4, v12", wait="s_waitcnt lgkmcnt(0)")
        A(st_dma); vmq.extend(["stp"] * 8)
    w1dma(min(O('nw1e', 6), 15 - ndma[0]))
    wdtouch(1)
    A("ds_read_b32 v12, v3 offset:40\ns_waitcnt lgkmcnt(0)\nv_cmp_ne_u32 vcc, 8, v12")
    retry("b4b", "s_sleep 1\nds_read_b32 v12, v3 offset:40", "v_cmp_ne_u32 vcc, 8, v12", wait="s_waitcnt lgkmcnt(0)")
    TSTAMP()
    for e in range(2):
        for c in range(2):
            A("ds_read_b128 %s, v5 offset:%d" % (v(80 + 8 * e + 4 * c, 4), 2 * c * U_STR + 512 * e))
    hfill(1)
    w1dma(O('nw1d', 0))
    A("s_waitcnt lgkmcnt(0)")
    for e in range(2):
        for c in range(2):
            A("%s %s, %s, %s, 0" % (MF, v(96 + 8 * e + 4 * c, 4), v(72 + 4 * c, 4), v(80 + 8 * e + 4 * c, 4)))
    w1dma(O('nw1f', 0))
    if O('lpw', 1) and not O('stf', 0):
        A("ds_read_b32 v12, v3 offset:32\ns_waitcnt lgkmcnt(0)\nv_cmp_eq_u32 vcc, 0, v12")
        retry("lw", "s_sleep 1\nds_read_b32 v12, v3 offset:32", "v_cmp_eq_u32 vcc, 0, v12", wait="s_waitcnt lgkmcnt(0)")
    if not O('stf', 0): A(st_dma); vmq.extend(["stp"] * 8)
    w1dma(min(O('nw1i', 3), 15 - ndma[0]))
    vmwait("stp")
    A(st_rd + "\ns_waitcnt lgkmcnt(0)\n" + st_chk)
    retry("st", "s_sleep %d\n" % O('stsl', 4) + st_dma + "\ns_waitcnt vmcnt(0)\n" + st_rd, st_chk, wait="s_waitcnt lgkmcnt(0)")
    TSTAMP()
    VM("buffer_load_dwordx4 v[48:51], v10, %s, s68 offen sc1" % WS, "qp")
    VM("buffer_load_dwordx4 v[52:55], v10, %s, s60 offen sc1" % WS, "qp")
    wdtouch(2)
    hfill(2)
    w1dma(min(O('nw1g', 6), 15 - ndma[0]))
    vmwait("qp")
    TSTAMP()
    for e in range(2):
        for j in range(4):
            A("v_lshlrev_b32 %s, 16, %s" % (v(112 + 8 * e + j), v(48 + 4 * e + j)))
            A("v_and_b32 %s, s65, %s" % (v(116 + 8 * e + j), v(48 + 4 * e + j)))
    for e in range(2):
        for c in range(2):
            for j in (0, 2):
                A("v_pk_fma_f32 %s, %s, %s, %s" % (v(128 + 8 * e + 4 * c + j, 2), v(112 + 8 * e + 4 * c + j, 2), v(16 + 8 * e + 2 * j, 2), v(18 + 8 * e + 2 * j, 2)))
    w1dma(O('nw1h', 0))
    TSTAMP()
    A("s_barrier")
    TSTAMP()
    for e in range(2):
        for src in range(4):
            A("ds_read_b128 %s, %s offset:%d" % (v(16 + 16 * e + 4 * src, 4), "v7" if src >= 2 else "v6", 8192 * (src & 1) + 1024 * e))
    for e in range(2):
        for c in range(2):
            A("s_waitcnt lgkmcnt(%d)" % (6 - 4 * e - 2 * c))
            for j in (0, 2):
                d = v(96 + 8 * e + 4 * c + j, 2)
                A("v_pk_add_f32 %s, %s, %s" % (d, d, v(16 + 16 * e + 8 * c + j, 2)))
            for j in (0, 2):
                d = v(96 + 8 * e + 4 * c + j, 2)
                A("v_pk_add_f32 %s, %s, %s" % (d, d, v(20 + 16 * e + 8 * c + j, 2)))
            for j in (0, 2):
                d = v(96 + 8 * e + 4 * c + j, 2)
                A("v_pk_fma_f32 %s, %s, %s, %s" % (d, d, v(128 + 8 * e + 4 * c + j, 2), v(112 + 8 * e + 4 * c + j, 2)))
        for j in range(4):
            A("v_cvt_pk_bf16_f32 %s, %s, %s" % (v(48 + 4 * e + j), v(96 + 8 * e + j), v(100 + 8 * e + j)))
        VM("buffer_store_dwordx4 %s, v63, %s, %s offen %s" % (v(48 + 4 * e, 4), WS, "s73" if e else "s72", WT), "hp")
    TSTAMP()
    NB6 = O('nb6', 15)
    wdtouch(3)
    hfill(3)
    w1dma(NB6 - ndma[0])
    A("""
    v_mov_b32 v56, 0x3f803f80
    v_mov_b32 v57, 0x3f803f80
    v_mov_b32 v58, 0x3f803f80
    v_mov_b32 v59, 0x3f803f80
    v_and_b32 v14, 31, v1
    v_mul_u32_u24 v14, 96, v14
    s_add_u32 s55, s76, 88
    v_add_u32 v14, s55, v14
    v_mov_b32 v3, %d
    v_mov_b32 v13, 1
    """ % L_FLG)
    vmwait("dma")
    for i in range(NB6 // 3): A("ds_write_b64 v14, v[56:57] offset:%d" % (6144 * i))
    A("s_waitcnt lgkmcnt(0)\ns_barrier")
    TSTAMP()
    def xtouch(pos):
        if O('xtp', 9) != pos: return
        A("""
        s_and_b32 s55, s87, %d
        s_lshl_b32 s55, s55, 2
        s_add_u32 s55, s55, s3
        s_lshl_b32 s55, s55, 7
        s_lshl_b32 s56, s86, 18
        s_add_u32 s55, s55, s56
        s_add_u32 s55, s55, %d
        v_lshlrev_b32 v12, 12, v1
        """ % (32 // RBX - 1, HP))
        VM("buffer_load_dword v63, v12, %s, s55 offen sc1" % WS, "tch")
    xtouch(0)
    w1dma(24 - NB6)
    xtouch(1)
    A("""
    s_and_b32 s72, s5, 7
    s_lshr_b32 s71, s5, 3
    s_mul_i32 s56, s71, %d
    s_mul_i32 s55, s72, %d
    s_add_u32 s55, s55, s56
    s_sub_u32 s56, s55, 11
    s_cmp_ge_u32 s55, 11
    s_cselect_b32 s55, s56, s55
    s_mul_i32 s56, s3, 11
    s_add_u32 s57, s56, 11
    s_add_u32 s55, s55, s56
    """ % (O('rot4', 0), O('rot3', 0)))
    for i in range(11):
        A("s_lshl_b32 %s, s55, 11\ns_add_u32 s55, s55, 1\ns_cmp_eq_u32 s55, s57\ns_cselect_b32 s55, s56, s55" % s(8 + i))
    A("""
    v_lshrrev_b32 v5, 3, v1
    v_and_b32 v6, 2, v5
    v_lshlrev_b32 v6, 1, v6
    v_and_b32 v7, 7, v1
    v_xor_b32 v6, v6, v7
    v_lshlrev_b32 v5, 10, v5
    v_lshl_add_u32 v5, v6, 4, v5
    s_mul_i32 s92, s3, 12288
    s_add_u32 s92, s92, %d
    v_lshrrev_b32 v6, 2, v1
    v_and_b32 v7, 2, v6
    v_lshlrev_b32 v7, 5, v7
    v_lshlrev_b32 v6, 7, v6
    v_and_b32 v8, 3, v1
    v_lshl_add_u32 v6, v8, 4, v6
    v_add_u32 v6, v6, v7
    s_lshl_b32 s55, s99, 6
    v_xor_b32 v7, s55, v6
    v_xor_b32 v6, 64, v7
    v_add_u32 v6, s92, v6
    v_add_u32 v7, s92, v7
    s_lshl_b32 s93, s72, 7
    v_lshrrev_b32 v10, 2, v1
    v_mul_u32_u24 v10, 96, v10
    v_lshl_add_u32 v10, v8, 3, v10
    s_lshl_b32 s56, s99, 5
    s_add_u32 s56, s56, %d
    v_add_u32 v11, s56, v10
    s_lshl_b32 s55, s3, 5
    s_cmp_eq_u32 s3, 3
    s_cselect_b32 s55, %d, s55
    v_add_u32 v10, s55, v10
    """ % (L_SG, L_WU + 32, L_WU))
    WDR = lambda i, tm: a(16 * i + 4 * tm, 4) if i < 4 else v(72 + 16 * (i - 4) + 4 * tm, 4)
    WDH = lambda i, tm, h: a(16 * i + 4 * tm + 2 * h, 2) if i < 4 else v(72 + 16 * (i - 4) + 4 * tm + 2 * h, 2)
    def wd_issue(i):
        if O('nowd', 0): A("s_mov_b32 s93, %s" % OOB)
        A("s_lshl_b32 s94, %s, 4\ns_add_u32 s94, s94, s93" % s(8 + i))
        for r in range(4):
            A("s_add_u32 m0, s92, %d" % (4096 * (i % 3) + 1024 * r))
            VM("buffer_load_dwordx4 v5, %s, s94 offen lds" % srd(S_WD), "wd%d" % i)
            if r < 3: A("s_add_u32 s94, s94, 0x2000")
    def wd_read(i):
        vmwait("wd%d" % i)
        for tm in range(4):
            for h in range(2):
                A("ds_read_b64_tr_b16 %s, %s offset:%d" % (WDH(i, tm, h), "v6" if tm < 2 else "v7", 4096 * (i % 3) + 2048 * h + 8 * (tm & 1)))
        A("s_waitcnt lgkmcnt(0)")
    def hflag():
        A("""
        s_lshl_b32 s55, s86, 2
        s_add_u32 s55, s55, s3
        s_lshl_b32 s55, s55, 5
        s_add_u32 s55, s55, s87
        s_lshl_b32 s55, s55, 7
        s_add_u32 s55, s55, %d
        v_mov_b32 v64, s84
        v_mov_b32 v65, s84
        v_mov_b32 v66, s84
        v_mov_b32 v67, s84
        s_mov_b64 exec, 0xff
        """ % FH)
        vmwait("fill")
        VM("buffer_store_dwordx4 v[64:67], v9, %s, s55 offen %s" % (WS, WT), "fhs")
        A("s_mov_b64 exec, -1")
    def colsum(k0, k1):
        for st in range(k0, k1 + 2):
            if st < k1:
                b = 16 + 8 * (st & 3)
                for h in range(2): A("ds_read_b64_tr_b16 %s, v10 offset:%d" % (v(b + 2 * h, 2), st * 3072 + h * 1536))
                for h in range(2): A("ds_read_b64_tr_b16 %s, v11 offset:%d" % (v(b + 4 + 2 * h, 2), st * 3072 + h * 1536))
            if st >= k0 + 2:
                pb = 16 + 8 * ((st - 2) & 3)
                A("s_waitcnt lgkmcnt(%d)" % (4 * (min(st, k1 - 1) - (st - 2))))
                A("%s v[48:51], v[56:59], %s, %s" % (MF, v(pb, 4), "v[48:51]" if st > 2 else "0"))
                A("%s v[52:55], v[56:59], %s, %s" % (MF, v(pb + 4, 4), "v[52:55]" if st > 2 else "0"))
    K1 = 2 * (NB6 // 3)
    NWD0 = O('nwd0', 1)
    colsum(0, K1)
    wdtouch(4)
    for i in range(NWD0): wd_issue(i)
    vmwait("dma")
    for i in range(NB6 // 3, 8): A("ds_write_b64 v14, v[56:57] offset:%d" % (6144 * i))
    A("s_waitcnt lgkmcnt(0)\ns_mov_b64 exec, 1\nds_add_u32 v3, v13\ns_mov_b64 exec, -1")
    TSTAMP()
    for i in range(NWD0): wd_read(i)
    A("ds_read_b32 v12, v3\ns_waitcnt lgkmcnt(0)\n" + flagchk)
    retry("fB", "ds_read_b32 v12, v3", flagchk, wait="s_waitcnt lgkmcnt(0)")
    if K1 < 16: colsum(K1, 16)
    HOLD = O('wdhold', 5); LATE = O('late', 3); NE = 11 - LATE
    A("""
    s_lshl_b32 s55, s72, 1
    s_add_u32 s55, s55, s99
    s_lshl_b32 s55, s55, 14
    s_lshl_b32 s56, s71, 12
    s_add_u32 s55, s55, s56
    s_lshl_b32 s56, s98, 3
    s_add_u32 s55, s55, s56
    s_lshl_b32 s56, s4, 18
    s_add_u32 s55, s55, s56
    s_add_u32 s95, s55, %d
    s_lshl_b32 s55, s4, 2
    s_add_u32 s55, s55, s71
    s_lshl_b32 s64, s55, 12
    s_add_u32 s64, s64, %d
    s_lshl_b32 s56, s55, 1
    s_add_u32 s57, s56, s98
    s_xor_b32 s56, s57, 1
    s_mul_i32 s68, s56, %d
    s_mul_i32 s69, s57, %d
    s_add_u32 s68, s68, %d
    s_add_u32 s69, s69, %d
    s_lshl_b32 s77, s55, 16
    s_lshl_b32 s56, s98, 12
    s_add_u32 s77, s77, s56
    s_lshl_b32 s56, s72, 7
    s_add_u32 s77, s77, s56
    s_lshl_b32 s56, s99, 6
    s_add_u32 s77, s77, s56
    s_lshl_b32 s67, s55, 8
    s_lshl_b32 s56, s98, 3
    s_add_u32 s67, s67, s56
    s_add_u32 s67, s67, %d
    s_mul_i32 s97, s3, 12288
    s_add_u32 s97, s97, 49152
    v_add_u32 v14, s97, v9
    s_lshl_b32 s56, s3, 3
    v_add_u32 v8, s56, v1
    v_cmp_lt_u32 vcc, 7, v1
    v_cndmask_b32 v8, v8, 31, vcc
    v_lshlrev_b32 v8, 7, v8
    """ % (HP, FH, HG, HG, HH, HH, R2))
    for i in range(11): A("s_min_u32 %s, %s, %d" % (s(20 + i), s(8 + i), 42 * 2048))
    for k in (1, 2, 3): A("s_xor_b32 s56, s3, %d\ns_mul_i32 s56, s56, 12288\ns_add_u32 %s, s56, %d" % (k, s(31 + k), L_RED3 + (k - 1) * 4096))
    def waitstep(k):
        chk = "v_cmp_gt_u32 vcc, %d, v12" % k
        A("ds_read_b32 v12, v3 offset:36\ns_waitcnt lgkmcnt(0)\n" + chk)
        retry("ws%d" % k, "s_sleep 1\nds_read_b32 v12, v3 offset:36", chk, wait="s_waitcnt lgkmcnt(0)")
    A(haddr(["v68", "v69", "v70"], "v71", ("v12", "v13")))
    A("v_mov_b32 v13, 1")
    fl = ["buffer_store_dwordx4 v[64:67], %s, %s, %s offen offset:%d %s" % (v(68 + ft), WS, "s90" if g else "s89", 1024 * ft, WT) for ft in range(3) for g in range(2)]
    fl.append("buffer_store_dwordx4 v[64:67], v71, %s, s91 offen %s" % (WS, WT))
    NP = O('np', 3)
    pieces = [(i, r) for i in range(NWD0, NWD0 + NP) for r in range(4)]
    P0 = O('p0', 1); PEND = O('pend', 13)
    nsteps = PEND - P0
    done_cs = False
    for k in range(P0, PEND):
        waitstep(k)
        if fl:
            VM(fl.pop(0), "fill")
            if len(fl) == 1: VM(fl.pop(0), "fill")
        elif not done_cs and k >= P0 + 7:
            hflag()
            A("""
    s_lshl_b32 s55, s3, 6
    s_add_u32 s55, s55, %d
    v_lshl_add_u32 v10, v2, 2, s55
    s_lshl_b32 s56, s99, 6
    s_add_u32 s56, s56, %d
    v_lshl_add_u32 v11, v2, 2, s56
    ds_write_b32 v10, v48
    ds_write_b32 v11, v52
    s_waitcnt lgkmcnt(0)
    s_mov_b64 exec, 1
    ds_add_u32 v3, v13 offset:4
    s_mov_b64 exec, -1
    """ % (L_CS, L_CS + 256))
            TSTAMP()
            done_cs = True
        want = (len(pieces) + (PEND - k) - 1) // (PEND - k) if (not fl or O('mix', 0)) else 0
        for _ in range(want):
            i, r = pieces.pop(0)
            if r == 0: A("s_lshl_b32 s94, %s, 4\ns_add_u32 s94, s94, s93" % s(8 + i))
            A("s_add_u32 m0, s92, %d" % (4096 * (i % 3) + 1024 * r))
            VM("buffer_load_dwordx4 v5, %s, s94 offen lds" % srd(S_WD), "wd%d" % i)
            if r < 3: A("s_add_u32 s94, s94, 0x2000")
    assert done_cs and not pieces
    TSTAMP()
    waitstep(PEND)
    VM("buffer_load_dword v10, v8, %s, s64 offen sc1" % WS, "fh")
    TSTAMP()
    nx = NWD0 + NP
    for i in range(NWD0, NE):
        wd_read(i)
        while nx < NE and nx <= i + 3: wd_issue(nx); nx += 1
    TSTAMP()
    A("s_waitcnt vmcnt(0)\nv_cmp_ne_u32 vcc, s84, v10")
    retry("fh", "buffer_load_dword v10, v8, %s, s64 offen sc1" % WS, "v_cmp_ne_u32 vcc, s84, v10")
    LB = O('lateb', 0)
    for i in range(NE, NE + LB): wd_issue(i)
    A("s_barrier")
    TSTAMP()
    for i in range(NE + LB, 11): wd_issue(i)
    def late_part():
        for i in range(NE, 11): wd_read(i)
        A("""
        v_lshrrev_b32 v5, 1, v2
        v_lshlrev_b32 v5, 13, v5
        v_and_b32 v12, 1, v2
        v_lshl_add_u32 v5, v12, 10, v5
        v_lshl_add_u32 v5, v4, 4, v5
        v_lshlrev_b32 v12, 4, v2
        v_subrev_u32 v10, 0xc000, v14
        v_add_u32 v6, s32, v9
        v_add_u32 v7, s33, v9
        v_add_u32 v8, s34, v9
        """)
    NR = 6
    HFR = lambda q, o, n: v(16 + 8 * (q % 3) + o, n)
    def acc3(grp, tm, e):
        t = 2 * (tm & 1) + e
        if grp == 1 and tm >= 2: return v(40 + 4 * t, 4)
        if tm < 2: return v(56 + 4 * t, 4)
        return v(40 + 4 * t, 4)
    def hdma_txt(q):
        grp, i = divmod(q, 11)
        return "s_add_u32 s96, %s, %s\ns_add_u32 m0, s97, %d\nbuffer_load_dwordx4 v9, %s, s96 offen sc1 lds\nbuffer_load_dwordx4 v9, %s, s96 offen offset:1024 sc1 lds" % (
            "s68" if grp == 0 else "s69", s(20 + i), 2048 * (q % NR), WS, WS)
    def hdma(q): A(hdma_txt(q)); vmq.extend(["h%d" % q] * 2)
    def hrd(q): return ["ds_read_b64 %s, %s offset:%d" % (HFR(q, 4 * e + 2 * aa, 2), "v14", 2048 * (q % NR) + 1024 * aa + 8 * e) for e in range(2) for aa in range(2)]
    def hchk(q): return "v_max_u32 v11, %s, %s\nv_cmp_eq_u32 vcc, -1, v11" % (HFR(q, 0, 1), HFR(q, 2, 1))
    def hretry(q):
        last = min(21, q + NR - 1) if O('hre', 1) else q
        if q == 0: last = O('nh0', 6) - 1
        n = 2 * (last - q) if q < 17 else 0
        retry("h%d" % q, "\n".join(hdma_txt(k) for k in range(q, last + 1)) + "\ns_waitcnt vmcnt(%d)\n" % n + "\n".join(hrd(q)), hchk(q), wait="s_waitcnt lgkmcnt(0)")
    NH0 = O('nh0', 6)
    for q in range(NH0): hdma(q)
    late_part()
    vmwait("h0"); A("\n".join(hrd(0))); A("s_waitcnt lgkmcnt(0)"); A(hchk(0)); hretry(0)
    TSTAMP()
    for q in range(NH0, NR): hdma(q)
    vmwait("h1"); A("\n".join(hrd(1)))
    for q in range(22):
        grp, i = divmod(q, 11)
        if q == 11:
            if O('psw', 1):
                for t in range(4): A("ds_write_b128 v7, %s offset:%d" % (v(40 + 4 * t, 4), 1024 * t))
            else:
                A("s_nop 7")
                for t in range(4): A("ds_write_b128 v8, %s offset:%d" % (v(56 + 4 * t, 4), 1024 * t))
                for t in range(4): A("ds_write_b128 v7, %s offset:%d" % (v(40 + 4 * t, 4), 1024 * t))
                A("s_waitcnt lgkmcnt(0)")
        rd = hrd(q + 2) if q + 2 < 22 else []
        if O('fine3', 0) and q % 2 == 0: TSTAMP()
        n = 0
        for tm in range(4):
            for e in range(2):
                sw = O('psw', 1) and q == 11
                if sw: A("s_waitcnt lgkmcnt(%d)" % (7 - n))
                A("%s %s, %s, %s, %s" % (MF, acc3(grp, tm, e), WDR(i, tm), HFR(q, 4 * e, 4), acc3(grp, tm, e) if i else "0"))
                if n == 0 and q + NR < 22: hdma(q + NR)
                if sw:
                    if n == 1: A(hchk(q + 1))
                    if n == 3: hretry(q + 1)
                    if n == 7:
                        vmwait("h%d" % (q + 2))
                        while rd: A(rd.pop(0))
                else:
                    if n == 1 and q < 21: A("s_waitcnt lgkmcnt(0)"); A(hchk(q + 1))
                    if n == 3 and q < 21: hretry(q + 1)
                    if n == 3 and rd: vmwait("h%d" % (q + 2))
                    if O('psw', 1) and q == 10:
                        if n == 3:
                            while rd: A(rd.pop(0))
                        if n >= 4: A("ds_write_b128 v8, %s offset:%d" % (v(56 + 4 * (n - 4), 4), 1024 * (n - 4)))
                    if n >= 3 and rd: A(rd.pop(0))
                if n == 2 and q == 17:
                    for j in range(4): A("buffer_load_dwordx2 %s, v9, %s, s95 offen offset:%d sc1" % (v(72 + 2 * j, 2), WS, 1024 * j))
                    A("buffer_load_dwordx2 v[80:81], v12, %s, s67 offen sc1" % WS); vmq.extend(["res"] * 5)
                n += 1
    if O('fine3', 0): TSTAMP()
    for t in range(4):
        A("ds_write_b128 v6, %s offset:%d" % (v(56 + 4 * t, 4), 1024 * t))
    A("s_waitcnt vmcnt(0)\nv_cmp_eq_u32 vcc, -1, v80")
    for j in range(4):
        for e in range(2):
            A("v_lshlrev_b32 %s, 16, %s\nv_and_b32 %s, s65, %s" % (v(88 + 8 * e + 2 * j), v(72 + 2 * j + e), v(89 + 8 * e + 2 * j), v(72 + 2 * j + e)))
    retry("r2", "buffer_load_dwordx2 v[80:81], v12, %s, s67 offen sc1" % WS, "v_cmp_eq_u32 vcc, -1, v80")
    if O('fine3', 0): TSTAMP()
    A("s_waitcnt lgkmcnt(0)\ns_barrier")
    TSTAMP()
    for sl in range(3):
        for t in range(4):
            A("ds_read_b128 %s, v10 offset:%d" % (v(112 + 16 * sl + 4 * t, 4), L_RED3 + 4096 * sl + 1024 * t))
    for sl in range(3):
        A("s_waitcnt lgkmcnt(%d)" % (8 - 4 * sl))
        for r in range(0, 16, 2):
            A("v_pk_add_f32 %s, %s, %s" % (v(40 + r, 2), v(40 + r, 2), v(112 + 16 * sl + r, 2)))
    for e in range(2):
        for mt in range(2):
            for j in (0, 2):
                d = v(40 + 8 * mt + 4 * e + j, 2)
                A("v_pk_fma_f32 %s, %s, v[80:81], %s op_sel:[0,%d,0] op_sel_hi:[1,%d,1]" % (d, d, v(88 + 8 * e + 4 * mt + j, 2), e, e))
        for mt in range(2):
            for j in (0, 2):
                A("v_cvt_pk_bf16_f32 %s, %s, %s" % (v(16 + 4 * e + 2 * mt + j // 2), v(40 + 8 * mt + 4 * e + j), v(41 + 8 * mt + 4 * e + j)))
        A("buffer_store_dwordx4 %s, v5, %s, s77 offen offset:%d %s" % (v(16 + 4 * e, 4), srd(S_OUT), 2048 * e, {0: "", 1: "sc0 sc1", 2: "nt"}[O('outf', 0)]))
    A("""
    s_or_b32 s55, s2, s3
    s_cmp_lg_u32 s55, 0
    s_cselect_b32 s55, %s, 0
    v_mov_b32 v14, s84
    s_mov_b64 exec, 1
    buffer_store_dword v14, v9, %s, s55 offen
    s_mov_b64 exec, -1
    """ % (OOB, WS))
    if O('spinto', 0):
        A("s_cmp_lg_u32 s2, %d\ns_cbranch_scc1 L_nospin" % O('spinwg', 0))
        if O('spinsel', -1) >= 0: A("v_readlane_b32 s96, v15, %d\ns_nop 3\ns_lshr_b32 s96, s96, 1\ns_add_u32 s96, s96, %d" % (O('spinsel', 0), O('spinto', 0)))
        else: A("s_mov_b32 s96, %d" % O('spinto', 0))
        A("L_spin:\ns_memrealtime s[80:81]\ns_waitcnt lgkmcnt(0)\ns_sub_u32 s80, s80, s82\ns_cmp_lt_u32 s80, s96\ns_cbranch_scc1 L_spin\nL_nospin:")
    dump(TS + 0x10000)
    A.label("L_end")
    A("s_endpgm")
    for st_ in stubs:
        A("s_nop 7")
        A(st_)
    A.raw(""".section .rodata,"a"
.p2align 6
.amdhsa_kernel %s_kernel
  .amdhsa_next_free_vgpr 256
  .amdhsa_next_free_sgpr 102
  .amdhsa_accum_offset 184
  .amdhsa_group_segment_fixed_size 0
  .amdhsa_kernarg_size 104
  .amdhsa_user_sgpr_count 2
  .amdhsa_user_sgpr_kernarg_segment_ptr 1
  .amdhsa_system_sgpr_workgroup_id_x 1
  .amdhsa_float_denorm_mode_32 3
.end_amdhsa_kernel""" % NAME)
    return A.text()

def parse(args):
    kw = {}; opt = {}
    for x in args:
        k, val = x.split("=")
        if k in ("RBX", "ROT"): kw[k] = int(val)
        elif k in ("NT",): kw[k] = val
        else: opt[k] = int(val)
    return kw, opt

if __name__ == "__main__":
    out = sys.argv[1] if len(sys.argv) > 1 else "cdna_kernels/%s.s" % NAME
    stamp = len(sys.argv) > 2 and sys.argv[2] == "stamp"
    kw, opt = parse(sys.argv[3:])
    open(out, "w").write(gen(stamp, opt=opt, **kw))
    print("wrote", out)
```

```python
import sys
from asm import Asm, v, a, s

NAME = "sequential_preLN__ssm_conv_h3__glu_gated_reglu__prompt"
EP = 0x0; R2 = 0x8000; TS = 0x10000; ST = 0x80000; STR = 0x8100; FU = 0x50000; FH = 0x60000
UP = 0x100000; QP = 0x300000; QSTR = 33024; HP = 0x700000; HH = 0xB00000
WS_BYTES = 0x1400000
HG = 88064
L_WU = 49152
L_KC = 98304; KC_STR = 4640
L_U = L_KC + 8 * KC_STR; U_STR = 4224
L_CS = L_U + 4 * U_STR
L_FLG = L_CS + 384
L_TA = L_FLG + 128
LDS_BYTES = L_TA + 8192
L_TB = L_WU + 40960
L_REDA = L_KC; L_REDB = L_KC + 16384
L_SG = L_KC
L_RED3 = 0
S_K, S_V, S_Q, S_SK, S_SSM, S_WG, S_WU, S_WD, S_OUT, S_WS, S_T = 8, 12, 16, 20, 24, 28, 32, 36, 40, 44, 48
sDP = 52; sD = 54; sPC = 74
BUDGET = 200000
WS = s(S_WS, 4)
MF = "v_mfma_f32_16x16x32_bf16"
OOB = "0x40000000"
WT = "sc0 sc1"
def srd(i): return s(i, 4)
def lines(t): return [x.strip() for x in t.strip().split("\n") if x.strip()]

def gen(stamp=False, RBX=4, ROT=0, NT="nt", opt=None):
    opt = opt or {}
    O = lambda k, d: opt.get(k, d)
    A = Asm()
    stubs = []
    nst = [0]
    vmq = []
    def TSTAMP():
        if stamp:
            A("s_memtime s[80:81]\ns_waitcnt lgkmcnt(0)\ns_sub_u32 s80, s80, s78\nv_writelane_b32 v15, s80, %d" % nst[0]); nst[0] += 1
    def dump(off):
        if stamp:
            A("s_waitcnt vmcnt(0)"); TSTAMP()
            A("s_cmp_lg_u32 s3, 0\ns_cbranch_scc1 L_end")
            A("s_memrealtime s[80:81]\ns_waitcnt lgkmcnt(0)\nv_writelane_b32 v15, s80, 62\nv_writelane_b32 v15, s82, 63\nv_writelane_b32 v15, s85, 61")
            A("s_lshl_b32 s55, s2, 8\ns_add_u32 s55, s55, %d\nv_lshlrev_b32 v14, 2, v1\nbuffer_store_dword v15, v14, %s, s55 offen" % (off, WS))
    def VM(txt, tag):
        A(txt); vmq.append(tag)
    def vmwait(tag, extra=""):
        tags = tag if isinstance(tag, tuple) else (tag,)
        idx = max(i for i, t in enumerate(vmq) if t in tags)
        A("s_waitcnt vmcnt(%d)%s" % (min(63, len(vmq) - 1 - idx), extra))
    def retry(name, reload_txt, chk_txt, wait="s_waitcnt vmcnt(0)"):
        A("s_cbranch_vccnz L_r%s" % name); A.label("L_o%s" % name)
        stubs.append("L_r%s:\ns_sub_u32 s85, s85, 1\ns_cbranch_scc1 L_x%s\n%s\n%s\n%s\ns_cbranch_vccnz L_r%s\ns_branch L_o%s\nL_x%s:\ns_mov_b32 s85, 0\ns_branch L_o%s"
                     % (name, name, reload_txt, wait, chk_txt, name, name, name, name))
    A.raw(open('cdna_kernels/%s.s.ref' % NAME).read().split('; @launch grid')[0].rstrip('\n'))
    A.raw("; @launch grid=(256,1,1) block=(512,1,1) lds=%d" % LDS_BYTES)
    A.raw('.amdgcn_target "amdgcn-amd-amdhsa--gfx950"\n.text\n.globl %s_kernel\n.p2align 8\n.type %s_kernel,@function\n%s_kernel:' % (NAME, NAME, NAME))
    LRB = {1: 0, 2: 1, 4: 2, 8: 3}[RBX]

    A("s_load_dwordx8 s[8:15], s[0:1], 0\ns_load_dwordx4 s[16:19], s[0:1], 32\ns_load_dwordx2 %s, s[0:1], 96" % s(S_WS, 2))
    if stamp: A("s_memtime s[78:79]\ns_memrealtime s[82:83]\nv_mov_b32 v15, 0"); nst[0] += 1
    A("s_cmp_ge_u32 s2, 256\ns_cbranch_scc1 L_end")
    if O('perm', 0):
        A("s_lshr_b32 s4, s2, 3\ns_add_u32 s4, s4, s2\ns_and_b32 s4, s4, 7\ns_and_b32 s2, s2, 0xf8\ns_or_b32 s2, s2, s4")
    A("s_getpc_b64 %s" % s(sPC, 2))
    A.label("L_pc")
    cpf = "s_lshl_b32 s55, s5, 11\nv_lshl_add_u32 v10, v0, 2, s55\nv_min_u32 v10, L_codeend-L_pc-4, v10\ns_mov_b32 exec_lo, 1\ns_mov_b32 exec_hi, 1\nglobal_load_dword v11, v10, %s\ns_mov_b64 exec, -1" % s(sPC, 2)
    cpf2 = "s_lshl_b32 s55, s5, 11\nv_and_b32 v10, 0xff, v0\nv_lshl_add_u32 v10, v10, 3, s55\nv_min_u32 v10, L_codeend-L_pc-4, v10\ns_mov_b32 exec_lo, 0x10001\ns_mov_b32 exec_hi, 0x10001\nglobal_load_dword v11, v10, %s\ns_mov_b64 exec, -1" % s(sPC, 2)
    A("""
    s_lshr_b32 s5, s2, 3
    s_and_b32 s4, s2, 7
    v_readfirstlane_b32 s6, v0
    CPF1
    s_lshl_b32 s55, s5, 16
    s_lshl_b32 s56, s4, 7
    s_add_u32 s55, s55, s56
    s_cmp_ge_u32 s6, 256
    s_cbranch_scc1 L_B0
    v_and_b32 v5, 0x38, v0
    v_lshlrev_b32 v5, 9, v5
    v_and_b32 v10, 7, v0
    v_lshl_add_u32 v5, v10, 3, v5
    v_and_b32 v6, 0x80, v0
    v_lshl_add_u32 v5, v6, 8, v5
    v_and_b32 v7, 64, v0
    v_add3_u32 v5, v5, v7, s55
    v_max_u32 v6, 0xc00, v5
    s_waitcnt lgkmcnt(0)
    """.replace("CPF1", cpf if O('cpf', 2) == 1 else ""))
    for j in range(4): VM("global_load_dwordx2 %s, v5, s[10:11] offset:%d %s" % (v(22 + 2 * j, 2), 1024 * j, NT), "k")
    for i in range(3): VM("global_load_dwordx2 %s, v6, s[10:11] offset:%d %s" % (v(16 + 2 * i, 2), 1024 * i - 3072, NT), "k")
    A("s_lshl_b32 s56, s4, 9\nv_lshl_add_u32 v10, v10, 5, s56\nv_lshl_add_u32 v10, v7, 2, v10")
    VM("global_load_dwordx4 v[48:51], v10, s[14:15]", "k")
    VM("global_load_dwordx4 v[52:55], v10, s[14:15] offset:16", "k")
    for j in range(4): VM("global_load_dwordx2 %s, v5, s[12:13] offset:%d %s" % (v(30 + 2 * j, 2), 1024 * j, NT), "v")
    A("s_barrier\ns_branch L_A")
    common = """
    v_and_b32 v1, 63, v0
    v_and_b32 v2, 15, v0
    v_lshrrev_b32 v4, 4, v1
    v_lshlrev_b32 v9, 4, v1
    s_bfe_u32 s3, s6, 0x20006
    s_lshl_b32 s66, s4, 5
    s_add_u32 s66, s66, s5
    s_and_b32 s99, s3, 1
    s_lshr_b32 s98, s3, 1
    """
    common2 = "s_mov_b32 s85, %d\ns_mov_b32 s65, 0xffff0000\ns_mov_b32 %s, %d\ns_mov_b32 %s, 0x20000" % (BUDGET, s(S_WS + 2), WS_BYTES, s(S_WS + 3))
    A.label("L_B0")
    A(common)
    A("""
    v_mov_b32 v40, 0
    v_mov_b32 v41, 0
    v_mov_b32 v42, 0
    v_mov_b32 v43, 0
    v_and_b32 v12, 3, v1
    v_lshlrev_b32 v12, 4, v12
    v_add_u32 v12, %d, v12
    ds_write_b128 v12, v[40:43]
    s_lshl_b32 s57, s2, 13
    s_lshl_b32 s56, s99, 12
    s_add_u32 s57, s57, s56
    s_lshl_b32 s56, s98, 10
    s_add_u32 s57, s57, s56
    s_lshl_b32 s61, s66, 13
    s_lshl_b32 s56, s3, 11
    s_add_u32 s61, s61, s56
    v_add_u32 v5, s57, v9
    v_add_u32 v6, s61, v9
    s_waitcnt lgkmcnt(0)
    s_barrier
    CPF2
    global_load_dwordx4 v[32:35], v5, s[8:9] NT
    global_load_dwordx4 v[36:39], v5, s[8:9] offset:2048 NT
    global_load_dwordx4 v[24:27], v6, s[16:17] NT
    global_load_dwordx4 v[28:31], v6, s[16:17] offset:1024 NT
    s_branch L_B
    """.replace("NT", NT).replace("CPF2", cpf2 if O('cpf', 2) == 2 else "") % L_FLG)
    ids = """
    s_lshr_b32 s55, s4, %d
    s_lshl_b32 s55, s55, %d
    s_and_b32 s60, s5, %d
    s_add_u32 s86, s55, s60
    s_and_b32 s55, s4, %d
    s_mul_i32 s55, s55, %d
    s_lshr_b32 s56, s5, %d
    s_add_u32 s87, s55, s56
    s_mul_i32 s88, s56, %d
    s_mul_i32 s60, s60, %d
    s_add_u32 s88, s88, s60
    s_and_b32 s88, s88, 15
    """ % (LRB, LRB, RBX - 1, RBX - 1, 32 // RBX, LRB, ROT, O('rot2', 16 // RBX))
    def haddr(hv, r2v, tmp):
        return """
        s_lshl_b32 s55, s86, 2
        s_add_u32 s55, s55, s3
        s_mul_i32 s55, s55, %d
        s_mul_i32 s56, s87, 2816
        s_add_u32 s55, s55, s56
        s_add_u32 s89, s55, %d
        s_add_u32 s90, s89, %d
        v_mov_b32 T0, %s
        v_cmp_eq_u32 vcc, 3, v4
        v_cndmask_b32 T1, v9, T0, vcc
        s_cmp_eq_u32 s87, 31
        s_cselect_b64 vcc, -1, 0
        v_cndmask_b32 %s, v9, T1, vcc
        v_cndmask_b32 %s, v9, T0, vcc
        v_cndmask_b32 %s, T1, T0, vcc
        v_lshrrev_b32 T1, 2, v2
        v_lshlrev_b32 %s, 4, v2
        v_cmp_eq_u32 vcc, T1, v4
        v_cndmask_b32 %s, T0, %s, vcc
        s_lshl_b32 s55, s86, 10
        s_lshl_b32 s56, s3, 8
        s_add_u32 s55, s55, s56
        s_add_u32 s55, s55, %d
        s_cmp_eq_u32 s87, 31
        s_cselect_b32 s91, s55, %s
        """.replace("T0", tmp[0]).replace("T1", tmp[1]) % (2 * HG, HH, HG, OOB, hv[0], hv[1], hv[2], r2v, r2v, r2v, R2, OOB)
    def xpose_addr(wr, rd, gv, base):
        return """
        v_and_b32 RD, 7, v2
        v_xor_b32 WR, v4, RD
        v_lshl_add_u32 WR, v2, 3, 0
        v_or_b32 WR, WR, v4
        v_xor_b32 WR, WR, RD
        v_lshlrev_b32 WR, 4, WR
        s_lshl_b32 s55, s3, 11
        s_add_u32 s55, s55, %d
        v_add_u32 WR, s55, WR
        v_lshrrev_b32 RD, 3, v1
        v_xor_b32 RD, RD, v1
        v_lshlrev_b32 RD, 4, RD
        v_add_u32 RD, s55, RD
        v_lshrrev_b32 GV, 2, v1
        v_lshlrev_b32 GV, 13, GV
        v_and_b32 v14, 3, v1
        v_lshl_add_u32 GV, v14, 4, GV
        """.replace("WR", wr).replace("RD", rd).replace("GV", gv) % base

    A.label("L_A")
    A(common); A(common2)
    A("s_movk_i32 s55, 0x1000\nv_cmp_gt_u32 s[20:21], s55, v5")
    A("""
    v_and_b32 v133, 7, v1
    v_lshrrev_b32 v134, 3, v1
    v_xor_b32 v132, v134, v133
    v_lshl_add_u32 v132, v133, 4, v132
    v_lshlrev_b32 v132, 4, v132
    s_lshl_b32 s55, s3, 11
    s_add_u32 s55, s55, %d
    v_add_u32 v132, s55, v132
    v_lshlrev_b32 v134, 13, v134
    v_lshl_add_u32 v134, v133, 4, v134
    v_xor_b32 v133, v1, v4
    v_lshlrev_b32 v133, 4, v133
    v_add_u32 v133, s55, v133
    v_xor_b32 v136, 64, v133
    """ % L_TA)
    HV = ["v176", "v177", "v178"]
    A("""
    s_lshl_b32 s55, s4, 18
    s_lshl_b32 s56, s5, 8
    s_add_u32 s55, s55, s56
    s_lshl_b32 s56, s98, 7
    s_add_u32 s55, s55, s56
    s_lshl_b32 s56, s99, 17
    s_add_u32 s55, s55, s56
    s_add_u32 s95, s55, %d
    s_add_u32 s97, s95, 0x10000
    """ % UP)
    if O('pw', 1):
        A("""
        s_lshl_b32 s55, s66, 7
        s_add_u32 s55, s55, %d
        s_cmp_lg_u32 s3, 0
        s_cselect_b32 s55, %s, s55
        v_mov_b32 v140, 0
        v_mov_b32 v141, 0
        v_mov_b32 v142, 0
        v_mov_b32 v143, 0
        s_mov_b64 exec, 0xff
        """ % (FU, OOB))
        VM("buffer_store_dwordx4 v[140:143], v9, %s, s55 offen %s" % (WS, WT), "pw")
        A("s_mov_b64 exec, -1")
    TSTAMP()
    vmwait("k")
    TSTAMP()
    for r in range(16, 22): A("v_cndmask_b32 %s, %s, 0, s[20:21]" % (v(r), v(r)))
    for c in range(4):
        for tap in range(4):
            src = 48 + 2 * c + (tap >> 1); dst = 64 + 4 * tap + c
            A(("v_lshlrev_b32 %s, 16, %s" if tap % 2 == 0 else "v_and_b32 %s, s65, %s") % (v(dst), v(src)))
    for i in range(7):
        for e in range(2):
            src = 16 + 2 * i + e; dst = 80 + 4 * i + 2 * e
            A("v_lshlrev_b32 %s, 16, %s\nv_and_b32 %s, s65, %s" % (v(dst), v(src), v(dst + 1), v(src)))
    for tap in range(4):
        for j in range(4):
            for e in range(2):
                d = v(144 + 4 * j + 2 * e, 2); kk = v(80 + 4 * (j + 3 - tap) + 2 * e, 2); ww = v(64 + 4 * tap + 2 * e, 2)
                if tap == 0: A("v_pk_mul_f32 %s, %s, %s" % (d, kk, ww))
                else: A("v_pk_fma_f32 %s, %s, %s, %s" % (d, kk, ww, d))
    vmwait("v")
    for j in range(4):
        for e in range(2):
            src = 30 + 2 * j + e; dst = 108 + 4 * j + 2 * e
            A("v_lshlrev_b32 %s, 16, %s\nv_and_b32 %s, s65, %s" % (v(dst), v(src), v(dst + 1), v(src)))
    for j in range(4):
        for e in range(2):
            d = 144 + 4 * j + 2 * e
            A("v_pk_mul_f32 %s, %s, %s" % (v(d, 2), v(d, 2), v(108 + 4 * j + 2 * e, 2)))
    for e in range(2):
        for j in range(4):
            d = 144 + 4 * j + 2 * e
            A("v_cvt_pk_bf16_f32 %s, %s, %s" % (v(124 + 4 * e + j), v(d), v(d + 1)))
        A("ds_write_b128 v132, %s offset:%d" % (v(124 + 4 * e, 4), 128 * e))
    A("ds_read_b128 v[16:19], v133\nds_read_b128 v[20:23], v136 offset:1024")
    A("s_waitcnt lgkmcnt(1)")
    A("buffer_store_dwordx4 v[16:19], v134, %s, s95 offen %s" % (WS, WT))
    A("s_waitcnt lgkmcnt(0)")
    A("buffer_store_dwordx4 v[20:23], v134, %s, s97 offen %s" % (WS, WT))
    TSTAMP()
    A("s_load_dword s84, %s, 0" % s(S_WS, 2))
    A(ids)
    A(haddr(HV, "v179", ("v12", "v13")))
    A("""
    s_lshl_b32 s67, s66, 13
    s_lshl_b32 s56, s3, 11
    s_add_u32 s67, s67, s56
    s_add_u32 s67, s67, %d
    s_sub_u32 s59, s67, 4
    s_lshl_b32 s62, s66, 7
    s_add_u32 s62, s62, FUADDR
    s_lshl_b32 s63, s4, 12
    s_add_u32 s63, s63, FUADDR
    s_lshl_b32 s56, s3, 3
    s_sub_u32 s56, s56, 1
    v_add_u32 v8, s56, v1
    v_max_i32 v8, 0, v8
    v_lshlrev_b32 v8, 7, v8
    v_mov_b32 v3, FLGADDR
    s_lshl_b32 s56, s3, 7
    v_xor_b32 v7, 1, v1
    v_add_u32 v7, s56, v7
    v_lshlrev_b32 v7, 3, v7
    v_add_u32 v7, %d, v7
    v_cmp_eq_u32 s[100:101], 0, v0
    s_mov_b32 s64, 0x05040100
    s_mov_b32 s71, 0x07060302
    v_and_b32 v180, 3, v2
    s_movk_i32 s55, %d
    v_mul_lo_u32 v180, v180, s55
    v_lshrrev_b32 v14, 2, v2
    v_lshl_add_u32 v180, v14, 7, v180
    v_lshl_add_u32 v180, v4, 4, v180
    s_mul_i32 s56, s98, %d
    s_lshl_b32 s57, s99, 8
    s_add_u32 s56, s56, s57
    s_add_u32 s56, s56, %d
    v_add_u32 v180, s56, v180
    v_and_b32 v181, 1, v2
    s_movk_i32 s55, %d
    v_mul_lo_u32 v181, v181, s55
    v_lshrrev_b32 v14, 1, v2
    v_lshl_add_u32 v181, v14, 4, v181
    v_lshlrev_b32 v14, 4, v4
    v_sub_u32 v181, v181, v14
    s_mul_i32 s56, s98, %d
    s_sub_u32 s56, s56, s57
    s_add_u32 s56, s56, %d
    v_add_u32 v181, s56, v181
    s_mul_i32 s56, s98, %d
    s_lshl_b32 s57, s99, 13
    s_add_u32 s56, s56, s57
    s_add_u32 s56, s56, %d
    v_add_u32 v182, s56, v9
    """.replace("FUADDR", str(FU)).replace("FLGADDR", str(L_FLG)) % (UP, L_U + 8 * 16, KC_STR, 4 * KC_STR, L_KC + 7 * 16,
           U_STR, 2 * U_STR, L_U + 20 * 16, L_REDB - L_REDA, L_REDA))
    A("s_waitcnt lgkmcnt(0)\ns_add_u32 s84, s84, 1\ns_or_b32 s84, s84, 0x80000000")
    A("v_mov_b32 v24, s84\nv_mov_b32 v25, s84\nv_mov_b32 v26, s84\nv_mov_b32 v27, s84\nv_mov_b32 v14, 1")
    A("""
    s_mov_b64 exec, 1
    s_waitcnt vmcnt(0)
    ds_add_rtn_u32 v14, v3, v14 offset:12
    s_waitcnt lgkmcnt(0)
    v_readfirstlane_b32 s55, v14
    s_mov_b64 exec, 0xff
    s_cmp_lg_u32 s55, 3
    s_cselect_b32 s62, %s, s62
    buffer_store_dwordx4 v[24:27], v9, %s, s62 offen %s
    s_mov_b64 exec, 0x1ff
    """ % (OOB, WS, WT)); vmq.clear()
    TSTAMP()
    if O('fudelay', 0): A("s_sleep %d" % O('fudelay', 0))
    fu_txt = "buffer_load_dword v14, v8, %s, s63 offen sc1" % WS
    fu_chk = "v_cmp_ne_u32 vcc, s84, v14"
    A(fu_txt + "\ns_waitcnt vmcnt(0)\n" + fu_chk)
    retry("up", fu_txt, fu_chk)
    A("s_mov_b64 exec, -1")
    TSTAMP()
    UL = "sc1" if O('upsc', 0) else ""
    A("""buffer_load_dwordx4 v[32:35], v9, WS, s67 offen UL
    buffer_load_dwordx4 v[40:43], v9, WS, s67 offen offset:1024 UL
    buffer_load_dword v36, v9, WS, s59 offen UL
    buffer_load_dword v44, v9, WS, s59 offen offset:1024 UL
    v_mov_b32 v14, 1
    s_mov_b64 exec, 1
    ds_add_u32 v3, v14 offset:24
    s_mov_b64 exec, -1
    s_waitcnt vmcnt(0)""".replace("WS", WS).replace("UL", UL))
    TSTAMP()
    A("v_cndmask_b32 v36, v36, 0, s[100:101]")
    for h in range(2):
        b = 32 + 8 * h
        W_ = lambda i: v(b + 4) if i < 0 else v(b + i)
        for c in range(2):
            for pi in range(2):
                o = 64 + 8 * h + 2 * (2 * c + pi)
                for jj in range(2):
                    lo = 2 + pi - 2 * jj; hi = lo - 1
                    A("v_perm_b32 %s, %s, %s, %s" % (v(o + jj), W_(hi), W_(lo), "s64" if c == 0 else "s71"))
                A("ds_write_b64 v7, %s offset:%d" % (v(o, 2), (2 * c + pi) * U_STR + 512 * h))
    A("v_mov_b32 v14, 1\ns_mov_b64 exec, 1\nds_add_u32 v3, v14 offset:40\ns_mov_b64 exec, -1\nds_read_b32 v12, v3 offset:40\ns_waitcnt lgkmcnt(0)\nv_cmp_ne_u32 vcc, 8, v12")
    retry("b4a", "ds_read_b32 v12, v3 offset:40", "v_cmp_ne_u32 vcc, 8, v12", wait="s_waitcnt lgkmcnt(0)")
    TSTAMP()
    BF = lambda buf, ct: v(16 + 32 * buf + 4 * ct, 4)
    ACC = lambda t: v(80 + 4 * t, 4)
    KF = lambda ph, g: a(32 * (ph & 1) + 4 * g, 4)
    bread = lambda ph, ct: "ds_read_b128 %s, v181 offset:%d" % (BF(ph & 1, ct), 512 * ct + 64 * (3 - ph))
    kread = lambda ph, g: "ds_read_b128 %s, v180 offset:%d" % (KF(ph, g), 512 * g + 64 * ph)
    for i in range(7): A(kread(0, i)); A(bread(0, i))
    p2pre = lines("""v_lshrrev_b32 v5, 2, v1
    v_mul_u32_u24 v5, 96, v5
    v_and_b32 v14, 3, v1
    v_lshl_add_u32 v5, v14, 3, v5
    v_add_u32 v6, %d, v5
    s_lshl_b32 s55, s3, 12
    v_add_u32 v7, s55, v9
    s_lshl_b32 s67, s86, 18
    s_add_u32 s67, s67, %d
    v_lshlrev_b32 v8, 4, v4
    v_add_u32 v8, %d, v8
    v_mov_b32 v3, %d
    v_lshlrev_b32 v10, 2, v2
    v_add_u32 v10, 0xc0, v10""" % (L_WU, HP, L_CS, L_FLG))
    touched = set(); issued = 14
    for ph in range(4):
        if ph in (0, 3): order = [(t - ct, ct) for t in range(8) for ct in range(t + 1)]
        else: order = [(g, ct) for ct in range(8) for g in range(8 - ct)]
        nxt = [x for i in range(8) for x in (kread(ph + 1, i), bread(ph + 1, i))] if ph < 3 else []
        for idx, (g, ct) in enumerate(order):
            t = g + ct
            if ph == 0 and ct == 0:
                need = 2 * (t + 1)
                if t < 7 or True: A("s_waitcnt lgkmcnt(%d)" % min(15, issued - need))
            if ph > 0 and idx == 0: A("s_waitcnt lgkmcnt(0)")
            if 36 * ph + idx == O('lpi', 40): A("v_mov_b32 v14, 1\nds_write_b32 v3, v14 offset:32")
            if ph == 3 and idx == 0: A("v_mov_b32 v14, 1\ns_mov_b64 exec, 1\nds_add_u32 v3, v14 offset:16\ns_mov_b64 exec, -1")
            A("%s %s, %s, %s, %s" % (MF, ACC(t), KF(ph, g), BF(ph & 1, ct), ACC(t) if t in touched else "0"))
            touched.add(t)
            if ph == 3 and idx == 6: A("ds_read_b32 v12, v3 offset:16")
            if ph == 3 and idx == 12: A("s_waitcnt lgkmcnt(0)\nv_cmp_ne_u32 vcc, 4, v12")
            if ph == 3 and idx == 14: retry("kc", "ds_read_b32 v12, v3 offset:16", "v_cmp_ne_u32 vcc, 4, v12", wait="s_waitcnt lgkmcnt(0)")
            if ph == 3 and idx in (15, 17, 19, 21): A("ds_write_b128 v182, %s offset:%d" % (ACC((idx - 15) // 2), 1024 * ((idx - 15) // 2)))
            if ph == 0 and idx == 1: A(kread(0, 7)); A(bread(0, 7)); issued += 2
            if idx >= 16 and nxt:
                A(nxt.pop(0))
                if ph == 0: issued += 1
            if ph == 1 and p2pre: A(p2pre.pop(0))
            if ph == 3 and idx in (23, 28): A("ds_write_b128 v182, %s offset:%d" % (ACC(4 if idx == 23 else 5), 1024 * (4 if idx == 23 else 5)))
        assert not nxt
    A("ds_write_b128 v182, %s offset:%d" % (ACC(6), 1024 * 6))
    A("ds_write_b128 v182, %s offset:%d" % (ACC(7), 1024 * 7))
    A("s_waitcnt lgkmcnt(0)")
    TSTAMP()
    A("s_barrier")
    TSTAMP()
    A("s_barrier")
    TSTAMP()
    XS = lambda st: 16 + 16 * (st & 3)
    AC = lambda arr, ft, tau: v(80 + 48 * arr + 16 * ft + 4 * tau, 4)
    WF = lambda st, arr, ft: 24 * (st & 1) + 12 * arr + 4 * ft
    def xaddr(st): return ["s_add_u32 s55, s88, %d" % st, "s_and_b32 s55, s55, 15", "s_lshl_b32 s55, s55, 14", "s_add_u32 s96, s55, s67"]
    def xlds(st): return ["buffer_load_dwordx4 %s, v7, %s, s96 offen offset:%d sc1" % (v(XS(st) + 4 * j, 4), WS, 1024 * j) for j in range(4)]
    def xload_txt(st): return "\n".join(xaddr(st) + xlds(st)).replace("s96", "s97")
    def xload(st):
        A("\n".join(xaddr(st) + xlds(st))); vmq.extend(["x%d" % st] * 4)
    def xchk(st):
        b = XS(st)
        return ["v_max3_u32 v11, %s, %s, %s" % (v(b), v(b + 4), v(b + 8)), "v_max_u32 v11, v11, %s" % v(b + 12), "v_cmp_eq_u32 vcc, -1, v11"]
    def wreads(st):
        return ["ds_read_b64_tr_b16 %s, %s offset:%d" % (a(WF(st, arr, ft) + 2 * h, 2), "v6" if arr else "v5", st * 3072 + h * 1536 + ft * 32)
                for arr in range(2) for ft in range(3) for h in range(2)]
    def swaps(st):
        b = XS(st)
        return ["v_swap_b32 %s, %s" % (v(b + 4 * j + t), v(b + 4 * t + j)) for j in range(4) for t in range(j + 1, 4)]
    if O('xdelay', 0): A("s_sleep %d" % O('xdelay', 0))
    if O('x3', 0):
        xload(0); xload(1); xload(2)
        for r in wreads(0): A(r)
        vmwait("x0")
        for r in xchk(0): A(r)
        retry("xP", "\n".join(xload_txt(i) for i in range(3)), "\n".join(xchk(0)), wait="s_waitcnt vmcnt(8)")
        TSTAMP()
    else:
        xload(0)
        for r in wreads(0): A(r)
        vmwait("x0")
        for r in xchk(0): A(r)
        if O('xr3', 0):
            A("s_cbranch_vccnz L_rxP")
            xload(1); xload(2)
            A.label("L_oxP")
            stubs.append("L_rxP:\n%s\ns_waitcnt vmcnt(8)\n%s\ns_cbranch_vccz L_oxP\ns_sub_u32 s85, s85, 1\ns_cbranch_scc0 L_rxP\ns_mov_b32 s85, 0\ns_branch L_oxP"
                         % ("\n".join(xload_txt(i) for i in range(3)), "\n".join(xchk(0))))
            TSTAMP()
        else:
            retry("xP", xload_txt(0), "\n".join(xchk(0)))
            TSTAMP()
            xload(1); xload(2)
    for r in swaps(0): A(r)
    A("s_cmp_eq_u32 s87, 31\ns_cbranch_scc1 L_p2alt")
    def flagrd(k): return "ds_read_b32 v12, v3 offset:%d" % (4 * k)
    flagchk = "v_cmp_ne_u32 vcc, 4, v12"
    def p2loop(alt):
        for st in range(16):
            ml = []
            for arr in range(2):
                for ft in range(3):
                    for tau in range(4):
                        xf = v(XS(st) + 4 * tau, 4)
                        wf = a(WF(st, arr, ft), 4)
                        if alt and arr == 1 and ft == 2: wf = xf
                        ml.append("%s %s, %s, %s, %s" % (MF, AC(arr, ft, tau), wf, xf, AC(arr, ft, tau) if st else "0"))
            wr = wreads(st + 1) if st < 15 else ["ds_read_b128 %s, v8 offset:%d" % (v(40 + 4 * t, 4), 64 * t) for t in range(6)]
            if st in (8, 14): wr = wr + [flagrd(0 if st == 8 else 1)]
            sw = swaps(st + 1) if st < 15 else []
            ck = xchk(st + 1) if st < 15 else []
            xa = xaddr(st + 3) if st + 3 < 16 else []
            xl = xlds(st + 3) if st + 3 < 16 else []
            tg = "b" if alt else "a"
            if O('fine2', 0) and st > 0:
                if alt and st == 1: nst[0] -= 15
                TSTAMP()
            A("s_waitcnt lgkmcnt(0)")
            for i, m in enumerate(ml):
                if i == 0 and st in (9, 15): A(flagchk)
                A(m)
                if i == 1 and st in (9, 15): retry("f%s%d" % (tg, st), flagrd(0 if st == 9 else 1), flagchk, wait="s_waitcnt lgkmcnt(0)")
                if i < 2 and xa: A(xa.pop(0)); A(xa.pop(0))
                if i >= 2 and wr: A(wr.pop(0))
                if i in (2, 4, 6, 8) and xl: VM(xl.pop(0).replace(" sc1", "" if O('xplain', 0) else " sc1"), "x%d" % (st + 3))
                if st <= 12 and i == 9: A("v_mov_b32 v13, %d" % (st + 1))
                if st <= 12 and i == 15: A("ds_write_b32 v3, v13 offset:36")
                if i == 12 and sw: vmwait("x%d" % (st + 1))
                if i >= 12 and ck: A(ck.pop(0))
                if i == 16 and sw: retry("x%s%d" % (tg, st + 1), xload_txt(st + 1), "\n".join(xchk(st + 1)))
                if i >= 16 and sw: A(sw.pop(0))
            assert not wr and not sw and not xl
    sv = list(vmq)
    p2loop(False)
    A("s_branch L_p2join")
    A.label("L_p2alt")
    vmq[:] = sv
    p2loop(True)
    A.label("L_p2join")
    TSTAMP()
    A("s_nop 3")
    for tau in range(4):
        A("ds_bpermute_b32 %s, v10, %s" % (v(64 + 2 * tau), v(80 + 32 + 4 * tau)))
    A("s_mov_b32 s57, 0xbb000000\ns_waitcnt lgkmcnt(0)")
    for tau in range(4): A("v_mul_f32 %s, s57, %s" % (v(64 + 2 * tau), v(64 + 2 * tau)))
    A("s_cmp_lg_u32 s87, 31\ns_cbranch_scc1 L_novar")
    A("v_and_b32 v10, 3, v2")
    for tau in range(4): A("v_mov_b32 %s, %s" % (v(72 + tau), v(80 + 48 + 32 + 4 * tau)))
    for j in range(1, 4):
        A("v_cmp_eq_u32 vcc, %d, v10" % j)
        for tau in range(4):
            A("v_cndmask_b32 %s, %s, %s, vcc" % (v(72 + tau), v(72 + tau), v(80 + 48 + 32 + 4 * tau + j)))
    A("s_mov_b32 s56, 0x3b000000\ns_mov_b32 s57, 0x3727c5ac")
    for tau in range(4): A("v_mul_f32 %s, s56, %s" % (v(72 + tau), v(72 + tau)))
    for tau in range(4): A("v_fma_f32 %s, -%s, %s, %s" % (v(72 + tau), v(64 + 2 * tau), v(64 + 2 * tau), v(72 + tau)))
    for tau in range(4): A("v_max_f32 %s, 0, %s" % (v(72 + tau), v(72 + tau)))
    for tau in range(4): A("v_add_f32 %s, s57, %s" % (v(72 + tau), v(72 + tau)))
    for tau in range(4): A("v_rcp_f32 %s, %s" % (v(72 + tau), v(72 + tau)))
    A("s_nop 0\nbuffer_store_dwordx4 v[72:75], v179, %s, s91 offen %s" % (WS, WT))
    A.label("L_novar")
    for ft in range(3):
        for g in range(2):
            o = 16 + 8 * ft + 4 * g
            for e in range(2):
                tau = 2 * g + e
                gb = 80 + 16 * ft + 4 * tau; ub = gb + 48
                M = v(64 + 2 * tau, 2)
                for j in (0, 2):
                    A("v_pk_fma_f32 %s, %s, %s, %s op_sel_hi:[1,0,1]" % (v(gb + j, 2), v(40 + 4 * ft + j, 2), M, v(gb + j, 2)))
                    A("v_pk_fma_f32 %s, %s, %s, %s op_sel_hi:[1,0,1]" % (v(ub + j, 2), v(52 + 4 * ft + j, 2), M, v(ub + j, 2)))
                for j in range(4): A("v_max_f32 %s, 0, %s" % (v(gb + j), v(gb + j)))
                for j in (0, 2): A("v_pk_mul_f32 %s, %s, %s" % (v(gb + j, 2), v(gb + j, 2), v(ub + j, 2)))
                for j in (0, 2): A("v_cvt_pk_bf16_f32 %s, %s, %s" % (v(o + 2 * e + j // 2), v(gb + j), v(gb + j + 1)))
            A("buffer_store_dwordx4 %s, %s, %s, %s offen offset:%d %s" % (v(o, 4), HV[ft], WS, "s90" if g else "s89", 1024 * ft, WT))
    TSTAMP()
    A("s_barrier")
    dump(TS)
    A("s_endpgm")

    A.label("L_B")
    vmq.clear(); nst[0] = 1; vmq.extend(["stat", "stat", "ssm", "ssm"])
    if O('bprio', 1): A("s_setprio %d" % O('bprio', 1))
    A("s_load_dword s84, %s, 0\ns_lshl_b32 s56, s66, 2\ns_load_dword %s, s[18:19], s56" % (s(S_WS, 2), s(sD)))
    for reg, off in ((S_WD, 72), (S_WG, 56), (S_WU, 64), (S_OUT, 80)):
        A("s_load_dwordx2 %s, s[0:1], %d" % (s(reg, 2), off))
    A(common2)
    for reg, nb in ((S_WD, 1376 * 1024), (S_OUT, 2097152), (S_T, 512 * 2752)):
        A("s_mov_b32 %s, %d\ns_mov_b32 %s, 0x20000" % (s(reg + 2), nb, s(reg + 3)))
    A("""
    s_lshr_b32 s55, s66, 4
    s_lshl_b32 s72, s55, 14
    s_and_b32 s55, s66, 3
    s_lshl_b32 s55, s55, 10
    s_add_u32 s72, s72, s55
    s_bfe_u32 s55, s66, 0x20002
    s_lshl_b32 s55, s55, 8
    s_add_u32 s72, s72, s55
    s_lshl_b32 s55, s3, 19
    s_add_u32 s72, s72, s55
    s_add_u32 s72, s72, %d
    s_add_u32 s73, s72, 0x40000
    v_lshlrev_b32 v63, 4, v2
    v_lshl_add_u32 v63, v4, 12, v63
    v_mov_b32 v64, -1
    v_mov_b32 v65, -1
    v_mov_b32 v66, -1
    v_mov_b32 v67, -1
    """ % HP)
    def hpfill():
        VM("buffer_store_dwordx4 v[64:67], v63, %s, s72 offen %s" % (WS, WT), "fill")
        VM("buffer_store_dwordx4 v[64:67], v63, %s, s73 offen %s" % (WS, WT), "fill")
    hpfill()
    if O('pw', 1):
        A("""
        v_and_b32 v13, 7, v1
        v_lshrrev_b32 v12, 3, v1
        v_mul_u32_u24 v12, %d, v12
        v_lshl_add_u32 v12, v13, 4, v12
        s_lshl_b32 s55, s2, 7
        s_add_u32 s55, s55, %d
        s_cmp_lg_u32 s3, 0
        s_cselect_b32 s55, %s, s55
        """ % (STR, ST, OOB))
        VM("buffer_store_dwordx4 v[40:43], v12, %s, s55 offen %s" % (WS, WT), "pw")
    A(ids)
    A("""
    v_and_b32 v6, 7, v1
    v_xor_b32 v5, s98, v6
    v_lshlrev_b32 v5, 4, v5
    v_lshl_add_u32 v5, v1, 7, v5
    s_lshl_b32 s55, s99, 3
    s_add_u32 s55, s55, %d
    v_add_u32 v5, s55, v5
    v_lshrrev_b32 v7, 3, v1
    s_mov_b32 s55, %d
    v_mul_lo_u32 v8, v7, s55
    v_lshl_add_u32 v8, v6, 4, v8
    v_xor_b32 v6, v6, v7
    v_lshlrev_b32 v6, 4, v6
    v_lshl_add_u32 v6, v7, 7, v6
    s_lshl_b32 s55, s3, 11
    s_add_u32 s55, s55, %d
    v_add_u32 v6, s55, v6
    v_xor_b32 v16, 32, v5
    v_xor_b32 v17, 64, v5
    v_xor_b32 v18, 0x60, v5
    """ % (L_TB, QSTR, L_TB))
    A("""
    s_mul_i32 s55, s3, %d
    s_add_u32 s55, s55, %d
    v_and_b32 v12, 7, v1
    v_lshl_add_u32 v12, v12, 4, s55
    ds_write_b128 v12, v[40:43]
    s_cmp_lg_u32 s99, 0
    s_cbranch_scc1 L_nohead
    v_and_b32 v12, 31, v1
    v_lshlrev_b32 v12, 4, v12
    v_lshrrev_b32 v13, 5, v1
    s_movk_i32 s56, %d
    v_mad_u32_u24 v12, v13, s56, v12
    s_mul_i32 s55, s98, %d
    s_add_u32 s55, s55, %d
    v_add_u32 v12, s55, v12
    ds_write_b128 v12, v[40:43]
    ds_write_b128 v12, v[40:43] offset:%d
    L_nohead:
    """ % (U_STR, L_U, KC_STR, 4 * KC_STR, L_KC, 2 * KC_STR))
    A("""
    s_mul_i32 s55, s3, %d
    s_lshl_b32 s56, s2, 7
    s_add_u32 s55, s55, s56
    s_add_u32 s95, s55, %d
    s_add_u32 s97, s95, %d
    s_movk_i32 s55, 0x2aab
    s_movk_i32 s56, 2752
    """ % (16 * QSTR, QP, 8 * QSTR))
    for i3 in range(3):
        A("""
        v_add_u32 v14, %d, v1
        v_mul_u32_u24 v3, s55, v14
        v_lshrrev_b32 v3, 16, v3
        v_mul_u32_u24 v13, 6, v3
        v_sub_u32 v14, v14, v13
        v_bfe_u32 v13, v3, 2, 2
        v_lshlrev_b32 v13, 3, v13
        v_lshrrev_b32 v12, 4, v3
        v_lshl_add_u32 v13, v12, 2, v13
        v_and_b32 v3, 3, v3
        v_add_u32 v13, v13, v3
        v_mul_u32_u24 v13, s56, v13
        v_lshl_add_u32 %s, v14, 4, v13
        """ % (64 * i3, v(60 + i3)))
    A("""
    s_waitcnt lgkmcnt(0)
    s_bitcmp1_b32 s3, 0
    s_cselect_b32 s48, s32, s28
    s_cselect_b32 s49, s33, s29
    s_add_u32 s69, s88, s98
    s_mul_i32 s70, s87, 88
    s_mul_i32 s76, s99, %d
    s_mul_i32 s56, s98, 3072
    s_add_u32 s76, s76, s56
    s_mul_i32 s56, s98, %d
    s_lshl_b32 s57, s99, 11
    s_add_u32 s56, s56, s57
    s_add_u32 s56, s56, %d
    v_add_u32 v44, s56, v9
    v_add_u32 v45, %d, v44
    v_add_u32 v46, %d, v44
    v_add_u32 v47, %d, v44
    v_mov_b32 v3, FLGA
    """.replace("FLGA", str(L_FLG)) % (L_WU, 4 * KC_STR, L_KC + 512 - 4, KC_STR - 4, 2 * KC_STR - 8, 3 * KC_STR - 12))
    ndma = [0]
    def w1dma(n):
        for _ in range(n):
            i = ndma[0]; ndma[0] += 1
            gi, i3 = divmod(i, 3)
            if i3 == 0: A("s_and_b32 s77, s69, 15\ns_mul_i32 s77, s77, 88064\ns_add_u32 s77, s77, s70\ns_add_u32 s69, s69, 2")
            A("s_add_u32 m0, s76, %d" % (gi * 6144 + i3 * 1024))
            VM("buffer_load_dwordx4 %s, %s, s77 offen %s lds" % (v(60 + i3), srd(S_T), "nt" if i < O('w1nt', 0) else ""), "dma")
    span = 88 * (32 // RBX)
    ntouch = ((span + 8 + 127 + 127) // 128 + 7) // 8
    def w1touch(pos):
        if O('w1tp', 9) != pos: return 0
        A("""
        v_lshrrev_b32 v12, 3, v1
        s_movk_i32 s55, 2752
        v_mul_lo_u32 v12, v12, s55
        v_and_b32 v13, 7, v1
        v_lshlrev_b32 v13, 7, v13
        s_lshl_b32 s55, s5, 1
        s_add_u32 s55, s55, s98
        s_mul_i32 s55, s55, 22016
        s_and_b32 s56, s4, %d
        s_mul_i32 s56, s56, %d
        s_add_u32 s55, s55, s56
        """ % (RBX - 1, span))
        for i in range(ntouch):
            A("v_add_u32 v14, %d, v13\nv_min_u32 v14, %d, v14\nv_add_u32 v14, v14, v12" % (1024 * i, span + 4))
            VM("buffer_load_dword v11, v14, %s, s55 offen %s" % (srd(S_T), "nt" if O('tnt', 0) else ""), "tch")
        return ntouch
    def hfill(pos):
        if O('hfp', 0) != pos: return
        A(haddr(["v68", "v69", "v70"], "v71", ("v12", "v13")))
        for ft in range(3):
            for g in range(2):
                VM("buffer_store_dwordx4 v[64:67], %s, %s, %s offen offset:%d %s" % (v(68 + ft), WS, "s90" if g else "s89", 1024 * ft, WT), "fill")
        VM("buffer_store_dwordx4 v[64:67], v71, %s, s91 offen %s" % (WS, WT), "fill")
        A("v_mov_b32 v13, 1")
    def wdtouch(pos):
        if O('wdtp', 1) != pos: return
        if O('wdtm', 1) == 1:
            A("s_lshl_b32 s55, s2, 2\ns_add_u32 s55, s55, s3\ns_mul_i32 s55, s55, 1408\nv_lshlrev_b32 v12, 7, v1\ns_mov_b64 exec, 0x7ff")
            VM("buffer_load_dword %s, v12, %s, s55 offen" % ("v63" if pos == 4 else "v11", srd(S_WD)), "tch")
            A("s_mov_b64 exec, -1")
        else:
            A("s_lshl_b32 s55, s5, 2\ns_add_u32 s55, s55, s3\ns_mul_i32 s55, s55, 11008\nv_lshlrev_b32 v12, 7, v1")
            VM("buffer_load_dword v11, v12, %s, s55 offen" % srd(S_WD), "tch")
            A("s_add_u32 s55, s55, 8192\ns_mov_b64 exec, 0x3fffff")
            VM("buffer_load_dword v11, v12, %s, s55 offen" % srd(S_WD), "tch")
            A("s_mov_b64 exec, -1")
    TSTAMP()
    w1dma(O('nw1a', 0))
    A("v_mov_b32 v21, 0x3f803f80")
    vmwait("stat")
    TSTAMP()
    w1touch(1)
    for i in range(4): A("ds_write2_b32 %s, %s, %s offset0:0 offset1:1" % (("v5", "v16", "v17", "v18")[i], v(32 + i), v(36 + i)))
    A("v_mov_b32 v14, 1\ns_waitcnt lgkmcnt(0)\ns_mov_b64 exec, 1\nds_add_u32 v3, v14 offset:20\ns_mov_b64 exec, -1\ns_add_u32 s84, s84, 1\ns_or_b32 s84, s84, 0x80000000")
    for i in range(4):
        for e in range(2):
            A("v_dot2c_f32_bf16 %s, %s, v21" % (v(42 + e), v(32 + 4 * e + i)))
            A("v_dot2c_f32_bf16 %s, %s, %s" % (v(40 + e), v(32 + 4 * e + i), v(32 + 4 * e + i)))
    for m in ("row_shr:1", "row_shr:2", "row_shr:4", "row_shr:8", "row_bcast:15 row_mask:0xa", "row_bcast:31 row_mask:0xc"):
        for r in range(40, 44):
            A("v_add_f32_dpp %s, %s, %s %s" % (v(r), v(r), v(r), m))
    A("s_mov_b32 s56, 0x3b000000\ns_mov_b32 s57, 0x3727c5ac")
    for r in range(40, 44): A("v_mul_f32 %s, s56, %s" % (v(r), v(r)))
    for e in range(2): A("v_fma_f32 %s, -%s, %s, %s" % (v(40 + e), v(42 + e), v(42 + e), v(40 + e)))
    for e in range(2): A("v_max_f32 %s, 0, %s" % (v(40 + e), v(40 + e)))
    for e in range(2): A("v_add_f32 %s, s57, %s" % (v(40 + e), v(40 + e)))
    for e in range(2): A("v_rsq_f32 %s, %s" % (v(40 + e), v(40 + e)))
    for e in range(2): A("v_mul_f32_e64 %s, -%s, %s" % (v(42 + e), v(42 + e), v(40 + e)))
    A("v_mov_b32 v19, v6\nv_mov_b32 v20, v8")
    qw_txt = "ds_read2_b32 v[12:13], v3 offset0:%d offset1:5" % O('qwait', 5)
    qw_chk = "v_add_u32 v12, v12, v13\nv_cmp_ne_u32 vcc, 8, v12"
    A(qw_txt + "\ns_waitcnt lgkmcnt(0)\n" + qw_chk)
    retry("qw", "s_sleep 1\n" + qw_txt, qw_chk, wait="s_waitcnt lgkmcnt(0)")
    TSTAMP()
    A("ds_read_b128 v[48:51], v19\nds_read_b128 v[52:55], v19 offset:1024\ns_waitcnt lgkmcnt(1)")
    A("buffer_store_dwordx4 v[48:51], v20, %s, s95 offen %s\ns_waitcnt lgkmcnt(0)" % (WS, WT))
    A("buffer_store_dwordx4 v[52:55], v20, %s, s97 offen %s" % (WS, WT))
    vmq.extend(["st"] * 2)
    w1dma(O('nw1b', 0)); nyoung = O('nw1b', 0)
    vmwait("ssm")
    for i in range(2):
        b = 24 + 4 * i
        if i == 1: A("v_add_u32 v44, 0x400, v44\nv_add_u32 v46, 0x400, v46")
        for ad in ("v44", "v46"):
            A("ds_write2_b32 %s, %s, %s offset0:0 offset1:1" % (ad, v(b), v(b + 1)))
            A("ds_write2_b32 %s, %s, %s offset0:2 offset1:3" % (ad, v(b + 2), v(b + 3)))
        A("ds_write2_b64 v45, %s, %s offset0:%d offset1:%d" % (v(b, 2), v(b + 2, 2), 128 * i, 128 * i + 1))
        A("ds_write_b128 v47, %s offset:%d" % (v(b, 4), 1024 * i))
    A("v_mov_b32 v14, 1\ns_mov_b64 exec, 1\nds_add_u32 v3, v14 offset:40\ns_mov_b64 exec, -1")
    A("""
    s_lshl_b32 s55, s3, 4
    s_add_u32 s55, s55, %d
    v_mov_b32 v12, s55
    v_mov_b32 v13, %d
    v_mov_b32 v14, 1
    s_mov_b32 exec_lo, 0
    s_mov_b32 exec_hi, 0x80000000
    ds_write_b128 v12, v[40:43]
    s_waitcnt vmcnt(NYOUNG) lgkmcnt(0)
    ds_add_rtn_u32 v14, v13, v14 offset:8
    s_waitcnt lgkmcnt(0)
    v_readfirstlane_b32 s55, v14
    s_mov_b64 exec, -1
    s_cmp_lg_u32 s55, 3
    s_cbranch_scc1 L_nost
    v_and_b32 v12, 3, v1
    v_lshlrev_b32 v12, 4, v12
    ds_read_b128 v[40:43], v12 offset:%%d
    v_and_b32 v13, 7, v1
    v_cmp_lt_u32 vcc, 3, v13
    v_mov_b32 v14, s84
    v_cndmask_b32 v14, 0, v14, vcc
    v_lshrrev_b32 v12, 3, v1
    v_mul_u32_u24 v12, STRIDE, v12
    v_lshl_add_u32 v12, v13, 4, v12
    s_lshl_b32 s55, s2, 7
    s_add_u32 s55, s55, %d
    s_waitcnt lgkmcnt(0)
    v_xor_b32 v40, v14, v40
    v_xor_b32 v41, v14, v41
    v_xor_b32 v42, v14, v42
    v_xor_b32 v43, v14, v43
    s_mov_b64 exec, STEX
    buffer_store_dwordx4 v[40:43], v12, WS, s55 offen WT
    s_mov_b64 exec, -1
    L_nost:
    """.replace("STRIDE", str(STR)).replace("STEX", "-1" if O('strep', 1) else "0xff").replace("WS", WS).replace("WT", WT).replace("NYOUNG", str(nyoung)).replace("v_lshlrev_b32 v12, 4, v12\n    ds_read_b128 v[40:43], v12 offset:%%d", "v_lshlrev_b32 v12, 4, v12\n    v_add_u32 v12, STL, v12\n    ds_read_b128 v[40:43], v12").replace("STL", str(L_FLG + 64)) % (L_FLG + 64, L_FLG, ST)); vmq.clear()
    TSTAMP()
    w1dma(O('nw1c', 0))
    A("""
    s_and_b32 s55, s54, 0xffff
    s_lshr_b32 s56, s54, 16
    v_mov_b32 v13, s55
    v_mov_b32 v14, s56
    v_lshl_add_u32 v12, v4, 2, 3
    v_sub_u32 v12, v12, v2
    """)
    for jj in range(4):
        A("v_cmp_eq_u32 vcc, %d, v12\nv_cndmask_b32 %s, 0, v13, vcc\nv_cndmask_b32 %s, 0, v14, vcc" % (jj, v(72 + jj), v(76 + jj)))
    A("""
    v_and_b32 v5, 1, v2
    s_movk_i32 s55, %d
    v_mul_lo_u32 v5, v5, s55
    v_lshrrev_b32 v14, 1, v2
    v_lshl_add_u32 v5, v14, 4, v5
    v_lshl_add_u32 v5, v4, 7, v5
    s_lshl_b32 s56, s3, 10
    s_add_u32 s56, s56, %d
    v_add_u32 v5, s56, v5
    s_lshl_b32 s56, s3, 11
    s_add_u32 s57, s56, %d
    v_add_u32 v6, s57, v9
    v_add_u32 v7, %d, v6
    s_lshr_b32 s68, s66, 2
    s_mul_i32 s68, s68, %d
    s_and_b32 s57, s66, 3
    s_lshl_b32 s57, s57, 5
    s_add_u32 s68, s68, s57
    s_lshl_b32 s58, s3, 13
    s_add_u32 s68, s68, s58
    s_add_u32 s68, s68, %d
    s_add_u32 s60, s68, 0x1000
    s_add_u32 s58, s58, %d
    s_mul_i32 s57, s4, STRX
    s_add_u32 s58, s58, s57
    s_add_u32 s59, s58, 0x1000
    v_lshrrev_b32 v8, 1, v1
    v_lshlrev_b32 v8, 7, v8
    v_and_b32 v14, 1, v1
    v_lshl_add_u32 v10, v14, 4, v8
    v_lshl_add_u32 v8, v14, 5, v8
    s_mul_i32 s61, s99, 49152
    s_lshl_b32 s57, s98, 13
    s_add_u32 s61, s61, s57
    s_add_u32 s61, s61, 0x8000
    v_lshlrev_b32 v14, 3, v1
    v_and_b32 v14, 0x70, v14
    v_xor_b32 v8, v8, v14
    v_add_u32 v8, s61, v8
    v_xor_b32 v57, 16, v8
    v_xor_b32 v58, 64, v8
    v_xor_b32 v59, 0x50, v8
    v_lshlrev_b32 v14, 1, v1
    v_and_b32 v14, 0x70, v14
    v_xor_b32 v56, v9, v14
    """.replace("STRX", str(STR if O('strep', 1) else 0)) % (U_STR, L_U + 8 * 16, L_REDA, L_REDB - L_REDA, QSTR, QP, ST))
    if O('nw1e', 6) or O('wdtp', 1) == 1:
        A("ds_read_b32 v12, v3 offset:24\ns_waitcnt lgkmcnt(0)\nv_cmp_ne_u32 vcc, 4, v12")
        retry("uw", "s_sleep 1\nds_read_b32 v12, v3 offset:24", "v_cmp_ne_u32 vcc, 4, v12", wait="s_waitcnt lgkmcnt(0)")
    st_dma = "s_mov_b32 m0, s61\n" + "\n".join("buffer_load_dwordx4 v56, %s, s58 offen offset:%d sc1 lds" % (WS, 1024 * i) for i in range(4)) + \
             "\ns_add_u32 m0, s61, 0x1000\n" + "\n".join("buffer_load_dwordx4 v56, %s, s59 offen offset:%d sc1 lds" % (WS, 1024 * i) for i in range(4))
    st_rd = "\n".join("ds_read_b128 %s, %s offset:%d" % (v(16 * (1 + cp) + 8 * e + 4 * h, 4), ("v8", "v57", "v58", "v59")[h + 2 * cp], 4096 * e)
                       for e in range(2) for h in range(2) for cp in range(2))
    st_chk = "\n".join(["v_bitop3_b32 %s, %s, %s, s84 bitop3:0x96" % (v(32 + i), v(32 + i), v(16 + i)) for i in range(16)] +
                       ["v_or3_b32 %s, %s, %s, %s" % (v(32 + i), v(32 + i), v(33 + i), v(34 + i)) for i in (0, 3, 6, 9, 12)] +
                       ["v_or3_b32 v32, v32, v35, v38", "v_or3_b32 v41, v41, v44, v47", "v_or_b32 v32, v32, v41", "v_cmp_ne_u32 vcc, 0, v32"])
    if O('stf', 0):
        A("ds_read_b32 v12, v3 offset:8\ns_waitcnt lgkmcnt(0)\nv_cmp_ne_u32 vcc, 4, v12")
        retry("s8", "ds_read_b32 v12, v3 offset:8", "v_cmp_ne_u32 vcc, 4, v12", wait="s_waitcnt lgkmcnt(0)")
        A(st_dma); vmq.extend(["stp"] * 8)
    w1dma(min(O('nw1e', 6), 15 - ndma[0]))
    wdtouch(1)
    A("ds_read_b32 v12, v3 offset:40\ns_waitcnt lgkmcnt(0)\nv_cmp_ne_u32 vcc, 8, v12")
    retry("b4b", "s_sleep 1\nds_read_b32 v12, v3 offset:40", "v_cmp_ne_u32 vcc, 8, v12", wait="s_waitcnt lgkmcnt(0)")
    TSTAMP()
    for e in range(2):
        for c in range(2):
            A("ds_read_b128 %s, v5 offset:%d" % (v(80 + 8 * e + 4 * c, 4), 2 * c * U_STR + 512 * e))
    hfill(1)
    w1dma(O('nw1d', 0))
    A("s_waitcnt lgkmcnt(0)")
    for e in range(2):
        for c in range(2):
            A("%s %s, %s, %s, 0" % (MF, v(96 + 8 * e + 4 * c, 4), v(72 + 4 * c, 4), v(80 + 8 * e + 4 * c, 4)))
    w1dma(O('nw1f', 0))
    if O('lpw', 1) and not O('stf', 0):
        A("ds_read_b32 v12, v3 offset:32\ns_waitcnt lgkmcnt(0)\nv_cmp_eq_u32 vcc, 0, v12")
        retry("lw", "s_sleep 1\nds_read_b32 v12, v3 offset:32", "v_cmp_eq_u32 vcc, 0, v12", wait="s_waitcnt lgkmcnt(0)")
    if not O('stf', 0): A(st_dma); vmq.extend(["stp"] * 8)
    w1dma(min(O('nw1i', 3), 15 - ndma[0]))
    vmwait("stp")
    A(st_rd + "\ns_waitcnt lgkmcnt(0)\n" + st_chk)
    retry("st", "s_sleep %d\n" % O('stsl', 4) + st_dma + "\ns_waitcnt vmcnt(0)\n" + st_rd, st_chk, wait="s_waitcnt lgkmcnt(0)")
    TSTAMP()
    VM("buffer_load_dwordx4 v[48:51], v10, %s, s68 offen sc1" % WS, "qp")
    VM("buffer_load_dwordx4 v[52:55], v10, %s, s60 offen sc1" % WS, "qp")
    wdtouch(2)
    hfill(2)
    w1dma(min(O('nw1g', 6), 15 - ndma[0]))
    vmwait("qp")
    TSTAMP()
    for e in range(2):
        for j in range(4):
            A("v_lshlrev_b32 %s, 16, %s" % (v(112 + 8 * e + j), v(48 + 4 * e + j)))
            A("v_and_b32 %s, s65, %s" % (v(116 + 8 * e + j), v(48 + 4 * e + j)))
    for e in range(2):
        for c in range(2):
            for j in (0, 2):
                A("v_pk_fma_f32 %s, %s, %s, %s" % (v(128 + 8 * e + 4 * c + j, 2), v(112 + 8 * e + 4 * c + j, 2), v(16 + 8 * e + 2 * j, 2), v(18 + 8 * e + 2 * j, 2)))
    w1dma(O('nw1h', 0))
    TSTAMP()
    A("s_barrier")
    TSTAMP()
    for e in range(2):
        for src in range(4):
            A("ds_read_b128 %s, %s offset:%d" % (v(16 + 16 * e + 4 * src, 4), "v7" if src >= 2 else "v6", 8192 * (src & 1) + 1024 * e))
    for e in range(2):
        for c in range(2):
            A("s_waitcnt lgkmcnt(%d)" % (6 - 4 * e - 2 * c))
            for j in (0, 2):
                d = v(96 + 8 * e + 4 * c + j, 2)
                A("v_pk_add_f32 %s, %s, %s" % (d, d, v(16 + 16 * e + 8 * c + j, 2)))
            for j in (0, 2):
                d = v(96 + 8 * e + 4 * c + j, 2)
                A("v_pk_add_f32 %s, %s, %s" % (d, d, v(20 + 16 * e + 8 * c + j, 2)))
            for j in (0, 2):
                d = v(96 + 8 * e + 4 * c + j, 2)
                A("v_pk_fma_f32 %s, %s, %s, %s" % (d, d, v(128 + 8 * e + 4 * c + j, 2), v(112 + 8 * e + 4 * c + j, 2)))
        for j in range(4):
            A("v_cvt_pk_bf16_f32 %s, %s, %s" % (v(48 + 4 * e + j), v(96 + 8 * e + j), v(100 + 8 * e + j)))
        VM("buffer_store_dwordx4 %s, v63, %s, %s offen %s" % (v(48 + 4 * e, 4), WS, "s73" if e else "s72", WT), "hp")
    TSTAMP()
    NB6 = O('nb6', 15)
    wdtouch(3)
    hfill(3)
    w1dma(NB6 - ndma[0])
    A("""
    v_mov_b32 v56, 0x3f803f80
    v_mov_b32 v57, 0x3f803f80
    v_mov_b32 v58, 0x3f803f80
    v_mov_b32 v59, 0x3f803f80
    v_and_b32 v14, 31, v1
    v_mul_u32_u24 v14, 96, v14
    s_add_u32 s55, s76, 88
    v_add_u32 v14, s55, v14
    v_mov_b32 v3, %d
    v_mov_b32 v13, 1
    """ % L_FLG)
    vmwait("dma")
    for i in range(NB6 // 3): A("ds_write_b64 v14, v[56:57] offset:%d" % (6144 * i))
    A("s_waitcnt lgkmcnt(0)\ns_barrier")
    TSTAMP()
    def xtouch(pos):
        if O('xtp', 9) != pos: return
        A("""
        s_and_b32 s55, s87, %d
        s_lshl_b32 s55, s55, 2
        s_add_u32 s55, s55, s3
        s_lshl_b32 s55, s55, 7
        s_lshl_b32 s56, s86, 18
        s_add_u32 s55, s55, s56
        s_add_u32 s55, s55, %d
        v_lshlrev_b32 v12, 12, v1
        """ % (32 // RBX - 1, HP))
        VM("buffer_load_dword v63, v12, %s, s55 offen sc1" % WS, "tch")
    xtouch(0)
    w1dma(24 - NB6)
    xtouch(1)
    A("""
    s_and_b32 s72, s5, 7
    s_lshr_b32 s71, s5, 3
    s_mul_i32 s56, s71, %d
    s_mul_i32 s55, s72, %d
    s_add_u32 s55, s55, s56
    s_sub_u32 s56, s55, 11
    s_cmp_ge_u32 s55, 11
    s_cselect_b32 s55, s56, s55
    s_mul_i32 s56, s3, 11
    s_add_u32 s57, s56, 11
    s_add_u32 s55, s55, s56
    """ % (O('rot4', 0), O('rot3', 0)))
    for i in range(11):
        A("s_lshl_b32 %s, s55, 11\ns_add_u32 s55, s55, 1\ns_cmp_eq_u32 s55, s57\ns_cselect_b32 s55, s56, s55" % s(8 + i))
    A("""
    v_lshrrev_b32 v5, 3, v1
    v_and_b32 v6, 2, v5
    v_lshlrev_b32 v6, 1, v6
    v_and_b32 v7, 7, v1
    v_xor_b32 v6, v6, v7
    v_lshlrev_b32 v5, 10, v5
    v_lshl_add_u32 v5, v6, 4, v5
    s_mul_i32 s92, s3, 12288
    s_add_u32 s92, s92, %d
    v_lshrrev_b32 v6, 2, v1
    v_and_b32 v7, 2, v6
    v_lshlrev_b32 v7, 5, v7
    v_lshlrev_b32 v6, 7, v6
    v_and_b32 v8, 3, v1
    v_lshl_add_u32 v6, v8, 4, v6
    v_add_u32 v6, v6, v7
    s_lshl_b32 s55, s99, 6
    v_xor_b32 v7, s55, v6
    v_xor_b32 v6, 64, v7
    v_add_u32 v6, s92, v6
    v_add_u32 v7, s92, v7
    s_lshl_b32 s93, s72, 7
    v_lshrrev_b32 v10, 2, v1
    v_mul_u32_u24 v10, 96, v10
    v_lshl_add_u32 v10, v8, 3, v10
    s_lshl_b32 s56, s99, 5
    s_add_u32 s56, s56, %d
    v_add_u32 v11, s56, v10
    s_lshl_b32 s55, s3, 5
    s_cmp_eq_u32 s3, 3
    s_cselect_b32 s55, %d, s55
    v_add_u32 v10, s55, v10
    """ % (L_SG, L_WU + 32, L_WU))
    WDR = lambda i, tm: a(16 * i + 4 * tm, 4) if i < 4 else v(72 + 16 * (i - 4) + 4 * tm, 4)
    WDH = lambda i, tm, h: a(16 * i + 4 * tm + 2 * h, 2) if i < 4 else v(72 + 16 * (i - 4) + 4 * tm + 2 * h, 2)
    def wd_issue(i):
        if O('nowd', 0): A("s_mov_b32 s93, %s" % OOB)
        A("s_lshl_b32 s94, %s, 4\ns_add_u32 s94, s94, s93" % s(8 + i))
        for r in range(4):
            A("s_add_u32 m0, s92, %d" % (4096 * (i % 3) + 1024 * r))
            VM("buffer_load_dwordx4 v5, %s, s94 offen lds" % srd(S_WD), "wd%d" % i)
            if r < 3: A("s_add_u32 s94, s94, 0x2000")
    def wd_read(i):
        vmwait("wd%d" % i)
        for tm in range(4):
            for h in range(2):
                A("ds_read_b64_tr_b16 %s, %s offset:%d" % (WDH(i, tm, h), "v6" if tm < 2 else "v7", 4096 * (i % 3) + 2048 * h + 8 * (tm & 1)))
        A("s_waitcnt lgkmcnt(0)")
    def hflag():
        A("""
        s_lshl_b32 s55, s86, 2
        s_add_u32 s55, s55, s3
        s_lshl_b32 s55, s55, 5
        s_add_u32 s55, s55, s87
        s_lshl_b32 s55, s55, 7
        s_add_u32 s55, s55, %d
        v_mov_b32 v64, s84
        v_mov_b32 v65, s84
        v_mov_b32 v66, s84
        v_mov_b32 v67, s84
        s_mov_b64 exec, 0xff
        """ % FH)
        vmwait("fill")
        VM("buffer_store_dwordx4 v[64:67], v9, %s, s55 offen %s" % (WS, WT), "fhs")
        A("s_mov_b64 exec, -1")
    def colsum(k0, k1):
        for st in range(k0, k1 + 2):
            if st < k1:
                b = 16 + 8 * (st & 3)
                for h in range(2): A("ds_read_b64_tr_b16 %s, v10 offset:%d" % (v(b + 2 * h, 2), st * 3072 + h * 1536))
                for h in range(2): A("ds_read_b64_tr_b16 %s, v11 offset:%d" % (v(b + 4 + 2 * h, 2), st * 3072 + h * 1536))
            if st >= k0 + 2:
                pb = 16 + 8 * ((st - 2) & 3)
                A("s_waitcnt lgkmcnt(%d)" % (4 * (min(st, k1 - 1) - (st - 2))))
                A("%s v[48:51], v[56:59], %s, %s" % (MF, v(pb, 4), "v[48:51]" if st > 2 else "0"))
                A("%s v[52:55], v[56:59], %s, %s" % (MF, v(pb + 4, 4), "v[52:55]" if st > 2 else "0"))
    K1 = 2 * (NB6 // 3)
    NWD0 = O('nwd0', 1)
    colsum(0, K1)
    wdtouch(4)
    for i in range(NWD0): wd_issue(i)
    vmwait("dma")
    for i in range(NB6 // 3, 8): A("ds_write_b64 v14, v[56:57] offset:%d" % (6144 * i))
    A("s_waitcnt lgkmcnt(0)\ns_mov_b64 exec, 1\nds_add_u32 v3, v13\ns_mov_b64 exec, -1")
    TSTAMP()
    for i in range(NWD0): wd_read(i)
    A("ds_read_b32 v12, v3\ns_waitcnt lgkmcnt(0)\n" + flagchk)
    retry("fB", "ds_read_b32 v12, v3", flagchk, wait="s_waitcnt lgkmcnt(0)")
    if K1 < 16: colsum(K1, 16)
    HOLD = O('wdhold', 5); LATE = O('late', 3); NE = 11 - LATE
    A("""
    s_lshl_b32 s55, s72, 1
    s_add_u32 s55, s55, s99
    s_lshl_b32 s55, s55, 14
    s_lshl_b32 s56, s71, 12
    s_add_u32 s55, s55, s56
    s_lshl_b32 s56, s98, 3
    s_add_u32 s55, s55, s56
    s_lshl_b32 s56, s4, 18
    s_add_u32 s55, s55, s56
    s_add_u32 s95, s55, %d
    s_lshl_b32 s55, s4, 2
    s_add_u32 s55, s55, s71
    s_lshl_b32 s64, s55, 12
    s_add_u32 s64, s64, %d
    s_lshl_b32 s56, s55, 1
    s_add_u32 s57, s56, s98
    s_xor_b32 s56, s57, 1
    s_mul_i32 s68, s56, %d
    s_mul_i32 s69, s57, %d
    s_add_u32 s68, s68, %d
    s_add_u32 s69, s69, %d
    s_lshl_b32 s77, s55, 16
    s_lshl_b32 s56, s98, 12
    s_add_u32 s77, s77, s56
    s_lshl_b32 s56, s72, 7
    s_add_u32 s77, s77, s56
    s_lshl_b32 s56, s99, 6
    s_add_u32 s77, s77, s56
    s_lshl_b32 s67, s55, 8
    s_lshl_b32 s56, s98, 3
    s_add_u32 s67, s67, s56
    s_add_u32 s67, s67, %d
    s_mul_i32 s97, s3, 12288
    s_add_u32 s97, s97, 49152
    v_add_u32 v14, s97, v9
    s_lshl_b32 s56, s3, 3
    v_add_u32 v8, s56, v1
    v_cmp_lt_u32 vcc, 7, v1
    v_cndmask_b32 v8, v8, 31, vcc
    v_lshlrev_b32 v8, 7, v8
    """ % (HP, FH, HG, HG, HH, HH, R2))
    for i in range(11): A("s_min_u32 %s, %s, %d" % (s(20 + i), s(8 + i), 42 * 2048))
    for k in (1, 2, 3): A("s_xor_b32 s56, s3, %d\ns_mul_i32 s56, s56, 12288\ns_add_u32 %s, s56, %d" % (k, s(31 + k), L_RED3 + (k - 1) * 4096))
    def waitstep(k):
        chk = "v_cmp_gt_u32 vcc, %d, v12" % k
        A("ds_read_b32 v12, v3 offset:36\ns_waitcnt lgkmcnt(0)\n" + chk)
        retry("ws%d" % k, "s_sleep 1\nds_read_b32 v12, v3 offset:36", chk, wait="s_waitcnt lgkmcnt(0)")
    A(haddr(["v68", "v69", "v70"], "v71", ("v12", "v13")))
    A("v_mov_b32 v13, 1")
    fl = ["buffer_store_dwordx4 v[64:67], %s, %s, %s offen offset:%d %s" % (v(68 + ft), WS, "s90" if g else "s89", 1024 * ft, WT) for ft in range(3) for g in range(2)]
    fl.append("buffer_store_dwordx4 v[64:67], v71, %s, s91 offen %s" % (WS, WT))
    NP = O('np', 3)
    pieces = [(i, r) for i in range(NWD0, NWD0 + NP) for r in range(4)]
    P0 = O('p0', 1); PEND = O('pend', 13)
    nsteps = PEND - P0
    done_cs = False
    for k in range(P0, PEND):
        waitstep(k)
        if fl:
            VM(fl.pop(0), "fill")
            if len(fl) == 1: VM(fl.pop(0), "fill")
        elif not done_cs and k >= P0 + 7:
            hflag()
            A("""
    s_lshl_b32 s55, s3, 6
    s_add_u32 s55, s55, %d
    v_lshl_add_u32 v10, v2, 2, s55
    s_lshl_b32 s56, s99, 6
    s_add_u32 s56, s56, %d
    v_lshl_add_u32 v11, v2, 2, s56
    ds_write_b32 v10, v48
    ds_write_b32 v11, v52
    s_waitcnt lgkmcnt(0)
    s_mov_b64 exec, 1
    ds_add_u32 v3, v13 offset:4
    s_mov_b64 exec, -1
    """ % (L_CS, L_CS + 256))
            TSTAMP()
            done_cs = True
        want = (len(pieces) + (PEND - k) - 1) // (PEND - k) if (not fl or O('mix', 0)) else 0
        for _ in range(want):
            i, r = pieces.pop(0)
            if r == 0: A("s_lshl_b32 s94, %s, 4\ns_add_u32 s94, s94, s93" % s(8 + i))
            A("s_add_u32 m0, s92, %d" % (4096 * (i % 3) + 1024 * r))
            VM("buffer_load_dwordx4 v5, %s, s94 offen lds" % srd(S_WD), "wd%d" % i)
            if r < 3: A("s_add_u32 s94, s94, 0x2000")
    assert done_cs and not pieces
    TSTAMP()
    waitstep(PEND)
    VM("buffer_load_dword v10, v8, %s, s64 offen sc1" % WS, "fh")
    TSTAMP()
    nx = NWD0 + NP
    for i in range(NWD0, NE):
        wd_read(i)
        while nx < NE and nx <= i + 3: wd_issue(nx); nx += 1
    TSTAMP()
    A("s_waitcnt vmcnt(0)\nv_cmp_ne_u32 vcc, s84, v10")
    retry("fh", "buffer_load_dword v10, v8, %s, s64 offen sc1" % WS, "v_cmp_ne_u32 vcc, s84, v10")
    LB = O('lateb', 0)
    for i in range(NE, NE + LB): wd_issue(i)
    A("s_barrier")
    TSTAMP()
    for i in range(NE + LB, 11): wd_issue(i)
    def late_part():
        for i in range(NE, 11): wd_read(i)
        A("""
        v_lshrrev_b32 v5, 1, v2
        v_lshlrev_b32 v5, 13, v5
        v_and_b32 v12, 1, v2
        v_lshl_add_u32 v5, v12, 10, v5
        v_lshl_add_u32 v5, v4, 4, v5
        v_lshlrev_b32 v12, 4, v2
        v_subrev_u32 v10, 0xc000, v14
        v_add_u32 v6, s32, v9
        v_add_u32 v7, s33, v9
        v_add_u32 v8, s34, v9
        """)
    NR = 6
    HFR = lambda q, o, n: v(16 + 8 * (q % 3) + o, n)
    def acc3(grp, tm, e):
        t = 2 * (tm & 1) + e
        if grp == 1 and tm >= 2: return v(40 + 4 * t, 4)
        if tm < 2: return v(56 + 4 * t, 4)
        return v(40 + 4 * t, 4)
    def hdma_txt(q):
        grp, i = divmod(q, 11)
        return "s_add_u32 s96, %s, %s\ns_add_u32 m0, s97, %d\nbuffer_load_dwordx4 v9, %s, s96 offen sc1 lds\nbuffer_load_dwordx4 v9, %s, s96 offen offset:1024 sc1 lds" % (
            "s68" if grp == 0 else "s69", s(20 + i), 2048 * (q % NR), WS, WS)
    def hdma(q): A(hdma_txt(q)); vmq.extend(["h%d" % q] * 2)
    def hrd(q): return ["ds_read_b64 %s, %s offset:%d" % (HFR(q, 4 * e + 2 * aa, 2), "v14", 2048 * (q % NR) + 1024 * aa + 8 * e) for e in range(2) for aa in range(2)]
    def hchk(q): return "v_max_u32 v11, %s, %s\nv_cmp_eq_u32 vcc, -1, v11" % (HFR(q, 0, 1), HFR(q, 2, 1))
    def hretry(q):
        last = min(21, q + NR - 1) if O('hre', 1) else q
        if q == 0: last = O('nh0', 6) - 1
        n = 2 * (last - q) if q < 17 else 0
        retry("h%d" % q, "\n".join(hdma_txt(k) for k in range(q, last + 1)) + "\ns_waitcnt vmcnt(%d)\n" % n + "\n".join(hrd(q)), hchk(q), wait="s_waitcnt lgkmcnt(0)")
    NH0 = O('nh0', 6)
    for q in range(NH0): hdma(q)
    late_part()
    vmwait("h0"); A("\n".join(hrd(0))); A("s_waitcnt lgkmcnt(0)"); A(hchk(0)); hretry(0)
    TSTAMP()
    for q in range(NH0, NR): hdma(q)
    vmwait("h1"); A("\n".join(hrd(1)))
    for q in range(22):
        grp, i = divmod(q, 11)
        if q == 11:
            if O('psw', 1):
                for t in range(4): A("ds_write_b128 v7, %s offset:%d" % (v(40 + 4 * t, 4), 1024 * t))
            else:
                A("s_nop 7")
                for t in range(4): A("ds_write_b128 v8, %s offset:%d" % (v(56 + 4 * t, 4), 1024 * t))
                for t in range(4): A("ds_write_b128 v7, %s offset:%d" % (v(40 + 4 * t, 4), 1024 * t))
                A("s_waitcnt lgkmcnt(0)")
        rd = hrd(q + 2) if q + 2 < 22 else []
        if O('fine3', 0) and q % 2 == 0: TSTAMP()
        n = 0
        for tm in range(4):
            for e in range(2):
                sw = O('psw', 1) and q == 11
                if sw: A("s_waitcnt lgkmcnt(%d)" % (7 - n))
                A("%s %s, %s, %s, %s" % (MF, acc3(grp, tm, e), WDR(i, tm), HFR(q, 4 * e, 4), acc3(grp, tm, e) if i else "0"))
                if n == 0 and q + NR < 22: hdma(q + NR)
                if sw:
                    if n == 1: A(hchk(q + 1))
                    if n == 3: hretry(q + 1)
                    if n == 7:
                        vmwait("h%d" % (q + 2))
                        while rd: A(rd.pop(0))
                else:
                    if n == 1 and q < 21: A("s_waitcnt lgkmcnt(0)"); A(hchk(q + 1))
                    if n == 3 and q < 21: hretry(q + 1)
                    if n == 3 and rd: vmwait("h%d" % (q + 2))
                    if O('psw', 1) and q == 10:
                        if n == 3:
                            while rd: A(rd.pop(0))
                        if n >= 4: A("ds_write_b128 v8, %s offset:%d" % (v(56 + 4 * (n - 4), 4), 1024 * (n - 4)))
                    if n >= 3 and rd: A(rd.pop(0))
                if n == 2 and q == 17:
                    for j in range(4): A("buffer_load_dwordx2 %s, v9, %s, s95 offen offset:%d sc1" % (v(72 + 2 * j, 2), WS, 1024 * j))
                    A("buffer_load_dwordx2 v[80:81], v12, %s, s67 offen sc1" % WS); vmq.extend(["res"] * 5)
                n += 1
    if O('fine3', 0): TSTAMP()
    for t in range(4):
        A("ds_write_b128 v6, %s offset:%d" % (v(56 + 4 * t, 4), 1024 * t))
    A("s_waitcnt vmcnt(0)\nv_cmp_eq_u32 vcc, -1, v80")
    for j in range(4):
        for e in range(2):
            A("v_lshlrev_b32 %s, 16, %s\nv_and_b32 %s, s65, %s" % (v(88 + 8 * e + 2 * j), v(72 + 2 * j + e), v(89 + 8 * e + 2 * j), v(72 + 2 * j + e)))
    retry("r2", "buffer_load_dwordx2 v[80:81], v12, %s, s67 offen sc1" % WS, "v_cmp_eq_u32 vcc, -1, v80")
    if O('fine3', 0): TSTAMP()
    A("s_waitcnt lgkmcnt(0)\ns_barrier")
    TSTAMP()
    for sl in range(3):
        for t in range(4):
            A("ds_read_b128 %s, v10 offset:%d" % (v(112 + 16 * sl + 4 * t, 4), L_RED3 + 4096 * sl + 1024 * t))
    for sl in range(3):
        A("s_waitcnt lgkmcnt(%d)" % (8 - 4 * sl))
        for r in range(0, 16, 2):
            A("v_pk_add_f32 %s, %s, %s" % (v(40 + r, 2), v(40 + r, 2), v(112 + 16 * sl + r, 2)))
    for e in range(2):
        for mt in range(2):
            for j in (0, 2):
                d = v(40 + 8 * mt + 4 * e + j, 2)
                A("v_pk_fma_f32 %s, %s, v[80:81], %s op_sel:[0,%d,0] op_sel_hi:[1,%d,1]" % (d, d, v(88 + 8 * e + 4 * mt + j, 2), e, e))
        for mt in range(2):
            for j in (0, 2):
                A("v_cvt_pk_bf16_f32 %s, %s, %s" % (v(16 + 4 * e + 2 * mt + j // 2), v(40 + 8 * mt + 4 * e + j), v(41 + 8 * mt + 4 * e + j)))
        A("buffer_store_dwordx4 %s, v5, %s, s77 offen offset:%d %s" % (v(16 + 4 * e, 4), srd(S_OUT), 2048 * e, {0: "", 1: "sc0 sc1", 2: "nt"}[O('outf', 0)]))
    A("""
    s_or_b32 s55, s2, s3
    s_cmp_lg_u32 s55, 0
    s_cselect_b32 s55, %s, 0
    v_mov_b32 v14, s84
    s_mov_b64 exec, 1
    buffer_store_dword v14, v9, %s, s55 offen
    s_mov_b64 exec, -1
    """ % (OOB, WS))
    dump(TS + 0x10000)
    A.label("L_end")
    A("s_endpgm")
    for st_ in stubs:
        A("s_nop 7")
        A(st_)
    A.label("L_codeend")
    A("s_endpgm")
    A.raw(""".section .rodata,"a"
.p2align 6
.amdhsa_kernel %s_kernel
  .amdhsa_next_free_vgpr 256
  .amdhsa_next_free_sgpr 102
  .amdhsa_accum_offset 184
  .amdhsa_group_segment_fixed_size 0
  .amdhsa_kernarg_size 104
  .amdhsa_user_sgpr_count 2
  .amdhsa_user_sgpr_kernarg_segment_ptr 1
  .amdhsa_system_sgpr_workgroup_id_x 1
  .amdhsa_float_denorm_mode_32 3
.end_amdhsa_kernel""" % NAME)
    return A.text()

def parse(args):
    kw = {}; opt = {}
    for x in args:
        k, val = x.split("=")
        if k in ("RBX", "ROT"): kw[k] = int(val)
        elif k in ("NT",): kw[k] = val
        else: opt[k] = int(val)
    return kw, opt

if __name__ == "__main__":
    out = sys.argv[1] if len(sys.argv) > 1 else "cdna_kernels/%s.s" % NAME
    stamp = len(sys.argv) > 2 and sys.argv[2] == "stamp"
    kw, opt = parse(sys.argv[3:])
    open(out, "w").write(gen(stamp, opt=opt, **kw))
    print("wrote", out)
```

```python
import sys
from asm import Asm, v, a, s

NAME = "sequential_preLN__ssm_conv_h3__glu_gated_reglu__prompt"
EP = 0x0; R2 = 0x8000; TS = 0x10000; ST = 0x80000; STR = 0x8100; FU = 0x50000; FH = 0x60000
UP = 0x100000; QP = 0x300000; QSTR = 33024; HP = 0x700000; HH = 0xB00000
WS_BYTES = 0x1400000
HG = 88064
L_WU = 49152
L_KC = 98304; KC_STR = 4640
L_U = L_KC + 8 * KC_STR; U_STR = 4224
L_CS = L_U + 4 * U_STR
L_FLG = L_CS + 384
L_TA = L_FLG + 128
LDS_BYTES = L_TA + 8192
L_TB = L_WU + 40960
L_REDA = L_KC; L_REDB = L_KC + 16384
L_SG = L_KC
L_RED3 = 0
S_K, S_V, S_Q, S_SK, S_SSM, S_WG, S_WU, S_WD, S_OUT, S_WS, S_T = 8, 12, 16, 20, 24, 28, 32, 36, 40, 44, 48
sDP = 52; sD = 54; sPC = 74
BUDGET = 200000
WS = s(S_WS, 4)
MF = "v_mfma_f32_16x16x32_bf16"
OOB = "0x40000000"
WT = "sc0 sc1"
def srd(i): return s(i, 4)
def lines(t): return [x.strip() for x in t.strip().split("\n") if x.strip()]

def gen(stamp=False, RBX=4, ROT=0, NT="", opt=None):
    opt = opt or {}
    O = lambda k, d: opt.get(k, d)
    A = Asm()
    stubs = []
    nst = [0]
    vmq = []
    def TSTAMP():
        if stamp:
            A("s_memtime s[80:81]\ns_waitcnt lgkmcnt(0)\ns_sub_u32 s80, s80, s78\nv_writelane_b32 v15, s80, %d" % nst[0]); nst[0] += 1
    def dump(off):
        if stamp:
            A("s_waitcnt vmcnt(0)"); TSTAMP()
            A("s_cmp_lg_u32 s3, 0\ns_cbranch_scc1 L_end")
            A("s_memrealtime s[80:81]\ns_waitcnt lgkmcnt(0)\nv_writelane_b32 v15, s80, 62\nv_writelane_b32 v15, s82, 63\nv_writelane_b32 v15, s85, 61")
            A("s_lshl_b32 s55, s2, 8\ns_add_u32 s55, s55, %d\nv_lshlrev_b32 v14, 2, v1\nbuffer_store_dword v15, v14, %s, s55 offen" % (off, WS))
    def VM(txt, tag):
        A(txt); vmq.append(tag)
    def vmwait(tag, extra=""):
        tags = tag if isinstance(tag, tuple) else (tag,)
        idx = max(i for i, t in enumerate(vmq) if t in tags)
        A("s_waitcnt vmcnt(%d)%s" % (min(63, len(vmq) - 1 - idx), extra))
    def retry(name, reload_txt, chk_txt, wait="s_waitcnt vmcnt(0)"):
        A("s_cbranch_vccnz L_r%s" % name); A.label("L_o%s" % name)
        stubs.append("L_r%s:\ns_sub_u32 s85, s85, 1\ns_cbranch_scc1 L_x%s\n%s\n%s\n%s\ns_cbranch_vccnz L_r%s\ns_branch L_o%s\nL_x%s:\ns_mov_b32 s85, 0\ns_branch L_o%s"
                     % (name, name, reload_txt, wait, chk_txt, name, name, name, name))
    A.raw(open('cdna_kernels/%s.s.ref' % NAME).read().split('; @launch grid')[0].rstrip('\n'))
    A.raw("; @launch grid=(256,1,1) block=(512,1,1) lds=%d" % LDS_BYTES)
    A.raw('.amdgcn_target "amdgcn-amd-amdhsa--gfx950"\n.text\n.globl %s_kernel\n.p2align 8\n.type %s_kernel,@function\n%s_kernel:' % (NAME, NAME, NAME))
    LRB = {1: 0, 2: 1, 4: 2, 8: 3}[RBX]

    A("s_load_dwordx8 s[8:15], s[0:1], 0\ns_load_dwordx4 s[16:19], s[0:1], 32\ns_load_dwordx2 %s, s[0:1], 96" % s(S_WS, 2))
    if stamp: A("s_memtime s[78:79]\ns_memrealtime s[82:83]\nv_mov_b32 v15, 0"); nst[0] += 1
    A("s_cmp_ge_u32 s2, 256\ns_cbranch_scc1 L_end")
    if O('perm', 0):
        A("s_lshr_b32 s4, s2, 3\ns_add_u32 s4, s4, s2\ns_and_b32 s4, s4, 7\ns_and_b32 s2, s2, 0xf8\ns_or_b32 s2, s2, s4")
    A("s_getpc_b64 %s" % s(sPC, 2))
    A.label("L_pc")
    cpf = "s_lshl_b32 s55, s5, 11\nv_lshl_add_u32 v10, v0, 2, s55\nv_min_u32 v10, L_codeend-L_pc-4, v10\ns_mov_b32 exec_lo, 1\ns_mov_b32 exec_hi, 1\nglobal_load_dword v11, v10, %s\ns_mov_b64 exec, -1" % s(sPC, 2)
    cpf2 = "s_lshl_b32 s55, s5, 11\nv_and_b32 v10, 0xff, v0\nv_lshl_add_u32 v10, v10, 3, s55\nv_min_u32 v10, L_codeend-L_pc-4, v10\ns_mov_b32 exec_lo, 0x10001\ns_mov_b32 exec_hi, 0x10001\nglobal_load_dword v11, v10, %s\ns_mov_b64 exec, -1" % s(sPC, 2)
    A("""
    s_lshr_b32 s5, s2, 3
    s_and_b32 s4, s2, 7
    v_readfirstlane_b32 s6, v0
    CPF1
    s_lshl_b32 s55, s5, 16
    s_lshl_b32 s56, s4, 7
    s_add_u32 s55, s55, s56
    s_cmp_ge_u32 s6, 256
    s_cbranch_scc1 L_B0
    v_and_b32 v5, 0x38, v0
    v_lshlrev_b32 v5, 9, v5
    v_and_b32 v10, 7, v0
    v_lshl_add_u32 v5, v10, 3, v5
    v_and_b32 v6, 0x80, v0
    v_lshl_add_u32 v5, v6, 8, v5
    v_and_b32 v7, 64, v0
    v_add3_u32 v5, v5, v7, s55
    v_max_u32 v6, 0xc00, v5
    s_waitcnt lgkmcnt(0)
    """.replace("CPF1", cpf if O('cpf', 2) == 1 else ""))
    for j in range(4): VM("global_load_dwordx2 %s, v5, s[10:11] offset:%d %s" % (v(22 + 2 * j, 2), 1024 * j, NT), "k")
    for i in range(3): VM("global_load_dwordx2 %s, v6, s[10:11] offset:%d %s" % (v(16 + 2 * i, 2), 1024 * i - 3072, NT), "k")
    A("s_lshl_b32 s56, s4, 9\nv_lshl_add_u32 v10, v10, 5, s56\nv_lshl_add_u32 v10, v7, 2, v10")
    VM("global_load_dwordx4 v[48:51], v10, s[14:15]", "k")
    VM("global_load_dwordx4 v[52:55], v10, s[14:15] offset:16", "k")
    for j in range(4): VM("global_load_dwordx2 %s, v5, s[12:13] offset:%d %s" % (v(30 + 2 * j, 2), 1024 * j, NT), "v")
    A("s_barrier\ns_branch L_A")
    common = """
    v_and_b32 v1, 63, v0
    v_and_b32 v2, 15, v0
    v_lshrrev_b32 v4, 4, v1
    v_lshlrev_b32 v9, 4, v1
    s_bfe_u32 s3, s6, 0x20006
    s_lshl_b32 s66, s4, 5
    s_add_u32 s66, s66, s5
    s_and_b32 s99, s3, 1
    s_lshr_b32 s98, s3, 1
    """
    common2 = "s_mov_b32 s85, %d\ns_mov_b32 s65, 0xffff0000\ns_mov_b32 %s, %d\ns_mov_b32 %s, 0x20000" % (BUDGET, s(S_WS + 2), WS_BYTES, s(S_WS + 3))
    A.label("L_B0")
    A(common)
    A("""
    v_mov_b32 v40, 0
    v_mov_b32 v41, 0
    v_mov_b32 v42, 0
    v_mov_b32 v43, 0
    v_and_b32 v12, 3, v1
    v_lshlrev_b32 v12, 4, v12
    v_add_u32 v12, %d, v12
    ds_write_b128 v12, v[40:43]
    s_lshl_b32 s57, s2, 13
    s_lshl_b32 s56, s99, 12
    s_add_u32 s57, s57, s56
    s_lshl_b32 s56, s98, 10
    s_add_u32 s57, s57, s56
    s_lshl_b32 s61, s66, 13
    s_lshl_b32 s56, s3, 11
    s_add_u32 s61, s61, s56
    v_add_u32 v5, s57, v9
    v_add_u32 v6, s61, v9
    s_waitcnt lgkmcnt(0)
    s_barrier
    CPF2
    global_load_dwordx4 v[32:35], v5, s[8:9] NT
    global_load_dwordx4 v[36:39], v5, s[8:9] offset:2048 NT
    global_load_dwordx4 v[24:27], v6, s[16:17] NT
    global_load_dwordx4 v[28:31], v6, s[16:17] offset:1024 NT
    s_branch L_B
    """.replace("NT", NT).replace("CPF2", cpf2 if O('cpf', 2) == 2 else "") % L_FLG)
    ids = """
    s_lshr_b32 s55, s4, %d
    s_lshl_b32 s55, s55, %d
    s_and_b32 s60, s5, %d
    s_add_u32 s86, s55, s60
    s_and_b32 s55, s4, %d
    s_mul_i32 s55, s55, %d
    s_lshr_b32 s56, s5, %d
    s_add_u32 s87, s55, s56
    s_mul_i32 s88, s56, %d
    s_mul_i32 s60, s60, %d
    s_add_u32 s88, s88, s60
    s_and_b32 s88, s88, 15
    """ % (LRB, LRB, RBX - 1, RBX - 1, 32 // RBX, LRB, ROT, O('rot2', 16 // RBX))
    def haddr(hv, r2v, tmp):
        return """
        s_lshl_b32 s55, s86, 2
        s_add_u32 s55, s55, s3
        s_mul_i32 s55, s55, %d
        s_mul_i32 s56, s87, 2816
        s_add_u32 s55, s55, s56
        s_add_u32 s89, s55, %d
        s_add_u32 s90, s89, %d
        v_mov_b32 T0, %s
        v_cmp_eq_u32 vcc, 3, v4
        v_cndmask_b32 T1, v9, T0, vcc
        s_cmp_eq_u32 s87, 31
        s_cselect_b64 vcc, -1, 0
        v_cndmask_b32 %s, v9, T1, vcc
        v_cndmask_b32 %s, v9, T0, vcc
        v_cndmask_b32 %s, T1, T0, vcc
        v_lshrrev_b32 T1, 2, v2
        v_lshlrev_b32 %s, 4, v2
        v_cmp_eq_u32 vcc, T1, v4
        v_cndmask_b32 %s, T0, %s, vcc
        s_lshl_b32 s55, s86, 10
        s_lshl_b32 s56, s3, 8
        s_add_u32 s55, s55, s56
        s_add_u32 s55, s55, %d
        s_cmp_eq_u32 s87, 31
        s_cselect_b32 s91, s55, %s
        """.replace("T0", tmp[0]).replace("T1", tmp[1]) % (2 * HG, HH, HG, OOB, hv[0], hv[1], hv[2], r2v, r2v, r2v, R2, OOB)
    def xpose_addr(wr, rd, gv, base):
        return """
        v_and_b32 RD, 7, v2
        v_xor_b32 WR, v4, RD
        v_lshl_add_u32 WR, v2, 3, 0
        v_or_b32 WR, WR, v4
        v_xor_b32 WR, WR, RD
        v_lshlrev_b32 WR, 4, WR
        s_lshl_b32 s55, s3, 11
        s_add_u32 s55, s55, %d
        v_add_u32 WR, s55, WR
        v_lshrrev_b32 RD, 3, v1
        v_xor_b32 RD, RD, v1
        v_lshlrev_b32 RD, 4, RD
        v_add_u32 RD, s55, RD
        v_lshrrev_b32 GV, 2, v1
        v_lshlrev_b32 GV, 13, GV
        v_and_b32 v14, 3, v1
        v_lshl_add_u32 GV, v14, 4, GV
        """.replace("WR", wr).replace("RD", rd).replace("GV", gv) % base

    A.label("L_A")
    A(common); A(common2)
    A("s_movk_i32 s55, 0x1000\nv_cmp_gt_u32 s[20:21], s55, v5")
    A("""
    v_and_b32 v133, 7, v1
    v_lshrrev_b32 v134, 3, v1
    v_xor_b32 v132, v134, v133
    v_lshl_add_u32 v132, v133, 4, v132
    v_lshlrev_b32 v132, 4, v132
    s_lshl_b32 s55, s3, 11
    s_add_u32 s55, s55, %d
    v_add_u32 v132, s55, v132
    v_lshlrev_b32 v134, 13, v134
    v_lshl_add_u32 v134, v133, 4, v134
    v_xor_b32 v133, v1, v4
    v_lshlrev_b32 v133, 4, v133
    v_add_u32 v133, s55, v133
    v_xor_b32 v136, 64, v133
    """ % L_TA)
    HV = ["v176", "v177", "v178"]
    A("""
    s_lshl_b32 s55, s4, 18
    s_lshl_b32 s56, s5, 8
    s_add_u32 s55, s55, s56
    s_lshl_b32 s56, s98, 7
    s_add_u32 s55, s55, s56
    s_lshl_b32 s56, s99, 17
    s_add_u32 s55, s55, s56
    s_add_u32 s95, s55, %d
    s_add_u32 s97, s95, 0x10000
    """ % UP)
    if O('pw', 1):
        A("""
        s_lshl_b32 s55, s66, 7
        s_add_u32 s55, s55, %d
        s_cmp_lg_u32 s3, 0
        s_cselect_b32 s55, %s, s55
        v_mov_b32 v140, 0
        v_mov_b32 v141, 0
        v_mov_b32 v142, 0
        v_mov_b32 v143, 0
        s_mov_b64 exec, 0xff
        """ % (FU, OOB))
        VM("buffer_store_dwordx4 v[140:143], v9, %s, s55 offen %s" % (WS, WT), "pw")
        A("s_mov_b64 exec, -1")
    TSTAMP()
    vmwait("k")
    TSTAMP()
    for r in range(16, 22): A("v_cndmask_b32 %s, %s, 0, s[20:21]" % (v(r), v(r)))
    for c in range(4):
        for tap in range(4):
            src = 48 + 2 * c + (tap >> 1); dst = 64 + 4 * tap + c
            A(("v_lshlrev_b32 %s, 16, %s" if tap % 2 == 0 else "v_and_b32 %s, s65, %s") % (v(dst), v(src)))
    for i in range(7):
        for e in range(2):
            src = 16 + 2 * i + e; dst = 80 + 4 * i + 2 * e
            A("v_lshlrev_b32 %s, 16, %s\nv_and_b32 %s, s65, %s" % (v(dst), v(src), v(dst + 1), v(src)))
    for tap in range(4):
        for j in range(4):
            for e in range(2):
                d = v(144 + 4 * j + 2 * e, 2); kk = v(80 + 4 * (j + 3 - tap) + 2 * e, 2); ww = v(64 + 4 * tap + 2 * e, 2)
                if tap == 0: A("v_pk_mul_f32 %s, %s, %s" % (d, kk, ww))
                else: A("v_pk_fma_f32 %s, %s, %s, %s" % (d, kk, ww, d))
    vmwait("v")
    for j in range(4):
        for e in range(2):
            src = 30 + 2 * j + e; dst = 108 + 4 * j + 2 * e
            A("v_lshlrev_b32 %s, 16, %s\nv_and_b32 %s, s65, %s" % (v(dst), v(src), v(dst + 1), v(src)))
    for j in range(4):
        for e in range(2):
            d = 144 + 4 * j + 2 * e
            A("v_pk_mul_f32 %s, %s, %s" % (v(d, 2), v(d, 2), v(108 + 4 * j + 2 * e, 2)))
    for e in range(2):
        for j in range(4):
            d = 144 + 4 * j + 2 * e
            A("v_cvt_pk_bf16_f32 %s, %s, %s" % (v(124 + 4 * e + j), v(d), v(d + 1)))
        A("ds_write_b128 v132, %s offset:%d" % (v(124 + 4 * e, 4), 128 * e))
    A("ds_read_b128 v[16:19], v133\nds_read_b128 v[20:23], v136 offset:1024")
    A("s_waitcnt lgkmcnt(1)")
    A("buffer_store_dwordx4 v[16:19], v134, %s, s95 offen %s" % (WS, WT))
    A("s_waitcnt lgkmcnt(0)")
    A("buffer_store_dwordx4 v[20:23], v134, %s, s97 offen %s" % (WS, WT))
    TSTAMP()
    A("s_load_dword s84, %s, 0" % s(S_WS, 2))
    A(ids)
    A(haddr(HV, "v179", ("v12", "v13")))
    A("""
    s_lshl_b32 s67, s66, 13
    s_lshl_b32 s56, s3, 11
    s_add_u32 s67, s67, s56
    s_add_u32 s67, s67, %d
    s_sub_u32 s59, s67, 4
    s_lshl_b32 s62, s66, 7
    s_add_u32 s62, s62, FUADDR
    s_lshl_b32 s63, s4, 12
    s_add_u32 s63, s63, FUADDR
    s_lshl_b32 s56, s3, 3
    s_sub_u32 s56, s56, 1
    v_add_u32 v8, s56, v1
    v_max_i32 v8, 0, v8
    v_lshlrev_b32 v8, 7, v8
    v_mov_b32 v3, FLGADDR
    s_lshl_b32 s56, s3, 7
    v_xor_b32 v7, 1, v1
    v_add_u32 v7, s56, v7
    v_lshlrev_b32 v7, 3, v7
    v_add_u32 v7, %d, v7
    v_cmp_eq_u32 s[100:101], 0, v0
    s_mov_b32 s64, 0x05040100
    s_mov_b32 s71, 0x07060302
    v_and_b32 v180, 3, v2
    s_movk_i32 s55, %d
    v_mul_lo_u32 v180, v180, s55
    v_lshrrev_b32 v14, 2, v2
    v_lshl_add_u32 v180, v14, 7, v180
    v_lshl_add_u32 v180, v4, 4, v180
    s_mul_i32 s56, s98, %d
    s_lshl_b32 s57, s99, 8
    s_add_u32 s56, s56, s57
    s_add_u32 s56, s56, %d
    v_add_u32 v180, s56, v180
    v_and_b32 v181, 1, v2
    s_movk_i32 s55, %d
    v_mul_lo_u32 v181, v181, s55
    v_lshrrev_b32 v14, 1, v2
    v_lshl_add_u32 v181, v14, 4, v181
    v_lshlrev_b32 v14, 4, v4
    v_sub_u32 v181, v181, v14
    s_mul_i32 s56, s98, %d
    s_sub_u32 s56, s56, s57
    s_add_u32 s56, s56, %d
    v_add_u32 v181, s56, v181
    s_mul_i32 s56, s98, %d
    s_lshl_b32 s57, s99, 13
    s_add_u32 s56, s56, s57
    s_add_u32 s56, s56, %d
    v_add_u32 v182, s56, v9
    """.replace("FUADDR", str(FU)).replace("FLGADDR", str(L_FLG)) % (UP, L_U + 8 * 16, KC_STR, 4 * KC_STR, L_KC + 7 * 16,
           U_STR, 2 * U_STR, L_U + 20 * 16, L_REDB - L_REDA, L_REDA))
    A("s_waitcnt lgkmcnt(0)\ns_add_u32 s84, s84, 1\ns_or_b32 s84, s84, 0x80000000")
    A("v_mov_b32 v24, s84\nv_mov_b32 v25, s84\nv_mov_b32 v26, s84\nv_mov_b32 v27, s84\nv_mov_b32 v14, 1")
    A("""
    s_mov_b64 exec, 1
    s_waitcnt vmcnt(0)
    ds_add_rtn_u32 v14, v3, v14 offset:12
    s_waitcnt lgkmcnt(0)
    v_readfirstlane_b32 s55, v14
    s_mov_b64 exec, 0xff
    s_cmp_lg_u32 s55, 3
    s_cselect_b32 s62, %s, s62
    buffer_store_dwordx4 v[24:27], v9, %s, s62 offen %s
    s_mov_b64 exec, 0x1ff
    """ % (OOB, WS, WT)); vmq.clear()
    TSTAMP()
    if O('fudelay', 0): A("s_sleep %d" % O('fudelay', 0))
    fu_txt = "buffer_load_dword v14, v8, %s, s63 offen sc1" % WS
    fu_chk = "v_cmp_ne_u32 vcc, s84, v14"
    A(fu_txt + "\ns_waitcnt vmcnt(0)\n" + fu_chk)
    retry("up", fu_txt, fu_chk)
    A("s_mov_b64 exec, -1")
    TSTAMP()
    UL = "sc1" if O('upsc', 0) else ""
    A("""buffer_load_dwordx4 v[32:35], v9, WS, s67 offen UL
    buffer_load_dwordx4 v[40:43], v9, WS, s67 offen offset:1024 UL
    buffer_load_dword v36, v9, WS, s59 offen UL
    buffer_load_dword v44, v9, WS, s59 offen offset:1024 UL
    v_mov_b32 v14, 1
    s_mov_b64 exec, 1
    ds_add_u32 v3, v14 offset:24
    s_mov_b64 exec, -1
    s_waitcnt vmcnt(0)""".replace("WS", WS).replace("UL", UL))
    TSTAMP()
    A("v_cndmask_b32 v36, v36, 0, s[100:101]")
    for h in range(2):
        b = 32 + 8 * h
        W_ = lambda i: v(b + 4) if i < 0 else v(b + i)
        for c in range(2):
            for pi in range(2):
                o = 64 + 8 * h + 2 * (2 * c + pi)
                for jj in range(2):
                    lo = 2 + pi - 2 * jj; hi = lo - 1
                    A("v_perm_b32 %s, %s, %s, %s" % (v(o + jj), W_(hi), W_(lo), "s64" if c == 0 else "s71"))
                A("ds_write_b64 v7, %s offset:%d" % (v(o, 2), (2 * c + pi) * U_STR + 512 * h))
    A("v_mov_b32 v14, 1\ns_mov_b64 exec, 1\nds_add_u32 v3, v14 offset:40\ns_mov_b64 exec, -1\nds_read_b32 v12, v3 offset:40\ns_waitcnt lgkmcnt(0)\nv_cmp_ne_u32 vcc, 8, v12")
    retry("b4a", "ds_read_b32 v12, v3 offset:40", "v_cmp_ne_u32 vcc, 8, v12", wait="s_waitcnt lgkmcnt(0)")
    TSTAMP()
    BF = lambda buf, ct: v(16 + 32 * buf + 4 * ct, 4)
    ACC = lambda t: v(80 + 4 * t, 4)
    KF = lambda ph, g: a(32 * (ph & 1) + 4 * g, 4)
    bread = lambda ph, ct: "ds_read_b128 %s, v181 offset:%d" % (BF(ph & 1, ct), 512 * ct + 64 * (3 - ph))
    kread = lambda ph, g: "ds_read_b128 %s, v180 offset:%d" % (KF(ph, g), 512 * g + 64 * ph)
    for i in range(7): A(kread(0, i)); A(bread(0, i))
    p2pre = lines("""v_lshrrev_b32 v5, 2, v1
    v_mul_u32_u24 v5, 96, v5
    v_and_b32 v14, 3, v1
    v_lshl_add_u32 v5, v14, 3, v5
    v_add_u32 v6, %d, v5
    s_lshl_b32 s55, s3, 12
    v_add_u32 v7, s55, v9
    s_lshl_b32 s67, s86, 18
    s_add_u32 s67, s67, %d
    v_lshlrev_b32 v8, 4, v4
    v_add_u32 v8, %d, v8
    v_mov_b32 v3, %d
    v_lshlrev_b32 v10, 2, v2
    v_add_u32 v10, 0xc0, v10""" % (L_WU, HP, L_CS, L_FLG))
    touched = set(); issued = 14
    for ph in range(4):
        if ph in (0, 3): order = [(t - ct, ct) for t in range(8) for ct in range(t + 1)]
        else: order = [(g, ct) for ct in range(8) for g in range(8 - ct)]
        nxt = [x for i in range(8) for x in (kread(ph + 1, i), bread(ph + 1, i))] if ph < 3 else []
        for idx, (g, ct) in enumerate(order):
            t = g + ct
            if ph == 0 and ct == 0:
                need = 2 * (t + 1)
                if t < 7 or True: A("s_waitcnt lgkmcnt(%d)" % min(15, issued - need))
            if ph > 0 and idx == 0: A("s_waitcnt lgkmcnt(0)")
            if 36 * ph + idx == O('lpi', 40): A("v_mov_b32 v14, 1\nds_write_b32 v3, v14 offset:32")
            if ph == 3 and idx == 0: A("v_mov_b32 v14, 1\ns_mov_b64 exec, 1\nds_add_u32 v3, v14 offset:16\ns_mov_b64 exec, -1")
            A("%s %s, %s, %s, %s" % (MF, ACC(t), KF(ph, g), BF(ph & 1, ct), ACC(t) if t in touched else "0"))
            touched.add(t)
            if ph == 3 and idx == 6: A("ds_read_b32 v12, v3 offset:16")
            if ph == 3 and idx == 12: A("s_waitcnt lgkmcnt(0)\nv_cmp_ne_u32 vcc, 4, v12")
            if ph == 3 and idx == 14: retry("kc", "ds_read_b32 v12, v3 offset:16", "v_cmp_ne_u32 vcc, 4, v12", wait="s_waitcnt lgkmcnt(0)")
            if ph == 3 and idx in (15, 17, 19, 21): A("ds_write_b128 v182, %s offset:%d" % (ACC((idx - 15) // 2), 1024 * ((idx - 15) // 2)))
            if ph == 0 and idx == 1: A(kread(0, 7)); A(bread(0, 7)); issued += 2
            if idx >= 16 and nxt:
                A(nxt.pop(0))
                if ph == 0: issued += 1
            if ph == 1 and p2pre: A(p2pre.pop(0))
            if ph == 3 and idx in (23, 28): A("ds_write_b128 v182, %s offset:%d" % (ACC(4 if idx == 23 else 5), 1024 * (4 if idx == 23 else 5)))
        assert not nxt
    A("ds_write_b128 v182, %s offset:%d" % (ACC(6), 1024 * 6))
    A("ds_write_b128 v182, %s offset:%d" % (ACC(7), 1024 * 7))
    A("s_waitcnt lgkmcnt(0)")
    TSTAMP()
    A("s_barrier")
    TSTAMP()
    A("s_barrier")
    TSTAMP()
    XS = lambda st: 16 + 16 * (st & 3)
    AC = lambda arr, ft, tau: v(80 + 48 * arr + 16 * ft + 4 * tau, 4)
    WF = lambda st, arr, ft: 24 * (st & 1) + 12 * arr + 4 * ft
    def xaddr(st): return ["s_add_u32 s55, s88, %d" % st, "s_and_b32 s55, s55, 15", "s_lshl_b32 s55, s55, 14", "s_add_u32 s96, s55, s67"]
    def xlds(st): return ["buffer_load_dwordx4 %s, v7, %s, s96 offen offset:%d sc1" % (v(XS(st) + 4 * j, 4), WS, 1024 * j) for j in range(4)]
    def xload_txt(st): return "\n".join(xaddr(st) + xlds(st)).replace("s96", "s97")
    def xload(st):
        A("\n".join(xaddr(st) + xlds(st))); vmq.extend(["x%d" % st] * 4)
    def xchk(st):
        b = XS(st)
        return ["v_max3_u32 v11, %s, %s, %s" % (v(b), v(b + 4), v(b + 8)), "v_max_u32 v11, v11, %s" % v(b + 12), "v_cmp_eq_u32 vcc, -1, v11"]
    def wreads(st):
        return ["ds_read_b64_tr_b16 %s, %s offset:%d" % (a(WF(st, arr, ft) + 2 * h, 2), "v6" if arr else "v5", st * 3072 + h * 1536 + ft * 32)
                for arr in range(2) for ft in range(3) for h in range(2)]
    def swaps(st):
        b = XS(st)
        return ["v_swap_b32 %s, %s" % (v(b + 4 * j + t), v(b + 4 * t + j)) for j in range(4) for t in range(j + 1, 4)]
    if O('xdelay', 0): A("s_sleep %d" % O('xdelay', 0))
    if O('x3', 0):
        xload(0); xload(1); xload(2)
        for r in wreads(0): A(r)
        vmwait("x0")
        for r in xchk(0): A(r)
        retry("xP", "\n".join(xload_txt(i) for i in range(3)), "\n".join(xchk(0)), wait="s_waitcnt vmcnt(8)")
        TSTAMP()
    else:
        xload(0)
        for r in wreads(0): A(r)
        vmwait("x0")
        for r in xchk(0): A(r)
        if O('xr3', 0):
            A("s_cbranch_vccnz L_rxP")
            xload(1); xload(2)
            A.label("L_oxP")
            stubs.append("L_rxP:\n%s\ns_waitcnt vmcnt(8)\n%s\ns_cbranch_vccz L_oxP\ns_sub_u32 s85, s85, 1\ns_cbranch_scc0 L_rxP\ns_mov_b32 s85, 0\ns_branch L_oxP"
                         % ("\n".join(xload_txt(i) for i in range(3)), "\n".join(xchk(0))))
            TSTAMP()
        else:
            retry("xP", xload_txt(0), "\n".join(xchk(0)))
            TSTAMP()
            xload(1); xload(2)
    for r in swaps(0): A(r)
    if O('aprio', 2): A("s_setprio %d" % O('aprio', 2))
    A("s_cmp_eq_u32 s87, 31\ns_cbranch_scc1 L_p2alt")
    def flagrd(k): return "ds_read_b32 v12, v3 offset:%d" % (4 * k)
    flagchk = "v_cmp_ne_u32 vcc, 4, v12"
    def p2loop(alt):
        for st in range(16):
            ml = []
            for arr in range(2):
                for ft in range(3):
                    for tau in range(4):
                        xf = v(XS(st) + 4 * tau, 4)
                        wf = a(WF(st, arr, ft), 4)
                        if alt and arr == 1 and ft == 2: wf = xf
                        ml.append("%s %s, %s, %s, %s" % (MF, AC(arr, ft, tau), wf, xf, AC(arr, ft, tau) if st else "0"))
            wr = wreads(st + 1) if st < 15 else ["ds_read_b128 %s, v8 offset:%d" % (v(40 + 4 * t, 4), 64 * t) for t in range(6)]
            if st in (8, 14): wr = wr + [flagrd(0 if st == 8 else 1)]
            sw = swaps(st + 1) if st < 15 else []
            ck = xchk(st + 1) if st < 15 else []
            xa = xaddr(st + 3) if st + 3 < 16 else []
            xl = xlds(st + 3) if st + 3 < 16 else []
            tg = "b" if alt else "a"
            if O('fine2', 0) and st > 0:
                if alt and st == 1: nst[0] -= 15
                TSTAMP()
            A("s_waitcnt lgkmcnt(0)")
            for i, m in enumerate(ml):
                if i == 0 and st in (9, 15): A(flagchk)
                A(m)
                if i == 1 and st in (9, 15): retry("f%s%d" % (tg, st), flagrd(0 if st == 9 else 1), flagchk, wait="s_waitcnt lgkmcnt(0)")
                if i < 2 and xa: A(xa.pop(0)); A(xa.pop(0))
                if i >= (2 if st in (9, 15) else O('wr0', 2)) and wr:
                    A(wr.pop(0))
                    if O('wr2', 0) and i % 2 == 1 and wr: A(wr.pop(0))
                if i in (2, 4, 6, 8) and xl: VM(xl.pop(0).replace(" sc1", "" if O('xplain', 0) else " sc1"), "x%d" % (st + 3))
                if st <= 12 and i == O('pgi', 15) - 6: A("v_mov_b32 v13, %d" % (st + 1))
                if st <= 12 and i == O('pgi', 15): A("ds_write_b32 v3, v13 offset:36")
                if i == 12 and sw: vmwait("x%d" % (st + 1))
                if i >= 12 and ck:
                    x = ck.pop(0)
                    if not O('nochk', 0): A(x)
                if i == 16 and sw and not O('nochk', 0): retry("x%s%d" % (tg, st + 1), xload_txt(st + 1), "\n".join(xchk(st + 1)))
                if i >= 16 and sw:
                    x = sw.pop(0)
                    if not O('nosw', 0): A(x)
            assert not wr and not sw and not xl
    sv = list(vmq)
    p2loop(False)
    A("s_branch L_p2join")
    A.label("L_p2alt")
    vmq[:] = sv
    p2loop(True)
    A.label("L_p2join")
    TSTAMP()
    A("s_nop 3")
    for tau in range(4):
        A("ds_bpermute_b32 %s, v10, %s" % (v(64 + 2 * tau), v(80 + 32 + 4 * tau)))
    A("s_mov_b32 s57, 0xbb000000\ns_waitcnt lgkmcnt(0)")
    for tau in range(4): A("v_mul_f32 %s, s57, %s" % (v(64 + 2 * tau), v(64 + 2 * tau)))
    A("s_cmp_lg_u32 s87, 31\ns_cbranch_scc1 L_novar")
    A("v_and_b32 v10, 3, v2")
    for tau in range(4): A("v_mov_b32 %s, %s" % (v(72 + tau), v(80 + 48 + 32 + 4 * tau)))
    for j in range(1, 4):
        A("v_cmp_eq_u32 vcc, %d, v10" % j)
        for tau in range(4):
            A("v_cndmask_b32 %s, %s, %s, vcc" % (v(72 + tau), v(72 + tau), v(80 + 48 + 32 + 4 * tau + j)))
    A("s_mov_b32 s56, 0x3b000000\ns_mov_b32 s57, 0x3727c5ac")
    for tau in range(4): A("v_mul_f32 %s, s56, %s" % (v(72 + tau), v(72 + tau)))
    for tau in range(4): A("v_fma_f32 %s, -%s, %s, %s" % (v(72 + tau), v(64 + 2 * tau), v(64 + 2 * tau), v(72 + tau)))
    for tau in range(4): A("v_max_f32 %s, 0, %s" % (v(72 + tau), v(72 + tau)))
    for tau in range(4): A("v_add_f32 %s, s57, %s" % (v(72 + tau), v(72 + tau)))
    for tau in range(4): A("v_rcp_f32 %s, %s" % (v(72 + tau), v(72 + tau)))
    A("s_nop 0\nbuffer_store_dwordx4 v[72:75], v179, %s, s91 offen %s" % (WS, WT))
    A.label("L_novar")
    for ft in range(3):
        for g in range(2):
            o = 16 + 8 * ft + 4 * g
            for e in range(2):
                tau = 2 * g + e
                gb = 80 + 16 * ft + 4 * tau; ub = gb + 48
                M = v(64 + 2 * tau, 2)
                for j in (0, 2):
                    A("v_pk_fma_f32 %s, %s, %s, %s op_sel_hi:[1,0,1]" % (v(gb + j, 2), v(40 + 4 * ft + j, 2), M, v(gb + j, 2)))
                    A("v_pk_fma_f32 %s, %s, %s, %s op_sel_hi:[1,0,1]" % (v(ub + j, 2), v(52 + 4 * ft + j, 2), M, v(ub + j, 2)))
                for j in range(4): A("v_max_f32 %s, 0, %s" % (v(gb + j), v(gb + j)))
                for j in (0, 2): A("v_pk_mul_f32 %s, %s, %s" % (v(gb + j, 2), v(gb + j, 2), v(ub + j, 2)))
                for j in (0, 2): A("v_cvt_pk_bf16_f32 %s, %s, %s" % (v(o + 2 * e + j // 2), v(gb + j), v(gb + j + 1)))
            A("buffer_store_dwordx4 %s, %s, %s, %s offen offset:%d %s" % (v(o, 4), HV[ft], WS, "s90" if g else "s89", 1024 * ft, WT))
    TSTAMP()
    A("s_barrier")
    dump(TS)
    A("s_endpgm")

    A.label("L_B")
    vmq.clear(); nst[0] = 1; vmq.extend(["stat", "stat", "ssm", "ssm"])
    if O('bprio', 1): A("s_setprio %d" % O('bprio', 1))
    A("s_load_dword s84, %s, 0\ns_lshl_b32 s56, s66, 2\ns_load_dword %s, s[18:19], s56" % (s(S_WS, 2), s(sD)))
    for reg, off in ((S_WD, 72), (S_WG, 56), (S_WU, 64), (S_OUT, 80)):
        A("s_load_dwordx2 %s, s[0:1], %d" % (s(reg, 2), off))
    A(common2)
    for reg, nb in ((S_WD, 1376 * 1024), (S_OUT, 2097152), (S_T, 512 * 2752)):
        A("s_mov_b32 %s, %d\ns_mov_b32 %s, 0x20000" % (s(reg + 2), nb, s(reg + 3)))
    A("""
    s_lshr_b32 s55, s66, 4
    s_lshl_b32 s72, s55, 14
    s_and_b32 s55, s66, 3
    s_lshl_b32 s55, s55, 10
    s_add_u32 s72, s72, s55
    s_bfe_u32 s55, s66, 0x20002
    s_lshl_b32 s55, s55, 8
    s_add_u32 s72, s72, s55
    s_lshl_b32 s55, s3, 19
    s_add_u32 s72, s72, s55
    s_add_u32 s72, s72, %d
    s_add_u32 s73, s72, 0x40000
    v_lshlrev_b32 v63, 4, v2
    v_lshl_add_u32 v63, v4, 12, v63
    v_mov_b32 v64, -1
    v_mov_b32 v65, -1
    v_mov_b32 v66, -1
    v_mov_b32 v67, -1
    """ % HP)
    def hpfill():
        VM("buffer_store_dwordx4 v[64:67], v63, %s, s72 offen %s" % (WS, WT), "fill")
        VM("buffer_store_dwordx4 v[64:67], v63, %s, s73 offen %s" % (WS, WT), "fill")
    hpfill()
    if O('pw', 1):
        A("""
        v_and_b32 v13, 7, v1
        v_lshrrev_b32 v12, 3, v1
        v_mul_u32_u24 v12, %d, v12
        v_lshl_add_u32 v12, v13, 4, v12
        s_lshl_b32 s55, s2, 7
        s_add_u32 s55, s55, %d
        s_cmp_lg_u32 s3, 0
        s_cselect_b32 s55, %s, s55
        """ % (STR, ST, OOB))
        VM("buffer_store_dwordx4 v[40:43], v12, %s, s55 offen %s" % (WS, WT), "pw")
    A(ids)
    A("""
    v_and_b32 v6, 7, v1
    v_xor_b32 v5, s98, v6
    v_lshlrev_b32 v5, 4, v5
    v_lshl_add_u32 v5, v1, 7, v5
    s_lshl_b32 s55, s99, 3
    s_add_u32 s55, s55, %d
    v_add_u32 v5, s55, v5
    v_lshrrev_b32 v7, 3, v1
    s_mov_b32 s55, %d
    v_mul_lo_u32 v8, v7, s55
    v_lshl_add_u32 v8, v6, 4, v8
    v_xor_b32 v6, v6, v7
    v_lshlrev_b32 v6, 4, v6
    v_lshl_add_u32 v6, v7, 7, v6
    s_lshl_b32 s55, s3, 11
    s_add_u32 s55, s55, %d
    v_add_u32 v6, s55, v6
    v_xor_b32 v16, 32, v5
    v_xor_b32 v17, 64, v5
    v_xor_b32 v18, 0x60, v5
    """ % (L_TB, QSTR, L_TB))
    A("""
    s_mul_i32 s55, s3, %d
    s_add_u32 s55, s55, %d
    v_and_b32 v12, 7, v1
    v_lshl_add_u32 v12, v12, 4, s55
    ds_write_b128 v12, v[40:43]
    s_cmp_lg_u32 s99, 0
    s_cbranch_scc1 L_nohead
    v_and_b32 v12, 31, v1
    v_lshlrev_b32 v12, 4, v12
    v_lshrrev_b32 v13, 5, v1
    s_movk_i32 s56, %d
    v_mad_u32_u24 v12, v13, s56, v12
    s_mul_i32 s55, s98, %d
    s_add_u32 s55, s55, %d
    v_add_u32 v12, s55, v12
    ds_write_b128 v12, v[40:43]
    ds_write_b128 v12, v[40:43] offset:%d
    L_nohead:
    """ % (U_STR, L_U, KC_STR, 4 * KC_STR, L_KC, 2 * KC_STR))
    A("""
    s_mul_i32 s55, s3, %d
    s_lshl_b32 s56, s2, 7
    s_add_u32 s55, s55, s56
    s_add_u32 s95, s55, %d
    s_add_u32 s97, s95, %d
    s_movk_i32 s55, 0x2aab
    s_movk_i32 s56, 2752
    """ % (16 * QSTR, QP, 8 * QSTR))
    for i3 in range(3):
        A("""
        v_add_u32 v14, %d, v1
        v_mul_u32_u24 v3, s55, v14
        v_lshrrev_b32 v3, 16, v3
        v_mul_u32_u24 v13, 6, v3
        v_sub_u32 v14, v14, v13
        v_bfe_u32 v13, v3, 2, 2
        v_lshlrev_b32 v13, 3, v13
        v_lshrrev_b32 v12, 4, v3
        v_lshl_add_u32 v13, v12, 2, v13
        v_and_b32 v3, 3, v3
        v_add_u32 v13, v13, v3
        v_mul_u32_u24 v13, s56, v13
        v_lshl_add_u32 %s, v14, 4, v13
        """ % (64 * i3, v(60 + i3)))
    A("""
    s_waitcnt lgkmcnt(0)
    s_bitcmp1_b32 s3, 0
    s_cselect_b32 s48, s32, s28
    s_cselect_b32 s49, s33, s29
    s_add_u32 s69, s88, s98
    s_mul_i32 s70, s87, 88
    s_mul_i32 s76, s99, %d
    s_mul_i32 s56, s98, 3072
    s_add_u32 s76, s76, s56
    s_mul_i32 s56, s98, %d
    s_lshl_b32 s57, s99, 11
    s_add_u32 s56, s56, s57
    s_add_u32 s56, s56, %d
    v_add_u32 v44, s56, v9
    v_add_u32 v45, %d, v44
    v_add_u32 v46, %d, v44
    v_add_u32 v47, %d, v44
    v_mov_b32 v3, FLGA
    """.replace("FLGA", str(L_FLG)) % (L_WU, 4 * KC_STR, L_KC + 512 - 4, KC_STR - 4, 2 * KC_STR - 8, 3 * KC_STR - 12))
    ndma = [0]
    def w1dma(n):
        for _ in range(n):
            i = ndma[0]; ndma[0] += 1
            gi, i3 = divmod(i, 3)
            if i3 == 0: A("s_and_b32 s77, s69, 15\ns_mul_i32 s77, s77, 88064\ns_add_u32 s77, s77, s70\ns_add_u32 s69, s69, 2")
            A("s_add_u32 m0, s76, %d" % (gi * 6144 + i3 * 1024))
            VM("buffer_load_dwordx4 %s, %s, s77 offen %s lds" % (v(60 + i3), srd(S_T), "nt" if i < O('w1nt', 0) else ""), "dma")
    span = 88 * (32 // RBX)
    ntouch = ((span + 8 + 127 + 127) // 128 + 7) // 8
    def w1touch(pos):
        if O('w1tp', 9) != pos: return 0
        A("""
        v_lshrrev_b32 v12, 3, v1
        s_movk_i32 s55, 2752
        v_mul_lo_u32 v12, v12, s55
        v_and_b32 v13, 7, v1
        v_lshlrev_b32 v13, 7, v13
        s_lshl_b32 s55, s5, 1
        s_add_u32 s55, s55, s98
        s_mul_i32 s55, s55, 22016
        s_and_b32 s56, s4, %d
        s_mul_i32 s56, s56, %d
        s_add_u32 s55, s55, s56
        """ % (RBX - 1, span))
        for i in range(ntouch):
            A("v_add_u32 v14, %d, v13\nv_min_u32 v14, %d, v14\nv_add_u32 v14, v14, v12" % (1024 * i, span + 4))
            VM("buffer_load_dword v11, v14, %s, s55 offen %s" % (srd(S_T), "nt" if O('tnt', 0) else ""), "tch")
        return ntouch
    def hfill(pos):
        if O('hfp', 0) != pos: return
        A(haddr(["v68", "v69", "v70"], "v71", ("v12", "v13")))
        for ft in range(3):
            for g in range(2):
                VM("buffer_store_dwordx4 v[64:67], %s, %s, %s offen offset:%d %s" % (v(68 + ft), WS, "s90" if g else "s89", 1024 * ft, WT), "fill")
        VM("buffer_store_dwordx4 v[64:67], v71, %s, s91 offen %s" % (WS, WT), "fill")
        A("v_mov_b32 v13, 1")
    def w1mall(pos):
        if O('w1m', 9) != pos: return 0
        A("s_lshl_b32 s55, s2, 1\ns_add_u32 s55, s55, s98\ns_mul_i32 s55, s55, 2752\nv_lshlrev_b32 v12, 7, v1\ns_mov_b64 exec, 0x3fffff")
        VM("buffer_load_dword v11, v12, %s, s55 offen" % srd(S_T), "tch")
        A("s_mov_b64 exec, -1")
        return 1
    def wdtouch(pos):
        if O('wdtp', 1) != pos: return
        if O('wdtm', 1) == 1:
            A("s_lshl_b32 s55, s2, 2\ns_add_u32 s55, s55, s3\ns_mul_i32 s55, s55, 1408\nv_lshlrev_b32 v12, 7, v1\ns_mov_b64 exec, 0x7ff")
            VM("buffer_load_dword %s, v12, %s, s55 offen" % ("v63" if pos == 4 else "v11", srd(S_WD)), "tch")
            A("s_mov_b64 exec, -1")
        else:
            A("s_lshl_b32 s55, s5, 2\ns_add_u32 s55, s55, s3\ns_mul_i32 s55, s55, 11008\nv_lshlrev_b32 v12, 7, v1")
            VM("buffer_load_dword v11, v12, %s, s55 offen" % srd(S_WD), "tch")
            A("s_add_u32 s55, s55, 8192\ns_mov_b64 exec, 0x3fffff")
            VM("buffer_load_dword v11, v12, %s, s55 offen" % srd(S_WD), "tch")
            A("s_mov_b64 exec, -1")
    TSTAMP()
    w1mall(0); wdtouch(5)
    w1dma(O('nw1a', 0))
    A("v_mov_b32 v21, 0x3f803f80")
    vmwait("stat")
    TSTAMP()
    w1touch(1)
    for i in range(4): A("ds_write2_b32 %s, %s, %s offset0:0 offset1:1" % (("v5", "v16", "v17", "v18")[i], v(32 + i), v(36 + i)))
    A("v_mov_b32 v14, 1\ns_waitcnt lgkmcnt(0)\ns_mov_b64 exec, 1\nds_add_u32 v3, v14 offset:20\ns_mov_b64 exec, -1\ns_add_u32 s84, s84, 1\ns_or_b32 s84, s84, 0x80000000")
    for i in range(4):
        for e in range(2):
            A("v_dot2c_f32_bf16 %s, %s, v21" % (v(42 + e), v(32 + 4 * e + i)))
            A("v_dot2c_f32_bf16 %s, %s, %s" % (v(40 + e), v(32 + 4 * e + i), v(32 + 4 * e + i)))
    for m in ("row_shr:1", "row_shr:2", "row_shr:4", "row_shr:8", "row_bcast:15 row_mask:0xa", "row_bcast:31 row_mask:0xc"):
        for r in range(40, 44):
            A("v_add_f32_dpp %s, %s, %s %s" % (v(r), v(r), v(r), m))
    A("s_mov_b32 s56, 0x3b000000\ns_mov_b32 s57, 0x3727c5ac")
    for r in range(40, 44): A("v_mul_f32 %s, s56, %s" % (v(r), v(r)))
    for e in range(2): A("v_fma_f32 %s, -%s, %s, %s" % (v(40 + e), v(42 + e), v(42 + e), v(40 + e)))
    for e in range(2): A("v_max_f32 %s, 0, %s" % (v(40 + e), v(40 + e)))
    for e in range(2): A("v_add_f32 %s, s57, %s" % (v(40 + e), v(40 + e)))
    for e in range(2): A("v_rsq_f32 %s, %s" % (v(40 + e), v(40 + e)))
    for e in range(2): A("v_mul_f32_e64 %s, -%s, %s" % (v(42 + e), v(42 + e), v(40 + e)))
    A("v_mov_b32 v19, v6\nv_mov_b32 v20, v8")
    qw_txt = "ds_read2_b32 v[12:13], v3 offset0:%d offset1:5" % O('qwait', 5)
    qw_chk = "v_add_u32 v12, v12, v13\nv_cmp_ne_u32 vcc, 8, v12"
    A(qw_txt + "\ns_waitcnt lgkmcnt(0)\n" + qw_chk)
    retry("qw", "s_sleep 1\n" + qw_txt, qw_chk, wait="s_waitcnt lgkmcnt(0)")
    TSTAMP()
    A("ds_read_b128 v[48:51], v19\nds_read_b128 v[52:55], v19 offset:1024\ns_waitcnt lgkmcnt(1)")
    A("buffer_store_dwordx4 v[48:51], v20, %s, s95 offen %s\ns_waitcnt lgkmcnt(0)" % (WS, WT))
    A("buffer_store_dwordx4 v[52:55], v20, %s, s97 offen %s" % (WS, WT))
    vmq.extend(["st"] * 2)
    w1dma(O('nw1b', 0)); nyoung = O('nw1b', 0) + w1mall(1)
    vmwait("ssm")
    for i in range(2):
        b = 24 + 4 * i
        if i == 1: A("v_add_u32 v44, 0x400, v44\nv_add_u32 v46, 0x400, v46")
        for ad in ("v44", "v46"):
            A("ds_write2_b32 %s, %s, %s offset0:0 offset1:1" % (ad, v(b), v(b + 1)))
            A("ds_write2_b32 %s, %s, %s offset0:2 offset1:3" % (ad, v(b + 2), v(b + 3)))
        A("ds_write2_b64 v45, %s, %s offset0:%d offset1:%d" % (v(b, 2), v(b + 2, 2), 128 * i, 128 * i + 1))
        A("ds_write_b128 v47, %s offset:%d" % (v(b, 4), 1024 * i))
    A("v_mov_b32 v14, 1\ns_mov_b64 exec, 1\nds_add_u32 v3, v14 offset:40\ns_mov_b64 exec, -1")
    A("""
    s_lshl_b32 s55, s3, 4
    s_add_u32 s55, s55, %d
    v_mov_b32 v12, s55
    v_mov_b32 v13, %d
    v_mov_b32 v14, 1
    s_mov_b32 exec_lo, 0
    s_mov_b32 exec_hi, 0x80000000
    ds_write_b128 v12, v[40:43]
    s_waitcnt vmcnt(NYOUNG) lgkmcnt(0)
    ds_add_rtn_u32 v14, v13, v14 offset:8
    s_waitcnt lgkmcnt(0)
    v_readfirstlane_b32 s55, v14
    s_mov_b64 exec, -1
    s_cmp_lg_u32 s55, 3
    s_cbranch_scc1 L_nost
    v_and_b32 v12, 3, v1
    v_lshlrev_b32 v12, 4, v12
    ds_read_b128 v[40:43], v12 offset:%%d
    v_and_b32 v13, 7, v1
    v_cmp_lt_u32 vcc, 3, v13
    v_mov_b32 v14, s84
    v_cndmask_b32 v14, 0, v14, vcc
    v_lshrrev_b32 v12, 3, v1
    v_mul_u32_u24 v12, STRIDE, v12
    v_lshl_add_u32 v12, v13, 4, v12
    s_lshl_b32 s55, s2, 7
    s_add_u32 s55, s55, %d
    s_waitcnt lgkmcnt(0)
    v_xor_b32 v40, v14, v40
    v_xor_b32 v41, v14, v41
    v_xor_b32 v42, v14, v42
    v_xor_b32 v43, v14, v43
    s_mov_b64 exec, STEX
    buffer_store_dwordx4 v[40:43], v12, WS, s55 offen WT
    s_mov_b64 exec, -1
    L_nost:
    """.replace("STRIDE", str(STR)).replace("STEX", "-1" if O('strep', 1) else "0xff").replace("WS", WS).replace("WT", WT).replace("NYOUNG", str(nyoung)).replace("v_lshlrev_b32 v12, 4, v12\n    ds_read_b128 v[40:43], v12 offset:%%d", "v_lshlrev_b32 v12, 4, v12\n    v_add_u32 v12, STL, v12\n    ds_read_b128 v[40:43], v12").replace("STL", str(L_FLG + 64)) % (L_FLG + 64, L_FLG, ST)); vmq.clear()
    TSTAMP()
    w1mall(2); wdtouch(6)
    w1dma(O('nw1c', 0))
    A("""
    s_and_b32 s55, s54, 0xffff
    s_lshr_b32 s56, s54, 16
    v_mov_b32 v13, s55
    v_mov_b32 v14, s56
    v_lshl_add_u32 v12, v4, 2, 3
    v_sub_u32 v12, v12, v2
    """)
    for jj in range(4):
        A("v_cmp_eq_u32 vcc, %d, v12\nv_cndmask_b32 %s, 0, v13, vcc\nv_cndmask_b32 %s, 0, v14, vcc" % (jj, v(72 + jj), v(76 + jj)))
    A("""
    v_and_b32 v5, 1, v2
    s_movk_i32 s55, %d
    v_mul_lo_u32 v5, v5, s55
    v_lshrrev_b32 v14, 1, v2
    v_lshl_add_u32 v5, v14, 4, v5
    v_lshl_add_u32 v5, v4, 7, v5
    s_lshl_b32 s56, s3, 10
    s_add_u32 s56, s56, %d
    v_add_u32 v5, s56, v5
    s_lshl_b32 s56, s3, 11
    s_add_u32 s57, s56, %d
    v_add_u32 v6, s57, v9
    v_add_u32 v7, %d, v6
    s_lshr_b32 s68, s66, 2
    s_mul_i32 s68, s68, %d
    s_and_b32 s57, s66, 3
    s_lshl_b32 s57, s57, 5
    s_add_u32 s68, s68, s57
    s_lshl_b32 s58, s3, 13
    s_add_u32 s68, s68, s58
    s_add_u32 s68, s68, %d
    s_add_u32 s60, s68, 0x1000
    s_add_u32 s58, s58, %d
    s_mul_i32 s57, s4, STRX
    s_add_u32 s58, s58, s57
    s_add_u32 s59, s58, 0x1000
    v_lshrrev_b32 v8, 1, v1
    v_lshlrev_b32 v8, 7, v8
    v_and_b32 v14, 1, v1
    v_lshl_add_u32 v10, v14, 4, v8
    v_lshl_add_u32 v8, v14, 5, v8
    s_mul_i32 s61, s99, 49152
    s_lshl_b32 s57, s98, 13
    s_add_u32 s61, s61, s57
    s_add_u32 s61, s61, 0x8000
    v_lshlrev_b32 v14, 3, v1
    v_and_b32 v14, 0x70, v14
    v_xor_b32 v8, v8, v14
    v_add_u32 v8, s61, v8
    v_xor_b32 v57, 16, v8
    v_xor_b32 v58, 64, v8
    v_xor_b32 v59, 0x50, v8
    v_lshlrev_b32 v14, 1, v1
    v_and_b32 v14, 0x70, v14
    v_xor_b32 v56, v9, v14
    """.replace("STRX", str(STR if O('strep', 1) else 0)) % (U_STR, L_U + 8 * 16, L_REDA, L_REDB - L_REDA, QSTR, QP, ST))
    if O('nw1e', 6) or O('wdtp', 1) == 1:
        A("ds_read_b32 v12, v3 offset:24\ns_waitcnt lgkmcnt(0)\nv_cmp_ne_u32 vcc, 4, v12")
        retry("uw", "s_sleep 1\nds_read_b32 v12, v3 offset:24", "v_cmp_ne_u32 vcc, 4, v12", wait="s_waitcnt lgkmcnt(0)")
    st_dma = "s_mov_b32 m0, s61\n" + "\n".join("buffer_load_dwordx4 v56, %s, s58 offen offset:%d sc1 lds" % (WS, 1024 * i) for i in range(4)) + \
             "\ns_add_u32 m0, s61, 0x1000\n" + "\n".join("buffer_load_dwordx4 v56, %s, s59 offen offset:%d sc1 lds" % (WS, 1024 * i) for i in range(4))
    st_rd = "\n".join("ds_read_b128 %s, %s offset:%d" % (v(16 * (1 + cp) + 8 * e + 4 * h, 4), ("v8", "v57", "v58", "v59")[h + 2 * cp], 4096 * e)
                       for e in range(2) for h in range(2) for cp in range(2))
    st_chk = "\n".join(["v_bitop3_b32 %s, %s, %s, s84 bitop3:0x96" % (v(32 + i), v(32 + i), v(16 + i)) for i in range(16)] +
                       ["v_or3_b32 %s, %s, %s, %s" % (v(32 + i), v(32 + i), v(33 + i), v(34 + i)) for i in (0, 3, 6, 9, 12)] +
                       ["v_or3_b32 v32, v32, v35, v38", "v_or3_b32 v41, v41, v44, v47", "v_or_b32 v32, v32, v41", "v_cmp_ne_u32 vcc, 0, v32"])
    if O('stf', 0):
        A("ds_read_b32 v12, v3 offset:8\ns_waitcnt lgkmcnt(0)\nv_cmp_ne_u32 vcc, 4, v12")
        retry("s8", "ds_read_b32 v12, v3 offset:8", "v_cmp_ne_u32 vcc, 4, v12", wait="s_waitcnt lgkmcnt(0)")
        A(st_dma); vmq.extend(["stp"] * 8)
    w1dma(min(O('nw1e', 6), 15 - ndma[0]))
    wdtouch(1)
    A("ds_read_b32 v12, v3 offset:40\ns_waitcnt lgkmcnt(0)\nv_cmp_ne_u32 vcc, 8, v12")
    retry("b4b", "s_sleep 1\nds_read_b32 v12, v3 offset:40", "v_cmp_ne_u32 vcc, 8, v12", wait="s_waitcnt lgkmcnt(0)")
    TSTAMP()
    for e in range(2):
        for c in range(2):
            A("ds_read_b128 %s, v5 offset:%d" % (v(80 + 8 * e + 4 * c, 4), 2 * c * U_STR + 512 * e))
    hfill(1)
    w1dma(O('nw1d', 0))
    A("s_waitcnt lgkmcnt(0)")
    for e in range(2):
        for c in range(2):
            A("%s %s, %s, %s, 0" % (MF, v(96 + 8 * e + 4 * c, 4), v(72 + 4 * c, 4), v(80 + 8 * e + 4 * c, 4)))
    w1dma(O('nw1f', 0))
    if O('lpw', 1) and not O('stf', 0):
        A("ds_read_b32 v12, v3 offset:32\ns_waitcnt lgkmcnt(0)\nv_cmp_eq_u32 vcc, 0, v12")
        retry("lw", "s_sleep 1\nds_read_b32 v12, v3 offset:32", "v_cmp_eq_u32 vcc, 0, v12", wait="s_waitcnt lgkmcnt(0)")
    if not O('stf', 0): A(st_dma); vmq.extend(["stp"] * 8)
    w1dma(min(O('nw1i', 3), 15 - ndma[0]))
    vmwait("stp")
    A(st_rd + "\ns_waitcnt lgkmcnt(0)\n" + st_chk)
    retry("st", "s_sleep %d\n" % O('stsl', 4) + st_dma + "\ns_waitcnt vmcnt(0)\n" + st_rd, st_chk, wait="s_waitcnt lgkmcnt(0)")
    TSTAMP()
    VM("buffer_load_dwordx4 v[48:51], v10, %s, s68 offen sc1" % WS, "qp")
    VM("buffer_load_dwordx4 v[52:55], v10, %s, s60 offen sc1" % WS, "qp")
    wdtouch(2)
    hfill(2)
    w1dma(min(O('nw1g', 6), 15 - ndma[0]))
    if O('nw1z', 0):
        A("v_mov_b32 v14, 1\ns_mov_b64 exec, 1\nds_add_u32 v3, v14 offset:44\ns_mov_b64 exec, -1\nds_read_b32 v12, v3 offset:44\ns_waitcnt lgkmcnt(0)\nv_cmp_ne_u32 vcc, 4, v12")
        retry("sv", "ds_read_b32 v12, v3 offset:44", "v_cmp_ne_u32 vcc, 4, v12", wait="s_waitcnt lgkmcnt(0)")
        w1dma(min(O('nw1z', 0), 24 - ndma[0]))
    vmwait("qp")
    TSTAMP()
    for e in range(2):
        for j in range(4):
            A("v_lshlrev_b32 %s, 16, %s" % (v(112 + 8 * e + j), v(48 + 4 * e + j)))
            A("v_and_b32 %s, s65, %s" % (v(116 + 8 * e + j), v(48 + 4 * e + j)))
    for e in range(2):
        for c in range(2):
            for j in (0, 2):
                A("v_pk_fma_f32 %s, %s, %s, %s" % (v(128 + 8 * e + 4 * c + j, 2), v(112 + 8 * e + 4 * c + j, 2), v(16 + 8 * e + 2 * j, 2), v(18 + 8 * e + 2 * j, 2)))
    w1dma(O('nw1h', 0))
    TSTAMP()
    A("s_barrier")
    TSTAMP()
    for e in range(2):
        for src in range(4):
            A("ds_read_b128 %s, %s offset:%d" % (v(16 + 16 * e + 4 * src, 4), "v7" if src >= 2 else "v6", 8192 * (src & 1) + 1024 * e))
    for e in range(2):
        for c in range(2):
            A("s_waitcnt lgkmcnt(%d)" % (6 - 4 * e - 2 * c))
            for j in (0, 2):
                d = v(96 + 8 * e + 4 * c + j, 2)
                A("v_pk_add_f32 %s, %s, %s" % (d, d, v(16 + 16 * e + 8 * c + j, 2)))
            for j in (0, 2):
                d = v(96 + 8 * e + 4 * c + j, 2)
                A("v_pk_add_f32 %s, %s, %s" % (d, d, v(20 + 16 * e + 8 * c + j, 2)))
            for j in (0, 2):
                d = v(96 + 8 * e + 4 * c + j, 2)
                A("v_pk_fma_f32 %s, %s, %s, %s" % (d, d, v(128 + 8 * e + 4 * c + j, 2), v(112 + 8 * e + 4 * c + j, 2)))
        for j in range(4):
            A("v_cvt_pk_bf16_f32 %s, %s, %s" % (v(48 + 4 * e + j), v(96 + 8 * e + j), v(100 + 8 * e + j)))
        VM("buffer_store_dwordx4 %s, v63, %s, %s offen %s" % (v(48 + 4 * e, 4), WS, "s73" if e else "s72", WT), "hp")
    TSTAMP()
    NB6 = O('nb6', 15)
    wdtouch(3)
    hfill(3)
    w1dma(NB6 - ndma[0])
    A("""
    v_mov_b32 v56, 0x3f803f80
    v_mov_b32 v57, 0x3f803f80
    v_mov_b32 v58, 0x3f803f80
    v_mov_b32 v59, 0x3f803f80
    v_and_b32 v14, 31, v1
    v_mul_u32_u24 v14, 96, v14
    s_add_u32 s55, s76, 88
    v_add_u32 v14, s55, v14
    v_mov_b32 v3, %d
    v_mov_b32 v13, 1
    """ % L_FLG)
    vmwait("dma")
    for i in range(NB6 // 3): A("ds_write_b64 v14, v[56:57] offset:%d" % (6144 * i))
    A("s_waitcnt lgkmcnt(0)\ns_barrier")
    TSTAMP()
    def xtouch(pos):
        if O('xtp', 9) != pos: return
        A("""
        s_and_b32 s55, s87, %d
        s_lshl_b32 s55, s55, 2
        s_add_u32 s55, s55, s3
        s_lshl_b32 s55, s55, 7
        s_lshl_b32 s56, s86, 18
        s_add_u32 s55, s55, s56
        s_add_u32 s55, s55, %d
        v_lshlrev_b32 v12, 12, v1
        """ % (32 // RBX - 1, HP))
        VM("buffer_load_dword v63, v12, %s, s55 offen sc1" % WS, "tch")
    xtouch(0)
    w1dma(24 - NB6)
    xtouch(1)
    A("""
    s_and_b32 s72, s5, 7
    s_lshr_b32 s71, s5, 3
    s_mul_i32 s56, s71, %d
    s_mul_i32 s55, s72, %d
    s_add_u32 s55, s55, s56
    s_sub_u32 s56, s55, 11
    s_cmp_ge_u32 s55, 11
    s_cselect_b32 s55, s56, s55
    s_mul_i32 s56, s3, 11
    s_add_u32 s57, s56, 11
    s_add_u32 s55, s55, s56
    """ % (O('rot4', 0), O('rot3', 0)))
    for i in range(11):
        A("s_lshl_b32 %s, s55, 11\ns_add_u32 s55, s55, 1\ns_cmp_eq_u32 s55, s57\ns_cselect_b32 s55, s56, s55" % s(8 + i))
    A("""
    v_lshrrev_b32 v5, 3, v1
    v_and_b32 v6, 2, v5
    v_lshlrev_b32 v6, 1, v6
    v_and_b32 v7, 7, v1
    v_xor_b32 v6, v6, v7
    v_lshlrev_b32 v5, 10, v5
    v_lshl_add_u32 v5, v6, 4, v5
    s_mul_i32 s92, s3, 12288
    s_add_u32 s92, s92, %d
    v_lshrrev_b32 v6, 2, v1
    v_and_b32 v7, 2, v6
    v_lshlrev_b32 v7, 5, v7
    v_lshlrev_b32 v6, 7, v6
    v_and_b32 v8, 3, v1
    v_lshl_add_u32 v6, v8, 4, v6
    v_add_u32 v6, v6, v7
    s_lshl_b32 s55, s99, 6
    v_xor_b32 v7, s55, v6
    v_xor_b32 v6, 64, v7
    v_add_u32 v6, s92, v6
    v_add_u32 v7, s92, v7
    s_lshl_b32 s93, s72, 7
    v_lshrrev_b32 v10, 2, v1
    v_mul_u32_u24 v10, 96, v10
    v_lshl_add_u32 v10, v8, 3, v10
    s_lshl_b32 s56, s99, 5
    s_add_u32 s56, s56, %d
    v_add_u32 v11, s56, v10
    s_lshl_b32 s55, s3, 5
    s_cmp_eq_u32 s3, 3
    s_cselect_b32 s55, %d, s55
    v_add_u32 v10, s55, v10
    """ % (L_SG, L_WU + 32, L_WU))
    WDR = lambda i, tm: a(16 * i + 4 * tm, 4) if i < 4 else v(72 + 16 * (i - 4) + 4 * tm, 4)
    WDH = lambda i, tm, h: a(16 * i + 4 * tm + 2 * h, 2) if i < 4 else v(72 + 16 * (i - 4) + 4 * tm + 2 * h, 2)
    def wd_issue(i):
        if O('nowd', 0): A("s_mov_b32 s93, %s" % OOB)
        A("s_lshl_b32 s94, %s, 4\ns_add_u32 s94, s94, s93" % s(8 + i))
        for r in range(4):
            A("s_add_u32 m0, s92, %d" % (4096 * (i % 3) + 1024 * r))
            VM("buffer_load_dwordx4 v5, %s, s94 offen lds" % srd(S_WD), "wd%d" % i)
            if r < 3: A("s_add_u32 s94, s94, 0x2000")
    def wd_read(i):
        vmwait("wd%d" % i)
        for tm in range(4):
            for h in range(2):
                A("ds_read_b64_tr_b16 %s, %s offset:%d" % (WDH(i, tm, h), "v6" if tm < 2 else "v7", 4096 * (i % 3) + 2048 * h + 8 * (tm & 1)))
        A("s_waitcnt lgkmcnt(0)")
    def hflag():
        A("""
        s_lshl_b32 s55, s86, 2
        s_add_u32 s55, s55, s3
        s_lshl_b32 s55, s55, 5
        s_add_u32 s55, s55, s87
        s_lshl_b32 s55, s55, 7
        s_add_u32 s55, s55, %d
        v_mov_b32 v64, s84
        v_mov_b32 v65, s84
        v_mov_b32 v66, s84
        v_mov_b32 v67, s84
        s_mov_b64 exec, 0xff
        """ % FH)
        vmwait("fill")
        VM("buffer_store_dwordx4 v[64:67], v9, %s, s55 offen %s" % (WS, WT), "fhs")
        A("s_mov_b64 exec, -1")
    def colsum(k0, k1):
        for st in range(k0, k1 + 2):
            if st < k1:
                b = 16 + 8 * (st & 3)
                for h in range(2): A("ds_read_b64_tr_b16 %s, v10 offset:%d" % (v(b + 2 * h, 2), st * 3072 + h * 1536))
                for h in range(2): A("ds_read_b64_tr_b16 %s, v11 offset:%d" % (v(b + 4 + 2 * h, 2), st * 3072 + h * 1536))
            if st >= k0 + 2:
                pb = 16 + 8 * ((st - 2) & 3)
                A("s_waitcnt lgkmcnt(%d)" % (4 * (min(st, k1 - 1) - (st - 2))))
                A("%s v[48:51], v[56:59], %s, %s" % (MF, v(pb, 4), "v[48:51]" if st > 2 else "0"))
                A("%s v[52:55], v[56:59], %s, %s" % (MF, v(pb + 4, 4), "v[52:55]" if st > 2 else "0"))
    K1 = 2 * (NB6 // 3)
    NWD0 = O('nwd0', 1)
    colsum(0, K1)
    wdtouch(4)
    for i in range(NWD0): wd_issue(i)
    vmwait("dma")
    for i in range(NB6 // 3, 8): A("ds_write_b64 v14, v[56:57] offset:%d" % (6144 * i))
    A("s_waitcnt lgkmcnt(0)\ns_mov_b64 exec, 1\nds_add_u32 v3, v13\ns_mov_b64 exec, -1")
    TSTAMP()
    for i in range(NWD0): wd_read(i)
    A("ds_read_b32 v12, v3\ns_waitcnt lgkmcnt(0)\n" + flagchk)
    retry("fB", "ds_read_b32 v12, v3", flagchk, wait="s_waitcnt lgkmcnt(0)")
    if K1 < 16: colsum(K1, 16)
    HOLD = O('wdhold', 5); LATE = O('late', 3); NE = 11 - LATE
    A("""
    s_lshl_b32 s55, s72, 1
    s_add_u32 s55, s55, s99
    s_lshl_b32 s55, s55, 14
    s_lshl_b32 s56, s71, 12
    s_add_u32 s55, s55, s56
    s_lshl_b32 s56, s98, 3
    s_add_u32 s55, s55, s56
    s_lshl_b32 s56, s4, 18
    s_add_u32 s55, s55, s56
    s_add_u32 s95, s55, %d
    s_lshl_b32 s55, s4, 2
    s_add_u32 s55, s55, s71
    s_lshl_b32 s64, s55, 12
    s_add_u32 s64, s64, %d
    s_lshl_b32 s56, s55, 1
    s_add_u32 s57, s56, s98
    s_xor_b32 s56, s57, 1
    s_mul_i32 s68, s56, %d
    s_mul_i32 s69, s57, %d
    s_add_u32 s68, s68, %d
    s_add_u32 s69, s69, %d
    s_lshl_b32 s77, s55, 16
    s_lshl_b32 s56, s98, 12
    s_add_u32 s77, s77, s56
    s_lshl_b32 s56, s72, 7
    s_add_u32 s77, s77, s56
    s_lshl_b32 s56, s99, 6
    s_add_u32 s77, s77, s56
    s_lshl_b32 s67, s55, 8
    s_lshl_b32 s56, s98, 3
    s_add_u32 s67, s67, s56
    s_add_u32 s67, s67, %d
    s_mul_i32 s97, s3, 12288
    s_add_u32 s97, s97, 49152
    v_add_u32 v14, s97, v9
    s_lshl_b32 s56, s3, 3
    v_add_u32 v8, s56, v1
    v_cmp_lt_u32 vcc, 7, v1
    v_cndmask_b32 v8, v8, 31, vcc
    v_lshlrev_b32 v8, 7, v8
    """ % (HP, FH, HG, HG, HH, HH, R2))
    for i in range(11): A("s_min_u32 %s, %s, %d" % (s(20 + i), s(8 + i), 42 * 2048))
    for k in (1, 2, 3): A("s_xor_b32 s56, s3, %d\ns_mul_i32 s56, s56, 12288\ns_add_u32 %s, s56, %d" % (k, s(31 + k), L_RED3 + (k - 1) * 4096))
    def waitstep(k):
        chk = "v_cmp_gt_u32 vcc, %d, v12" % k
        A("ds_read_b32 v12, v3 offset:36\ns_waitcnt lgkmcnt(0)\n" + chk)
        retry("ws%d" % k, "s_sleep %d\n" % O('bsl', 2) + "ds_read_b32 v12, v3 offset:36", chk, wait="s_waitcnt lgkmcnt(0)")
    A(haddr(["v68", "v69", "v70"], "v71", ("v12", "v13")))
    A("v_mov_b32 v13, 1")
    fl = ["buffer_store_dwordx4 v[64:67], %s, %s, %s offen offset:%d %s" % (v(68 + ft), WS, "s90" if g else "s89", 1024 * ft, WT) for ft in range(3) for g in range(2)]
    fl.append("buffer_store_dwordx4 v[64:67], v71, %s, s91 offen %s" % (WS, WT))
    NP = O('np', 3)
    pieces = [(i, r) for i in range(NWD0, NWD0 + NP) for r in range(4)]
    P0 = O('p0', 1); PEND = O('pend', 13)
    nsteps = PEND - P0
    done_cs = False
    for k in range(P0, PEND):
        waitstep(k)
        if fl:
            VM(fl.pop(0), "fill")
            if len(fl) == 1: VM(fl.pop(0), "fill")
        elif not done_cs and k >= P0 + 7:
            hflag()
            A("""
    s_lshl_b32 s55, s3, 6
    s_add_u32 s55, s55, %d
    v_lshl_add_u32 v10, v2, 2, s55
    s_lshl_b32 s56, s99, 6
    s_add_u32 s56, s56, %d
    v_lshl_add_u32 v11, v2, 2, s56
    ds_write_b32 v10, v48
    ds_write_b32 v11, v52
    s_waitcnt lgkmcnt(0)
    s_mov_b64 exec, 1
    ds_add_u32 v3, v13 offset:4
    s_mov_b64 exec, -1
    """ % (L_CS, L_CS + 256))
            TSTAMP()
            done_cs = True
        want = (len(pieces) + (PEND - k) - 1) // (PEND - k) if (not fl or O('mix', 0)) else 0
        for _ in range(want):
            i, r = pieces.pop(0)
            if r == 0: A("s_lshl_b32 s94, %s, 4\ns_add_u32 s94, s94, s93" % s(8 + i))
            A("s_add_u32 m0, s92, %d" % (4096 * (i % 3) + 1024 * r))
            VM("buffer_load_dwordx4 v5, %s, s94 offen lds" % srd(S_WD), "wd%d" % i)
            if r < 3: A("s_add_u32 s94, s94, 0x2000")
    assert done_cs and not pieces
    TSTAMP()
    waitstep(PEND)
    VM("buffer_load_dword v10, v8, %s, s64 offen sc1" % WS, "fh")
    TSTAMP()
    nx = NWD0 + NP
    for i in range(NWD0, NE):
        wd_read(i)
        while nx < NE and nx <= i + 3: wd_issue(nx); nx += 1
    TSTAMP()
    A("s_waitcnt vmcnt(0)\nv_cmp_ne_u32 vcc, s84, v10")
    retry("fh", "buffer_load_dword v10, v8, %s, s64 offen sc1" % WS, "v_cmp_ne_u32 vcc, s84, v10")
    LB = O('lateb', 0)
    for i in range(NE, NE + LB): wd_issue(i)
    A("s_barrier")
    TSTAMP()
    for i in range(NE + LB, 11): wd_issue(i)
    def late_part():
        for i in range(NE, 11): wd_read(i)
        A("""
        v_lshrrev_b32 v5, 1, v2
        v_lshlrev_b32 v5, 13, v5
        v_and_b32 v12, 1, v2
        v_lshl_add_u32 v5, v12, 10, v5
        v_lshl_add_u32 v5, v4, 4, v5
        v_lshlrev_b32 v12, 4, v2
        v_subrev_u32 v10, 0xc000, v14
        v_add_u32 v6, s32, v9
        v_add_u32 v7, s33, v9
        v_add_u32 v8, s34, v9
        """)
    NR = 6
    HFR = lambda q, o, n: v(16 + 8 * (q % 3) + o, n)
    def acc3(grp, tm, e):
        t = 2 * (tm & 1) + e
        if grp == 1 and tm >= 2: return v(40 + 4 * t, 4)
        if tm < 2: return v(56 + 4 * t, 4)
        return v(40 + 4 * t, 4)
    def hdma_txt(q):
        grp, i = divmod(q, 11)
        return "s_add_u32 s96, %s, %s\ns_add_u32 m0, s97, %d\nbuffer_load_dwordx4 v9, %s, s96 offen sc1 lds\nbuffer_load_dwordx4 v9, %s, s96 offen offset:1024 sc1 lds" % (
            "s68" if grp == 0 else "s69", s(20 + i), 2048 * (q % NR), WS, WS)
    def hdma(q): A(hdma_txt(q)); vmq.extend(["h%d" % q] * 2)
    def hrd(q): return ["ds_read_b64 %s, %s offset:%d" % (HFR(q, 4 * e + 2 * aa, 2), "v14", 2048 * (q % NR) + 1024 * aa + 8 * e) for e in range(2) for aa in range(2)]
    def hchk(q): return "v_max_u32 v11, %s, %s\nv_cmp_eq_u32 vcc, -1, v11" % (HFR(q, 0, 1), HFR(q, 2, 1))
    def hretry(q):
        last = min(21, q + NR - 1) if O('hre', 1) else q
        if q == 0: last = O('nh0', 6) - 1
        n = 2 * (last - q) if q < 17 else 0
        retry("h%d" % q, "\n".join(hdma_txt(k) for k in range(q, last + 1)) + "\ns_waitcnt vmcnt(%d)\n" % n + "\n".join(hrd(q)), hchk(q), wait="s_waitcnt lgkmcnt(0)")
    NH0 = O('nh0', 6)
    for q in range(NH0): hdma(q)
    late_part()
    vmwait("h0"); A("\n".join(hrd(0))); A("s_waitcnt lgkmcnt(0)"); A(hchk(0)); hretry(0)
    TSTAMP()
    for q in range(NH0, NR): hdma(q)
    vmwait("h1"); A("\n".join(hrd(1)))
    for q in range(22):
        grp, i = divmod(q, 11)
        if q == 11:
            if O('psw', 1):
                for t in range(4): A("ds_write_b128 v7, %s offset:%d" % (v(40 + 4 * t, 4), 1024 * t))
            else:
                A("s_nop 7")
                for t in range(4): A("ds_write_b128 v8, %s offset:%d" % (v(56 + 4 * t, 4), 1024 * t))
                for t in range(4): A("ds_write_b128 v7, %s offset:%d" % (v(40 + 4 * t, 4), 1024 * t))
                A("s_waitcnt lgkmcnt(0)")
        rd = hrd(q + 2) if q + 2 < 22 else []
        if O('fine3', 0) and q % 2 == 0: TSTAMP()
        n = 0
        for tm in range(4):
            for e in range(2):
                sw = O('psw', 1) and q == 11
                if sw: A("s_waitcnt lgkmcnt(%d)" % (7 - n))
                A("%s %s, %s, %s, %s" % (MF, acc3(grp, tm, e), WDR(i, tm), HFR(q, 4 * e, 4), acc3(grp, tm, e) if i else "0"))
                if n == 0 and q + NR < 22: hdma(q + NR)
                if sw:
                    if n == 1: A(hchk(q + 1))
                    if n == 3: hretry(q + 1)
                    if n == 7:
                        vmwait("h%d" % (q + 2))
                        while rd: A(rd.pop(0))
                else:
                    if n == 1 and q < 21: A("s_waitcnt lgkmcnt(0)"); A(hchk(q + 1))
                    if n == 3 and q < 21: hretry(q + 1)
                    if n == 3 and rd: vmwait("h%d" % (q + 2))
                    if O('psw', 1) and q == 10:
                        if n == 3:
                            while rd: A(rd.pop(0))
                        if n >= 4: A("ds_write_b128 v8, %s offset:%d" % (v(56 + 4 * (n - 4), 4), 1024 * (n - 4)))
                    if n >= 3 and rd: A(rd.pop(0))
                if n == 2 and q == 17:
                    for j in range(4): A("buffer_load_dwordx2 %s, v9, %s, s95 offen offset:%d sc1" % (v(72 + 2 * j, 2), WS, 1024 * j))
                    A("buffer_load_dwordx2 v[80:81], v12, %s, s67 offen sc1" % WS); vmq.extend(["res"] * 5)
                n += 1
    if O('fine3', 0): TSTAMP()
    for t in range(4):
        A("ds_write_b128 v6, %s offset:%d" % (v(56 + 4 * t, 4), 1024 * t))
    A("s_waitcnt vmcnt(0)\nv_cmp_eq_u32 vcc, -1, v80")
    for j in range(4):
        for e in range(2):
            A("v_lshlrev_b32 %s, 16, %s\nv_and_b32 %s, s65, %s" % (v(88 + 8 * e + 2 * j), v(72 + 2 * j + e), v(89 + 8 * e + 2 * j), v(72 + 2 * j + e)))
    retry("r2", "buffer_load_dwordx2 v[80:81], v12, %s, s67 offen sc1" % WS, "v_cmp_eq_u32 vcc, -1, v80")
    if O('fine3', 0): TSTAMP()
    A("s_waitcnt lgkmcnt(0)\ns_barrier")
    TSTAMP()
    for sl in range(3):
        for t in range(4):
            A("ds_read_b128 %s, v10 offset:%d" % (v(112 + 16 * sl + 4 * t, 4), L_RED3 + 4096 * sl + 1024 * t))
    for sl in range(3):
        A("s_waitcnt lgkmcnt(%d)" % (8 - 4 * sl))
        for r in range(0, 16, 2):
            A("v_pk_add_f32 %s, %s, %s" % (v(40 + r, 2), v(40 + r, 2), v(112 + 16 * sl + r, 2)))
    for e in range(2):
        for mt in range(2):
            for j in (0, 2):
                d = v(40 + 8 * mt + 4 * e + j, 2)
                A("v_pk_fma_f32 %s, %s, v[80:81], %s op_sel:[0,%d,0] op_sel_hi:[1,%d,1]" % (d, d, v(88 + 8 * e + 4 * mt + j, 2), e, e))
        for mt in range(2):
            for j in (0, 2):
                A("v_cvt_pk_bf16_f32 %s, %s, %s" % (v(16 + 4 * e + 2 * mt + j // 2), v(40 + 8 * mt + 4 * e + j), v(41 + 8 * mt + 4 * e + j)))
        A("buffer_store_dwordx4 %s, v5, %s, s77 offen offset:%d %s" % (v(16 + 4 * e, 4), srd(S_OUT), 2048 * e, {0: "", 1: "sc0 sc1", 2: "nt"}[O('outf', 0)]))
    A("""
    s_or_b32 s55, s2, s3
    s_cmp_lg_u32 s55, 0
    s_cselect_b32 s55, %s, 0
    v_mov_b32 v14, s84
    s_mov_b64 exec, 1
    buffer_store_dword v14, v9, %s, s55 offen
    s_mov_b64 exec, -1
    """ % (OOB, WS))
    dump(TS + 0x10000)
    A.label("L_end")
    A("s_endpgm")
    for st_ in stubs:
        A("s_nop 7")
        A(st_)
    A.label("L_codeend")
    A("s_endpgm")
    A.raw(""".section .rodata,"a"
.p2align 6
.amdhsa_kernel %s_kernel
  .amdhsa_next_free_vgpr 256
  .amdhsa_next_free_sgpr 102
  .amdhsa_accum_offset 184
  .amdhsa_group_segment_fixed_size 0
  .amdhsa_kernarg_size 104
  .amdhsa_user_sgpr_count 2
  .amdhsa_user_sgpr_kernarg_segment_ptr 1
  .amdhsa_system_sgpr_workgroup_id_x 1
  .amdhsa_float_denorm_mode_32 3
.end_amdhsa_kernel""" % NAME)
    return A.text()

def parse(args):
    kw = {}; opt = {}
    for x in args:
        k, val = x.split("=")
        if k in ("RBX", "ROT"): kw[k] = int(val)
        elif k in ("NT",): kw[k] = val
        else: opt[k] = int(val)
    return kw, opt

if __name__ == "__main__":
    out = sys.argv[1] if len(sys.argv) > 1 else "cdna_kernels/%s.s" % NAME
    stamp = len(sys.argv) > 2 and sys.argv[2] == "stamp"
    kw, opt = parse(sys.argv[3:])
    open(out, "w").write(gen(stamp, opt=opt, **kw))
    print("wrote", out)
```

```python
import sys
from asm import Asm, v, a, s

NAME = "sequential_preLN__ssm_conv_h3__glu_gated_reglu__prompt"
EP = 0x0; R2 = 0x8000; TS = 0x10000; ST = 0x80000; STR = 0x8100; FU = 0x50000; FH = 0x60000
UP = 0x100000; QP = 0x300000; QSTR = 33024; HP = 0x700000; HH = 0xB00000
WS_BYTES = 0x1400000
HG = 88064
L_WU = 49152
L_KC = 98304; KC_STR = 4640
L_U = L_KC + 8 * KC_STR; U_STR = 4224
L_CS = L_U + 4 * U_STR
L_FLG = L_CS + 384
L_TA = L_FLG + 128
LDS_BYTES = L_TA + 8192
L_TB = L_WU + 40960
L_REDA = L_KC; L_REDB = L_KC + 16384
L_SG = L_KC
L_RED3 = 0
S_K, S_V, S_Q, S_SK, S_SSM, S_WG, S_WU, S_WD, S_OUT, S_WS, S_T = 8, 12, 16, 20, 24, 28, 32, 36, 40, 44, 48
sDP = 52; sD = 54; sPC = 74
BUDGET = 200000
WS = s(S_WS, 4)
MF = "v_mfma_f32_16x16x32_bf16"
OOB = "0x40000000"
WT = "sc0 sc1"
def srd(i): return s(i, 4)
def lines(t): return [x.strip() for x in t.strip().split("\n") if x.strip()]

def gen(stamp=False, RBX=4, ROT=0, NT="", opt=None):
    opt = opt or {}
    O = lambda k, d: opt.get(k, d)
    A = Asm()
    stubs = []
    nst = [0]
    vmq = []
    def TSTAMP():
        if stamp:
            A("s_memtime s[80:81]\ns_waitcnt lgkmcnt(0)\ns_sub_u32 s80, s80, s78\nv_writelane_b32 v15, s80, %d" % nst[0]); nst[0] += 1
    def dump(off):
        if stamp:
            A("s_waitcnt vmcnt(0)"); TSTAMP()
            A("s_cmp_lg_u32 s3, 0\ns_cbranch_scc1 L_end")
            A("s_memrealtime s[80:81]\ns_waitcnt lgkmcnt(0)\nv_writelane_b32 v15, s80, 62\nv_writelane_b32 v15, s82, 63\nv_writelane_b32 v15, s85, 61")
            A("s_lshl_b32 s55, s2, 8\ns_add_u32 s55, s55, %d\nv_lshlrev_b32 v14, 2, v1\nbuffer_store_dword v15, v14, %s, s55 offen" % (off, WS))
    def spin(role):
        if O('spinto', 0) and O('spinrole', 1) == role:
            A("s_cmp_lg_u32 s2, %d\ns_cbranch_scc1 L_nospin\ns_cmp_lg_u32 s3, 0\ns_cbranch_scc1 L_nospin" % O('spinwg', 0))
            if O('spinsel', -1) >= 0: A("v_readlane_b32 s96, v15, %d\ns_nop 3\ns_lshr_b32 s96, s96, 1\ns_add_u32 s96, s96, %d" % (O('spinsel', 0), O('spinto', 0)))
            else: A("s_mov_b32 s96, %d" % O('spinto', 0))
            A("L_spin:\ns_memrealtime s[80:81]\ns_waitcnt lgkmcnt(0)\ns_sub_u32 s80, s80, s82\ns_cmp_lt_u32 s80, s96\ns_cbranch_scc1 L_spin\nL_nospin:")
    def VM(txt, tag):
        A(txt); vmq.append(tag)
    def vmwait(tag, extra=""):
        tags = tag if isinstance(tag, tuple) else (tag,)
        idx = max(i for i, t in enumerate(vmq) if t in tags)
        A("s_waitcnt vmcnt(%d)%s" % (min(63, len(vmq) - 1 - idx), extra))
    def retry(name, reload_txt, chk_txt, wait="s_waitcnt vmcnt(0)"):
        A("s_cbranch_vccnz L_r%s" % name); A.label("L_o%s" % name)
        stubs.append("L_r%s:\ns_sub_u32 s85, s85, 1\ns_cbranch_scc1 L_x%s\n%s\n%s\n%s\ns_cbranch_vccnz L_r%s\ns_branch L_o%s\nL_x%s:\ns_mov_b32 s85, 0\ns_branch L_o%s"
                     % (name, name, reload_txt, wait, chk_txt, name, name, name, name))
    A.raw(open('cdna_kernels/%s.s.ref' % NAME).read().split('; @launch grid')[0].rstrip('\n'))
    A.raw("; @launch grid=(256,1,1) block=(512,1,1) lds=%d" % LDS_BYTES)
    A.raw('.amdgcn_target "amdgcn-amd-amdhsa--gfx950"\n.text\n.globl %s_kernel\n.p2align 8\n.type %s_kernel,@function\n%s_kernel:' % (NAME, NAME, NAME))
    LRB = {1: 0, 2: 1, 4: 2, 8: 3}[RBX]

    A("s_load_dwordx8 s[8:15], s[0:1], 0\ns_load_dwordx4 s[16:19], s[0:1], 32\ns_load_dwordx2 %s, s[0:1], 96" % s(S_WS, 2))
    if stamp: A("s_memtime s[78:79]\ns_memrealtime s[82:83]\nv_mov_b32 v15, 0"); nst[0] += 1
    A("s_cmp_ge_u32 s2, 256\ns_cbranch_scc1 L_end")
    if O('perm', 0):
        A("s_lshr_b32 s4, s2, 3\ns_add_u32 s4, s4, s2\ns_and_b32 s4, s4, 7\ns_and_b32 s2, s2, 0xf8\ns_or_b32 s2, s2, s4")
    A("s_getpc_b64 %s" % s(sPC, 2))
    A.label("L_pc")
    cpf = "s_lshl_b32 s55, s5, 11\nv_lshl_add_u32 v10, v0, 2, s55\nv_min_u32 v10, L_codeend-L_pc-4, v10\ns_mov_b32 exec_lo, 1\ns_mov_b32 exec_hi, 1\nglobal_load_dword v11, v10, %s\ns_mov_b64 exec, -1" % s(sPC, 2)
    cpf2 = "s_lshl_b32 s55, s5, 11\nv_and_b32 v10, 0xff, v0\nv_lshl_add_u32 v10, v10, 3, s55\nv_min_u32 v10, L_codeend-L_pc-4, v10\ns_mov_b32 exec_lo, 0x10001\ns_mov_b32 exec_hi, 0x10001\nglobal_load_dword v11, v10, %s\ns_mov_b64 exec, -1" % s(sPC, 2)
    A("""
    s_lshr_b32 s5, s2, 3
    s_and_b32 s4, s2, 7
    v_readfirstlane_b32 s6, v0
    CPF1
    s_lshl_b32 s55, s5, 16
    s_lshl_b32 s56, s4, 7
    s_add_u32 s55, s55, s56
    s_cmp_ge_u32 s6, 256
    s_cbranch_scc1 L_B0
    v_and_b32 v5, 0x38, v0
    v_lshlrev_b32 v5, 9, v5
    v_and_b32 v10, 7, v0
    v_lshl_add_u32 v5, v10, 3, v5
    v_and_b32 v6, 0x80, v0
    v_lshl_add_u32 v5, v6, 8, v5
    v_and_b32 v7, 64, v0
    v_add3_u32 v5, v5, v7, s55
    v_max_u32 v6, 0xc00, v5
    s_waitcnt lgkmcnt(0)
    """.replace("CPF1", cpf if O('cpf', 2) == 1 else ""))
    for j in range(4): VM("global_load_dwordx2 %s, v5, s[10:11] offset:%d %s" % (v(22 + 2 * j, 2), 1024 * j, NT), "k")
    for i in range(3): VM("global_load_dwordx2 %s, v6, s[10:11] offset:%d %s" % (v(16 + 2 * i, 2), 1024 * i - 3072, NT), "k")
    A("s_lshl_b32 s56, s4, 9\nv_lshl_add_u32 v10, v10, 5, s56\nv_lshl_add_u32 v10, v7, 2, v10")
    VM("global_load_dwordx4 v[48:51], v10, s[14:15]", "k")
    VM("global_load_dwordx4 v[52:55], v10, s[14:15] offset:16", "k")
    for j in range(4): VM("global_load_dwordx2 %s, v5, s[12:13] offset:%d %s" % (v(30 + 2 * j, 2), 1024 * j, NT), "v")
    A("s_barrier\ns_branch L_A")
    common = """
    v_and_b32 v1, 63, v0
    v_and_b32 v2, 15, v0
    v_lshrrev_b32 v4, 4, v1
    v_lshlrev_b32 v9, 4, v1
    s_bfe_u32 s3, s6, 0x20006
    s_lshl_b32 s66, s4, 5
    s_add_u32 s66, s66, s5
    s_and_b32 s99, s3, 1
    s_lshr_b32 s98, s3, 1
    """
    common2 = "s_mov_b32 s85, %d\ns_mov_b32 s65, 0xffff0000\ns_mov_b32 %s, %d\ns_mov_b32 %s, 0x20000" % (BUDGET, s(S_WS + 2), WS_BYTES, s(S_WS + 3))
    A.label("L_B0")
    A(common)
    A("""
    v_mov_b32 v40, 0
    v_mov_b32 v41, 0
    v_mov_b32 v42, 0
    v_mov_b32 v43, 0
    v_and_b32 v12, 3, v1
    v_lshlrev_b32 v12, 4, v12
    v_add_u32 v12, %d, v12
    ds_write_b128 v12, v[40:43]
    s_lshl_b32 s57, s2, 13
    s_lshl_b32 s56, s99, 12
    s_add_u32 s57, s57, s56
    s_lshl_b32 s56, s98, 10
    s_add_u32 s57, s57, s56
    s_lshl_b32 s61, s66, 13
    s_lshl_b32 s56, s3, 11
    s_add_u32 s61, s61, s56
    v_add_u32 v5, s57, v9
    v_add_u32 v6, s61, v9
    s_waitcnt lgkmcnt(0)
    s_barrier
    CPF2
    global_load_dwordx4 v[32:35], v5, s[8:9] NT
    global_load_dwordx4 v[36:39], v5, s[8:9] offset:2048 NT
    global_load_dwordx4 v[24:27], v6, s[16:17] NT
    global_load_dwordx4 v[28:31], v6, s[16:17] offset:1024 NT
    s_branch L_B
    """.replace("NT", NT).replace("CPF2", cpf2 if O('cpf', 2) == 2 else "") % L_FLG)
    ids = """
    s_lshr_b32 s55, s4, %d
    s_lshl_b32 s55, s55, %d
    s_and_b32 s60, s5, %d
    s_add_u32 s86, s55, s60
    s_and_b32 s55, s4, %d
    s_mul_i32 s55, s55, %d
    s_lshr_b32 s56, s5, %d
    s_add_u32 s87, s55, s56
    s_mul_i32 s88, s56, %d
    s_mul_i32 s60, s60, %d
    s_add_u32 s88, s88, s60
    s_and_b32 s88, s88, 15
    """ % (LRB, LRB, RBX - 1, RBX - 1, 32 // RBX, LRB, ROT, O('rot2', 16 // RBX))
    def haddr(hv, r2v, tmp):
        return """
        s_lshl_b32 s55, s86, 2
        s_add_u32 s55, s55, s3
        s_mul_i32 s55, s55, %d
        s_mul_i32 s56, s87, 2816
        s_add_u32 s55, s55, s56
        s_add_u32 s89, s55, %d
        s_add_u32 s90, s89, %d
        v_mov_b32 T0, %s
        v_cmp_eq_u32 vcc, 3, v4
        v_cndmask_b32 T1, v9, T0, vcc
        s_cmp_eq_u32 s87, 31
        s_cselect_b64 vcc, -1, 0
        v_cndmask_b32 %s, v9, T1, vcc
        v_cndmask_b32 %s, v9, T0, vcc
        v_cndmask_b32 %s, T1, T0, vcc
        v_lshrrev_b32 T1, 2, v2
        v_lshlrev_b32 %s, 4, v2
        v_cmp_eq_u32 vcc, T1, v4
        v_cndmask_b32 %s, T0, %s, vcc
        s_lshl_b32 s55, s86, 10
        s_lshl_b32 s56, s3, 8
        s_add_u32 s55, s55, s56
        s_add_u32 s55, s55, %d
        s_cmp_eq_u32 s87, 31
        s_cselect_b32 s91, s55, %s
        """.replace("T0", tmp[0]).replace("T1", tmp[1]) % (2 * HG, HH, HG, OOB, hv[0], hv[1], hv[2], r2v, r2v, r2v, R2, OOB)
    def xpose_addr(wr, rd, gv, base):
        return """
        v_and_b32 RD, 7, v2
        v_xor_b32 WR, v4, RD
        v_lshl_add_u32 WR, v2, 3, 0
        v_or_b32 WR, WR, v4
        v_xor_b32 WR, WR, RD
        v_lshlrev_b32 WR, 4, WR
        s_lshl_b32 s55, s3, 11
        s_add_u32 s55, s55, %d
        v_add_u32 WR, s55, WR
        v_lshrrev_b32 RD, 3, v1
        v_xor_b32 RD, RD, v1
        v_lshlrev_b32 RD, 4, RD
        v_add_u32 RD, s55, RD
        v_lshrrev_b32 GV, 2, v1
        v_lshlrev_b32 GV, 13, GV
        v_and_b32 v14, 3, v1
        v_lshl_add_u32 GV, v14, 4, GV
        """.replace("WR", wr).replace("RD", rd).replace("GV", gv) % base

    A.label("L_A")
    A(common); A(common2)
    A("s_movk_i32 s55, 0x1000\nv_cmp_gt_u32 s[20:21], s55, v5")
    A("""
    v_and_b32 v133, 7, v1
    v_lshrrev_b32 v134, 3, v1
    v_xor_b32 v132, v134, v133
    v_lshl_add_u32 v132, v133, 4, v132
    v_lshlrev_b32 v132, 4, v132
    s_lshl_b32 s55, s3, 11
    s_add_u32 s55, s55, %d
    v_add_u32 v132, s55, v132
    v_lshlrev_b32 v134, 13, v134
    v_lshl_add_u32 v134, v133, 4, v134
    v_xor_b32 v133, v1, v4
    v_lshlrev_b32 v133, 4, v133
    v_add_u32 v133, s55, v133
    v_xor_b32 v136, 64, v133
    """ % L_TA)
    HV = ["v176", "v177", "v178"]
    A("""
    s_lshl_b32 s55, s4, 18
    s_lshl_b32 s56, s5, 8
    s_add_u32 s55, s55, s56
    s_lshl_b32 s56, s98, 7
    s_add_u32 s55, s55, s56
    s_lshl_b32 s56, s99, 17
    s_add_u32 s55, s55, s56
    s_add_u32 s95, s55, %d
    s_add_u32 s97, s95, 0x10000
    """ % UP)
    if O('pw', 1):
        A("""
        s_lshl_b32 s55, s66, 7
        s_add_u32 s55, s55, %d
        s_cmp_lg_u32 s3, 0
        s_cselect_b32 s55, %s, s55
        v_mov_b32 v140, 0
        v_mov_b32 v141, 0
        v_mov_b32 v142, 0
        v_mov_b32 v143, 0
        s_mov_b64 exec, 0xff
        """ % (FU, OOB))
        VM("buffer_store_dwordx4 v[140:143], v9, %s, s55 offen %s" % (WS, WT), "pw")
        A("s_mov_b64 exec, -1")
    TSTAMP()
    vmwait("k")
    TSTAMP()
    for r in range(16, 22): A("v_cndmask_b32 %s, %s, 0, s[20:21]" % (v(r), v(r)))
    for c in range(4):
        for tap in range(4):
            src = 48 + 2 * c + (tap >> 1); dst = 64 + 4 * tap + c
            A(("v_lshlrev_b32 %s, 16, %s" if tap % 2 == 0 else "v_and_b32 %s, s65, %s") % (v(dst), v(src)))
    for i in range(7):
        for e in range(2):
            src = 16 + 2 * i + e; dst = 80 + 4 * i + 2 * e
            A("v_lshlrev_b32 %s, 16, %s\nv_and_b32 %s, s65, %s" % (v(dst), v(src), v(dst + 1), v(src)))
    for tap in range(4):
        for j in range(4):
            for e in range(2):
                d = v(144 + 4 * j + 2 * e, 2); kk = v(80 + 4 * (j + 3 - tap) + 2 * e, 2); ww = v(64 + 4 * tap + 2 * e, 2)
                if tap == 0: A("v_pk_mul_f32 %s, %s, %s" % (d, kk, ww))
                else: A("v_pk_fma_f32 %s, %s, %s, %s" % (d, kk, ww, d))
    vmwait("v")
    for j in range(4):
        for e in range(2):
            src = 30 + 2 * j + e; dst = 108 + 4 * j + 2 * e
            A("v_lshlrev_b32 %s, 16, %s\nv_and_b32 %s, s65, %s" % (v(dst), v(src), v(dst + 1), v(src)))
    for j in range(4):
        for e in range(2):
            d = 144 + 4 * j + 2 * e
            A("v_pk_mul_f32 %s, %s, %s" % (v(d, 2), v(d, 2), v(108 + 4 * j + 2 * e, 2)))
    for e in range(2):
        for j in range(4):
            d = 144 + 4 * j + 2 * e
            A("v_cvt_pk_bf16_f32 %s, %s, %s" % (v(124 + 4 * e + j), v(d), v(d + 1)))
        A("ds_write_b128 v132, %s offset:%d" % (v(124 + 4 * e, 4), 128 * e))
    A("ds_read_b128 v[16:19], v133\nds_read_b128 v[20:23], v136 offset:1024")
    A("s_waitcnt lgkmcnt(1)")
    A("buffer_store_dwordx4 v[16:19], v134, %s, s95 offen %s" % (WS, WT))
    A("s_waitcnt lgkmcnt(0)")
    A("buffer_store_dwordx4 v[20:23], v134, %s, s97 offen %s" % (WS, WT))
    TSTAMP()
    A("s_load_dword s84, %s, 0" % s(S_WS, 2))
    A(ids)
    A(haddr(HV, "v179", ("v12", "v13")))
    A("""
    s_lshl_b32 s67, s66, 13
    s_lshl_b32 s56, s3, 11
    s_add_u32 s67, s67, s56
    s_add_u32 s67, s67, %d
    s_sub_u32 s59, s67, 4
    s_lshl_b32 s62, s66, 7
    s_add_u32 s62, s62, FUADDR
    s_lshl_b32 s63, s4, 12
    s_add_u32 s63, s63, FUADDR
    s_lshl_b32 s56, s3, 3
    s_sub_u32 s56, s56, 1
    v_add_u32 v8, s56, v1
    v_max_i32 v8, 0, v8
    v_lshlrev_b32 v8, 7, v8
    v_mov_b32 v3, FLGADDR
    s_lshl_b32 s56, s3, 7
    v_xor_b32 v7, 1, v1
    v_add_u32 v7, s56, v7
    v_lshlrev_b32 v7, 3, v7
    v_add_u32 v7, %d, v7
    v_cmp_eq_u32 s[100:101], 0, v0
    s_mov_b32 s64, 0x05040100
    s_mov_b32 s71, 0x07060302
    v_and_b32 v180, 3, v2
    s_movk_i32 s55, %d
    v_mul_lo_u32 v180, v180, s55
    v_lshrrev_b32 v14, 2, v2
    v_lshl_add_u32 v180, v14, 7, v180
    v_lshl_add_u32 v180, v4, 4, v180
    s_mul_i32 s56, s98, %d
    s_lshl_b32 s57, s99, 8
    s_add_u32 s56, s56, s57
    s_add_u32 s56, s56, %d
    v_add_u32 v180, s56, v180
    v_and_b32 v181, 1, v2
    s_movk_i32 s55, %d
    v_mul_lo_u32 v181, v181, s55
    v_lshrrev_b32 v14, 1, v2
    v_lshl_add_u32 v181, v14, 4, v181
    v_lshlrev_b32 v14, 4, v4
    v_sub_u32 v181, v181, v14
    s_mul_i32 s56, s98, %d
    s_sub_u32 s56, s56, s57
    s_add_u32 s56, s56, %d
    v_add_u32 v181, s56, v181
    s_mul_i32 s56, s98, %d
    s_lshl_b32 s57, s99, 13
    s_add_u32 s56, s56, s57
    s_add_u32 s56, s56, %d
    v_add_u32 v182, s56, v9
    """.replace("FUADDR", str(FU)).replace("FLGADDR", str(L_FLG)) % (UP, L_U + 8 * 16, KC_STR, 4 * KC_STR, L_KC + 7 * 16,
           U_STR, 2 * U_STR, L_U + 20 * 16, L_REDB - L_REDA, L_REDA))
    A("s_waitcnt lgkmcnt(0)\ns_add_u32 s84, s84, 1\ns_or_b32 s84, s84, 0x80000000")
    A("v_mov_b32 v24, s84\nv_mov_b32 v25, s84\nv_mov_b32 v26, s84\nv_mov_b32 v27, s84\nv_mov_b32 v14, 1")
    A("""
    s_mov_b64 exec, 1
    s_waitcnt vmcnt(0)
    ds_add_rtn_u32 v14, v3, v14 offset:12
    s_waitcnt lgkmcnt(0)
    v_readfirstlane_b32 s55, v14
    s_mov_b64 exec, 0xff
    s_cmp_lg_u32 s55, 3
    s_cselect_b32 s62, %s, s62
    buffer_store_dwordx4 v[24:27], v9, %s, s62 offen %s
    s_mov_b64 exec, 0x1ff
    """ % (OOB, WS, WT)); vmq.clear()
    TSTAMP()
    if O('fudelay', 0): A("s_sleep %d" % O('fudelay', 0))
    fu_txt = "buffer_load_dword v14, v8, %s, s63 offen sc1" % WS
    fu_chk = "v_cmp_ne_u32 vcc, s84, v14"
    A(fu_txt + "\ns_waitcnt vmcnt(0)\n" + fu_chk)
    retry("up", fu_txt, fu_chk)
    A("s_mov_b64 exec, -1")
    TSTAMP()
    UL = "sc1" if O('upsc', 0) else ""
    A("""buffer_load_dwordx4 v[32:35], v9, WS, s67 offen UL
    buffer_load_dwordx4 v[40:43], v9, WS, s67 offen offset:1024 UL
    buffer_load_dword v36, v9, WS, s59 offen UL
    buffer_load_dword v44, v9, WS, s59 offen offset:1024 UL
    v_mov_b32 v14, 1
    s_mov_b64 exec, 1
    ds_add_u32 v3, v14 offset:24
    s_mov_b64 exec, -1
    s_waitcnt vmcnt(0)""".replace("WS", WS).replace("UL", UL))
    TSTAMP()
    A("v_cndmask_b32 v36, v36, 0, s[100:101]")
    for h in range(2):
        b = 32 + 8 * h
        W_ = lambda i: v(b + 4) if i < 0 else v(b + i)
        for c in range(2):
            for pi in range(2):
                o = 64 + 8 * h + 2 * (2 * c + pi)
                for jj in range(2):
                    lo = 2 + pi - 2 * jj; hi = lo - 1
                    A("v_perm_b32 %s, %s, %s, %s" % (v(o + jj), W_(hi), W_(lo), "s64" if c == 0 else "s71"))
                A("ds_write_b64 v7, %s offset:%d" % (v(o, 2), (2 * c + pi) * U_STR + 512 * h))
    A("v_mov_b32 v14, 1\ns_mov_b64 exec, 1\nds_add_u32 v3, v14 offset:40\ns_mov_b64 exec, -1\nds_read_b32 v12, v3 offset:40\ns_waitcnt lgkmcnt(0)\nv_cmp_ne_u32 vcc, 8, v12")
    retry("b4a", "ds_read_b32 v12, v3 offset:40", "v_cmp_ne_u32 vcc, 8, v12", wait="s_waitcnt lgkmcnt(0)")
    TSTAMP()
    BF = lambda buf, ct: v(16 + 32 * buf + 4 * ct, 4)
    ACC = lambda t: v(80 + 4 * t, 4)
    KF = lambda ph, g: a(32 * (ph & 1) + 4 * g, 4)
    bread = lambda ph, ct: "ds_read_b128 %s, v181 offset:%d" % (BF(ph & 1, ct), 512 * ct + 64 * (3 - ph))
    kread = lambda ph, g: "ds_read_b128 %s, v180 offset:%d" % (KF(ph, g), 512 * g + 64 * ph)
    for i in range(7): A(kread(0, i)); A(bread(0, i))
    p2pre = lines("""v_lshrrev_b32 v5, 2, v1
    v_mul_u32_u24 v5, 96, v5
    v_and_b32 v14, 3, v1
    v_lshl_add_u32 v5, v14, 3, v5
    v_add_u32 v6, %d, v5
    s_lshl_b32 s55, s3, 12
    v_add_u32 v7, s55, v9
    s_lshl_b32 s67, s86, 18
    s_add_u32 s67, s67, %d
    v_lshlrev_b32 v8, 4, v4
    v_add_u32 v8, %d, v8
    v_mov_b32 v3, %d
    v_lshlrev_b32 v10, 2, v2
    v_add_u32 v10, 0xc0, v10""" % (L_WU, HP, L_CS, L_FLG))
    touched = set(); issued = 14
    for ph in range(4):
        if ph in (0, 3): order = [(t - ct, ct) for t in range(8) for ct in range(t + 1)]
        else: order = [(g, ct) for ct in range(8) for g in range(8 - ct)]
        nxt = [x for i in range(8) for x in (kread(ph + 1, i), bread(ph + 1, i))] if ph < 3 else []
        for idx, (g, ct) in enumerate(order):
            t = g + ct
            if ph == 0 and ct == 0:
                need = 2 * (t + 1)
                if t < 7 or True: A("s_waitcnt lgkmcnt(%d)" % min(15, issued - need))
            if ph > 0 and idx == 0: A("s_waitcnt lgkmcnt(0)")
            if 36 * ph + idx == O('lpi', 40): A("v_mov_b32 v14, 1\nds_write_b32 v3, v14 offset:32")
            if ph == 3 and idx == 0: A("v_mov_b32 v14, 1\ns_mov_b64 exec, 1\nds_add_u32 v3, v14 offset:16\ns_mov_b64 exec, -1")
            A("%s %s, %s, %s, %s" % (MF, ACC(t), KF(ph, g), BF(ph & 1, ct), ACC(t) if t in touched else "0"))
            touched.add(t)
            if ph == 3 and idx == 6: A("ds_read_b32 v12, v3 offset:16")
            if ph == 3 and idx == 12: A("s_waitcnt lgkmcnt(0)\nv_cmp_ne_u32 vcc, 4, v12")
            if ph == 3 and idx == 14: retry("kc", "ds_read_b32 v12, v3 offset:16", "v_cmp_ne_u32 vcc, 4, v12", wait="s_waitcnt lgkmcnt(0)")
            if ph == 3 and idx in (15, 17, 19, 21): A("ds_write_b128 v182, %s offset:%d" % (ACC((idx - 15) // 2), 1024 * ((idx - 15) // 2)))
            if ph == 0 and idx == 1: A(kread(0, 7)); A(bread(0, 7)); issued += 2
            if idx >= 16 and nxt:
                A(nxt.pop(0))
                if ph == 0: issued += 1
            if ph == 1 and p2pre: A(p2pre.pop(0))
            if ph == 3 and idx in (23, 28): A("ds_write_b128 v182, %s offset:%d" % (ACC(4 if idx == 23 else 5), 1024 * (4 if idx == 23 else 5)))
        assert not nxt
    A("ds_write_b128 v182, %s offset:%d" % (ACC(6), 1024 * 6))
    A("ds_write_b128 v182, %s offset:%d" % (ACC(7), 1024 * 7))
    A("s_waitcnt lgkmcnt(0)")
    TSTAMP()
    A("s_barrier")
    TSTAMP()
    A("s_barrier")
    TSTAMP()
    XS = lambda st: 16 + 16 * (st & 3)
    AC = lambda arr, ft, tau: v(80 + 48 * arr + 16 * ft + 4 * tau, 4)
    WF = lambda st, arr, ft: 24 * (st & 1) + 12 * arr + 4 * ft
    def xaddr(st): return ["s_add_u32 s55, s88, %d" % st, "s_and_b32 s55, s55, 15", "s_lshl_b32 s55, s55, 14", "s_add_u32 s96, s55, s67"]
    def xlds(st): return ["buffer_load_dwordx4 %s, v7, %s, s96 offen offset:%d sc1" % (v(XS(st) + 4 * j, 4), WS, 1024 * j) for j in range(4)]
    def xload_txt(st): return "\n".join(xaddr(st) + xlds(st)).replace("s96", "s97")
    def xload(st):
        A("\n".join(xaddr(st) + xlds(st))); vmq.extend(["x%d" % st] * 4)
    def xchk(st):
        b = XS(st)
        return ["v_max3_u32 v11, %s, %s, %s" % (v(b), v(b + 4), v(b + 8)), "v_max_u32 v11, v11, %s" % v(b + 12), "v_cmp_eq_u32 vcc, -1, v11"]
    def wreads(st):
        return ["ds_read_b64_tr_b16 %s, %s offset:%d" % (a(WF(st, arr, ft) + 2 * h, 2), "v6" if arr else "v5", st * 3072 + h * 1536 + ft * 32)
                for arr in range(2) for ft in range(3) for h in range(2)]
    def swaps(st):
        b = XS(st)
        return ["v_swap_b32 %s, %s" % (v(b + 4 * j + t), v(b + 4 * t + j)) for j in range(4) for t in range(j + 1, 4)]
    if O('xdelay', 0): A("s_sleep %d" % O('xdelay', 0))
    if O('x3', 0):
        xload(0); xload(1); xload(2)
        for r in wreads(0): A(r)
        vmwait("x0")
        for r in xchk(0): A(r)
        retry("xP", "\n".join(xload_txt(i) for i in range(3)), "\n".join(xchk(0)), wait="s_waitcnt vmcnt(8)")
        TSTAMP()
    else:
        xload(0)
        for r in wreads(0): A(r)
        vmwait("x0")
        for r in xchk(0): A(r)
        if O('xr3', 0):
            A("s_cbranch_vccnz L_rxP")
            xload(1); xload(2)
            A.label("L_oxP")
            stubs.append("L_rxP:\n%s\ns_waitcnt vmcnt(8)\n%s\ns_cbranch_vccz L_oxP\ns_sub_u32 s85, s85, 1\ns_cbranch_scc0 L_rxP\ns_mov_b32 s85, 0\ns_branch L_oxP"
                         % ("\n".join(xload_txt(i) for i in range(3)), "\n".join(xchk(0))))
            TSTAMP()
        else:
            retry("xP", xload_txt(0), "\n".join(xchk(0)))
            TSTAMP()
            xload(1); xload(2)
    for r in swaps(0): A(r)
    if O('aprio', 2): A("s_setprio %d" % O('aprio', 2))
    A("s_cmp_eq_u32 s87, 31\ns_cbranch_scc1 L_p2alt")
    def flagrd(k): return "ds_read_b32 v12, v3 offset:%d" % (4 * k)
    flagchk = "v_cmp_ne_u32 vcc, 4, v12"
    def p2loop(alt):
        for st in range(16):
            ml = []
            for arr in range(2):
                for ft in range(3):
                    for tau in range(4):
                        xf = v(XS(st) + 4 * tau, 4)
                        wf = a(WF(st, arr, ft), 4)
                        if alt and arr == 1 and ft == 2: wf = xf
                        ml.append("%s %s, %s, %s, %s" % (MF, AC(arr, ft, tau), wf, xf, AC(arr, ft, tau) if st else "0"))
            wr = wreads(st + 1) if st < 15 else ["ds_read_b128 %s, v8 offset:%d" % (v(40 + 4 * t, 4), 64 * t) for t in range(6)]
            if st in (8, 14): wr = wr + [flagrd(0 if st == 8 else 1)]
            sw = swaps(st + 1) if st < 15 else []
            ck = xchk(st + 1) if st < 15 else []
            xa = xaddr(st + 3) if st + 3 < 16 else []
            xl = xlds(st + 3) if st + 3 < 16 else []
            tg = "b" if alt else "a"
            if O('fine2', 0) and st > 0:
                if alt and st == 1: nst[0] -= 15
                TSTAMP()
            A("s_waitcnt lgkmcnt(0)")
            for i, m in enumerate(ml):
                if i == 0 and st in (9, 15): A(flagchk)
                A(m)
                if i == 1 and st in (9, 15): retry("f%s%d" % (tg, st), flagrd(0 if st == 9 else 1), flagchk, wait="s_waitcnt lgkmcnt(0)")
                if i < 2 and xa: A(xa.pop(0)); A(xa.pop(0))
                if i >= (2 if st in (9, 15) else O('wr0', 2)) and wr:
                    A(wr.pop(0))
                    if O('wr2', 0) and i % 2 == 1 and wr: A(wr.pop(0))
                if i in (2, 4, 6, 8) and xl: VM(xl.pop(0).replace(" sc1", "" if O('xplain', 0) else " sc1"), "x%d" % (st + 3))
                if st <= 12 and i == O('pgi', 15) - 6: A("v_mov_b32 v13, %d" % (st + 1))
                if st <= 12 and i == O('pgi', 15): A("ds_write_b32 v3, v13 offset:36")
                if i == 12 and sw: vmwait("x%d" % (st + 1))
                if i >= 12 and ck:
                    x = ck.pop(0)
                    if not O('nochk', 0): A(x)
                if i == 16 and sw and not O('nochk', 0): retry("x%s%d" % (tg, st + 1), xload_txt(st + 1), "\n".join(xchk(st + 1)))
                if i >= 16 and sw:
                    x = sw.pop(0)
                    if not O('nosw', 0): A(x)
            assert not wr and not sw and not xl
    sv = list(vmq)
    p2loop(False)
    A("s_branch L_p2join")
    A.label("L_p2alt")
    vmq[:] = sv
    p2loop(True)
    A.label("L_p2join")
    TSTAMP()
    A("s_nop 3")
    for tau in range(4):
        A("ds_bpermute_b32 %s, v10, %s" % (v(64 + 2 * tau), v(80 + 32 + 4 * tau)))
    A("s_mov_b32 s57, 0xbb000000\ns_waitcnt lgkmcnt(0)")
    for tau in range(4): A("v_mul_f32 %s, s57, %s" % (v(64 + 2 * tau), v(64 + 2 * tau)))
    A("s_cmp_lg_u32 s87, 31\ns_cbranch_scc1 L_novar")
    A("v_and_b32 v10, 3, v2")
    for tau in range(4): A("v_mov_b32 %s, %s" % (v(72 + tau), v(80 + 48 + 32 + 4 * tau)))
    for j in range(1, 4):
        A("v_cmp_eq_u32 vcc, %d, v10" % j)
        for tau in range(4):
            A("v_cndmask_b32 %s, %s, %s, vcc" % (v(72 + tau), v(72 + tau), v(80 + 48 + 32 + 4 * tau + j)))
    A("s_mov_b32 s56, 0x3b000000\ns_mov_b32 s57, 0x3727c5ac")
    for tau in range(4): A("v_mul_f32 %s, s56, %s" % (v(72 + tau), v(72 + tau)))
    for tau in range(4): A("v_fma_f32 %s, -%s, %s, %s" % (v(72 + tau), v(64 + 2 * tau), v(64 + 2 * tau), v(72 + tau)))
    for tau in range(4): A("v_max_f32 %s, 0, %s" % (v(72 + tau), v(72 + tau)))
    for tau in range(4): A("v_add_f32 %s, s57, %s" % (v(72 + tau), v(72 + tau)))
    for tau in range(4): A("v_rcp_f32 %s, %s" % (v(72 + tau), v(72 + tau)))
    A("s_nop 0\nbuffer_store_dwordx4 v[72:75], v179, %s, s91 offen %s" % (WS, WT))
    A.label("L_novar")
    for ft in range(3):
        for g in range(2):
            o = 16 + 8 * ft + 4 * g
            for e in range(2):
                tau = 2 * g + e
                gb = 80 + 16 * ft + 4 * tau; ub = gb + 48
                M = v(64 + 2 * tau, 2)
                for j in (0, 2):
                    A("v_pk_fma_f32 %s, %s, %s, %s op_sel_hi:[1,0,1]" % (v(gb + j, 2), v(40 + 4 * ft + j, 2), M, v(gb + j, 2)))
                    A("v_pk_fma_f32 %s, %s, %s, %s op_sel_hi:[1,0,1]" % (v(ub + j, 2), v(52 + 4 * ft + j, 2), M, v(ub + j, 2)))
                for j in range(4): A("v_max_f32 %s, 0, %s" % (v(gb + j), v(gb + j)))
                for j in (0, 2): A("v_pk_mul_f32 %s, %s, %s" % (v(gb + j, 2), v(gb + j, 2), v(ub + j, 2)))
                for j in (0, 2): A("v_cvt_pk_bf16_f32 %s, %s, %s" % (v(o + 2 * e + j // 2), v(gb + j), v(gb + j + 1)))
            A("buffer_store_dwordx4 %s, %s, %s, %s offen offset:%d %s" % (v(o, 4), HV[ft], WS, "s90" if g else "s89", 1024 * ft, WT))
    TSTAMP()
    A("s_barrier")
    if O('spinto', 0) and O('spinrole', 1) == 0: A("s_barrier")
    spin(0)
    dump(TS)
    A("s_endpgm")

    A.label("L_B")
    vmq.clear(); nst[0] = 1; vmq.extend(["stat", "stat", "ssm", "ssm"])
    if O('bprio', 1): A("s_setprio %d" % O('bprio', 1))
    A("s_load_dword s84, %s, 0\ns_lshl_b32 s56, s66, 2\ns_load_dword %s, s[18:19], s56" % (s(S_WS, 2), s(sD)))
    for reg, off in ((S_WD, 72), (S_WG, 56), (S_WU, 64), (S_OUT, 80)):
        A("s_load_dwordx2 %s, s[0:1], %d" % (s(reg, 2), off))
    A(common2)
    for reg, nb in ((S_WD, 1376 * 1024), (S_OUT, 2097152), (S_T, 512 * 2752)):
        A("s_mov_b32 %s, %d\ns_mov_b32 %s, 0x20000" % (s(reg + 2), nb, s(reg + 3)))
    A("""
    s_lshr_b32 s55, s66, 4
    s_lshl_b32 s72, s55, 14
    s_and_b32 s55, s66, 3
    s_lshl_b32 s55, s55, 10
    s_add_u32 s72, s72, s55
    s_bfe_u32 s55, s66, 0x20002
    s_lshl_b32 s55, s55, 8
    s_add_u32 s72, s72, s55
    s_lshl_b32 s55, s3, 19
    s_add_u32 s72, s72, s55
    s_add_u32 s72, s72, %d
    s_add_u32 s73, s72, 0x40000
    v_lshlrev_b32 v63, 4, v2
    v_lshl_add_u32 v63, v4, 12, v63
    v_mov_b32 v64, -1
    v_mov_b32 v65, -1
    v_mov_b32 v66, -1
    v_mov_b32 v67, -1
    """ % HP)
    def hpfill():
        VM("buffer_store_dwordx4 v[64:67], v63, %s, s72 offen %s" % (WS, WT), "fill")
        VM("buffer_store_dwordx4 v[64:67], v63, %s, s73 offen %s" % (WS, WT), "fill")
    hpfill()
    if O('pw', 1):
        A("""
        v_and_b32 v13, 7, v1
        v_lshrrev_b32 v12, 3, v1
        v_mul_u32_u24 v12, %d, v12
        v_lshl_add_u32 v12, v13, 4, v12
        s_lshl_b32 s55, s2, 7
        s_add_u32 s55, s55, %d
        s_cmp_lg_u32 s3, 0
        s_cselect_b32 s55, %s, s55
        """ % (STR, ST, OOB))
        VM("buffer_store_dwordx4 v[40:43], v12, %s, s55 offen %s" % (WS, WT), "pw")
    A(ids)
    A("""
    v_and_b32 v6, 7, v1
    v_xor_b32 v5, s98, v6
    v_lshlrev_b32 v5, 4, v5
    v_lshl_add_u32 v5, v1, 7, v5
    s_lshl_b32 s55, s99, 3
    s_add_u32 s55, s55, %d
    v_add_u32 v5, s55, v5
    v_lshrrev_b32 v7, 3, v1
    s_mov_b32 s55, %d
    v_mul_lo_u32 v8, v7, s55
    v_lshl_add_u32 v8, v6, 4, v8
    v_xor_b32 v6, v6, v7
    v_lshlrev_b32 v6, 4, v6
    v_lshl_add_u32 v6, v7, 7, v6
    s_lshl_b32 s55, s3, 11
    s_add_u32 s55, s55, %d
    v_add_u32 v6, s55, v6
    v_xor_b32 v16, 32, v5
    v_xor_b32 v17, 64, v5
    v_xor_b32 v18, 0x60, v5
    """ % (L_TB, QSTR, L_TB))
    A("""
    s_mul_i32 s55, s3, %d
    s_add_u32 s55, s55, %d
    v_and_b32 v12, 7, v1
    v_lshl_add_u32 v12, v12, 4, s55
    ds_write_b128 v12, v[40:43]
    s_cmp_lg_u32 s99, 0
    s_cbranch_scc1 L_nohead
    v_and_b32 v12, 31, v1
    v_lshlrev_b32 v12, 4, v12
    v_lshrrev_b32 v13, 5, v1
    s_movk_i32 s56, %d
    v_mad_u32_u24 v12, v13, s56, v12
    s_mul_i32 s55, s98, %d
    s_add_u32 s55, s55, %d
    v_add_u32 v12, s55, v12
    ds_write_b128 v12, v[40:43]
    ds_write_b128 v12, v[40:43] offset:%d
    L_nohead:
    """ % (U_STR, L_U, KC_STR, 4 * KC_STR, L_KC, 2 * KC_STR))
    A("""
    s_mul_i32 s55, s3, %d
    s_lshl_b32 s56, s2, 7
    s_add_u32 s55, s55, s56
    s_add_u32 s95, s55, %d
    s_add_u32 s97, s95, %d
    s_movk_i32 s55, 0x2aab
    s_movk_i32 s56, 2752
    """ % (16 * QSTR, QP, 8 * QSTR))
    for i3 in range(3):
        A("""
        v_add_u32 v14, %d, v1
        v_mul_u32_u24 v3, s55, v14
        v_lshrrev_b32 v3, 16, v3
        v_mul_u32_u24 v13, 6, v3
        v_sub_u32 v14, v14, v13
        v_bfe_u32 v13, v3, 2, 2
        v_lshlrev_b32 v13, 3, v13
        v_lshrrev_b32 v12, 4, v3
        v_lshl_add_u32 v13, v12, 2, v13
        v_and_b32 v3, 3, v3
        v_add_u32 v13, v13, v3
        v_mul_u32_u24 v13, s56, v13
        v_lshl_add_u32 %s, v14, 4, v13
        """ % (64 * i3, v(60 + i3)))
    A("""
    s_waitcnt lgkmcnt(0)
    s_bitcmp1_b32 s3, 0
    s_cselect_b32 s48, s32, s28
    s_cselect_b32 s49, s33, s29
    s_add_u32 s69, s88, s98
    s_mul_i32 s70, s87, 88
    s_mul_i32 s76, s99, %d
    s_mul_i32 s56, s98, 3072
    s_add_u32 s76, s76, s56
    s_mul_i32 s56, s98, %d
    s_lshl_b32 s57, s99, 11
    s_add_u32 s56, s56, s57
    s_add_u32 s56, s56, %d
    v_add_u32 v44, s56, v9
    v_add_u32 v45, %d, v44
    v_add_u32 v46, %d, v44
    v_add_u32 v47, %d, v44
    v_mov_b32 v3, FLGA
    """.replace("FLGA", str(L_FLG)) % (L_WU, 4 * KC_STR, L_KC + 512 - 4, KC_STR - 4, 2 * KC_STR - 8, 3 * KC_STR - 12))
    ndma = [0]
    def w1dma(n):
        for _ in range(n):
            i = ndma[0]; ndma[0] += 1
            gi, i3 = divmod(i, 3)
            if i3 == 0: A("s_and_b32 s77, s69, 15\ns_mul_i32 s77, s77, 88064\ns_add_u32 s77, s77, s70\ns_add_u32 s69, s69, 2")
            A("s_add_u32 m0, s76, %d" % (gi * 6144 + i3 * 1024))
            VM("buffer_load_dwordx4 %s, %s, s77 offen %s lds" % (v(60 + i3), srd(S_T), "nt" if i < O('w1nt', 0) else ""), "dma")
    span = 88 * (32 // RBX)
    ntouch = ((span + 8 + 127 + 127) // 128 + 7) // 8
    def w1touch(pos):
        if O('w1tp', 9) != pos: return 0
        A("""
        v_lshrrev_b32 v12, 3, v1
        s_movk_i32 s55, 2752
        v_mul_lo_u32 v12, v12, s55
        v_and_b32 v13, 7, v1
        v_lshlrev_b32 v13, 7, v13
        s_lshl_b32 s55, s5, 1
        s_add_u32 s55, s55, s98
        s_mul_i32 s55, s55, 22016
        s_and_b32 s56, s4, %d
        s_mul_i32 s56, s56, %d
        s_add_u32 s55, s55, s56
        """ % (RBX - 1, span))
        for i in range(ntouch):
            A("v_add_u32 v14, %d, v13\nv_min_u32 v14, %d, v14\nv_add_u32 v14, v14, v12" % (1024 * i, span + 4))
            VM("buffer_load_dword v11, v14, %s, s55 offen %s" % (srd(S_T), "nt" if O('tnt', 0) else ""), "tch")
        return ntouch
    def hfill(pos):
        if O('hfp', 0) != pos: return
        A(haddr(["v68", "v69", "v70"], "v71", ("v12", "v13")))
        for ft in range(3):
            for g in range(2):
                VM("buffer_store_dwordx4 v[64:67], %s, %s, %s offen offset:%d %s" % (v(68 + ft), WS, "s90" if g else "s89", 1024 * ft, WT), "fill")
        VM("buffer_store_dwordx4 v[64:67], v71, %s, s91 offen %s" % (WS, WT), "fill")
        A("v_mov_b32 v13, 1")
    def w1mall(pos):
        if O('w1m', 9) != pos: return 0
        A("s_lshl_b32 s55, s2, 1\ns_add_u32 s55, s55, s98\ns_mul_i32 s55, s55, 2752\nv_lshlrev_b32 v12, 7, v1\ns_mov_b64 exec, 0x3fffff")
        VM("buffer_load_dword v11, v12, %s, s55 offen" % srd(S_T), "tch")
        A("s_mov_b64 exec, -1")
        return 1
    def wdtouch(pos):
        if O('wdtp', 1) != pos: return
        if O('wdtm', 1) == 1:
            A("s_lshl_b32 s55, s2, 2\ns_add_u32 s55, s55, s3\ns_mul_i32 s55, s55, 1408\nv_lshlrev_b32 v12, 7, v1\ns_mov_b64 exec, 0x7ff")
            VM("buffer_load_dword %s, v12, %s, s55 offen" % ("v63" if pos == 4 else "v11", srd(S_WD)), "tch")
            A("s_mov_b64 exec, -1")
        else:
            A("s_lshl_b32 s55, s5, 2\ns_add_u32 s55, s55, s3\ns_mul_i32 s55, s55, 11008\nv_lshlrev_b32 v12, 7, v1")
            VM("buffer_load_dword v11, v12, %s, s55 offen" % srd(S_WD), "tch")
            A("s_add_u32 s55, s55, 8192\ns_mov_b64 exec, 0x3fffff")
            VM("buffer_load_dword v11, v12, %s, s55 offen" % srd(S_WD), "tch")
            A("s_mov_b64 exec, -1")
    TSTAMP()
    w1mall(0); wdtouch(5)
    w1dma(O('nw1a', 0))
    A("v_mov_b32 v21, 0x3f803f80")
    vmwait("stat")
    TSTAMP()
    w1touch(1)
    for i in range(4): A("ds_write2_b32 %s, %s, %s offset0:0 offset1:1" % (("v5", "v16", "v17", "v18")[i], v(32 + i), v(36 + i)))
    A("v_mov_b32 v14, 1\ns_waitcnt lgkmcnt(0)\ns_mov_b64 exec, 1\nds_add_u32 v3, v14 offset:20\ns_mov_b64 exec, -1\ns_add_u32 s84, s84, 1\ns_or_b32 s84, s84, 0x80000000")
    for i in range(4):
        for e in range(2):
            A("v_dot2c_f32_bf16 %s, %s, v21" % (v(42 + e), v(32 + 4 * e + i)))
            A("v_dot2c_f32_bf16 %s, %s, %s" % (v(40 + e), v(32 + 4 * e + i), v(32 + 4 * e + i)))
    for m in ("row_shr:1", "row_shr:2", "row_shr:4", "row_shr:8", "row_bcast:15 row_mask:0xa", "row_bcast:31 row_mask:0xc"):
        for r in range(40, 44):
            A("v_add_f32_dpp %s, %s, %s %s" % (v(r), v(r), v(r), m))
    A("s_mov_b32 s56, 0x3b000000\ns_mov_b32 s57, 0x3727c5ac")
    for r in range(40, 44): A("v_mul_f32 %s, s56, %s" % (v(r), v(r)))
    for e in range(2): A("v_fma_f32 %s, -%s, %s, %s" % (v(40 + e), v(42 + e), v(42 + e), v(40 + e)))
    for e in range(2): A("v_max_f32 %s, 0, %s" % (v(40 + e), v(40 + e)))
    for e in range(2): A("v_add_f32 %s, s57, %s" % (v(40 + e), v(40 + e)))
    for e in range(2): A("v_rsq_f32 %s, %s" % (v(40 + e), v(40 + e)))
    for e in range(2): A("v_mul_f32_e64 %s, -%s, %s" % (v(42 + e), v(42 + e), v(40 + e)))
    A("v_mov_b32 v19, v6\nv_mov_b32 v20, v8")
    qw_txt = "ds_read2_b32 v[12:13], v3 offset0:%d offset1:5" % O('qwait', 5)
    qw_chk = "v_add_u32 v12, v12, v13\nv_cmp_ne_u32 vcc, 8, v12"
    A(qw_txt + "\ns_waitcnt lgkmcnt(0)\n" + qw_chk)
    retry("qw", "s_sleep 1\n" + qw_txt, qw_chk, wait="s_waitcnt lgkmcnt(0)")
    TSTAMP()
    A("ds_read_b128 v[48:51], v19\nds_read_b128 v[52:55], v19 offset:1024\ns_waitcnt lgkmcnt(1)")
    A("buffer_store_dwordx4 v[48:51], v20, %s, s95 offen %s\ns_waitcnt lgkmcnt(0)" % (WS, WT))
    A("buffer_store_dwordx4 v[52:55], v20, %s, s97 offen %s" % (WS, WT))
    vmq.extend(["st"] * 2)
    w1dma(O('nw1b', 0)); nyoung = O('nw1b', 0) + w1mall(1)
    vmwait("ssm")
    for i in range(2):
        b = 24 + 4 * i
        if i == 1: A("v_add_u32 v44, 0x400, v44\nv_add_u32 v46, 0x400, v46")
        for ad in ("v44", "v46"):
            A("ds_write2_b32 %s, %s, %s offset0:0 offset1:1" % (ad, v(b), v(b + 1)))
            A("ds_write2_b32 %s, %s, %s offset0:2 offset1:3" % (ad, v(b + 2), v(b + 3)))
        A("ds_write2_b64 v45, %s, %s offset0:%d offset1:%d" % (v(b, 2), v(b + 2, 2), 128 * i, 128 * i + 1))
        A("ds_write_b128 v47, %s offset:%d" % (v(b, 4), 1024 * i))
    A("v_mov_b32 v14, 1\ns_mov_b64 exec, 1\nds_add_u32 v3, v14 offset:40\ns_mov_b64 exec, -1")
    A("""
    s_lshl_b32 s55, s3, 4
    s_add_u32 s55, s55, %d
    v_mov_b32 v12, s55
    v_mov_b32 v13, %d
    v_mov_b32 v14, 1
    s_mov_b32 exec_lo, 0
    s_mov_b32 exec_hi, 0x80000000
    ds_write_b128 v12, v[40:43]
    s_waitcnt vmcnt(NYOUNG) lgkmcnt(0)
    ds_add_rtn_u32 v14, v13, v14 offset:8
    s_waitcnt lgkmcnt(0)
    v_readfirstlane_b32 s55, v14
    s_mov_b64 exec, -1
    s_cmp_lg_u32 s55, 3
    s_cbranch_scc1 L_nost
    v_and_b32 v12, 3, v1
    v_lshlrev_b32 v12, 4, v12
    ds_read_b128 v[40:43], v12 offset:%%d
    v_and_b32 v13, 7, v1
    v_cmp_lt_u32 vcc, 3, v13
    v_mov_b32 v14, s84
    v_cndmask_b32 v14, 0, v14, vcc
    v_lshrrev_b32 v12, 3, v1
    v_mul_u32_u24 v12, STRIDE, v12
    v_lshl_add_u32 v12, v13, 4, v12
    s_lshl_b32 s55, s2, 7
    s_add_u32 s55, s55, %d
    s_waitcnt lgkmcnt(0)
    v_xor_b32 v40, v14, v40
    v_xor_b32 v41, v14, v41
    v_xor_b32 v42, v14, v42
    v_xor_b32 v43, v14, v43
    s_mov_b64 exec, STEX
    buffer_store_dwordx4 v[40:43], v12, WS, s55 offen WT
    s_mov_b64 exec, -1
    L_nost:
    """.replace("STRIDE", str(STR)).replace("STEX", "-1" if O('strep', 1) else "0xff").replace("WS", WS).replace("WT", WT).replace("NYOUNG", str(nyoung)).replace("v_lshlrev_b32 v12, 4, v12\n    ds_read_b128 v[40:43], v12 offset:%%d", "v_lshlrev_b32 v12, 4, v12\n    v_add_u32 v12, STL, v12\n    ds_read_b128 v[40:43], v12").replace("STL", str(L_FLG + 64)) % (L_FLG + 64, L_FLG, ST)); vmq.clear()
    TSTAMP()
    w1mall(2); wdtouch(6)
    w1dma(O('nw1c', 0))
    A("""
    s_and_b32 s55, s54, 0xffff
    s_lshr_b32 s56, s54, 16
    v_mov_b32 v13, s55
    v_mov_b32 v14, s56
    v_lshl_add_u32 v12, v4, 2, 3
    v_sub_u32 v12, v12, v2
    """)
    for jj in range(4):
        A("v_cmp_eq_u32 vcc, %d, v12\nv_cndmask_b32 %s, 0, v13, vcc\nv_cndmask_b32 %s, 0, v14, vcc" % (jj, v(72 + jj), v(76 + jj)))
    A("""
    v_and_b32 v5, 1, v2
    s_movk_i32 s55, %d
    v_mul_lo_u32 v5, v5, s55
    v_lshrrev_b32 v14, 1, v2
    v_lshl_add_u32 v5, v14, 4, v5
    v_lshl_add_u32 v5, v4, 7, v5
    s_lshl_b32 s56, s3, 10
    s_add_u32 s56, s56, %d
    v_add_u32 v5, s56, v5
    s_lshl_b32 s56, s3, 11
    s_add_u32 s57, s56, %d
    v_add_u32 v6, s57, v9
    v_add_u32 v7, %d, v6
    s_lshr_b32 s68, s66, 2
    s_mul_i32 s68, s68, %d
    s_and_b32 s57, s66, 3
    s_lshl_b32 s57, s57, 5
    s_add_u32 s68, s68, s57
    s_lshl_b32 s58, s3, 13
    s_add_u32 s68, s68, s58
    s_add_u32 s68, s68, %d
    s_add_u32 s60, s68, 0x1000
    s_add_u32 s58, s58, %d
    s_mul_i32 s57, s4, STRX
    s_add_u32 s58, s58, s57
    s_add_u32 s59, s58, 0x1000
    v_lshrrev_b32 v8, 1, v1
    v_lshlrev_b32 v8, 7, v8
    v_and_b32 v14, 1, v1
    v_lshl_add_u32 v10, v14, 4, v8
    v_lshl_add_u32 v8, v14, 5, v8
    s_mul_i32 s61, s99, 49152
    s_lshl_b32 s57, s98, 13
    s_add_u32 s61, s61, s57
    s_add_u32 s61, s61, 0x8000
    v_lshlrev_b32 v14, 3, v1
    v_and_b32 v14, 0x70, v14
    v_xor_b32 v8, v8, v14
    v_add_u32 v8, s61, v8
    v_xor_b32 v57, 16, v8
    v_xor_b32 v58, 64, v8
    v_xor_b32 v59, 0x50, v8
    v_lshlrev_b32 v14, 1, v1
    v_and_b32 v14, 0x70, v14
    v_xor_b32 v56, v9, v14
    """.replace("STRX", str(STR if O('strep', 1) else 0)) % (U_STR, L_U + 8 * 16, L_REDA, L_REDB - L_REDA, QSTR, QP, ST))
    if O('nw1e', 6) or O('wdtp', 1) == 1:
        A("ds_read_b32 v12, v3 offset:24\ns_waitcnt lgkmcnt(0)\nv_cmp_ne_u32 vcc, 4, v12")
        retry("uw", "s_sleep 1\nds_read_b32 v12, v3 offset:24", "v_cmp_ne_u32 vcc, 4, v12", wait="s_waitcnt lgkmcnt(0)")
    st_dma = "s_mov_b32 m0, s61\n" + "\n".join("buffer_load_dwordx4 v56, %s, s58 offen offset:%d sc1 lds" % (WS, 1024 * i) for i in range(4)) + \
             "\ns_add_u32 m0, s61, 0x1000\n" + "\n".join("buffer_load_dwordx4 v56, %s, s59 offen offset:%d sc1 lds" % (WS, 1024 * i) for i in range(4))
    st_rd = "\n".join("ds_read_b128 %s, %s offset:%d" % (v(16 * (1 + cp) + 8 * e + 4 * h, 4), ("v8", "v57", "v58", "v59")[h + 2 * cp], 4096 * e)
                       for e in range(2) for h in range(2) for cp in range(2))
    st_chk = "\n".join(["v_bitop3_b32 %s, %s, %s, s84 bitop3:0x96" % (v(32 + i), v(32 + i), v(16 + i)) for i in range(16)] +
                       ["v_or3_b32 %s, %s, %s, %s" % (v(32 + i), v(32 + i), v(33 + i), v(34 + i)) for i in (0, 3, 6, 9, 12)] +
                       ["v_or3_b32 v32, v32, v35, v38", "v_or3_b32 v41, v41, v44, v47", "v_or_b32 v32, v32, v41", "v_cmp_ne_u32 vcc, 0, v32"])
    if O('stf', 0):
        A("ds_read_b32 v12, v3 offset:8\ns_waitcnt lgkmcnt(0)\nv_cmp_ne_u32 vcc, 4, v12")
        retry("s8", "ds_read_b32 v12, v3 offset:8", "v_cmp_ne_u32 vcc, 4, v12", wait="s_waitcnt lgkmcnt(0)")
        A(st_dma); vmq.extend(["stp"] * 8)
    w1dma(min(O('nw1e', 6), 15 - ndma[0]))
    wdtouch(1)
    A("ds_read_b32 v12, v3 offset:40\ns_waitcnt lgkmcnt(0)\nv_cmp_ne_u32 vcc, 8, v12")
    retry("b4b", "s_sleep 1\nds_read_b32 v12, v3 offset:40", "v_cmp_ne_u32 vcc, 8, v12", wait="s_waitcnt lgkmcnt(0)")
    TSTAMP()
    for e in range(2):
        for c in range(2):
            A("ds_read_b128 %s, v5 offset:%d" % (v(80 + 8 * e + 4 * c, 4), 2 * c * U_STR + 512 * e))
    hfill(1)
    w1dma(O('nw1d', 0))
    A("s_waitcnt lgkmcnt(0)")
    for e in range(2):
        for c in range(2):
            A("%s %s, %s, %s, 0" % (MF, v(96 + 8 * e + 4 * c, 4), v(72 + 4 * c, 4), v(80 + 8 * e + 4 * c, 4)))
    w1dma(O('nw1f', 0))
    if O('lpw', 1) and not O('stf', 0):
        A("ds_read_b32 v12, v3 offset:32\ns_waitcnt lgkmcnt(0)\nv_cmp_eq_u32 vcc, 0, v12")
        retry("lw", "s_sleep 1\nds_read_b32 v12, v3 offset:32", "v_cmp_eq_u32 vcc, 0, v12", wait="s_waitcnt lgkmcnt(0)")
    if not O('stf', 0): A(st_dma); vmq.extend(["stp"] * 8)
    w1dma(min(O('nw1i', 3), 15 - ndma[0]))
    vmwait("stp")
    A(st_rd + "\ns_waitcnt lgkmcnt(0)\n" + st_chk)
    retry("st", "s_sleep %d\n" % O('stsl', 4) + st_dma + "\ns_waitcnt vmcnt(0)\n" + st_rd, st_chk, wait="s_waitcnt lgkmcnt(0)")
    TSTAMP()
    VM("buffer_load_dwordx4 v[48:51], v10, %s, s68 offen sc1" % WS, "qp")
    VM("buffer_load_dwordx4 v[52:55], v10, %s, s60 offen sc1" % WS, "qp")
    wdtouch(2)
    hfill(2)
    w1dma(min(O('nw1g', 6), 15 - ndma[0]))
    if O('nw1z', 0):
        A("v_mov_b32 v14, 1\ns_mov_b64 exec, 1\nds_add_u32 v3, v14 offset:44\ns_mov_b64 exec, -1\nds_read_b32 v12, v3 offset:44\ns_waitcnt lgkmcnt(0)\nv_cmp_ne_u32 vcc, 4, v12")
        retry("sv", "ds_read_b32 v12, v3 offset:44", "v_cmp_ne_u32 vcc, 4, v12", wait="s_waitcnt lgkmcnt(0)")
        w1dma(min(O('nw1z', 0), 24 - ndma[0]))
    vmwait("qp")
    TSTAMP()
    for e in range(2):
        for j in range(4):
            A("v_lshlrev_b32 %s, 16, %s" % (v(112 + 8 * e + j), v(48 + 4 * e + j)))
            A("v_and_b32 %s, s65, %s" % (v(116 + 8 * e + j), v(48 + 4 * e + j)))
    for e in range(2):
        for c in range(2):
            for j in (0, 2):
                A("v_pk_fma_f32 %s, %s, %s, %s" % (v(128 + 8 * e + 4 * c + j, 2), v(112 + 8 * e + 4 * c + j, 2), v(16 + 8 * e + 2 * j, 2), v(18 + 8 * e + 2 * j, 2)))
    w1dma(O('nw1h', 0))
    TSTAMP()
    A("s_barrier")
    TSTAMP()
    for e in range(2):
        for src in range(4):
            A("ds_read_b128 %s, %s offset:%d" % (v(16 + 16 * e + 4 * src, 4), "v7" if src >= 2 else "v6", 8192 * (src & 1) + 1024 * e))
    for e in range(2):
        for c in range(2):
            A("s_waitcnt lgkmcnt(%d)" % (6 - 4 * e - 2 * c))
            for j in (0, 2):
                d = v(96 + 8 * e + 4 * c + j, 2)
                A("v_pk_add_f32 %s, %s, %s" % (d, d, v(16 + 16 * e + 8 * c + j, 2)))
            for j in (0, 2):
                d = v(96 + 8 * e + 4 * c + j, 2)
                A("v_pk_add_f32 %s, %s, %s" % (d, d, v(20 + 16 * e + 8 * c + j, 2)))
            for j in (0, 2):
                d = v(96 + 8 * e + 4 * c + j, 2)
                A("v_pk_fma_f32 %s, %s, %s, %s" % (d, d, v(128 + 8 * e + 4 * c + j, 2), v(112 + 8 * e + 4 * c + j, 2)))
        for j in range(4):
            A("v_cvt_pk_bf16_f32 %s, %s, %s" % (v(48 + 4 * e + j), v(96 + 8 * e + j), v(100 + 8 * e + j)))
        VM("buffer_store_dwordx4 %s, v63, %s, %s offen %s" % (v(48 + 4 * e, 4), WS, "s73" if e else "s72", WT), "hp")
    TSTAMP()
    NB6 = O('nb6', 15)
    wdtouch(3)
    hfill(3)
    w1dma(NB6 - ndma[0])
    A("""
    v_mov_b32 v56, 0x3f803f80
    v_mov_b32 v57, 0x3f803f80
    v_mov_b32 v58, 0x3f803f80
    v_mov_b32 v59, 0x3f803f80
    v_and_b32 v14, 31, v1
    v_mul_u32_u24 v14, 96, v14
    s_add_u32 s55, s76, 88
    v_add_u32 v14, s55, v14
    v_mov_b32 v3, %d
    v_mov_b32 v13, 1
    """ % L_FLG)
    vmwait("dma")
    for i in range(NB6 // 3): A("ds_write_b64 v14, v[56:57] offset:%d" % (6144 * i))
    A("s_waitcnt lgkmcnt(0)\ns_barrier")
    TSTAMP()
    def xtouch(pos):
        if O('xtp', 9) != pos: return
        A("""
        s_and_b32 s55, s87, %d
        s_lshl_b32 s55, s55, 2
        s_add_u32 s55, s55, s3
        s_lshl_b32 s55, s55, 7
        s_lshl_b32 s56, s86, 18
        s_add_u32 s55, s55, s56
        s_add_u32 s55, s55, %d
        v_lshlrev_b32 v12, 12, v1
        """ % (32 // RBX - 1, HP))
        VM("buffer_load_dword v63, v12, %s, s55 offen sc1" % WS, "tch")
    xtouch(0)
    w1dma(24 - NB6)
    xtouch(1)
    A("""
    s_and_b32 s72, s5, 7
    s_lshr_b32 s71, s5, 3
    s_mul_i32 s56, s71, %d
    s_mul_i32 s55, s72, %d
    s_add_u32 s55, s55, s56
    s_sub_u32 s56, s55, 11
    s_cmp_ge_u32 s55, 11
    s_cselect_b32 s55, s56, s55
    s_mul_i32 s56, s3, 11
    s_add_u32 s57, s56, 11
    s_add_u32 s55, s55, s56
    """ % (O('rot4', 0), O('rot3', 0)))
    for i in range(11):
        A("s_lshl_b32 %s, s55, 11\ns_add_u32 s55, s55, 1\ns_cmp_eq_u32 s55, s57\ns_cselect_b32 s55, s56, s55" % s(8 + i))
    A("""
    v_lshrrev_b32 v5, 3, v1
    v_and_b32 v6, 2, v5
    v_lshlrev_b32 v6, 1, v6
    v_and_b32 v7, 7, v1
    v_xor_b32 v6, v6, v7
    v_lshlrev_b32 v5, 10, v5
    v_lshl_add_u32 v5, v6, 4, v5
    s_mul_i32 s92, s3, 12288
    s_add_u32 s92, s92, %d
    v_lshrrev_b32 v6, 2, v1
    v_and_b32 v7, 2, v6
    v_lshlrev_b32 v7, 5, v7
    v_lshlrev_b32 v6, 7, v6
    v_and_b32 v8, 3, v1
    v_lshl_add_u32 v6, v8, 4, v6
    v_add_u32 v6, v6, v7
    s_lshl_b32 s55, s99, 6
    v_xor_b32 v7, s55, v6
    v_xor_b32 v6, 64, v7
    v_add_u32 v6, s92, v6
    v_add_u32 v7, s92, v7
    s_lshl_b32 s93, s72, 7
    v_lshrrev_b32 v10, 2, v1
    v_mul_u32_u24 v10, 96, v10
    v_lshl_add_u32 v10, v8, 3, v10
    s_lshl_b32 s56, s99, 5
    s_add_u32 s56, s56, %d
    v_add_u32 v11, s56, v10
    s_lshl_b32 s55, s3, 5
    s_cmp_eq_u32 s3, 3
    s_cselect_b32 s55, %d, s55
    v_add_u32 v10, s55, v10
    """ % (L_SG, L_WU + 32, L_WU))
    WDR = lambda i, tm: a(16 * i + 4 * tm, 4) if i < 4 else v(72 + 16 * (i - 4) + 4 * tm, 4)
    WDH = lambda i, tm, h: a(16 * i + 4 * tm + 2 * h, 2) if i < 4 else v(72 + 16 * (i - 4) + 4 * tm + 2 * h, 2)
    def wd_issue(i):
        if O('nowd', 0): A("s_mov_b32 s93, %s" % OOB)
        A("s_lshl_b32 s94, %s, 4\ns_add_u32 s94, s94, s93" % s(8 + i))
        for r in range(4):
            A("s_add_u32 m0, s92, %d" % (4096 * (i % 3) + 1024 * r))
            VM("buffer_load_dwordx4 v5, %s, s94 offen lds" % srd(S_WD), "wd%d" % i)
            if r < 3: A("s_add_u32 s94, s94, 0x2000")
    def wd_read(i):
        vmwait("wd%d" % i)
        for tm in range(4):
            for h in range(2):
                A("ds_read_b64_tr_b16 %s, %s offset:%d" % (WDH(i, tm, h), "v6" if tm < 2 else "v7", 4096 * (i % 3) + 2048 * h + 8 * (tm & 1)))
        A("s_waitcnt lgkmcnt(0)")
    def hflag():
        A("""
        s_lshl_b32 s55, s86, 2
        s_add_u32 s55, s55, s3
        s_lshl_b32 s55, s55, 5
        s_add_u32 s55, s55, s87
        s_lshl_b32 s55, s55, 7
        s_add_u32 s55, s55, %d
        v_mov_b32 v64, s84
        v_mov_b32 v65, s84
        v_mov_b32 v66, s84
        v_mov_b32 v67, s84
        s_mov_b64 exec, 0xff
        """ % FH)
        vmwait("fill")
        VM("buffer_store_dwordx4 v[64:67], v9, %s, s55 offen %s" % (WS, WT), "fhs")
        A("s_mov_b64 exec, -1")
    def colsum(k0, k1):
        for st in range(k0, k1 + 2):
            if st < k1:
                b = 16 + 8 * (st & 3)
                for h in range(2): A("ds_read_b64_tr_b16 %s, v10 offset:%d" % (v(b + 2 * h, 2), st * 3072 + h * 1536))
                for h in range(2): A("ds_read_b64_tr_b16 %s, v11 offset:%d" % (v(b + 4 + 2 * h, 2), st * 3072 + h * 1536))
            if st >= k0 + 2:
                pb = 16 + 8 * ((st - 2) & 3)
                A("s_waitcnt lgkmcnt(%d)" % (4 * (min(st, k1 - 1) - (st - 2))))
                A("%s v[48:51], v[56:59], %s, %s" % (MF, v(pb, 4), "v[48:51]" if st > 2 else "0"))
                A("%s v[52:55], v[56:59], %s, %s" % (MF, v(pb + 4, 4), "v[52:55]" if st > 2 else "0"))
    K1 = 2 * (NB6 // 3)
    NWD0 = O('nwd0', 1)
    colsum(0, K1)
    wdtouch(4)
    for i in range(NWD0): wd_issue(i)
    vmwait("dma")
    for i in range(NB6 // 3, 8): A("ds_write_b64 v14, v[56:57] offset:%d" % (6144 * i))
    A("s_waitcnt lgkmcnt(0)\ns_mov_b64 exec, 1\nds_add_u32 v3, v13\ns_mov_b64 exec, -1")
    TSTAMP()
    for i in range(NWD0): wd_read(i)
    A("ds_read_b32 v12, v3\ns_waitcnt lgkmcnt(0)\n" + flagchk)
    retry("fB", "ds_read_b32 v12, v3", flagchk, wait="s_waitcnt lgkmcnt(0)")
    if K1 < 16: colsum(K1, 16)
    HOLD = O('wdhold', 5); LATE = O('late', 3); NE = 11 - LATE
    A("""
    s_lshl_b32 s55, s72, 1
    s_add_u32 s55, s55, s99
    s_lshl_b32 s55, s55, 14
    s_lshl_b32 s56, s71, 12
    s_add_u32 s55, s55, s56
    s_lshl_b32 s56, s98, 3
    s_add_u32 s55, s55, s56
    s_lshl_b32 s56, s4, 18
    s_add_u32 s55, s55, s56
    s_add_u32 s95, s55, %d
    s_lshl_b32 s55, s4, 2
    s_add_u32 s55, s55, s71
    s_lshl_b32 s64, s55, 12
    s_add_u32 s64, s64, %d
    s_lshl_b32 s56, s55, 1
    s_add_u32 s57, s56, s98
    s_xor_b32 s56, s57, 1
    s_mul_i32 s68, s56, %d
    s_mul_i32 s69, s57, %d
    s_add_u32 s68, s68, %d
    s_add_u32 s69, s69, %d
    s_lshl_b32 s77, s55, 16
    s_lshl_b32 s56, s98, 12
    s_add_u32 s77, s77, s56
    s_lshl_b32 s56, s72, 7
    s_add_u32 s77, s77, s56
    s_lshl_b32 s56, s99, 6
    s_add_u32 s77, s77, s56
    s_lshl_b32 s67, s55, 8
    s_lshl_b32 s56, s98, 3
    s_add_u32 s67, s67, s56
    s_add_u32 s67, s67, %d
    s_mul_i32 s97, s3, 12288
    s_add_u32 s97, s97, 49152
    v_add_u32 v14, s97, v9
    s_lshl_b32 s56, s3, 3
    v_add_u32 v8, s56, v1
    v_cmp_lt_u32 vcc, 7, v1
    v_cndmask_b32 v8, v8, 31, vcc
    v_lshlrev_b32 v8, 7, v8
    """ % (HP, FH, HG, HG, HH, HH, R2))
    for i in range(11): A("s_min_u32 %s, %s, %d" % (s(20 + i), s(8 + i), 42 * 2048))
    for k in (1, 2, 3): A("s_xor_b32 s56, s3, %d\ns_mul_i32 s56, s56, 12288\ns_add_u32 %s, s56, %d" % (k, s(31 + k), L_RED3 + (k - 1) * 4096))
    def waitstep(k):
        chk = "v_cmp_gt_u32 vcc, %d, v12" % k
        A("ds_read_b32 v12, v3 offset:36\ns_waitcnt lgkmcnt(0)\n" + chk)
        retry("ws%d" % k, "s_sleep %d\n" % O('bsl', 2) + "ds_read_b32 v12, v3 offset:36", chk, wait="s_waitcnt lgkmcnt(0)")
    A(haddr(["v68", "v69", "v70"], "v71", ("v12", "v13")))
    A("v_mov_b32 v13, 1")
    fl = ["buffer_store_dwordx4 v[64:67], %s, %s, %s offen offset:%d %s" % (v(68 + ft), WS, "s90" if g else "s89", 1024 * ft, WT) for ft in range(3) for g in range(2)]
    fl.append("buffer_store_dwordx4 v[64:67], v71, %s, s91 offen %s" % (WS, WT))
    NP = O('np', 3)
    pieces = [(i, r) for i in range(NWD0, NWD0 + NP) for r in range(4)]
    P0 = O('p0', 1); PEND = O('pend', 13)
    nsteps = PEND - P0
    done_cs = False
    for k in range(P0, PEND):
        waitstep(k)
        if fl:
            VM(fl.pop(0), "fill")
            if len(fl) == 1: VM(fl.pop(0), "fill")
        elif not done_cs and k >= P0 + 7:
            hflag()
            A("""
    s_lshl_b32 s55, s3, 6
    s_add_u32 s55, s55, %d
    v_lshl_add_u32 v10, v2, 2, s55
    s_lshl_b32 s56, s99, 6
    s_add_u32 s56, s56, %d
    v_lshl_add_u32 v11, v2, 2, s56
    ds_write_b32 v10, v48
    ds_write_b32 v11, v52
    s_waitcnt lgkmcnt(0)
    s_mov_b64 exec, 1
    ds_add_u32 v3, v13 offset:4
    s_mov_b64 exec, -1
    """ % (L_CS, L_CS + 256))
            TSTAMP()
            done_cs = True
        want = (len(pieces) + (PEND - k) - 1) // (PEND - k) if (not fl or O('mix', 0)) else 0
        for _ in range(want):
            i, r = pieces.pop(0)
            if r == 0: A("s_lshl_b32 s94, %s, 4\ns_add_u32 s94, s94, s93" % s(8 + i))
            A("s_add_u32 m0, s92, %d" % (4096 * (i % 3) + 1024 * r))
            VM("buffer_load_dwordx4 v5, %s, s94 offen lds" % srd(S_WD), "wd%d" % i)
            if r < 3: A("s_add_u32 s94, s94, 0x2000")
    assert done_cs and not pieces
    TSTAMP()
    waitstep(PEND)
    VM("buffer_load_dword v10, v8, %s, s64 offen sc1" % WS, "fh")
    TSTAMP()
    nx = NWD0 + NP
    for i in range(NWD0, NE):
        wd_read(i)
        while nx < NE and nx <= i + 3: wd_issue(nx); nx += 1
    TSTAMP()
    A("s_waitcnt vmcnt(0)\nv_cmp_ne_u32 vcc, s84, v10")
    retry("fh", "buffer_load_dword v10, v8, %s, s64 offen sc1" % WS, "v_cmp_ne_u32 vcc, s84, v10")
    LB = O('lateb', 0)
    for i in range(NE, NE + LB): wd_issue(i)
    A("s_barrier")
    TSTAMP()
    for i in range(NE + LB, 11): wd_issue(i)
    def late_part():
        for i in range(NE, 11): wd_read(i)
        A("""
        v_lshrrev_b32 v5, 1, v2
        v_lshlrev_b32 v5, 13, v5
        v_and_b32 v12, 1, v2
        v_lshl_add_u32 v5, v12, 10, v5
        v_lshl_add_u32 v5, v4, 4, v5
        v_lshlrev_b32 v12, 4, v2
        v_subrev_u32 v10, 0xc000, v14
        v_add_u32 v6, s32, v9
        v_add_u32 v7, s33, v9
        v_add_u32 v8, s34, v9
        """)
    NR = 6
    HFR = lambda q, o, n: v(16 + 8 * (q % 3) + o, n)
    def acc3(grp, tm, e):
        t = 2 * (tm & 1) + e
        if grp == 1 and tm >= 2: return v(40 + 4 * t, 4)
        if tm < 2: return v(56 + 4 * t, 4)
        return v(40 + 4 * t, 4)
    def hdma_txt(q):
        grp, i = divmod(q, 11)
        return "s_add_u32 s96, %s, %s\ns_add_u32 m0, s97, %d\nbuffer_load_dwordx4 v9, %s, s96 offen sc1 lds\nbuffer_load_dwordx4 v9, %s, s96 offen offset:1024 sc1 lds" % (
            "s68" if grp == 0 else "s69", s(20 + i), 2048 * (q % NR), WS, WS)
    def hdma(q): A(hdma_txt(q)); vmq.extend(["h%d" % q] * 2)
    def hrd(q): return ["ds_read_b64 %s, %s offset:%d" % (HFR(q, 4 * e + 2 * aa, 2), "v14", 2048 * (q % NR) + 1024 * aa + 8 * e) for e in range(2) for aa in range(2)]
    def hchk(q): return "v_max_u32 v11, %s, %s\nv_cmp_eq_u32 vcc, -1, v11" % (HFR(q, 0, 1), HFR(q, 2, 1))
    def hretry(q):
        last = min(21, q + NR - 1) if O('hre', 1) else q
        if q == 0: last = O('nh0', 6) - 1
        n = 2 * (last - q) if q < 17 else 0
        retry("h%d" % q, "\n".join(hdma_txt(k) for k in range(q, last + 1)) + "\ns_waitcnt vmcnt(%d)\n" % n + "\n".join(hrd(q)), hchk(q), wait="s_waitcnt lgkmcnt(0)")
    NH0 = O('nh0', 6)
    for q in range(NH0): hdma(q)
    late_part()
    vmwait("h0"); A("\n".join(hrd(0))); A("s_waitcnt lgkmcnt(0)"); A(hchk(0)); hretry(0)
    TSTAMP()
    for q in range(NH0, NR): hdma(q)
    vmwait("h1"); A("\n".join(hrd(1)))
    for q in range(22):
        grp, i = divmod(q, 11)
        if q == 11:
            if O('psw', 1):
                for t in range(4): A("ds_write_b128 v7, %s offset:%d" % (v(40 + 4 * t, 4), 1024 * t))
            else:
                A("s_nop 7")
                for t in range(4): A("ds_write_b128 v8, %s offset:%d" % (v(56 + 4 * t, 4), 1024 * t))
                for t in range(4): A("ds_write_b128 v7, %s offset:%d" % (v(40 + 4 * t, 4), 1024 * t))
                A("s_waitcnt lgkmcnt(0)")
        rd = hrd(q + 2) if q + 2 < 22 else []
        if O('fine3', 0) and q % 2 == 0: TSTAMP()
        n = 0
        for tm in range(4):
            for e in range(2):
                sw = O('psw', 1) and q == 11
                if sw: A("s_waitcnt lgkmcnt(%d)" % (7 - n))
                A("%s %s, %s, %s, %s" % (MF, acc3(grp, tm, e), WDR(i, tm), HFR(q, 4 * e, 4), acc3(grp, tm, e) if i else "0"))
                if n == 0 and q + NR < 22: hdma(q + NR)
                if sw:
                    if n == 1: A(hchk(q + 1))
                    if n == 3: hretry(q + 1)
                    if n == 7:
                        vmwait("h%d" % (q + 2))
                        while rd: A(rd.pop(0))
                else:
                    if n == 1 and q < 21: A("s_waitcnt lgkmcnt(0)"); A(hchk(q + 1))
                    if n == 3 and q < 21: hretry(q + 1)
                    if n == 3 and rd: vmwait("h%d" % (q + 2))
                    if O('psw', 1) and q == 10:
                        if n == 3:
                            while rd: A(rd.pop(0))
                        if n >= 4: A("ds_write_b128 v8, %s offset:%d" % (v(56 + 4 * (n - 4), 4), 1024 * (n - 4)))
                    if n >= 3 and rd: A(rd.pop(0))
                if n == 2 and q == 17:
                    for j in range(4): A("buffer_load_dwordx2 %s, v9, %s, s95 offen offset:%d sc1" % (v(72 + 2 * j, 2), WS, 1024 * j))
                    A("buffer_load_dwordx2 v[80:81], v12, %s, s67 offen sc1" % WS); vmq.extend(["res"] * 5)
                n += 1
    if O('fine3', 0): TSTAMP()
    for t in range(4):
        A("ds_write_b128 v6, %s offset:%d" % (v(56 + 4 * t, 4), 1024 * t))
    A("s_waitcnt vmcnt(0)\nv_cmp_eq_u32 vcc, -1, v80")
    for j in range(4):
        for e in range(2):
            A("v_lshlrev_b32 %s, 16, %s\nv_and_b32 %s, s65, %s" % (v(88 + 8 * e + 2 * j), v(72 + 2 * j + e), v(89 + 8 * e + 2 * j), v(72 + 2 * j + e)))
    retry("r2", "buffer_load_dwordx2 v[80:81], v12, %s, s67 offen sc1" % WS, "v_cmp_eq_u32 vcc, -1, v80")
    if O('fine3', 0): TSTAMP()
    A("s_waitcnt lgkmcnt(0)\ns_barrier")
    TSTAMP()
    for sl in range(3):
        for t in range(4):
            A("ds_read_b128 %s, v10 offset:%d" % (v(112 + 16 * sl + 4 * t, 4), L_RED3 + 4096 * sl + 1024 * t))
    for sl in range(3):
        A("s_waitcnt lgkmcnt(%d)" % (8 - 4 * sl))
        for r in range(0, 16, 2):
            A("v_pk_add_f32 %s, %s, %s" % (v(40 + r, 2), v(40 + r, 2), v(112 + 16 * sl + r, 2)))
    for e in range(2):
        for mt in range(2):
            for j in (0, 2):
                d = v(40 + 8 * mt + 4 * e + j, 2)
                A("v_pk_fma_f32 %s, %s, v[80:81], %s op_sel:[0,%d,0] op_sel_hi:[1,%d,1]" % (d, d, v(88 + 8 * e + 4 * mt + j, 2), e, e))
        for mt in range(2):
            for j in (0, 2):
                A("v_cvt_pk_bf16_f32 %s, %s, %s" % (v(16 + 4 * e + 2 * mt + j // 2), v(40 + 8 * mt + 4 * e + j), v(41 + 8 * mt + 4 * e + j)))
        A("buffer_store_dwordx4 %s, v5, %s, s77 offen offset:%d %s" % (v(16 + 4 * e, 4), srd(S_OUT), 2048 * e, {0: "", 1: "sc0 sc1", 2: "nt"}[O('outf', 0)]))
    A("""
    s_or_b32 s55, s2, s3
    s_cmp_lg_u32 s55, 0
    s_cselect_b32 s55, %s, 0
    v_mov_b32 v14, s84
    s_mov_b64 exec, 1
    buffer_store_dword v14, v9, %s, s55 offen
    s_mov_b64 exec, -1
    """ % (OOB, WS))
    spin(1)
    dump(TS + 0x10000)
    A.label("L_end")
    A("s_endpgm")
    for st_ in stubs:
        A("s_nop 7")
        A(st_)
    A.label("L_codeend")
    A("s_endpgm")
    A.raw(""".section .rodata,"a"
.p2align 6
.amdhsa_kernel %s_kernel
  .amdhsa_next_free_vgpr 256
  .amdhsa_next_free_sgpr 102
  .amdhsa_accum_offset 184
  .amdhsa_group_segment_fixed_size 0
  .amdhsa_kernarg_size 104
  .amdhsa_user_sgpr_count 2
  .amdhsa_user_sgpr_kernarg_segment_ptr 1
  .amdhsa_system_sgpr_workgroup_id_x 1
  .amdhsa_float_denorm_mode_32 3
.end_amdhsa_kernel""" % NAME)
    return A.text()

def parse(args):
    kw = {}; opt = {}
    for x in args:
        k, val = x.split("=")
        if k in ("RBX", "ROT"): kw[k] = int(val)
        elif k in ("NT",): kw[k] = val
        else: opt[k] = int(val)
    return kw, opt

if __name__ == "__main__":
    out = sys.argv[1] if len(sys.argv) > 1 else "cdna_kernels/%s.s" % NAME
    stamp = len(sys.argv) > 2 and sys.argv[2] == "stamp"
    kw, opt = parse(sys.argv[3:])
    open(out, "w").write(gen(stamp, opt=opt, **kw))
    print("wrote", out)
```

```python
import sys
from asm import Asm, v, a, s

NAME = "sequential_preLN__ssm_conv_h3__glu_gated_reglu__prompt"
EP = 0x0; R2 = 0x8000; TS = 0x10000; ST = 0x80000; STR = 0x8100; FU = 0x50000; FH = 0x60000
UP = 0x100000; QP = 0x300000; QSTR = 33024; HP = 0x700000; HH = 0xB00000
WS_BYTES = 0x1400000
HG = 88064
L_WU = 49152
L_KC = 98304; KC_STR = 4640
L_U = L_KC + 8 * KC_STR; U_STR = 4224
L_CS = L_U + 4 * U_STR
L_FLG = L_CS + 384
L_TA = L_FLG + 128
LDS_BYTES = L_TA + 8192
L_TB = L_WU + 40960
L_REDA = L_KC; L_REDB = L_KC + 16384
L_SG = L_KC
L_RED3 = 0
S_K, S_V, S_Q, S_SK, S_SSM, S_WG, S_WU, S_WD, S_OUT, S_WS, S_T = 8, 12, 16, 20, 24, 28, 32, 36, 40, 44, 48
sDP = 52; sD = 54; sPC = 74
BUDGET = 200000
WS = s(S_WS, 4)
MF = "v_mfma_f32_16x16x32_bf16"
OOB = "0x40000000"
WT = "sc0 sc1"
def srd(i): return s(i, 4)
def lines(t): return [x.strip() for x in t.strip().split("\n") if x.strip()]

def gen(stamp=False, RBX=4, ROT=0, NT="", opt=None):
    opt = opt or {}
    O = lambda k, d: opt.get(k, d)
    A = Asm()
    stubs = []
    nst = [0]
    vmq = []
    def TSTAMP():
        if stamp:
            A("s_memtime s[80:81]\ns_waitcnt lgkmcnt(0)\ns_sub_u32 s80, s80, s78\nv_writelane_b32 v15, s80, %d" % nst[0]); nst[0] += 1
    def dump(off):
        if stamp:
            A("s_waitcnt vmcnt(0)"); TSTAMP()
            A("s_cmp_lg_u32 s3, %d\ns_cbranch_scc1 L_end" % O('dw', 0))
            A("s_memrealtime s[80:81]\ns_waitcnt lgkmcnt(0)\nv_writelane_b32 v15, s80, 62\nv_writelane_b32 v15, s82, 63\nv_writelane_b32 v15, s85, 61")
            A("s_lshl_b32 s55, s2, 8\ns_add_u32 s55, s55, %d\nv_lshlrev_b32 v14, 2, v1\nbuffer_store_dword v15, v14, %s, s55 offen" % (off, WS))
    def spin(role):
        if O('spinto', 0) and O('spinrole', 1) == role:
            A("s_cmp_lg_u32 s2, %d\ns_cbranch_scc1 L_nospin\ns_cmp_lg_u32 s3, 0\ns_cbranch_scc1 L_nospin" % O('spinwg', 0))
            if O('spinsel', -1) >= 0: A("v_readlane_b32 s96, v15, %d\ns_nop 3\ns_lshr_b32 s96, s96, 1\ns_add_u32 s96, s96, %d" % (O('spinsel', 0), O('spinto', 0)))
            else: A("s_mov_b32 s96, %d" % O('spinto', 0))
            A("L_spin:\ns_memrealtime s[80:81]\ns_waitcnt lgkmcnt(0)\ns_sub_u32 s80, s80, s82\ns_cmp_lt_u32 s80, s96\ns_cbranch_scc1 L_spin\nL_nospin:")
    def VM(txt, tag):
        A(txt); vmq.append(tag)
    def vmwait(tag, extra=""):
        tags = tag if isinstance(tag, tuple) else (tag,)
        idx = max(i for i, t in enumerate(vmq) if t in tags)
        A("s_waitcnt vmcnt(%d)%s" % (min(63, len(vmq) - 1 - idx), extra))
    def retry(name, reload_txt, chk_txt, wait="s_waitcnt vmcnt(0)"):
        A("s_cbranch_vccnz L_r%s" % name); A.label("L_o%s" % name)
        stubs.append("L_r%s:\ns_sub_u32 s85, s85, 1\ns_cbranch_scc1 L_x%s\n%s\n%s\n%s\ns_cbranch_vccnz L_r%s\ns_branch L_o%s\nL_x%s:\ns_mov_b32 s85, 0\ns_branch L_o%s"
                     % (name, name, reload_txt, wait, chk_txt, name, name, name, name))
    A.raw(open('cdna_kernels/%s.s.ref' % NAME).read().split('; @launch grid')[0].rstrip('\n'))
    A.raw("; @launch grid=(256,1,1) block=(512,1,1) lds=%d" % LDS_BYTES)
    A.raw('.amdgcn_target "amdgcn-amd-amdhsa--gfx950"\n.text\n.globl %s_kernel\n.p2align 8\n.type %s_kernel,@function\n%s_kernel:' % (NAME, NAME, NAME))
    LRB = {1: 0, 2: 1, 4: 2, 8: 3}[RBX]

    A("s_load_dwordx8 s[8:15], s[0:1], 0")
    if stamp: A("s_memtime s[78:79]\ns_memrealtime s[82:83]\nv_mov_b32 v15, 0"); nst[0] += 1
    A("s_cmpk_ge_u32 s2, 0x100\ns_cbranch_scc1 L_end")
    if O('perm', 0):
        A("s_lshr_b32 s4, s2, 3\ns_add_u32 s4, s4, s2\ns_and_b32 s4, s4, 7\ns_and_b32 s2, s2, 0xf8\ns_or_b32 s2, s2, s4")
    A("""
    v_readfirstlane_b32 s6, v0
    s_lshr_b32 s5, s2, 3
    s_and_b32 s4, s2, 7
    s_cmpk_lt_u32 s6, 0x100
    s_cbranch_scc1 L_A0
    s_getpc_b64 %s
    L_pc:
    s_lshl_b32 s55, s5, 11
    v_lshl_add_u32 v10, v0, 3, s55
    v_min_u32 v10, L_codeend-L_pc+2044, v10
    s_mov_b32 exec_lo, 0x10001
    s_mov_b32 exec_hi, exec_lo
    global_load_dword v11, v10, %s offset:-2048
    s_branch L_B0
    L_A0:
    s_lshl_b32 s55, s5, 9
    s_add_u32 s55, s55, s4
    s_lshl_b32 s55, s55, 7
    v_and_b32 v5, 0xb8, v0
    v_and_b32 v10, 7, v0
    v_and_b32 v7, 64, v0
    v_and_b32 v6, 56, v0
    v_add_lshl_u32 v5, v5, v6, 8
    v_lshl_add_u32 v5, v10, 3, v5
    v_add3_u32 v5, v5, v7, s55
    v_max_u32 v6, 0xc00, v5
    s_waitcnt lgkmcnt(0)
    """ % (s(sPC, 2), s(sPC, 2)))
    for j in range(4): VM("global_load_dwordx2 %s, v5, s[10:11] offset:%d %s" % (v(22 + 2 * j, 2), 1024 * j, NT), "k")
    for j in range(4): VM("global_load_dwordx2 %s, v5, s[12:13] offset:%d %s" % (v(30 + 2 * j, 2), 1024 * j, NT), "v")
    for i in range(3): VM("global_load_dwordx2 %s, v6, s[10:11] offset:%d %s" % (v(16 + 2 * i, 2), 1024 * i - 3072, NT), "k")
    A("v_and_b32 v10, 0x3ff, v5\nv_lshlrev_b32 v10, 2, v10")
    VM("global_load_dwordx4 v[48:51], v10, s[14:15]", "k")
    VM("global_load_dwordx4 v[52:55], v10, s[14:15] offset:16", "k")
    A("s_load_dwordx2 %s, s[0:1], 96\ns_barrier\ns_branch L_A" % s(S_WS, 2))
    common = """
    v_and_b32 v1, 63, v0
    v_and_b32 v2, 15, v0
    v_lshrrev_b32 v4, 4, v1
    v_lshlrev_b32 v9, 4, v1
    s_bfe_u32 s3, s6, 0x20006
    s_lshl_b32 s66, s4, 5
    s_add_u32 s66, s66, s5
    s_and_b32 s99, s3, 1
    s_lshr_b32 s98, s3, 1
    """
    common2 = "s_mov_b32 s85, %d\ns_mov_b32 s65, 0xffff0000\ns_mov_b32 %s, %d\ns_mov_b32 %s, 0x20000" % (BUDGET, s(S_WS + 2), WS_BYTES, s(S_WS + 3))
    A.label("L_B0")
    A("s_mov_b64 exec, -1\ns_load_dwordx4 s[16:19], s[0:1], 32\ns_load_dwordx2 %s, s[0:1], 96" % s(S_WS, 2))
    A(common)
    A("""
    v_mov_b32 v40, 0
    v_mov_b32 v41, 0
    v_mov_b32 v42, 0
    v_mov_b32 v43, 0
    v_and_b32 v12, 3, v1
    v_lshlrev_b32 v12, 4, v12
    v_add_u32 v12, %d, v12
    ds_write_b128 v12, v[40:43]
    s_lshl_b32 s57, s2, 13
    s_lshl_b32 s56, s99, 12
    s_add_u32 s57, s57, s56
    s_lshl_b32 s56, s98, 10
    s_add_u32 s57, s57, s56
    s_lshl_b32 s61, s66, 13
    s_lshl_b32 s56, s3, 11
    s_add_u32 s61, s61, s56
    v_add_u32 v5, s57, v9
    v_add_u32 v6, s61, v9
    s_waitcnt lgkmcnt(0)
    s_barrier
    global_load_dwordx4 v[32:35], v5, s[8:9] NT
    global_load_dwordx4 v[36:39], v5, s[8:9] offset:2048 NT
    global_load_dwordx4 v[24:27], v6, s[16:17] NT
    global_load_dwordx4 v[28:31], v6, s[16:17] offset:1024 NT
    s_branch L_B
    """.replace("NT", NT) % L_FLG)
    ids = """
    s_lshr_b32 s55, s4, %d
    s_lshl_b32 s55, s55, %d
    s_and_b32 s60, s5, %d
    s_add_u32 s86, s55, s60
    s_and_b32 s55, s4, %d
    s_mul_i32 s55, s55, %d
    s_lshr_b32 s56, s5, %d
    s_add_u32 s87, s55, s56
    s_mul_i32 s88, s56, %d
    s_mul_i32 s60, s60, %d
    s_add_u32 s88, s88, s60
    s_and_b32 s88, s88, 15
    """ % (LRB, LRB, RBX - 1, RBX - 1, 32 // RBX, LRB, ROT, O('rot2', 16 // RBX))
    def haddr(hv, r2v, tmp):
        return """
        s_lshl_b32 s55, s86, 2
        s_add_u32 s55, s55, s3
        s_mul_i32 s55, s55, %d
        s_mul_i32 s56, s87, 2816
        s_add_u32 s55, s55, s56
        s_add_u32 s89, s55, %d
        s_add_u32 s90, s89, %d
        v_mov_b32 T0, %s
        v_cmp_eq_u32 vcc, 3, v4
        v_cndmask_b32 T1, v9, T0, vcc
        s_cmp_eq_u32 s87, 31
        s_cselect_b64 vcc, -1, 0
        v_cndmask_b32 %s, v9, T1, vcc
        v_cndmask_b32 %s, v9, T0, vcc
        v_cndmask_b32 %s, T1, T0, vcc
        v_lshrrev_b32 T1, 2, v2
        v_lshlrev_b32 %s, 4, v2
        v_cmp_eq_u32 vcc, T1, v4
        v_cndmask_b32 %s, T0, %s, vcc
        s_lshl_b32 s55, s86, 10
        s_lshl_b32 s56, s3, 8
        s_add_u32 s55, s55, s56
        s_add_u32 s55, s55, %d
        s_cmp_eq_u32 s87, 31
        s_cselect_b32 s91, s55, %s
        """.replace("T0", tmp[0]).replace("T1", tmp[1]) % (2 * HG, HH, HG, OOB, hv[0], hv[1], hv[2], r2v, r2v, r2v, R2, OOB)
    def xpose_addr(wr, rd, gv, base):
        return """
        v_and_b32 RD, 7, v2
        v_xor_b32 WR, v4, RD
        v_lshl_add_u32 WR, v2, 3, 0
        v_or_b32 WR, WR, v4
        v_xor_b32 WR, WR, RD
        v_lshlrev_b32 WR, 4, WR
        s_lshl_b32 s55, s3, 11
        s_add_u32 s55, s55, %d
        v_add_u32 WR, s55, WR
        v_lshrrev_b32 RD, 3, v1
        v_xor_b32 RD, RD, v1
        v_lshlrev_b32 RD, 4, RD
        v_add_u32 RD, s55, RD
        v_lshrrev_b32 GV, 2, v1
        v_lshlrev_b32 GV, 13, GV
        v_and_b32 v14, 3, v1
        v_lshl_add_u32 GV, v14, 4, GV
        """.replace("WR", wr).replace("RD", rd).replace("GV", gv) % base

    A.label("L_A")
    A(common); A(common2); A("s_waitcnt lgkmcnt(0)")
    A("s_movk_i32 s55, 0x1000\nv_cmp_gt_u32 s[20:21], s55, v5")
    A("""
    v_and_b32 v133, 7, v1
    v_lshrrev_b32 v134, 3, v1
    v_xor_b32 v132, v134, v133
    v_lshl_add_u32 v132, v133, 4, v132
    v_lshlrev_b32 v132, 4, v132
    s_lshl_b32 s55, s3, 11
    s_add_u32 s55, s55, %d
    v_add_u32 v132, s55, v132
    v_lshlrev_b32 v134, 13, v134
    v_lshl_add_u32 v134, v133, 4, v134
    v_xor_b32 v133, v1, v4
    v_lshlrev_b32 v133, 4, v133
    v_add_u32 v133, s55, v133
    v_xor_b32 v136, 64, v133
    """ % L_TA)
    HV = ["v176", "v177", "v178"]
    A("""
    s_lshl_b32 s55, s4, 18
    s_lshl_b32 s56, s5, 8
    s_add_u32 s55, s55, s56
    s_lshl_b32 s56, s98, 7
    s_add_u32 s55, s55, s56
    s_lshl_b32 s56, s99, 17
    s_add_u32 s55, s55, s56
    s_add_u32 s95, s55, %d
    s_add_u32 s97, s95, 0x10000
    """ % UP)
    if O('pw', 1):
        A("""
        s_lshl_b32 s55, s66, 7
        s_add_u32 s55, s55, %d
        s_cmp_lg_u32 s3, 0
        s_cselect_b32 s55, %s, s55
        v_mov_b32 v140, 0
        v_mov_b32 v141, 0
        v_mov_b32 v142, 0
        v_mov_b32 v143, 0
        s_mov_b64 exec, 0xff
        """ % (FU, OOB))
        VM("buffer_store_dwordx4 v[140:143], v9, %s, s55 offen %s" % (WS, WT), "pw")
        A("s_mov_b64 exec, -1")
    TSTAMP()
    vmwait("k")
    TSTAMP()
    for r in range(16, 22): A("v_cndmask_b32 %s, %s, 0, s[20:21]" % (v(r), v(r)))
    for c in range(4):
        for tap in range(4):
            src = 48 + 2 * c + (tap >> 1); dst = 64 + 4 * tap + c
            A(("v_lshlrev_b32 %s, 16, %s" if tap % 2 == 0 else "v_and_b32 %s, s65, %s") % (v(dst), v(src)))
    for i in range(7):
        for e in range(2):
            src = 16 + 2 * i + e; dst = 80 + 4 * i + 2 * e
            A("v_lshlrev_b32 %s, 16, %s\nv_and_b32 %s, s65, %s" % (v(dst), v(src), v(dst + 1), v(src)))
    for tap in range(4):
        for j in range(4):
            for e in range(2):
                d = v(144 + 4 * j + 2 * e, 2); kk = v(80 + 4 * (j + 3 - tap) + 2 * e, 2); ww = v(64 + 4 * tap + 2 * e, 2)
                if tap == 0: A("v_pk_mul_f32 %s, %s, %s" % (d, kk, ww))
                else: A("v_pk_fma_f32 %s, %s, %s, %s" % (d, kk, ww, d))
    vmwait("v")
    for j in range(4):
        for e in range(2):
            src = 30 + 2 * j + e; dst = 108 + 4 * j + 2 * e
            A("v_lshlrev_b32 %s, 16, %s\nv_and_b32 %s, s65, %s" % (v(dst), v(src), v(dst + 1), v(src)))
    for j in range(4):
        for e in range(2):
            d = 144 + 4 * j + 2 * e
            A("v_pk_mul_f32 %s, %s, %s" % (v(d, 2), v(d, 2), v(108 + 4 * j + 2 * e, 2)))
    for e in range(2):
        for j in range(4):
            d = 144 + 4 * j + 2 * e
            A("v_cvt_pk_bf16_f32 %s, %s, %s" % (v(124 + 4 * e + j), v(d), v(d + 1)))
        A("ds_write_b128 v132, %s offset:%d" % (v(124 + 4 * e, 4), 128 * e))
    A("ds_read_b128 v[16:19], v133\nds_read_b128 v[20:23], v136 offset:1024")
    A("s_waitcnt lgkmcnt(1)")
    A("buffer_store_dwordx4 v[16:19], v134, %s, s95 offen %s" % (WS, WT))
    A("s_waitcnt lgkmcnt(0)")
    A("buffer_store_dwordx4 v[20:23], v134, %s, s97 offen %s" % (WS, WT))
    TSTAMP()
    A("s_load_dword s84, %s, 0" % s(S_WS, 2))
    A(ids)
    A(haddr(HV, "v179", ("v12", "v13")))
    A("""
    s_lshl_b32 s67, s66, 13
    s_lshl_b32 s56, s3, 11
    s_add_u32 s67, s67, s56
    s_add_u32 s67, s67, %d
    s_sub_u32 s59, s67, 4
    s_lshl_b32 s62, s66, 7
    s_add_u32 s62, s62, FUADDR
    s_lshl_b32 s63, s4, 12
    s_add_u32 s63, s63, FUADDR
    s_lshl_b32 s56, s3, 3
    s_sub_u32 s56, s56, 1
    v_add_u32 v8, s56, v1
    v_max_i32 v8, 0, v8
    v_lshlrev_b32 v8, 7, v8
    v_mov_b32 v3, FLGADDR
    s_lshl_b32 s56, s3, 7
    v_xor_b32 v7, 1, v1
    v_add_u32 v7, s56, v7
    v_lshlrev_b32 v7, 3, v7
    v_add_u32 v7, %d, v7
    v_cmp_eq_u32 s[100:101], 0, v0
    s_mov_b32 s64, 0x05040100
    s_mov_b32 s71, 0x07060302
    v_and_b32 v180, 3, v2
    s_movk_i32 s55, %d
    v_mul_lo_u32 v180, v180, s55
    v_lshrrev_b32 v14, 2, v2
    v_lshl_add_u32 v180, v14, 7, v180
    v_lshl_add_u32 v180, v4, 4, v180
    s_mul_i32 s56, s98, %d
    s_lshl_b32 s57, s99, 8
    s_add_u32 s56, s56, s57
    s_add_u32 s56, s56, %d
    v_add_u32 v180, s56, v180
    v_and_b32 v181, 1, v2
    s_movk_i32 s55, %d
    v_mul_lo_u32 v181, v181, s55
    v_lshrrev_b32 v14, 1, v2
    v_lshl_add_u32 v181, v14, 4, v181
    v_lshlrev_b32 v14, 4, v4
    v_sub_u32 v181, v181, v14
    s_mul_i32 s56, s98, %d
    s_sub_u32 s56, s56, s57
    s_add_u32 s56, s56, %d
    v_add_u32 v181, s56, v181
    s_mul_i32 s56, s98, %d
    s_lshl_b32 s57, s99, 13
    s_add_u32 s56, s56, s57
    s_add_u32 s56, s56, %d
    v_add_u32 v182, s56, v9
    """.replace("FUADDR", str(FU)).replace("FLGADDR", str(L_FLG)) % (UP, L_U + 8 * 16, KC_STR, 4 * KC_STR, L_KC + 7 * 16,
           U_STR, 2 * U_STR, L_U + 20 * 16, L_REDB - L_REDA, L_REDA))
    A("s_waitcnt lgkmcnt(0)\ns_add_u32 s84, s84, 1\ns_or_b32 s84, s84, 0x80000000")
    A("v_mov_b32 v24, s84\nv_mov_b32 v25, s84\nv_mov_b32 v26, s84\nv_mov_b32 v27, s84\nv_mov_b32 v14, 1")
    A("""
    s_mov_b64 exec, 1
    s_waitcnt vmcnt(0)
    ds_add_rtn_u32 v14, v3, v14 offset:12
    s_waitcnt lgkmcnt(0)
    v_readfirstlane_b32 s55, v14
    s_mov_b64 exec, 0xff
    s_cmp_lg_u32 s55, 3
    s_cselect_b32 s62, %s, s62
    buffer_store_dwordx4 v[24:27], v9, %s, s62 offen %s
    s_mov_b64 exec, 0x1ff
    """ % (OOB, WS, WT)); vmq.clear()
    TSTAMP()
    if O('fudelay', 0): A("s_sleep %d" % O('fudelay', 0))
    fu_txt = "buffer_load_dword v14, v8, %s, s63 offen sc1" % WS
    fu_chk = "v_cmp_ne_u32 vcc, s84, v14"
    A(fu_txt + "\ns_waitcnt vmcnt(0)\n" + fu_chk)
    retry("up", fu_txt, fu_chk)
    A("s_mov_b64 exec, -1")
    TSTAMP()
    UL = "sc1" if O('upsc', 0) else ""
    A("""buffer_load_dwordx4 v[32:35], v9, WS, s67 offen UL
    buffer_load_dwordx4 v[40:43], v9, WS, s67 offen offset:1024 UL
    buffer_load_dword v36, v9, WS, s59 offen UL
    buffer_load_dword v44, v9, WS, s59 offen offset:1024 UL
    v_mov_b32 v14, 1
    s_mov_b64 exec, 1
    ds_add_u32 v3, v14 offset:24
    s_mov_b64 exec, -1
    s_waitcnt vmcnt(0)""".replace("WS", WS).replace("UL", UL))
    TSTAMP()
    A("v_cndmask_b32 v36, v36, 0, s[100:101]")
    for h in range(2):
        b = 32 + 8 * h
        W_ = lambda i: v(b + 4) if i < 0 else v(b + i)
        for c in range(2):
            for pi in range(2):
                o = 64 + 8 * h + 2 * (2 * c + pi)
                for jj in range(2):
                    lo = 2 + pi - 2 * jj; hi = lo - 1
                    A("v_perm_b32 %s, %s, %s, %s" % (v(o + jj), W_(hi), W_(lo), "s64" if c == 0 else "s71"))
                A("ds_write_b64 v7, %s offset:%d" % (v(o, 2), (2 * c + pi) * U_STR + 512 * h))
    A("v_mov_b32 v14, 1\ns_mov_b64 exec, 1\nds_add_u32 v3, v14 offset:40\ns_mov_b64 exec, -1\nds_read_b32 v12, v3 offset:40\ns_waitcnt lgkmcnt(0)\nv_cmp_ne_u32 vcc, 8, v12")
    retry("b4a", "ds_read_b32 v12, v3 offset:40", "v_cmp_ne_u32 vcc, 8, v12", wait="s_waitcnt lgkmcnt(0)")
    TSTAMP()
    BF = lambda buf, ct: v(16 + 32 * buf + 4 * ct, 4)
    ACC = lambda t: v(80 + 4 * t, 4)
    KF = lambda ph, g: a(32 * (ph & 1) + 4 * g, 4)
    bread = lambda ph, ct: "ds_read_b128 %s, v181 offset:%d" % (BF(ph & 1, ct), 512 * ct + 64 * (3 - ph))
    kread = lambda ph, g: "ds_read_b128 %s, v180 offset:%d" % (KF(ph, g), 512 * g + 64 * ph)
    for i in range(7): A(kread(0, i)); A(bread(0, i))
    p2pre = lines("""v_lshrrev_b32 v5, 2, v1
    v_mul_u32_u24 v5, 96, v5
    v_and_b32 v14, 3, v1
    v_lshl_add_u32 v5, v14, 3, v5
    v_add_u32 v6, %d, v5
    s_lshl_b32 s55, s3, 12
    v_add_u32 v7, s55, v9
    s_lshl_b32 s67, s86, 18
    s_add_u32 s67, s67, %d
    v_lshlrev_b32 v8, 4, v4
    v_add_u32 v8, %d, v8
    v_mov_b32 v3, %d
    v_lshlrev_b32 v10, 2, v2
    v_add_u32 v10, 0xc0, v10""" % (L_WU, HP, L_CS, L_FLG))
    touched = set(); issued = 14
    for ph in range(4):
        if ph in (0, 3): order = [(t - ct, ct) for t in range(8) for ct in range(t + 1)]
        else: order = [(g, ct) for ct in range(8) for g in range(8 - ct)]
        nxt = [x for i in range(8) for x in (kread(ph + 1, i), bread(ph + 1, i))] if ph < 3 else []
        for idx, (g, ct) in enumerate(order):
            t = g + ct
            if ph == 0 and ct == 0:
                need = 2 * (t + 1)
                if t < 7 or True: A("s_waitcnt lgkmcnt(%d)" % min(15, issued - need))
            if ph > 0 and idx == 0: A("s_waitcnt lgkmcnt(0)")
            if 36 * ph + idx == O('lpi', 40): A("v_mov_b32 v14, 1\nds_write_b32 v3, v14 offset:32")
            if ph == 3 and idx == 0: A("v_mov_b32 v14, 1\ns_mov_b64 exec, 1\nds_add_u32 v3, v14 offset:16\ns_mov_b64 exec, -1")
            A("%s %s, %s, %s, %s" % (MF, ACC(t), KF(ph, g), BF(ph & 1, ct), ACC(t) if t in touched else "0"))
            touched.add(t)
            if ph == 3 and idx == 6: A("ds_read_b32 v12, v3 offset:16")
            if ph == 3 and idx == 12: A("s_waitcnt lgkmcnt(0)\nv_cmp_ne_u32 vcc, 4, v12")
            if ph == 3 and idx == 14: retry("kc", "ds_read_b32 v12, v3 offset:16", "v_cmp_ne_u32 vcc, 4, v12", wait="s_waitcnt lgkmcnt(0)")
            if ph == 3 and idx in (15, 17, 19, 21): A("ds_write_b128 v182, %s offset:%d" % (ACC((idx - 15) // 2), 1024 * ((idx - 15) // 2)))
            if ph == 0 and idx == 1: A(kread(0, 7)); A(bread(0, 7)); issued += 2
            if idx >= 16 and nxt:
                A(nxt.pop(0))
                if ph == 0: issued += 1
            if ph == 1 and p2pre: A(p2pre.pop(0))
            if ph == 3 and idx in (23, 28): A("ds_write_b128 v182, %s offset:%d" % (ACC(4 if idx == 23 else 5), 1024 * (4 if idx == 23 else 5)))
        assert not nxt
    A("ds_write_b128 v182, %s offset:%d" % (ACC(6), 1024 * 6))
    A("ds_write_b128 v182, %s offset:%d" % (ACC(7), 1024 * 7))
    A("s_waitcnt lgkmcnt(0)")
    TSTAMP()
    A("s_barrier")
    TSTAMP()
    A("s_barrier")
    TSTAMP()
    XS = lambda st: 16 + 16 * (st & 3)
    AC = lambda arr, ft, tau: v(80 + 48 * arr + 16 * ft + 4 * tau, 4)
    WF = lambda st, arr, ft: 24 * (st & 1) + 12 * arr + 4 * ft
    def xaddr(st): return ["s_add_u32 s55, s88, %d" % st, "s_and_b32 s55, s55, 15", "s_lshl_b32 s55, s55, 14", "s_add_u32 s96, s55, s67"]
    def xlds(st): return ["buffer_load_dwordx4 %s, v7, %s, s96 offen offset:%d sc1" % (v(XS(st) + 4 * j, 4), WS, 1024 * j) for j in range(4)]
    def xload_txt(st): return "\n".join(xaddr(st) + xlds(st)).replace("s96", "s97")
    def xload(st):
        A("\n".join(xaddr(st) + xlds(st))); vmq.extend(["x%d" % st] * 4)
    def xchk(st):
        b = XS(st)
        return ["v_max3_u32 v11, %s, %s, %s" % (v(b), v(b + 4), v(b + 8)), "v_max_u32 v11, v11, %s" % v(b + 12), "v_cmp_eq_u32 vcc, -1, v11"]
    def wreads(st):
        return ["ds_read_b64_tr_b16 %s, %s offset:%d" % (a(WF(st, arr, ft) + 2 * h, 2), "v6" if arr else "v5", st * 3072 + h * 1536 + ft * 32)
                for arr in range(2) for ft in range(3) for h in range(2)]
    def swaps(st):
        b = XS(st)
        return ["v_swap_b32 %s, %s" % (v(b + 4 * j + t), v(b + 4 * t + j)) for j in range(4) for t in range(j + 1, 4)]
    if O('xdelay', 0): A("s_sleep %d" % O('xdelay', 0))
    if O('x3', 0):
        xload(0); xload(1); xload(2)
        for r in wreads(0): A(r)
        vmwait("x0")
        for r in xchk(0): A(r)
        retry("xP", "\n".join(xload_txt(i) for i in range(3)), "\n".join(xchk(0)), wait="s_waitcnt vmcnt(8)")
        TSTAMP()
    else:
        xload(0)
        for r in wreads(0): A(r)
        vmwait("x0")
        for r in xchk(0): A(r)
        if O('xr3', 0):
            A("s_cbranch_vccnz L_rxP")
            xload(1); xload(2)
            A.label("L_oxP")
            stubs.append("L_rxP:\n%s\ns_waitcnt vmcnt(8)\n%s\ns_cbranch_vccz L_oxP\ns_sub_u32 s85, s85, 1\ns_cbranch_scc0 L_rxP\ns_mov_b32 s85, 0\ns_branch L_oxP"
                         % ("\n".join(xload_txt(i) for i in range(3)), "\n".join(xchk(0))))
            TSTAMP()
        else:
            retry("xP", xload_txt(0), "\n".join(xchk(0)))
            TSTAMP()
            xload(1); xload(2)
    for r in swaps(0): A(r)
    if O('aprio', 2): A("s_setprio %d" % O('aprio', 2))
    A("s_cmp_eq_u32 s87, 31\ns_cbranch_scc1 L_p2alt")
    def flagrd(k): return "ds_read_b32 v12, v3 offset:%d" % (4 * k)
    flagchk = "v_cmp_ne_u32 vcc, 4, v12"
    def p2loop(alt):
        for st in range(16):
            ml = []
            for arr in range(2):
                for ft in range(3):
                    for tau in range(4):
                        xf = v(XS(st) + 4 * tau, 4)
                        wf = a(WF(st, arr, ft), 4)
                        if alt and arr == 1 and ft == 2: wf = xf
                        ml.append("%s %s, %s, %s, %s" % (MF, AC(arr, ft, tau), wf, xf, AC(arr, ft, tau) if st else "0"))
            wr = wreads(st + 1) if st < 15 else ["ds_read_b128 %s, v8 offset:%d" % (v(40 + 4 * t, 4), 64 * t) for t in range(6)]
            if st in (8, 14): wr = wr + [flagrd(0 if st == 8 else 1)]
            sw = swaps(st + 1) if st < 15 else []
            ck = xchk(st + 1) if st < 15 else []
            xa = xaddr(st + 3) if st + 3 < 16 else []
            xl = xlds(st + 3) if st + 3 < 16 else []
            tg = "b" if alt else "a"
            if O('fine2', 0) and st > 0:
                if alt and st == 1: nst[0] -= 15
                TSTAMP()
            A("s_waitcnt lgkmcnt(0)")
            for i, m in enumerate(ml):
                if i == 0 and st in (9, 15): A(flagchk)
                A(m)
                if i == 1 and st in (9, 15): retry("f%s%d" % (tg, st), flagrd(0 if st == 9 else 1), flagchk, wait="s_waitcnt lgkmcnt(0)")
                if i < 2 and xa: A(xa.pop(0)); A(xa.pop(0))
                if i >= (2 if st in (9, 15) else O('wr0', 2)) and wr:
                    A(wr.pop(0))
                    if O('wr2', 0) and i % 2 == 1 and wr: A(wr.pop(0))
                if i in (2, 4, 6, 8) and xl: VM(xl.pop(0).replace(" sc1", "" if O('xplain', 0) else " sc1"), "x%d" % (st + 3))
                if st <= 12 and i == O('pgi', 15) - 6: A("v_mov_b32 v13, %d" % (st + 1))
                if st <= 12 and i == O('pgi', 15): A("ds_write_b32 v3, v13 offset:36")
                if i == 12 and sw: vmwait("x%d" % (st + 1))
                if i >= 12 and ck:
                    x = ck.pop(0)
                    if not O('nochk', 0): A(x)
                if i == 16 and sw and not O('nochk', 0): retry("x%s%d" % (tg, st + 1), xload_txt(st + 1), "\n".join(xchk(st + 1)))
                if i >= 16 and sw:
                    x = sw.pop(0)
                    if not O('nosw', 0): A(x)
            assert not wr and not sw and not xl
    sv = list(vmq)
    p2loop(False)
    A("s_branch L_p2join")
    A.label("L_p2alt")
    vmq[:] = sv
    p2loop(True)
    A.label("L_p2join")
    TSTAMP()
    A("s_nop 3")
    for tau in range(4):
        A("ds_bpermute_b32 %s, v10, %s" % (v(64 + 2 * tau), v(80 + 32 + 4 * tau)))
    A("s_mov_b32 s57, 0xbb000000\ns_waitcnt lgkmcnt(0)")
    for tau in range(4): A("v_mul_f32 %s, s57, %s" % (v(64 + 2 * tau), v(64 + 2 * tau)))
    A("s_cmp_lg_u32 s87, 31\ns_cbranch_scc1 L_novar")
    A("v_and_b32 v10, 3, v2")
    for tau in range(4): A("v_mov_b32 %s, %s" % (v(72 + tau), v(80 + 48 + 32 + 4 * tau)))
    for j in range(1, 4):
        A("v_cmp_eq_u32 vcc, %d, v10" % j)
        for tau in range(4):
            A("v_cndmask_b32 %s, %s, %s, vcc" % (v(72 + tau), v(72 + tau), v(80 + 48 + 32 + 4 * tau + j)))
    A("s_mov_b32 s56, 0x3b000000\ns_mov_b32 s57, 0x3727c5ac")
    for tau in range(4): A("v_mul_f32 %s, s56, %s" % (v(72 + tau), v(72 + tau)))
    for tau in range(4): A("v_fma_f32 %s, -%s, %s, %s" % (v(72 + tau), v(64 + 2 * tau), v(64 + 2 * tau), v(72 + tau)))
    for tau in range(4): A("v_max_f32 %s, 0, %s" % (v(72 + tau), v(72 + tau)))
    for tau in range(4): A("v_add_f32 %s, s57, %s" % (v(72 + tau), v(72 + tau)))
    for tau in range(4): A("v_rcp_f32 %s, %s" % (v(72 + tau), v(72 + tau)))
    A("s_nop 0\nbuffer_store_dwordx4 v[72:75], v179, %s, s91 offen %s" % (WS, WT))
    A.label("L_novar")
    for ft in range(3):
        for g in range(2):
            o = 16 + 8 * ft + 4 * g
            for e in range(2):
                tau = 2 * g + e
                gb = 80 + 16 * ft + 4 * tau; ub = gb + 48
                M = v(64 + 2 * tau, 2)
                for j in (0, 2):
                    A("v_pk_fma_f32 %s, %s, %s, %s op_sel_hi:[1,0,1]" % (v(gb + j, 2), v(40 + 4 * ft + j, 2), M, v(gb + j, 2)))
                    A("v_pk_fma_f32 %s, %s, %s, %s op_sel_hi:[1,0,1]" % (v(ub + j, 2), v(52 + 4 * ft + j, 2), M, v(ub + j, 2)))
                for j in range(4): A("v_max_f32 %s, 0, %s" % (v(gb + j), v(gb + j)))
                for j in (0, 2): A("v_pk_mul_f32 %s, %s, %s" % (v(gb + j, 2), v(gb + j, 2), v(ub + j, 2)))
                for j in (0, 2): A("v_cvt_pk_bf16_f32 %s, %s, %s" % (v(o + 2 * e + j // 2), v(gb + j), v(gb + j + 1)))
            A("buffer_store_dwordx4 %s, %s, %s, %s offen offset:%d %s" % (v(o, 4), HV[ft], WS, "s90" if g else "s89", 1024 * ft, WT))
    TSTAMP()
    A("s_barrier")
    if O('spinto', 0) and O('spinrole', 1) == 0: A("s_barrier")
    spin(0)
    dump(TS)
    A("s_endpgm")

    A.label("L_B")
    vmq.clear(); nst[0] = 1; vmq.extend(["stat", "stat", "ssm", "ssm"])
    if O('bprio', 1): A("s_setprio %d" % O('bprio', 1))
    A("s_load_dword s84, %s, 0\ns_lshl_b32 s56, s66, 2\ns_load_dword %s, s[18:19], s56" % (s(S_WS, 2), s(sD)))
    for reg, off in ((S_WD, 72), (S_WG, 56), (S_WU, 64), (S_OUT, 80)):
        A("s_load_dwordx2 %s, s[0:1], %d" % (s(reg, 2), off))
    A(common2)
    for reg, nb in ((S_WD, 1376 * 1024), (S_OUT, 2097152), (S_T, 512 * 2752)):
        A("s_mov_b32 %s, %d\ns_mov_b32 %s, 0x20000" % (s(reg + 2), nb, s(reg + 3)))
    A("""
    s_lshr_b32 s55, s66, 4
    s_lshl_b32 s72, s55, 14
    s_and_b32 s55, s66, 3
    s_lshl_b32 s55, s55, 10
    s_add_u32 s72, s72, s55
    s_bfe_u32 s55, s66, 0x20002
    s_lshl_b32 s55, s55, 8
    s_add_u32 s72, s72, s55
    s_lshl_b32 s55, s3, 19
    s_add_u32 s72, s72, s55
    s_add_u32 s72, s72, %d
    s_add_u32 s73, s72, 0x40000
    v_lshlrev_b32 v63, 4, v2
    v_lshl_add_u32 v63, v4, 12, v63
    v_mov_b32 v64, -1
    v_mov_b32 v65, -1
    v_mov_b32 v66, -1
    v_mov_b32 v67, -1
    """ % HP)
    def hpfill():
        VM("buffer_store_dwordx4 v[64:67], v63, %s, s72 offen %s" % (WS, WT), "fill")
        VM("buffer_store_dwordx4 v[64:67], v63, %s, s73 offen %s" % (WS, WT), "fill")
    hpfill()
    if O('pw', 1):
        A("""
        v_and_b32 v13, 7, v1
        v_lshrrev_b32 v12, 3, v1
        v_mul_u32_u24 v12, %d, v12
        v_lshl_add_u32 v12, v13, 4, v12
        s_lshl_b32 s55, s2, 7
        s_add_u32 s55, s55, %d
        s_cmp_lg_u32 s3, 0
        s_cselect_b32 s55, %s, s55
        """ % (STR, ST, OOB))
        VM("buffer_store_dwordx4 v[40:43], v12, %s, s55 offen %s" % (WS, WT), "pw")
    A(ids)
    A("""
    v_and_b32 v6, 7, v1
    v_xor_b32 v5, s98, v6
    v_lshlrev_b32 v5, 4, v5
    v_lshl_add_u32 v5, v1, 7, v5
    s_lshl_b32 s55, s99, 3
    s_add_u32 s55, s55, %d
    v_add_u32 v5, s55, v5
    v_lshrrev_b32 v7, 3, v1
    s_mov_b32 s55, %d
    v_mul_lo_u32 v8, v7, s55
    v_lshl_add_u32 v8, v6, 4, v8
    v_xor_b32 v6, v6, v7
    v_lshlrev_b32 v6, 4, v6
    v_lshl_add_u32 v6, v7, 7, v6
    s_lshl_b32 s55, s3, 11
    s_add_u32 s55, s55, %d
    v_add_u32 v6, s55, v6
    v_xor_b32 v16, 32, v5
    v_xor_b32 v17, 64, v5
    v_xor_b32 v18, 0x60, v5
    """ % (L_TB, QSTR, L_TB))
    A("""
    s_mul_i32 s55, s3, %d
    s_add_u32 s55, s55, %d
    v_and_b32 v12, 7, v1
    v_lshl_add_u32 v12, v12, 4, s55
    ds_write_b128 v12, v[40:43]
    s_cmp_lg_u32 s99, 0
    s_cbranch_scc1 L_nohead
    v_and_b32 v12, 31, v1
    v_lshlrev_b32 v12, 4, v12
    v_lshrrev_b32 v13, 5, v1
    s_movk_i32 s56, %d
    v_mad_u32_u24 v12, v13, s56, v12
    s_mul_i32 s55, s98, %d
    s_add_u32 s55, s55, %d
    v_add_u32 v12, s55, v12
    ds_write_b128 v12, v[40:43]
    ds_write_b128 v12, v[40:43] offset:%d
    L_nohead:
    """ % (U_STR, L_U, KC_STR, 4 * KC_STR, L_KC, 2 * KC_STR))
    A("""
    s_mul_i32 s55, s3, %d
    s_lshl_b32 s56, s2, 7
    s_add_u32 s55, s55, s56
    s_add_u32 s95, s55, %d
    s_add_u32 s97, s95, %d
    s_movk_i32 s55, 0x2aab
    s_movk_i32 s56, 2752
    """ % (16 * QSTR, QP, 8 * QSTR))
    for i3 in range(3):
        A("""
        v_add_u32 v14, %d, v1
        v_mul_u32_u24 v3, s55, v14
        v_lshrrev_b32 v3, 16, v3
        v_mul_u32_u24 v13, 6, v3
        v_sub_u32 v14, v14, v13
        v_bfe_u32 v13, v3, 2, 2
        v_lshlrev_b32 v13, 3, v13
        v_lshrrev_b32 v12, 4, v3
        v_lshl_add_u32 v13, v12, 2, v13
        v_and_b32 v3, 3, v3
        v_add_u32 v13, v13, v3
        v_mul_u32_u24 v13, s56, v13
        v_lshl_add_u32 %s, v14, 4, v13
        """ % (64 * i3, v(60 + i3)))
    A("""
    s_waitcnt lgkmcnt(0)
    s_bitcmp1_b32 s3, 0
    s_cselect_b32 s48, s32, s28
    s_cselect_b32 s49, s33, s29
    s_add_u32 s69, s88, s98
    s_mul_i32 s70, s87, 88
    s_mul_i32 s76, s99, %d
    s_mul_i32 s56, s98, 3072
    s_add_u32 s76, s76, s56
    s_mul_i32 s56, s98, %d
    s_lshl_b32 s57, s99, 11
    s_add_u32 s56, s56, s57
    s_add_u32 s56, s56, %d
    v_add_u32 v44, s56, v9
    v_add_u32 v45, %d, v44
    v_add_u32 v46, %d, v44
    v_add_u32 v47, %d, v44
    v_mov_b32 v3, FLGA
    """.replace("FLGA", str(L_FLG)) % (L_WU, 4 * KC_STR, L_KC + 512 - 4, KC_STR - 4, 2 * KC_STR - 8, 3 * KC_STR - 12))
    ndma = [0]
    def w1dma(n):
        for _ in range(n):
            i = ndma[0]; ndma[0] += 1
            gi, i3 = divmod(i, 3)
            if i3 == 0: A("s_and_b32 s77, s69, 15\ns_mul_i32 s77, s77, 88064\ns_add_u32 s77, s77, s70\ns_add_u32 s69, s69, 2")
            A("s_add_u32 m0, s76, %d" % (gi * 6144 + i3 * 1024))
            VM("buffer_load_dwordx4 %s, %s, s77 offen %s lds" % (v(60 + i3), srd(S_T), "nt" if i < O('w1nt', 0) else ""), "dma")
    span = 88 * (32 // RBX)
    ntouch = ((span + 8 + 127 + 127) // 128 + 7) // 8
    def w1touch(pos):
        if O('w1tp', 9) != pos: return 0
        A("""
        v_lshrrev_b32 v12, 3, v1
        s_movk_i32 s55, 2752
        v_mul_lo_u32 v12, v12, s55
        v_and_b32 v13, 7, v1
        v_lshlrev_b32 v13, 7, v13
        s_lshl_b32 s55, s5, 1
        s_add_u32 s55, s55, s98
        s_mul_i32 s55, s55, 22016
        s_and_b32 s56, s4, %d
        s_mul_i32 s56, s56, %d
        s_add_u32 s55, s55, s56
        """ % (RBX - 1, span))
        for i in range(ntouch):
            A("v_add_u32 v14, %d, v13\nv_min_u32 v14, %d, v14\nv_add_u32 v14, v14, v12" % (1024 * i, span + 4))
            VM("buffer_load_dword v11, v14, %s, s55 offen %s" % (srd(S_T), "nt" if O('tnt', 0) else ""), "tch")
        return ntouch
    def hfill(pos):
        if O('hfp', 0) != pos: return
        A(haddr(["v68", "v69", "v70"], "v71", ("v12", "v13")))
        for ft in range(3):
            for g in range(2):
                VM("buffer_store_dwordx4 v[64:67], %s, %s, %s offen offset:%d %s" % (v(68 + ft), WS, "s90" if g else "s89", 1024 * ft, WT), "fill")
        VM("buffer_store_dwordx4 v[64:67], v71, %s, s91 offen %s" % (WS, WT), "fill")
        A("v_mov_b32 v13, 1")
    def w1mall(pos):
        if O('w1m', 0) != pos: return 0
        A("s_lshl_b32 s55, s2, 1\ns_add_u32 s55, s55, s98\ns_mul_i32 s55, s55, 2752\nv_lshlrev_b32 v12, 7, v1\ns_mov_b64 exec, 0x3fffff")
        VM("buffer_load_dword v11, v12, %s, s55 offen" % srd(S_T), "tch")
        A("s_mov_b64 exec, -1")
        return 1
    def wdtouch(pos):
        if O('wdtp', 1) != pos: return
        if O('wdtm', 1) == 1:
            A("s_lshl_b32 s55, s2, 2\ns_add_u32 s55, s55, s3\ns_mul_i32 s55, s55, 1408\nv_lshlrev_b32 v12, 7, v1\ns_mov_b64 exec, 0x7ff")
            VM("buffer_load_dword %s, v12, %s, s55 offen" % ("v63" if pos == 4 else "v11", srd(S_WD)), "tch")
            A("s_mov_b64 exec, -1")
        else:
            A("s_lshl_b32 s55, s5, 2\ns_add_u32 s55, s55, s3\ns_mul_i32 s55, s55, 11008\nv_lshlrev_b32 v12, 7, v1")
            VM("buffer_load_dword v11, v12, %s, s55 offen" % srd(S_WD), "tch")
            A("s_add_u32 s55, s55, 8192\ns_mov_b64 exec, 0x3fffff")
            VM("buffer_load_dword v11, v12, %s, s55 offen" % srd(S_WD), "tch")
            A("s_mov_b64 exec, -1")
    TSTAMP()
    w1mall(0); wdtouch(5)
    w1dma(O('nw1a', 0))
    A("v_mov_b32 v21, 0x3f803f80")
    vmwait("stat")
    TSTAMP()
    w1touch(1)
    for i in range(4): A("ds_write2_b32 %s, %s, %s offset0:0 offset1:1" % (("v5", "v16", "v17", "v18")[i], v(32 + i), v(36 + i)))
    A("v_mov_b32 v14, 1\ns_waitcnt lgkmcnt(0)\ns_mov_b64 exec, 1\nds_add_u32 v3, v14 offset:20\ns_mov_b64 exec, -1\ns_add_u32 s84, s84, 1\ns_or_b32 s84, s84, 0x80000000")
    for i in range(4):
        for e in range(2):
            A("v_dot2c_f32_bf16 %s, %s, v21" % (v(42 + e), v(32 + 4 * e + i)))
            A("v_dot2c_f32_bf16 %s, %s, %s" % (v(40 + e), v(32 + 4 * e + i), v(32 + 4 * e + i)))
    for m in ("row_shr:1", "row_shr:2", "row_shr:4", "row_shr:8", "row_bcast:15 row_mask:0xa", "row_bcast:31 row_mask:0xc"):
        for r in range(40, 44):
            A("v_add_f32_dpp %s, %s, %s %s" % (v(r), v(r), v(r), m))
    A("s_mov_b32 s56, 0x3b000000\ns_mov_b32 s57, 0x3727c5ac")
    for r in range(40, 44): A("v_mul_f32 %s, s56, %s" % (v(r), v(r)))
    for e in range(2): A("v_fma_f32 %s, -%s, %s, %s" % (v(40 + e), v(42 + e), v(42 + e), v(40 + e)))
    for e in range(2): A("v_max_f32 %s, 0, %s" % (v(40 + e), v(40 + e)))
    for e in range(2): A("v_add_f32 %s, s57, %s" % (v(40 + e), v(40 + e)))
    for e in range(2): A("v_rsq_f32 %s, %s" % (v(40 + e), v(40 + e)))
    for e in range(2): A("v_mul_f32_e64 %s, -%s, %s" % (v(42 + e), v(42 + e), v(40 + e)))
    A("v_mov_b32 v19, v6\nv_mov_b32 v20, v8")
    qw_txt = "ds_read2_b32 v[12:13], v3 offset0:%d offset1:5" % O('qwait', 5)
    qw_chk = "v_add_u32 v12, v12, v13\nv_cmp_ne_u32 vcc, 8, v12"
    A(qw_txt + "\ns_waitcnt lgkmcnt(0)\n" + qw_chk)
    retry("qw", "s_sleep 1\n" + qw_txt, qw_chk, wait="s_waitcnt lgkmcnt(0)")
    TSTAMP()
    A("ds_read_b128 v[48:51], v19\nds_read_b128 v[52:55], v19 offset:1024\ns_waitcnt lgkmcnt(1)")
    A("buffer_store_dwordx4 v[48:51], v20, %s, s95 offen %s\ns_waitcnt lgkmcnt(0)" % (WS, WT))
    A("buffer_store_dwordx4 v[52:55], v20, %s, s97 offen %s" % (WS, WT))
    vmq.extend(["st"] * 2)
    w1dma(O('nw1b', 0)); nyoung = O('nw1b', 0) + w1mall(1)
    vmwait("ssm")
    for i in range(2):
        b = 24 + 4 * i
        if i == 1: A("v_add_u32 v44, 0x400, v44\nv_add_u32 v46, 0x400, v46")
        for ad in ("v44", "v46"):
            A("ds_write2_b32 %s, %s, %s offset0:0 offset1:1" % (ad, v(b), v(b + 1)))
            A("ds_write2_b32 %s, %s, %s offset0:2 offset1:3" % (ad, v(b + 2), v(b + 3)))
        A("ds_write2_b64 v45, %s, %s offset0:%d offset1:%d" % (v(b, 2), v(b + 2, 2), 128 * i, 128 * i + 1))
        A("ds_write_b128 v47, %s offset:%d" % (v(b, 4), 1024 * i))
    A("v_mov_b32 v14, 1\ns_mov_b64 exec, 1\nds_add_u32 v3, v14 offset:40\ns_mov_b64 exec, -1")
    A("""
    s_lshl_b32 s55, s3, 4
    s_add_u32 s55, s55, %d
    v_mov_b32 v12, s55
    v_mov_b32 v13, %d
    v_mov_b32 v14, 1
    s_mov_b32 exec_lo, 0
    s_mov_b32 exec_hi, 0x80000000
    ds_write_b128 v12, v[40:43]
    s_waitcnt vmcnt(NYOUNG) lgkmcnt(0)
    ds_add_rtn_u32 v14, v13, v14 offset:8
    s_waitcnt lgkmcnt(0)
    v_readfirstlane_b32 s55, v14
    s_mov_b64 exec, -1
    s_cmp_lg_u32 s55, 3
    s_cbranch_scc1 L_nost
    v_and_b32 v12, 3, v1
    v_lshlrev_b32 v12, 4, v12
    ds_read_b128 v[40:43], v12 offset:%%d
    v_and_b32 v13, 7, v1
    v_cmp_lt_u32 vcc, 3, v13
    v_mov_b32 v14, s84
    v_cndmask_b32 v14, 0, v14, vcc
    v_lshrrev_b32 v12, 3, v1
    v_mul_u32_u24 v12, STRIDE, v12
    v_lshl_add_u32 v12, v13, 4, v12
    s_lshl_b32 s55, s2, 7
    s_add_u32 s55, s55, %d
    s_waitcnt lgkmcnt(0)
    v_xor_b32 v40, v14, v40
    v_xor_b32 v41, v14, v41
    v_xor_b32 v42, v14, v42
    v_xor_b32 v43, v14, v43
    s_mov_b64 exec, STEX
    buffer_store_dwordx4 v[40:43], v12, WS, s55 offen WT
    s_mov_b64 exec, -1
    L_nost:
    """.replace("STRIDE", str(STR)).replace("STEX", "-1" if O('strep', 1) else "0xff").replace("WS", WS).replace("WT", WT).replace("NYOUNG", str(nyoung)).replace("v_lshlrev_b32 v12, 4, v12\n    ds_read_b128 v[40:43], v12 offset:%%d", "v_lshlrev_b32 v12, 4, v12\n    v_add_u32 v12, STL, v12\n    ds_read_b128 v[40:43], v12").replace("STL", str(L_FLG + 64)) % (L_FLG + 64, L_FLG, ST)); vmq.clear()
    TSTAMP()
    w1mall(2); wdtouch(6)
    w1dma(O('nw1c', 0))
    A("""
    s_and_b32 s55, s54, 0xffff
    s_lshr_b32 s56, s54, 16
    v_mov_b32 v13, s55
    v_mov_b32 v14, s56
    v_lshl_add_u32 v12, v4, 2, 3
    v_sub_u32 v12, v12, v2
    """)
    for jj in range(4):
        A("v_cmp_eq_u32 vcc, %d, v12\nv_cndmask_b32 %s, 0, v13, vcc\nv_cndmask_b32 %s, 0, v14, vcc" % (jj, v(72 + jj), v(76 + jj)))
    A("""
    v_and_b32 v5, 1, v2
    s_movk_i32 s55, %d
    v_mul_lo_u32 v5, v5, s55
    v_lshrrev_b32 v14, 1, v2
    v_lshl_add_u32 v5, v14, 4, v5
    v_lshl_add_u32 v5, v4, 7, v5
    s_lshl_b32 s56, s3, 10
    s_add_u32 s56, s56, %d
    v_add_u32 v5, s56, v5
    s_lshl_b32 s56, s3, 11
    s_add_u32 s57, s56, %d
    v_add_u32 v6, s57, v9
    v_add_u32 v7, %d, v6
    s_lshr_b32 s68, s66, 2
    s_mul_i32 s68, s68, %d
    s_and_b32 s57, s66, 3
    s_lshl_b32 s57, s57, 5
    s_add_u32 s68, s68, s57
    s_lshl_b32 s58, s3, 13
    s_add_u32 s68, s68, s58
    s_add_u32 s68, s68, %d
    s_add_u32 s60, s68, 0x1000
    s_add_u32 s58, s58, %d
    s_mul_i32 s57, s4, STRX
    s_add_u32 s58, s58, s57
    s_add_u32 s59, s58, 0x1000
    v_lshrrev_b32 v8, 1, v1
    v_lshlrev_b32 v8, 7, v8
    v_and_b32 v14, 1, v1
    v_lshl_add_u32 v10, v14, 4, v8
    v_lshl_add_u32 v8, v14, 5, v8
    s_mul_i32 s61, s99, 49152
    s_lshl_b32 s57, s98, 13
    s_add_u32 s61, s61, s57
    s_add_u32 s61, s61, 0x8000
    v_lshlrev_b32 v14, 3, v1
    v_and_b32 v14, 0x70, v14
    v_xor_b32 v8, v8, v14
    v_add_u32 v8, s61, v8
    v_xor_b32 v57, 16, v8
    v_xor_b32 v58, 64, v8
    v_xor_b32 v59, 0x50, v8
    v_lshlrev_b32 v14, 1, v1
    v_and_b32 v14, 0x70, v14
    v_xor_b32 v56, v9, v14
    """.replace("STRX", str(STR if O('strep', 1) else 0)) % (U_STR, L_U + 8 * 16, L_REDA, L_REDB - L_REDA, QSTR, QP, ST))
    if O('nw1e', 6) or O('wdtp', 1) == 1:
        A("ds_read_b32 v12, v3 offset:24\ns_waitcnt lgkmcnt(0)\nv_cmp_ne_u32 vcc, 4, v12")
        retry("uw", "s_sleep 1\nds_read_b32 v12, v3 offset:24", "v_cmp_ne_u32 vcc, 4, v12", wait="s_waitcnt lgkmcnt(0)")
    st_dma = "s_mov_b32 m0, s61\n" + "\n".join("buffer_load_dwordx4 v56, %s, s58 offen offset:%d sc1 lds" % (WS, 1024 * i) for i in range(4)) + \
             "\ns_add_u32 m0, s61, 0x1000\n" + "\n".join("buffer_load_dwordx4 v56, %s, s59 offen offset:%d sc1 lds" % (WS, 1024 * i) for i in range(4))
    st_rd = "\n".join("ds_read_b128 %s, %s offset:%d" % (v(16 * (1 + cp) + 8 * e + 4 * h, 4), ("v8", "v57", "v58", "v59")[h + 2 * cp], 4096 * e)
                       for e in range(2) for h in range(2) for cp in range(2))
    st_chk = "\n".join(["v_bitop3_b32 %s, %s, %s, s84 bitop3:0x96" % (v(32 + i), v(32 + i), v(16 + i)) for i in range(16)] +
                       ["v_or3_b32 %s, %s, %s, %s" % (v(32 + i), v(32 + i), v(33 + i), v(34 + i)) for i in (0, 3, 6, 9, 12)] +
                       ["v_or3_b32 v32, v32, v35, v38", "v_or3_b32 v41, v41, v44, v47", "v_or_b32 v32, v32, v41", "v_cmp_ne_u32 vcc, 0, v32"])
    if O('stf', 0):
        A("ds_read_b32 v12, v3 offset:8\ns_waitcnt lgkmcnt(0)\nv_cmp_ne_u32 vcc, 4, v12")
        retry("s8", "ds_read_b32 v12, v3 offset:8", "v_cmp_ne_u32 vcc, 4, v12", wait="s_waitcnt lgkmcnt(0)")
        A(st_dma); vmq.extend(["stp"] * 8)
    w1dma(min(O('nw1e', 6), 15 - ndma[0]))
    wdtouch(1)
    A("ds_read_b32 v12, v3 offset:40\ns_waitcnt lgkmcnt(0)\nv_cmp_ne_u32 vcc, 8, v12")
    retry("b4b", "s_sleep 1\nds_read_b32 v12, v3 offset:40", "v_cmp_ne_u32 vcc, 8, v12", wait="s_waitcnt lgkmcnt(0)")
    TSTAMP()
    for e in range(2):
        for c in range(2):
            A("ds_read_b128 %s, v5 offset:%d" % (v(80 + 8 * e + 4 * c, 4), 2 * c * U_STR + 512 * e))
    hfill(1)
    w1dma(O('nw1d', 0))
    A("s_waitcnt lgkmcnt(0)")
    for e in range(2):
        for c in range(2):
            A("%s %s, %s, %s, 0" % (MF, v(96 + 8 * e + 4 * c, 4), v(72 + 4 * c, 4), v(80 + 8 * e + 4 * c, 4)))
    w1dma(O('nw1f', 0))
    if O('lpw', 1) and not O('stf', 0):
        A("ds_read_b32 v12, v3 offset:32\ns_waitcnt lgkmcnt(0)\nv_cmp_eq_u32 vcc, 0, v12")
        retry("lw", "s_sleep 1\nds_read_b32 v12, v3 offset:32", "v_cmp_eq_u32 vcc, 0, v12", wait="s_waitcnt lgkmcnt(0)")
    if not O('stf', 0): A(st_dma); vmq.extend(["stp"] * 8)
    w1dma(min(O('nw1i', 3), 15 - ndma[0]))
    vmwait("stp")
    A(st_rd + "\ns_waitcnt lgkmcnt(0)\n" + st_chk)
    retry("st", "s_sleep %d\n" % O('stsl', 4) + st_dma + "\ns_waitcnt vmcnt(0)\n" + st_rd, st_chk, wait="s_waitcnt lgkmcnt(0)")
    TSTAMP()
    VM("buffer_load_dwordx4 v[48:51], v10, %s, s68 offen sc1" % WS, "qp")
    VM("buffer_load_dwordx4 v[52:55], v10, %s, s60 offen sc1" % WS, "qp")
    wdtouch(2)
    hfill(2)
    w1dma(min(O('nw1g', 6), 15 - ndma[0]))
    if O('nw1z', 0):
        A("v_mov_b32 v14, 1\ns_mov_b64 exec, 1\nds_add_u32 v3, v14 offset:44\ns_mov_b64 exec, -1\nds_read_b32 v12, v3 offset:44\ns_waitcnt lgkmcnt(0)\nv_cmp_ne_u32 vcc, 4, v12")
        retry("sv", "ds_read_b32 v12, v3 offset:44", "v_cmp_ne_u32 vcc, 4, v12", wait="s_waitcnt lgkmcnt(0)")
        w1dma(min(O('nw1z', 0), 24 - ndma[0]))
    vmwait("qp")
    TSTAMP()
    for e in range(2):
        for j in range(4):
            A("v_lshlrev_b32 %s, 16, %s" % (v(112 + 8 * e + j), v(48 + 4 * e + j)))
            A("v_and_b32 %s, s65, %s" % (v(116 + 8 * e + j), v(48 + 4 * e + j)))
    for e in range(2):
        for c in range(2):
            for j in (0, 2):
                A("v_pk_fma_f32 %s, %s, %s, %s" % (v(128 + 8 * e + 4 * c + j, 2), v(112 + 8 * e + 4 * c + j, 2), v(16 + 8 * e + 2 * j, 2), v(18 + 8 * e + 2 * j, 2)))
    w1dma(O('nw1h', 0))
    TSTAMP()
    A("s_barrier")
    TSTAMP()
    for e in range(2):
        for src in range(4):
            A("ds_read_b128 %s, %s offset:%d" % (v(16 + 16 * e + 4 * src, 4), "v7" if src >= 2 else "v6", 8192 * (src & 1) + 1024 * e))
    for e in range(2):
        for c in range(2):
            A("s_waitcnt lgkmcnt(%d)" % (6 - 4 * e - 2 * c))
            for j in (0, 2):
                d = v(96 + 8 * e + 4 * c + j, 2)
                A("v_pk_add_f32 %s, %s, %s" % (d, d, v(16 + 16 * e + 8 * c + j, 2)))
            for j in (0, 2):
                d = v(96 + 8 * e + 4 * c + j, 2)
                A("v_pk_add_f32 %s, %s, %s" % (d, d, v(20 + 16 * e + 8 * c + j, 2)))
            for j in (0, 2):
                d = v(96 + 8 * e + 4 * c + j, 2)
                A("v_pk_fma_f32 %s, %s, %s, %s" % (d, d, v(128 + 8 * e + 4 * c + j, 2), v(112 + 8 * e + 4 * c + j, 2)))
        for j in range(4):
            A("v_cvt_pk_bf16_f32 %s, %s, %s" % (v(48 + 4 * e + j), v(96 + 8 * e + j), v(100 + 8 * e + j)))
        VM("buffer_store_dwordx4 %s, v63, %s, %s offen %s" % (v(48 + 4 * e, 4), WS, "s73" if e else "s72", WT), "hp")
    TSTAMP()
    NB6 = O('nb6', 15)
    wdtouch(3)
    hfill(3)
    w1dma(NB6 - ndma[0])
    A("""
    v_mov_b32 v56, 0x3f803f80
    v_mov_b32 v57, 0x3f803f80
    v_mov_b32 v58, 0x3f803f80
    v_mov_b32 v59, 0x3f803f80
    v_and_b32 v14, 31, v1
    v_mul_u32_u24 v14, 96, v14
    s_add_u32 s55, s76, 88
    v_add_u32 v14, s55, v14
    v_mov_b32 v3, %d
    v_mov_b32 v13, 1
    """ % L_FLG)
    vmwait("dma")
    for i in range(NB6 // 3): A("ds_write_b64 v14, v[56:57] offset:%d" % (6144 * i))
    A("s_waitcnt lgkmcnt(0)\ns_barrier")
    TSTAMP()
    def xtouch(pos):
        if O('xtp', 9) != pos: return
        A("""
        s_and_b32 s55, s87, %d
        s_lshl_b32 s55, s55, 2
        s_add_u32 s55, s55, s3
        s_lshl_b32 s55, s55, 7
        s_lshl_b32 s56, s86, 18
        s_add_u32 s55, s55, s56
        s_add_u32 s55, s55, %d
        v_lshlrev_b32 v12, 12, v1
        """ % (32 // RBX - 1, HP))
        VM("buffer_load_dword v63, v12, %s, s55 offen sc1" % WS, "tch")
    xtouch(0)
    w1dma(24 - NB6)
    xtouch(1)
    A("""
    s_and_b32 s72, s5, 7
    s_lshr_b32 s71, s5, 3
    s_mul_i32 s56, s71, %d
    s_mul_i32 s55, s72, %d
    s_add_u32 s55, s55, s56
    s_sub_u32 s56, s55, 11
    s_cmp_ge_u32 s55, 11
    s_cselect_b32 s55, s56, s55
    s_mul_i32 s56, s3, 11
    s_add_u32 s57, s56, 11
    s_add_u32 s55, s55, s56
    """ % (O('rot4', 0), O('rot3', 0)))
    for i in range(11):
        A("s_lshl_b32 %s, s55, 11\ns_add_u32 s55, s55, 1\ns_cmp_eq_u32 s55, s57\ns_cselect_b32 s55, s56, s55" % s(8 + i))
    A("""
    v_lshrrev_b32 v5, 3, v1
    v_and_b32 v6, 2, v5
    v_lshlrev_b32 v6, 1, v6
    v_and_b32 v7, 7, v1
    v_xor_b32 v6, v6, v7
    v_lshlrev_b32 v5, 10, v5
    v_lshl_add_u32 v5, v6, 4, v5
    s_mul_i32 s92, s3, 12288
    s_add_u32 s92, s92, %d
    v_lshrrev_b32 v6, 2, v1
    v_and_b32 v7, 2, v6
    v_lshlrev_b32 v7, 5, v7
    v_lshlrev_b32 v6, 7, v6
    v_and_b32 v8, 3, v1
    v_lshl_add_u32 v6, v8, 4, v6
    v_add_u32 v6, v6, v7
    s_lshl_b32 s55, s99, 6
    v_xor_b32 v7, s55, v6
    v_xor_b32 v6, 64, v7
    v_add_u32 v6, s92, v6
    v_add_u32 v7, s92, v7
    s_lshl_b32 s93, s72, 7
    v_lshrrev_b32 v10, 2, v1
    v_mul_u32_u24 v10, 96, v10
    v_lshl_add_u32 v10, v8, 3, v10
    s_lshl_b32 s56, s99, 5
    s_add_u32 s56, s56, %d
    v_add_u32 v11, s56, v10
    s_lshl_b32 s55, s3, 5
    s_cmp_eq_u32 s3, 3
    s_cselect_b32 s55, %d, s55
    v_add_u32 v10, s55, v10
    """ % (L_SG, L_WU + 32, L_WU))
    WDR = lambda i, tm: a(16 * i + 4 * tm, 4) if i < 4 else v(72 + 16 * (i - 4) + 4 * tm, 4)
    WDH = lambda i, tm, h: a(16 * i + 4 * tm + 2 * h, 2) if i < 4 else v(72 + 16 * (i - 4) + 4 * tm + 2 * h, 2)
    def wd_issue(i):
        if O('nowd', 0): A("s_mov_b32 s93, %s" % OOB)
        A("s_lshl_b32 s94, %s, 4\ns_add_u32 s94, s94, s93" % s(8 + i))
        for r in range(4):
            A("s_add_u32 m0, s92, %d" % (4096 * (i % 3) + 1024 * r))
            VM("buffer_load_dwordx4 v5, %s, s94 offen lds" % srd(S_WD), "wd%d" % i)
            if r < 3: A("s_add_u32 s94, s94, 0x2000")
    def wd_read(i):
        vmwait("wd%d" % i)
        for tm in range(4):
            for h in range(2):
                A("ds_read_b64_tr_b16 %s, %s offset:%d" % (WDH(i, tm, h), "v6" if tm < 2 else "v7", 4096 * (i % 3) + 2048 * h + 8 * (tm & 1)))
        A("s_waitcnt lgkmcnt(0)")
    def hflag():
        A("""
        s_lshl_b32 s55, s86, 2
        s_add_u32 s55, s55, s3
        s_lshl_b32 s55, s55, 5
        s_add_u32 s55, s55, s87
        s_lshl_b32 s55, s55, 7
        s_add_u32 s55, s55, %d
        v_mov_b32 v64, s84
        v_mov_b32 v65, s84
        v_mov_b32 v66, s84
        v_mov_b32 v67, s84
        s_mov_b64 exec, 0xff
        """ % FH)
        vmwait("fill")
        VM("buffer_store_dwordx4 v[64:67], v9, %s, s55 offen %s" % (WS, WT), "fhs")
        A("s_mov_b64 exec, -1")
    def colsum(k0, k1):
        for st in range(k0, k1 + 2):
            if st < k1:
                b = 16 + 8 * (st & 3)
                for h in range(2): A("ds_read_b64_tr_b16 %s, v10 offset:%d" % (v(b + 2 * h, 2), st * 3072 + h * 1536))
                for h in range(2): A("ds_read_b64_tr_b16 %s, v11 offset:%d" % (v(b + 4 + 2 * h, 2), st * 3072 + h * 1536))
            if st >= k0 + 2:
                pb = 16 + 8 * ((st - 2) & 3)
                A("s_waitcnt lgkmcnt(%d)" % (4 * (min(st, k1 - 1) - (st - 2))))
                A("%s v[48:51], v[56:59], %s, %s" % (MF, v(pb, 4), "v[48:51]" if st > 2 else "0"))
                A("%s v[52:55], v[56:59], %s, %s" % (MF, v(pb + 4, 4), "v[52:55]" if st > 2 else "0"))
    K1 = 2 * (NB6 // 3)
    NWD0 = O('nwd0', 1)
    colsum(0, K1)
    wdtouch(4)
    for i in range(NWD0): wd_issue(i)
    vmwait("dma")
    for i in range(NB6 // 3, 8): A("ds_write_b64 v14, v[56:57] offset:%d" % (6144 * i))
    A("s_waitcnt lgkmcnt(0)\ns_mov_b64 exec, 1\nds_add_u32 v3, v13\ns_mov_b64 exec, -1")
    TSTAMP()
    for i in range(NWD0): wd_read(i)
    A("ds_read_b32 v12, v3\ns_waitcnt lgkmcnt(0)\n" + flagchk)
    retry("fB", "ds_read_b32 v12, v3", flagchk, wait="s_waitcnt lgkmcnt(0)")
    if K1 < 16: colsum(K1, 16)
    HOLD = O('wdhold', 5); LATE = O('late', 3); NE = 11 - LATE
    A("""
    s_lshl_b32 s55, s72, 1
    s_add_u32 s55, s55, s99
    s_lshl_b32 s55, s55, 14
    s_lshl_b32 s56, s71, 12
    s_add_u32 s55, s55, s56
    s_lshl_b32 s56, s98, 3
    s_add_u32 s55, s55, s56
    s_lshl_b32 s56, s4, 18
    s_add_u32 s55, s55, s56
    s_add_u32 s95, s55, %d
    s_lshl_b32 s55, s4, 2
    s_add_u32 s55, s55, s71
    s_lshl_b32 s64, s55, 12
    s_add_u32 s64, s64, %d
    s_lshl_b32 s56, s55, 1
    s_add_u32 s57, s56, s98
    s_xor_b32 s56, s57, 1
    s_mul_i32 s68, s56, %d
    s_mul_i32 s69, s57, %d
    s_add_u32 s68, s68, %d
    s_add_u32 s69, s69, %d
    s_lshl_b32 s77, s55, 16
    s_lshl_b32 s56, s98, 12
    s_add_u32 s77, s77, s56
    s_lshl_b32 s56, s72, 7
    s_add_u32 s77, s77, s56
    s_lshl_b32 s56, s99, 6
    s_add_u32 s77, s77, s56
    s_lshl_b32 s67, s55, 8
    s_lshl_b32 s56, s98, 3
    s_add_u32 s67, s67, s56
    s_add_u32 s67, s67, %d
    s_mul_i32 s97, s3, 12288
    s_add_u32 s97, s97, 49152
    v_add_u32 v14, s97, v9
    s_lshl_b32 s56, s3, 3
    v_add_u32 v8, s56, v1
    v_cmp_lt_u32 vcc, 7, v1
    v_cndmask_b32 v8, v8, 31, vcc
    v_lshlrev_b32 v8, 7, v8
    """ % (HP, FH, HG, HG, HH, HH, R2))
    for i in range(11): A("s_min_u32 %s, %s, %d" % (s(20 + i), s(8 + i), 42 * 2048))
    for k in (1, 2, 3): A("s_xor_b32 s56, s3, %d\ns_mul_i32 s56, s56, 12288\ns_add_u32 %s, s56, %d" % (k, s(31 + k), L_RED3 + (k - 1) * 4096))
    def waitstep(k):
        chk = "v_cmp_gt_u32 vcc, %d, v12" % k
        A("ds_read_b32 v12, v3 offset:36\ns_waitcnt lgkmcnt(0)\n" + chk)
        retry("ws%d" % k, "s_sleep %d\n" % O('bsl', 2) + "ds_read_b32 v12, v3 offset:36", chk, wait="s_waitcnt lgkmcnt(0)")
    A(haddr(["v68", "v69", "v70"], "v71", ("v12", "v13")))
    A("v_mov_b32 v13, 1")
    fl = ["buffer_store_dwordx4 v[64:67], %s, %s, %s offen offset:%d %s" % (v(68 + ft), WS, "s90" if g else "s89", 1024 * ft, WT) for ft in range(3) for g in range(2)]
    fl.append("buffer_store_dwordx4 v[64:67], v71, %s, s91 offen %s" % (WS, WT))
    NP = O('np', 3)
    pieces = [(i, r) for i in range(NWD0, NWD0 + NP) for r in range(4)]
    P0 = O('p0', 1); PEND = O('pend', 13)
    nsteps = PEND - P0
    done_cs = False
    for k in range(P0, PEND):
        waitstep(k)
        if fl:
            VM(fl.pop(0), "fill")
            if len(fl) == 1: VM(fl.pop(0), "fill")
        elif not done_cs and k >= P0 + 7:
            hflag()
            A("""
    s_lshl_b32 s55, s3, 6
    s_add_u32 s55, s55, %d
    v_lshl_add_u32 v10, v2, 2, s55
    s_lshl_b32 s56, s99, 6
    s_add_u32 s56, s56, %d
    v_lshl_add_u32 v11, v2, 2, s56
    ds_write_b32 v10, v48
    ds_write_b32 v11, v52
    s_waitcnt lgkmcnt(0)
    s_mov_b64 exec, 1
    ds_add_u32 v3, v13 offset:4
    s_mov_b64 exec, -1
    """ % (L_CS, L_CS + 256))
            TSTAMP()
            done_cs = True
        want = (len(pieces) + (PEND - k) - 1) // (PEND - k) if (not fl or O('mix', 0)) else 0
        for _ in range(want):
            i, r = pieces.pop(0)
            if r == 0: A("s_lshl_b32 s94, %s, 4\ns_add_u32 s94, s94, s93" % s(8 + i))
            A("s_add_u32 m0, s92, %d" % (4096 * (i % 3) + 1024 * r))
            VM("buffer_load_dwordx4 v5, %s, s94 offen lds" % srd(S_WD), "wd%d" % i)
            if r < 3: A("s_add_u32 s94, s94, 0x2000")
    assert done_cs and not pieces
    TSTAMP()
    waitstep(PEND)
    VM("buffer_load_dword v10, v8, %s, s64 offen sc1" % WS, "fh")
    TSTAMP()
    nx = NWD0 + NP
    for i in range(NWD0, NE):
        wd_read(i)
        while nx < NE and nx <= i + 3: wd_issue(nx); nx += 1
    TSTAMP()
    A("s_waitcnt vmcnt(0)\nv_cmp_ne_u32 vcc, s84, v10")
    retry("fh", "buffer_load_dword v10, v8, %s, s64 offen sc1" % WS, "v_cmp_ne_u32 vcc, s84, v10")
    LB = O('lateb', 0)
    for i in range(NE, NE + LB): wd_issue(i)
    A("s_barrier")
    TSTAMP()
    for i in range(NE + LB, 11): wd_issue(i)
    def late_part():
        for i in range(NE, 11): wd_read(i)
        A("""
        v_lshrrev_b32 v5, 1, v2
        v_lshlrev_b32 v5, 13, v5
        v_and_b32 v12, 1, v2
        v_lshl_add_u32 v5, v12, 10, v5
        v_lshl_add_u32 v5, v4, 4, v5
        v_lshlrev_b32 v12, 4, v2
        v_subrev_u32 v10, 0xc000, v14
        v_add_u32 v6, s32, v9
        v_add_u32 v7, s33, v9
        v_add_u32 v8, s34, v9
        """)
    NR = 6
    HFR = lambda q, o, n: v(16 + 8 * (q % 3) + o, n)
    def acc3(grp, tm, e):
        t = 2 * (tm & 1) + e
        if grp == 1 and tm >= 2: return v(40 + 4 * t, 4)
        if tm < 2: return v(56 + 4 * t, 4)
        return v(40 + 4 * t, 4)
    def hdma_txt(q):
        grp, i = divmod(q, 11)
        return "s_add_u32 s96, %s, %s\ns_add_u32 m0, s97, %d\nbuffer_load_dwordx4 v9, %s, s96 offen sc1 lds\nbuffer_load_dwordx4 v9, %s, s96 offen offset:1024 sc1 lds" % (
            "s68" if grp == 0 else "s69", s(20 + i), 2048 * (q % NR), WS, WS)
    def hdma(q): A(hdma_txt(q)); vmq.extend(["h%d" % q] * 2)
    def hrd(q): return ["ds_read_b64 %s, %s offset:%d" % (HFR(q, 4 * e + 2 * aa, 2), "v14", 2048 * (q % NR) + 1024 * aa + 8 * e) for e in range(2) for aa in range(2)]
    def hchk(q): return "v_max_u32 v11, %s, %s\nv_cmp_eq_u32 vcc, -1, v11" % (HFR(q, 0, 1), HFR(q, 2, 1))
    def hretry(q):
        last = min(21, q + NR - 1) if O('hre', 1) else q
        if q == 0: last = O('nh0', 6) - 1
        n = 2 * (last - q) if q < 17 else 0
        retry("h%d" % q, "\n".join(hdma_txt(k) for k in range(q, last + 1)) + "\ns_waitcnt vmcnt(%d)\n" % n + "\n".join(hrd(q)), hchk(q), wait="s_waitcnt lgkmcnt(0)")
    NH0 = O('nh0', 6)
    for q in range(NH0): hdma(q)
    late_part()
    vmwait("h0"); A("\n".join(hrd(0))); A("s_waitcnt lgkmcnt(0)"); A(hchk(0)); hretry(0)
    TSTAMP()
    for q in range(NH0, NR): hdma(q)
    vmwait("h1"); A("\n".join(hrd(1)))
    for q in range(22):
        grp, i = divmod(q, 11)
        if q == 11:
            if O('psw', 1):
                for t in range(4): A("ds_write_b128 v7, %s offset:%d" % (v(40 + 4 * t, 4), 1024 * t))
            else:
                A("s_nop 7")
                for t in range(4): A("ds_write_b128 v8, %s offset:%d" % (v(56 + 4 * t, 4), 1024 * t))
                for t in range(4): A("ds_write_b128 v7, %s offset:%d" % (v(40 + 4 * t, 4), 1024 * t))
                A("s_waitcnt lgkmcnt(0)")
        rd = hrd(q + 2) if q + 2 < 22 else []
        if O('fine3', 0) and q % 2 == 0: TSTAMP()
        n = 0
        for tm in range(4):
            for e in range(2):
                sw = O('psw', 1) and q == 11
                if sw: A("s_waitcnt lgkmcnt(%d)" % (7 - n))
                A("%s %s, %s, %s, %s" % (MF, acc3(grp, tm, e), WDR(i, tm), HFR(q, 4 * e, 4), acc3(grp, tm, e) if i else "0"))
                if n == 0 and q + NR < 22: hdma(q + NR)
                if sw:
                    if n == 1: A(hchk(q + 1))
                    if n == 3: hretry(q + 1)
                    if n == 7:
                        vmwait("h%d" % (q + 2))
                        while rd: A(rd.pop(0))
                else:
                    if n == 1 and q < 21: A("s_waitcnt lgkmcnt(0)"); A(hchk(q + 1))
                    if n == 3 and q < 21: hretry(q + 1)
                    if n == 3 and rd: vmwait("h%d" % (q + 2))
                    if O('psw', 1) and q == 10:
                        if n == 3:
                            while rd: A(rd.pop(0))
                        if n >= 4: A("ds_write_b128 v8, %s offset:%d" % (v(56 + 4 * (n - 4), 4), 1024 * (n - 4)))
                    if n >= 3 and rd: A(rd.pop(0))
                if n == 2 and q == 17:
                    for j in range(4): A("buffer_load_dwordx2 %s, v9, %s, s95 offen offset:%d sc1" % (v(72 + 2 * j, 2), WS, 1024 * j))
                    A("buffer_load_dwordx2 v[80:81], v12, %s, s67 offen sc1" % WS); vmq.extend(["res"] * 5)
                n += 1
    if O('fine3', 0): TSTAMP()
    for t in range(4):
        A("ds_write_b128 v6, %s offset:%d" % (v(56 + 4 * t, 4), 1024 * t))
    A("s_waitcnt vmcnt(0)\nv_cmp_eq_u32 vcc, -1, v80")
    for j in range(4):
        for e in range(2):
            A("v_lshlrev_b32 %s, 16, %s\nv_and_b32 %s, s65, %s" % (v(88 + 8 * e + 2 * j), v(72 + 2 * j + e), v(89 + 8 * e + 2 * j), v(72 + 2 * j + e)))
    retry("r2", "buffer_load_dwordx2 v[80:81], v12, %s, s67 offen sc1" % WS, "v_cmp_eq_u32 vcc, -1, v80")
    if O('fine3', 0): TSTAMP()
    A("s_waitcnt lgkmcnt(0)\ns_barrier")
    TSTAMP()
    for sl in range(3):
        for t in range(4):
            A("ds_read_b128 %s, v10 offset:%d" % (v(112 + 16 * sl + 4 * t, 4), L_RED3 + 4096 * sl + 1024 * t))
    for sl in range(3):
        A("s_waitcnt lgkmcnt(%d)" % (8 - 4 * sl))
        for r in range(0, 16, 2):
            A("v_pk_add_f32 %s, %s, %s" % (v(40 + r, 2), v(40 + r, 2), v(112 + 16 * sl + r, 2)))
    for e in range(2):
        for mt in range(2):
            for j in (0, 2):
                d = v(40 + 8 * mt + 4 * e + j, 2)
                A("v_pk_fma_f32 %s, %s, v[80:81], %s op_sel:[0,%d,0] op_sel_hi:[1,%d,1]" % (d, d, v(88 + 8 * e + 4 * mt + j, 2), e, e))
        for mt in range(2):
            for j in (0, 2):
                A("v_cvt_pk_bf16_f32 %s, %s, %s" % (v(16 + 4 * e + 2 * mt + j // 2), v(40 + 8 * mt + 4 * e + j), v(41 + 8 * mt + 4 * e + j)))
        A("buffer_store_dwordx4 %s, v5, %s, s77 offen offset:%d %s" % (v(16 + 4 * e, 4), srd(S_OUT), 2048 * e, {0: "", 1: "sc0 sc1", 2: "nt"}[O('outf', 0)]))
    A("""
    s_or_b32 s55, s2, s3
    s_cmp_lg_u32 s55, 0
    s_cselect_b32 s55, %s, 0
    v_mov_b32 v14, s84
    s_mov_b64 exec, 1
    buffer_store_dword v14, v9, %s, s55 offen
    s_mov_b64 exec, -1
    """ % (OOB, WS))
    spin(1)
    dump(TS + 0x10000)
    A.label("L_end")
    A("s_endpgm")
    for st_ in stubs:
        A("s_nop 7")
        A(st_)
    A.label("L_codeend")
    A("s_endpgm")
    A.raw(""".section .rodata,"a"
.p2align 6
.amdhsa_kernel %s_kernel
  .amdhsa_next_free_vgpr 256
  .amdhsa_next_free_sgpr 102
  .amdhsa_accum_offset 184
  .amdhsa_group_segment_fixed_size 0
  .amdhsa_kernarg_size 104
  .amdhsa_user_sgpr_count 2
  .amdhsa_user_sgpr_kernarg_segment_ptr 1
  .amdhsa_system_sgpr_workgroup_id_x 1
  .amdhsa_float_denorm_mode_32 3
.end_amdhsa_kernel""" % NAME)
    return A.text()

def parse(args):
    kw = {}; opt = {}
    for x in args:
        k, val = x.split("=")
        if k in ("RBX", "ROT"): kw[k] = int(val)
        elif k in ("NT",): kw[k] = val
        else: opt[k] = int(val)
    return kw, opt

if __name__ == "__main__":
    out = sys.argv[1] if len(sys.argv) > 1 else "cdna_kernels/%s.s" % NAME
    stamp = len(sys.argv) > 2 and sys.argv[2] == "stamp"
    kw, opt = parse(sys.argv[3:])
    open(out, "w").write(gen(stamp, opt=opt, **kw))
    print("wrote", out)
```

```python
import sys
from asm import Asm, v, a, s

NAME = "sequential_preLN__ssm_conv_h3__glu_gated_reglu__prompt"
EP = 0x0; R2 = 0x8000; TS = 0x10000; ST = 0x80000; STR = 0x8100; FU = 0x50000; FH = 0x60000
UP = 0x100000; QP = 0x300000; QSTR = 33024; HP = 0x700000; HH = 0xB00000
WS_BYTES = 0x1400000
HG = 88064
L_WU = 49152
L_KC = 98304; KC_STR = 4640
L_U = L_KC + 8 * KC_STR; U_STR = 4224
L_CS = L_U + 4 * U_STR
L_FLG = L_CS + 384
L_TA = L_FLG + 128
LDS_BYTES = L_TA + 8192
L_TB = L_WU + 40960
L_REDA = L_KC; L_REDB = L_KC + 16384
L_SG = L_KC
L_RED3 = 0
S_K, S_V, S_Q, S_SK, S_SSM, S_WG, S_WU, S_WD, S_OUT, S_WS, S_T = 8, 12, 16, 20, 24, 28, 32, 36, 40, 44, 48
sDP = 52; sD = 54; sPC = 74
BUDGET = 200000
WS = s(S_WS, 4)
MF = "v_mfma_f32_16x16x32_bf16"
OOB = "0x40000000"
WT = "sc0 sc1"
def srd(i): return s(i, 4)
def lines(t): return [x.strip() for x in t.strip().split("\n") if x.strip()]

def gen(stamp=False, RBX=4, ROT=0, NT="", opt=None):
    opt = opt or {}
    O = lambda k, d: opt.get(k, d)
    A = Asm()
    stubs = []
    nst = [0]
    vmq = []
    def TSTAMP():
        if stamp:
            A("s_memtime s[80:81]\ns_waitcnt lgkmcnt(0)\ns_sub_u32 s80, s80, s78\nv_writelane_b32 v15, s80, %d" % nst[0]); nst[0] += 1
    def dump(off):
        if stamp:
            A("s_waitcnt vmcnt(0)"); TSTAMP()
            A("s_cmp_lg_u32 s3, %d\ns_cbranch_scc1 L_end" % O('dw', 0))
            A("s_memrealtime s[80:81]\ns_waitcnt lgkmcnt(0)\nv_writelane_b32 v15, s80, 62\nv_writelane_b32 v15, s82, 63\nv_writelane_b32 v15, s85, 61")
            A("s_lshl_b32 s55, s2, 8\ns_add_u32 s55, s55, %d\nv_lshlrev_b32 v14, 2, v1\nbuffer_store_dword v15, v14, %s, s55 offen" % (off, WS))
    def spin(role):
        if O('spinto', 0) and O('spinrole', 1) == role:
            A("s_cmp_lg_u32 s2, %d\ns_cbranch_scc1 L_nospin\ns_cmp_lg_u32 s3, 0\ns_cbranch_scc1 L_nospin" % O('spinwg', 0))
            if O('spinsel', -1) >= 0: A("v_readlane_b32 s96, v15, %d\ns_nop 3\ns_lshr_b32 s96, s96, 1\ns_add_u32 s96, s96, %d" % (O('spinsel', 0), O('spinto', 0)))
            else: A("s_mov_b32 s96, %d" % O('spinto', 0))
            A("L_spin:\ns_memrealtime s[80:81]\ns_waitcnt lgkmcnt(0)\ns_sub_u32 s80, s80, s82\ns_cmp_lt_u32 s80, s96\ns_cbranch_scc1 L_spin\nL_nospin:")
    def VM(txt, tag):
        A(txt); vmq.append(tag)
    def vmwait(tag, extra=""):
        tags = tag if isinstance(tag, tuple) else (tag,)
        idx = max(i for i, t in enumerate(vmq) if t in tags)
        A("s_waitcnt vmcnt(%d)%s" % (min(63, len(vmq) - 1 - idx), extra))
    INL = ("up", "b4a", "b4b", "xP", "h0", "st", "uw", "lw", "qw", "fB", "kc")
    def retry(name, reload_txt, chk_txt, wait="s_waitcnt vmcnt(0)"):
        if O('inl', 1) and (name in INL or name.startswith("ws")):
            A("s_cbranch_vccz L_o%s" % name); A.label("L_r%s" % name)
            keep = list(A.hist)
            A("s_sub_u32 s85, s85, 1\ns_cbranch_scc1 L_x%s\n%s\n%s\n%s\ns_cbranch_vccnz L_r%s" % (name, reload_txt, wait, chk_txt, name))
            A.label("L_o%s" % name)
            A.hist[:] = keep
            stubs.append("L_x%s:\ns_mov_b32 s85, 0\ns_branch L_o%s" % (name, name))
            return
        A("s_cbranch_vccnz L_r%s" % name); A.label("L_o%s" % name)
        stubs.append("L_r%s:\ns_sub_u32 s85, s85, 1\ns_cbranch_scc1 L_x%s\n%s\n%s\n%s\ns_cbranch_vccnz L_r%s\ns_branch L_o%s\nL_x%s:\ns_mov_b32 s85, 0\ns_branch L_o%s"
                     % (name, name, reload_txt, wait, chk_txt, name, name, name, name))
    A.raw(open('cdna_kernels/%s.s.ref' % NAME).read().split('; @launch grid')[0].rstrip('\n'))
    A.raw("; @launch grid=(256,1,1) block=(512,1,1) lds=%d" % LDS_BYTES)
    A.raw('.amdgcn_target "amdgcn-amd-amdhsa--gfx950"\n.text\n.globl %s_kernel\n.p2align 8\n.type %s_kernel,@function\n%s_kernel:' % (NAME, NAME, NAME))
    LRB = {1: 0, 2: 1, 4: 2, 8: 3}[RBX]

    A("s_load_dwordx8 s[8:15], s[0:1], 0")
    if stamp: A("s_memtime s[78:79]\ns_memrealtime s[82:83]\nv_mov_b32 v15, 0"); nst[0] += 1
    A("s_cmpk_ge_u32 s2, 0x100\ns_cbranch_scc1 L_end")
    if O('perm', 0):
        A("s_lshr_b32 s4, s2, 3\ns_add_u32 s4, s4, s2\ns_and_b32 s4, s4, 7\ns_and_b32 s2, s2, 0xf8\ns_or_b32 s2, s2, s4")
    A("""
    v_readfirstlane_b32 s6, v0
    s_lshr_b32 s5, s2, 3
    s_and_b32 s4, s2, 7
    s_cmpk_lt_u32 s6, 0x100
    s_cbranch_scc1 L_A0
    s_load_dwordx4 s[16:19], s[0:1], 32
    s_getpc_b64 %s
    L_pc:
    s_lshl_b32 s55, s5, 11
    v_lshl_add_u32 v10, v0, 3, s55
    v_min_u32 v10, L_codeend-L_pc+2044, v10
    s_mov_b32 exec_lo, 0x10001
    s_mov_b32 exec_hi, exec_lo
    global_load_dword v11, v10, %s offset:-2048
    s_branch L_B0
    L_A0:
    s_lshl_b32 s55, s5, 9
    s_add_u32 s55, s55, s4
    s_lshl_b32 s55, s55, 7
    v_and_b32 v5, 0xb8, v0
    v_and_b32 v10, 7, v0
    v_and_b32 v7, 64, v0
    v_and_b32 v6, 56, v0
    v_add_lshl_u32 v5, v5, v6, 8
    v_lshl_add_u32 v5, v10, 3, v5
    v_add3_u32 v5, v5, v7, s55
    v_max_u32 v6, 0xc00, v5
    s_waitcnt lgkmcnt(0)
    """ % (s(sPC, 2), s(sPC, 2)))
    for j in range(4): VM("global_load_dwordx2 %s, v5, s[10:11] offset:%d %s" % (v(22 + 2 * j, 2), 1024 * j, NT), "k")
    for j in range(4): VM("global_load_dwordx2 %s, v5, s[12:13] offset:%d %s" % (v(30 + 2 * j, 2), 1024 * j, NT), "v")
    for i in range(3): VM("global_load_dwordx2 %s, v6, s[10:11] offset:%d %s" % (v(16 + 2 * i, 2), 1024 * i - 3072, NT), "k")
    A("v_and_b32 v10, 0x3ff, v5\nv_lshlrev_b32 v10, 2, v10")
    VM("global_load_dwordx4 v[48:51], v10, s[14:15]", "k")
    VM("global_load_dwordx4 v[52:55], v10, s[14:15] offset:16", "k")
    A("s_load_dwordx2 %s, s[0:1], 96\ns_barrier\ns_branch L_A" % s(S_WS, 2))
    common = """
    v_and_b32 v1, 63, v0
    v_and_b32 v2, 15, v0
    v_lshrrev_b32 v4, 4, v1
    v_lshlrev_b32 v9, 4, v1
    s_bfe_u32 s3, s6, 0x20006
    s_lshl_b32 s66, s4, 5
    s_add_u32 s66, s66, s5
    s_and_b32 s99, s3, 1
    s_lshr_b32 s98, s3, 1
    """
    common2 = "s_mov_b32 s85, %d\ns_mov_b32 s65, 0xffff0000\ns_mov_b32 %s, %d\ns_mov_b32 %s, 0x20000" % (BUDGET, s(S_WS + 2), WS_BYTES, s(S_WS + 3))
    A.label("L_B0")
    bl = """
    s_mov_b64 exec, -1
    s_lshl_b32 s57, s2, 13
    s_lshl_b32 s66, s4, 5
    s_add_u32 s66, s66, s5
    s_lshl_b32 s61, s66, 13
    v_and_b32 v1, 63, v0
    v_lshlrev_b32 v9, 4, v1
    v_and_b32 v5, 64, v0
    v_lshl_add_u32 v5, v5, 6, v9
    v_and_b32 v6, 0x80, v0
    v_lshl_add_u32 v5, v6, 3, v5
    v_add_u32 v5, s57, v5
    v_and_b32 v6, 0xc0, v0
    v_lshl_add_u32 v6, v6, 5, v9
    v_add_u32 v6, s61, v6
    s_waitcnt lgkmcnt(0)
    """
    ld = """
    global_load_dwordx4 v[32:35], v5, s[8:9] NT
    global_load_dwordx4 v[36:39], v5, s[8:9] offset:2048 NT
    global_load_dwordx4 v[24:27], v6, s[16:17] NT
    global_load_dwordx4 v[28:31], v6, s[16:17] offset:1024 NT
    """.replace("NT", NT)
    A(bl)
    if O('bfirst', 1): A(ld)
    A("s_load_dwordx2 %s, s[0:1], 96" % s(S_WS, 2))
    A(common)
    A("""
    v_mov_b32 v40, 0
    v_mov_b32 v41, 0
    v_mov_b32 v42, 0
    v_mov_b32 v43, 0
    v_and_b32 v12, 3, v1
    v_lshlrev_b32 v12, 4, v12
    v_add_u32 v12, %d, v12
    ds_write_b128 v12, v[40:43]
    s_waitcnt lgkmcnt(0)
    s_barrier
    """ % L_FLG)
    if not O('bfirst', 1): A(ld)
    A("s_branch L_B")
    ids = """
    s_lshr_b32 s55, s4, %d
    s_lshl_b32 s55, s55, %d
    s_and_b32 s60, s5, %d
    s_add_u32 s86, s55, s60
    s_and_b32 s55, s4, %d
    s_mul_i32 s55, s55, %d
    s_lshr_b32 s56, s5, %d
    s_add_u32 s87, s55, s56
    s_mul_i32 s88, s56, %d
    s_mul_i32 s60, s60, %d
    s_add_u32 s88, s88, s60
    s_and_b32 s88, s88, 15
    """ % (LRB, LRB, RBX - 1, RBX - 1, 32 // RBX, LRB, ROT, O('rot2', 16 // RBX))
    def haddr(hv, r2v, tmp):
        return """
        s_lshl_b32 s55, s86, 2
        s_add_u32 s55, s55, s3
        s_mul_i32 s55, s55, %d
        s_mul_i32 s56, s87, 2816
        s_add_u32 s55, s55, s56
        s_add_u32 s89, s55, %d
        s_add_u32 s90, s89, %d
        v_mov_b32 T0, %s
        v_cmp_eq_u32 vcc, 3, v4
        v_cndmask_b32 T1, v9, T0, vcc
        s_cmp_eq_u32 s87, 31
        s_cselect_b64 vcc, -1, 0
        v_cndmask_b32 %s, v9, T1, vcc
        v_cndmask_b32 %s, v9, T0, vcc
        v_cndmask_b32 %s, T1, T0, vcc
        v_lshrrev_b32 T1, 2, v2
        v_lshlrev_b32 %s, 4, v2
        v_cmp_eq_u32 vcc, T1, v4
        v_cndmask_b32 %s, T0, %s, vcc
        s_lshl_b32 s55, s86, 10
        s_lshl_b32 s56, s3, 8
        s_add_u32 s55, s55, s56
        s_add_u32 s55, s55, %d
        s_cmp_eq_u32 s87, 31
        s_cselect_b32 s91, s55, %s
        """.replace("T0", tmp[0]).replace("T1", tmp[1]) % (2 * HG, HH, HG, OOB, hv[0], hv[1], hv[2], r2v, r2v, r2v, R2, OOB)
    def xpose_addr(wr, rd, gv, base):
        return """
        v_and_b32 RD, 7, v2
        v_xor_b32 WR, v4, RD
        v_lshl_add_u32 WR, v2, 3, 0
        v_or_b32 WR, WR, v4
        v_xor_b32 WR, WR, RD
        v_lshlrev_b32 WR, 4, WR
        s_lshl_b32 s55, s3, 11
        s_add_u32 s55, s55, %d
        v_add_u32 WR, s55, WR
        v_lshrrev_b32 RD, 3, v1
        v_xor_b32 RD, RD, v1
        v_lshlrev_b32 RD, 4, RD
        v_add_u32 RD, s55, RD
        v_lshrrev_b32 GV, 2, v1
        v_lshlrev_b32 GV, 13, GV
        v_and_b32 v14, 3, v1
        v_lshl_add_u32 GV, v14, 4, GV
        """.replace("WR", wr).replace("RD", rd).replace("GV", gv) % base

    A.label("L_A")
    A(common); A(common2); A("s_waitcnt lgkmcnt(0)")
    A("s_movk_i32 s55, 0x1000\nv_cmp_gt_u32 s[20:21], s55, v5")
    A("""
    v_and_b32 v133, 7, v1
    v_lshrrev_b32 v134, 3, v1
    v_xor_b32 v132, v134, v133
    v_lshl_add_u32 v132, v133, 4, v132
    v_lshlrev_b32 v132, 4, v132
    s_lshl_b32 s55, s3, 11
    s_add_u32 s55, s55, %d
    v_add_u32 v132, s55, v132
    v_lshlrev_b32 v134, 13, v134
    v_lshl_add_u32 v134, v133, 4, v134
    v_xor_b32 v133, v1, v4
    v_lshlrev_b32 v133, 4, v133
    v_add_u32 v133, s55, v133
    v_xor_b32 v136, 64, v133
    """ % L_TA)
    HV = ["v176", "v177", "v178"]
    A("""
    s_lshl_b32 s55, s4, 18
    s_lshl_b32 s56, s5, 8
    s_add_u32 s55, s55, s56
    s_lshl_b32 s56, s98, 7
    s_add_u32 s55, s55, s56
    s_lshl_b32 s56, s99, 17
    s_add_u32 s55, s55, s56
    s_add_u32 s95, s55, %d
    s_add_u32 s97, s95, 0x10000
    """ % UP)
    if O('pw', 1):
        A("""
        s_lshl_b32 s55, s66, 7
        s_add_u32 s55, s55, %d
        s_cmp_lg_u32 s3, 0
        s_cselect_b32 s55, %s, s55
        v_mov_b32 v140, 0
        v_mov_b32 v141, 0
        v_mov_b32 v142, 0
        v_mov_b32 v143, 0
        s_mov_b64 exec, 0xff
        """ % (FU, OOB))
        VM("buffer_store_dwordx4 v[140:143], v9, %s, s55 offen %s" % (WS, WT), "pw")
        A("s_mov_b64 exec, -1")
    TSTAMP()
    vmwait("k")
    TSTAMP()
    for r in range(16, 22): A("v_cndmask_b32 %s, %s, 0, s[20:21]" % (v(r), v(r)))
    for c in range(4):
        for tap in range(4):
            src = 48 + 2 * c + (tap >> 1); dst = 64 + 4 * tap + c
            A(("v_lshlrev_b32 %s, 16, %s" if tap % 2 == 0 else "v_and_b32 %s, s65, %s") % (v(dst), v(src)))
    for i in range(7):
        for e in range(2):
            src = 16 + 2 * i + e; dst = 80 + 4 * i + 2 * e
            A("v_lshlrev_b32 %s, 16, %s\nv_and_b32 %s, s65, %s" % (v(dst), v(src), v(dst + 1), v(src)))
    for tap in range(4):
        for j in range(4):
            for e in range(2):
                d = v(144 + 4 * j + 2 * e, 2); kk = v(80 + 4 * (j + 3 - tap) + 2 * e, 2); ww = v(64 + 4 * tap + 2 * e, 2)
                if tap == 0: A("v_pk_mul_f32 %s, %s, %s" % (d, kk, ww))
                else: A("v_pk_fma_f32 %s, %s, %s, %s" % (d, kk, ww, d))
    vmwait("v")
    for j in range(4):
        for e in range(2):
            src = 30 + 2 * j + e; dst = 108 + 4 * j + 2 * e
            A("v_lshlrev_b32 %s, 16, %s\nv_and_b32 %s, s65, %s" % (v(dst), v(src), v(dst + 1), v(src)))
    for j in range(4):
        for e in range(2):
            d = 144 + 4 * j + 2 * e
            A("v_pk_mul_f32 %s, %s, %s" % (v(d, 2), v(d, 2), v(108 + 4 * j + 2 * e, 2)))
    for e in range(2):
        for j in range(4):
            d = 144 + 4 * j + 2 * e
            A("v_cvt_pk_bf16_f32 %s, %s, %s" % (v(124 + 4 * e + j), v(d), v(d + 1)))
        A("ds_write_b128 v132, %s offset:%d" % (v(124 + 4 * e, 4), 128 * e))
    A("ds_read_b128 v[16:19], v133\nds_read_b128 v[20:23], v136 offset:1024")
    A("s_waitcnt lgkmcnt(1)")
    A("buffer_store_dwordx4 v[16:19], v134, %s, s95 offen %s" % (WS, WT))
    A("s_waitcnt lgkmcnt(0)")
    A("buffer_store_dwordx4 v[20:23], v134, %s, s97 offen %s" % (WS, WT))
    TSTAMP()
    A("s_load_dword s84, %s, 0" % s(S_WS, 2))
    A(ids)
    A(haddr(HV, "v179", ("v12", "v13")))
    A("""
    s_lshl_b32 s67, s66, 13
    s_lshl_b32 s56, s3, 11
    s_add_u32 s67, s67, s56
    s_add_u32 s67, s67, %d
    s_sub_u32 s59, s67, 4
    s_lshl_b32 s62, s66, 7
    s_add_u32 s62, s62, FUADDR
    s_lshl_b32 s63, s4, 12
    s_add_u32 s63, s63, FUADDR
    s_lshl_b32 s56, s3, 3
    s_sub_u32 s56, s56, 1
    v_add_u32 v8, s56, v1
    v_max_i32 v8, 0, v8
    v_lshlrev_b32 v8, 7, v8
    v_mov_b32 v3, FLGADDR
    s_lshl_b32 s56, s3, 7
    v_xor_b32 v7, 1, v1
    v_add_u32 v7, s56, v7
    v_lshlrev_b32 v7, 3, v7
    v_add_u32 v7, %d, v7
    v_cmp_eq_u32 s[100:101], 0, v0
    s_mov_b32 s64, 0x05040100
    s_mov_b32 s71, 0x07060302
    v_and_b32 v180, 3, v2
    s_movk_i32 s55, %d
    v_mul_lo_u32 v180, v180, s55
    v_lshrrev_b32 v14, 2, v2
    v_lshl_add_u32 v180, v14, 7, v180
    v_lshl_add_u32 v180, v4, 4, v180
    s_mul_i32 s56, s98, %d
    s_lshl_b32 s57, s99, 8
    s_add_u32 s56, s56, s57
    s_add_u32 s56, s56, %d
    v_add_u32 v180, s56, v180
    v_and_b32 v181, 1, v2
    s_movk_i32 s55, %d
    v_mul_lo_u32 v181, v181, s55
    v_lshrrev_b32 v14, 1, v2
    v_lshl_add_u32 v181, v14, 4, v181
    v_lshlrev_b32 v14, 4, v4
    v_sub_u32 v181, v181, v14
    s_mul_i32 s56, s98, %d
    s_sub_u32 s56, s56, s57
    s_add_u32 s56, s56, %d
    v_add_u32 v181, s56, v181
    s_mul_i32 s56, s98, %d
    s_lshl_b32 s57, s99, 13
    s_add_u32 s56, s56, s57
    s_add_u32 s56, s56, %d
    v_add_u32 v182, s56, v9
    """.replace("FUADDR", str(FU)).replace("FLGADDR", str(L_FLG)) % (UP, L_U + 8 * 16, KC_STR, 4 * KC_STR, L_KC + 7 * 16,
           U_STR, 2 * U_STR, L_U + 20 * 16, L_REDB - L_REDA, L_REDA))
    A("s_waitcnt lgkmcnt(0)\ns_add_u32 s84, s84, 1\ns_or_b32 s84, s84, 0x80000000")
    A("v_mov_b32 v24, s84\nv_mov_b32 v25, s84\nv_mov_b32 v26, s84\nv_mov_b32 v27, s84\nv_mov_b32 v14, 1")
    A("""
    s_mov_b64 exec, 1
    s_waitcnt vmcnt(0)
    ds_add_rtn_u32 v14, v3, v14 offset:12
    s_waitcnt lgkmcnt(0)
    v_readfirstlane_b32 s55, v14
    s_mov_b64 exec, 0xff
    s_cmp_lg_u32 s55, 3
    s_cselect_b32 s62, %s, s62
    buffer_store_dwordx4 v[24:27], v9, %s, s62 offen %s
    s_mov_b64 exec, 0x1ff
    """ % (OOB, WS, WT)); vmq.clear()
    TSTAMP()
    if O('fudelay', 0): A("s_sleep %d" % O('fudelay', 0))
    fu_txt = "buffer_load_dword v14, v8, %s, s63 offen sc1" % WS
    fu_chk = "v_cmp_ne_u32 vcc, s84, v14"
    A(fu_txt + "\ns_waitcnt vmcnt(0)\n" + fu_chk)
    retry("up", fu_txt, fu_chk)
    A("s_mov_b64 exec, -1")
    TSTAMP()
    UL = "sc1" if O('upsc', 0) else ""
    A("""buffer_load_dwordx4 v[32:35], v9, WS, s67 offen UL
    buffer_load_dwordx4 v[40:43], v9, WS, s67 offen offset:1024 UL
    buffer_load_dword v36, v9, WS, s59 offen UL
    buffer_load_dword v44, v9, WS, s59 offen offset:1024 UL
    v_mov_b32 v14, 1
    s_mov_b64 exec, 1
    ds_add_u32 v3, v14 offset:24
    s_mov_b64 exec, -1
    s_waitcnt vmcnt(0)""".replace("WS", WS).replace("UL", UL))
    TSTAMP()
    A("v_cndmask_b32 v36, v36, 0, s[100:101]")
    for h in range(2):
        b = 32 + 8 * h
        W_ = lambda i: v(b + 4) if i < 0 else v(b + i)
        for c in range(2):
            for pi in range(2):
                o = 64 + 8 * h + 2 * (2 * c + pi)
                for jj in range(2):
                    lo = 2 + pi - 2 * jj; hi = lo - 1
                    A("v_perm_b32 %s, %s, %s, %s" % (v(o + jj), W_(hi), W_(lo), "s64" if c == 0 else "s71"))
                A("ds_write_b64 v7, %s offset:%d" % (v(o, 2), (2 * c + pi) * U_STR + 512 * h))
    A("v_mov_b32 v14, 1\ns_mov_b64 exec, 1\nds_add_u32 v3, v14 offset:40\ns_mov_b64 exec, -1\nds_read_b32 v12, v3 offset:40\ns_waitcnt lgkmcnt(0)\nv_cmp_ne_u32 vcc, 8, v12")
    retry("b4a", "ds_read_b32 v12, v3 offset:40", "v_cmp_ne_u32 vcc, 8, v12", wait="s_waitcnt lgkmcnt(0)")
    TSTAMP()
    BF = lambda buf, ct: v(16 + 32 * buf + 4 * ct, 4)
    ACC = lambda t: v(80 + 4 * t, 4)
    KF = lambda ph, g: a(32 * (ph & 1) + 4 * g, 4)
    bread = lambda ph, ct: "ds_read_b128 %s, v181 offset:%d" % (BF(ph & 1, ct), 512 * ct + 64 * (3 - ph))
    kread = lambda ph, g: "ds_read_b128 %s, v180 offset:%d" % (KF(ph, g), 512 * g + 64 * ph)
    for i in range(7): A(kread(0, i)); A(bread(0, i))
    p2pre = lines("""v_lshrrev_b32 v5, 2, v1
    v_mul_u32_u24 v5, 96, v5
    v_and_b32 v14, 3, v1
    v_lshl_add_u32 v5, v14, 3, v5
    v_add_u32 v6, %d, v5
    s_lshl_b32 s55, s3, 12
    v_add_u32 v7, s55, v9
    s_lshl_b32 s67, s86, 18
    s_add_u32 s67, s67, %d
    v_lshlrev_b32 v8, 4, v4
    v_add_u32 v8, %d, v8
    v_mov_b32 v3, %d
    v_lshlrev_b32 v10, 2, v2
    v_add_u32 v10, 0xc0, v10""" % (L_WU, HP, L_CS, L_FLG))
    touched = set(); issued = 14
    for ph in range(4):
        if ph in (0, 3): order = [(t - ct, ct) for t in range(8) for ct in range(t + 1)]
        else: order = [(g, ct) for ct in range(8) for g in range(8 - ct)]
        nxt = [x for i in range(8) for x in (kread(ph + 1, i), bread(ph + 1, i))] if ph < 3 else []
        for idx, (g, ct) in enumerate(order):
            t = g + ct
            if ph == 0 and ct == 0:
                need = 2 * (t + 1)
                if t < 7 or True: A("s_waitcnt lgkmcnt(%d)" % min(15, issued - need))
            if ph > 0 and idx == 0: A("s_waitcnt lgkmcnt(0)")
            if 36 * ph + idx == O('lpi', 40): A("v_mov_b32 v14, 1\nds_write_b32 v3, v14 offset:32")
            if ph == 3 and idx == 0: A("v_mov_b32 v14, 1\ns_mov_b64 exec, 1\nds_add_u32 v3, v14 offset:16\ns_mov_b64 exec, -1")
            A("%s %s, %s, %s, %s" % (MF, ACC(t), KF(ph, g), BF(ph & 1, ct), ACC(t) if t in touched else "0"))
            touched.add(t)
            if ph == 3 and idx == 6: A("ds_read_b32 v12, v3 offset:16")
            if ph == 3 and idx == 12: A("s_waitcnt lgkmcnt(0)\nv_cmp_ne_u32 vcc, 4, v12")
            if ph == 3 and idx == 14: retry("kc", "ds_read_b32 v12, v3 offset:16", "v_cmp_ne_u32 vcc, 4, v12", wait="s_waitcnt lgkmcnt(0)")
            if ph == 3 and idx in (15, 17, 19, 21): A("ds_write_b128 v182, %s offset:%d" % (ACC((idx - 15) // 2), 1024 * ((idx - 15) // 2)))
            if ph == 0 and idx == 1: A(kread(0, 7)); A(bread(0, 7)); issued += 2
            if idx >= 16 and nxt:
                A(nxt.pop(0))
                if ph == 0: issued += 1
            if ph == 1 and p2pre: A(p2pre.pop(0))
            if ph == 3 and idx in (23, 28): A("ds_write_b128 v182, %s offset:%d" % (ACC(4 if idx == 23 else 5), 1024 * (4 if idx == 23 else 5)))
        assert not nxt
    A("ds_write_b128 v182, %s offset:%d" % (ACC(6), 1024 * 6))
    A("ds_write_b128 v182, %s offset:%d" % (ACC(7), 1024 * 7))
    A("s_waitcnt lgkmcnt(0)")
    TSTAMP()
    A("s_barrier")
    TSTAMP()
    A("s_barrier")
    TSTAMP()
    XS = lambda st: 16 + 16 * (st & 3)
    AC = lambda arr, ft, tau: v(80 + 48 * arr + 16 * ft + 4 * tau, 4)
    WF = lambda st, arr, ft: 24 * (st & 1) + 12 * arr + 4 * ft
    def xaddr(st): return ["s_add_u32 s55, s88, %d" % st, "s_and_b32 s55, s55, 15", "s_lshl_b32 s55, s55, 14", "s_add_u32 s96, s55, s67"]
    def xlds(st): return ["buffer_load_dwordx4 %s, v7, %s, s96 offen offset:%d sc1" % (v(XS(st) + 4 * j, 4), WS, 1024 * j) for j in range(4)]
    def xload_txt(st): return "\n".join(xaddr(st) + xlds(st)).replace("s96", "s97")
    def xload(st):
        A("\n".join(xaddr(st) + xlds(st))); vmq.extend(["x%d" % st] * 4)
    def xchk(st):
        b = XS(st)
        return ["v_max3_u32 v11, %s, %s, %s" % (v(b), v(b + 4), v(b + 8)), "v_max_u32 v11, v11, %s" % v(b + 12), "v_cmp_eq_u32 vcc, -1, v11"]
    def wreads(st):
        return ["ds_read_b64_tr_b16 %s, %s offset:%d" % (a(WF(st, arr, ft) + 2 * h, 2), "v6" if arr else "v5", st * 3072 + h * 1536 + ft * 32)
                for arr in range(2) for ft in range(3) for h in range(2)]
    def swaps(st):
        b = XS(st)
        return ["v_swap_b32 %s, %s" % (v(b + 4 * j + t), v(b + 4 * t + j)) for j in range(4) for t in range(j + 1, 4)]
    if O('xdelay', 0): A("s_sleep %d" % O('xdelay', 0))
    if O('x3', 0):
        xload(0); xload(1); xload(2)
        for r in wreads(0): A(r)
        vmwait("x0")
        for r in xchk(0): A(r)
        retry("xP", "\n".join(xload_txt(i) for i in range(3)), "\n".join(xchk(0)), wait="s_waitcnt vmcnt(8)")
        TSTAMP()
    else:
        xload(0)
        for r in wreads(0): A(r)
        vmwait("x0")
        for r in xchk(0): A(r)
        if O('xr3', 0):
            A("s_cbranch_vccnz L_rxP")
            xload(1); xload(2)
            A.label("L_oxP")
            stubs.append("L_rxP:\n%s\ns_waitcnt vmcnt(8)\n%s\ns_cbranch_vccz L_oxP\ns_sub_u32 s85, s85, 1\ns_cbranch_scc0 L_rxP\ns_mov_b32 s85, 0\ns_branch L_oxP"
                         % ("\n".join(xload_txt(i) for i in range(3)), "\n".join(xchk(0))))
            TSTAMP()
        else:
            retry("xP", xload_txt(0), "\n".join(xchk(0)))
            TSTAMP()
            xload(1); xload(2)
    for r in swaps(0): A(r)
    if O('aprio', 2): A("s_setprio %d" % O('aprio', 2))
    A("s_cmp_eq_u32 s87, 31\ns_cbranch_scc1 L_p2alt")
    def flagrd(k): return "ds_read_b32 v12, v3 offset:%d" % (4 * k)
    flagchk = "v_cmp_ne_u32 vcc, 4, v12"
    def p2loop(alt):
        for st in range(16):
            ml = []
            for arr in range(2):
                for ft in range(3):
                    for tau in range(4):
                        xf = v(XS(st) + 4 * tau, 4)
                        wf = a(WF(st, arr, ft), 4)
                        if alt and arr == 1 and ft == 2: wf = xf
                        ml.append("%s %s, %s, %s, %s" % (MF, AC(arr, ft, tau), wf, xf, AC(arr, ft, tau) if st else "0"))
            wr = wreads(st + 1) if st < 15 else ["ds_read_b128 %s, v8 offset:%d" % (v(40 + 4 * t, 4), 64 * t) for t in range(6)]
            if st in (8, 14): wr = wr + [flagrd(0 if st == 8 else 1)]
            sw = swaps(st + 1) if st < 15 else []
            ck = xchk(st + 1) if st < 15 else []
            xa = xaddr(st + 3) if st + 3 < 16 else []
            xl = xlds(st + 3) if st + 3 < 16 else []
            tg = "b" if alt else "a"
            if O('fine2', 0) and st > 0:
                if alt and st == 1: nst[0] -= 15
                TSTAMP()
            A("s_waitcnt lgkmcnt(0)")
            for i, m in enumerate(ml):
                if i == 0 and st in (9, 15): A(flagchk)
                A(m)
                if i == 1 and st in (9, 15): retry("f%s%d" % (tg, st), flagrd(0 if st == 9 else 1), flagchk, wait="s_waitcnt lgkmcnt(0)")
                if i < 2 and xa: A(xa.pop(0)); A(xa.pop(0))
                if i >= (2 if st in (9, 15) else O('wr0', 2)) and wr:
                    A(wr.pop(0))
                    if O('wr2', 0) and i % 2 == 1 and wr: A(wr.pop(0))
                if i in (2, 4, 6, 8) and xl: VM(xl.pop(0).replace(" sc1", "" if O('xplain', 0) else " sc1"), "x%d" % (st + 3))
                if st <= 12 and i == O('pgi', 15) - 6: A("v_mov_b32 v13, %d" % (st + 1))
                if st <= 12 and i == O('pgi', 15): A("ds_write_b32 v3, v13 offset:36")
                if i == 12 and sw: vmwait("x%d" % (st + 1))
                if i >= 12 and ck:
                    x = ck.pop(0)
                    if not O('nochk', 0): A(x)
                if i == 16 and sw and not O('nochk', 0): retry("x%s%d" % (tg, st + 1), xload_txt(st + 1), "\n".join(xchk(st + 1)))
                if i >= 16 and sw:
                    x = sw.pop(0)
                    if not O('nosw', 0): A(x)
            assert not wr and not sw and not xl
    sv = list(vmq)
    p2loop(False)
    A("s_branch L_p2join")
    A.label("L_p2alt")
    vmq[:] = sv
    p2loop(True)
    A.label("L_p2join")
    TSTAMP()
    A("s_nop 3")
    for tau in range(4):
        A("ds_bpermute_b32 %s, v10, %s" % (v(64 + 2 * tau), v(80 + 32 + 4 * tau)))
    A("s_mov_b32 s57, 0xbb000000\ns_waitcnt lgkmcnt(0)")
    for tau in range(4): A("v_mul_f32 %s, s57, %s" % (v(64 + 2 * tau), v(64 + 2 * tau)))
    A("s_cmp_lg_u32 s87, 31\ns_cbranch_scc1 L_novar")
    A("v_and_b32 v10, 3, v2")
    for tau in range(4): A("v_mov_b32 %s, %s" % (v(72 + tau), v(80 + 48 + 32 + 4 * tau)))
    for j in range(1, 4):
        A("v_cmp_eq_u32 vcc, %d, v10" % j)
        for tau in range(4):
            A("v_cndmask_b32 %s, %s, %s, vcc" % (v(72 + tau), v(72 + tau), v(80 + 48 + 32 + 4 * tau + j)))
    A("s_mov_b32 s56, 0x3b000000\ns_mov_b32 s57, 0x3727c5ac")
    for tau in range(4): A("v_mul_f32 %s, s56, %s" % (v(72 + tau), v(72 + tau)))
    for tau in range(4): A("v_fma_f32 %s, -%s, %s, %s" % (v(72 + tau), v(64 + 2 * tau), v(64 + 2 * tau), v(72 + tau)))
    for tau in range(4): A("v_max_f32 %s, 0, %s" % (v(72 + tau), v(72 + tau)))
    for tau in range(4): A("v_add_f32 %s, s57, %s" % (v(72 + tau), v(72 + tau)))
    for tau in range(4): A("v_rcp_f32 %s, %s" % (v(72 + tau), v(72 + tau)))
    A("s_nop 0\nbuffer_store_dwordx4 v[72:75], v179, %s, s91 offen %s" % (WS, WT))
    A.label("L_novar")
    for ft in range(3):
        for g in range(2):
            o = 16 + 8 * ft + 4 * g
            for e in range(2):
                tau = 2 * g + e
                gb = 80 + 16 * ft + 4 * tau; ub = gb + 48
                M = v(64 + 2 * tau, 2)
                for j in (0, 2):
                    A("v_pk_fma_f32 %s, %s, %s, %s op_sel_hi:[1,0,1]" % (v(gb + j, 2), v(40 + 4 * ft + j, 2), M, v(gb + j, 2)))
                    A("v_pk_fma_f32 %s, %s, %s, %s op_sel_hi:[1,0,1]" % (v(ub + j, 2), v(52 + 4 * ft + j, 2), M, v(ub + j, 2)))
                for j in range(4): A("v_max_f32 %s, 0, %s" % (v(gb + j), v(gb + j)))
                for j in (0, 2): A("v_pk_mul_f32 %s, %s, %s" % (v(gb + j, 2), v(gb + j, 2), v(ub + j, 2)))
                for j in (0, 2): A("v_cvt_pk_bf16_f32 %s, %s, %s" % (v(o + 2 * e + j // 2), v(gb + j), v(gb + j + 1)))
            A("buffer_store_dwordx4 %s, %s, %s, %s offen offset:%d %s" % (v(o, 4), HV[ft], WS, "s90" if g else "s89", 1024 * ft, WT))
    TSTAMP()
    A("s_barrier")
    if O('spinto', 0) and O('spinrole', 1) == 0: A("s_barrier")
    spin(0)
    dump(TS)
    A("s_endpgm")

    A.label("L_B")
    vmq.clear(); nst[0] = 1; vmq.extend(["stat", "stat", "ssm", "ssm"])
    if O('bprio', 1): A("s_setprio %d" % O('bprio', 1))
    A("s_load_dword s84, %s, 0\ns_lshl_b32 s56, s66, 2\ns_load_dword %s, s[18:19], s56" % (s(S_WS, 2), s(sD)))
    for reg, off in ((S_WD, 72), (S_WG, 56), (S_WU, 64), (S_OUT, 80)):
        A("s_load_dwordx2 %s, s[0:1], %d" % (s(reg, 2), off))
    A(common2)
    for reg, nb in ((S_WD, 1376 * 1024), (S_OUT, 2097152), (S_T, 512 * 2752)):
        A("s_mov_b32 %s, %d\ns_mov_b32 %s, 0x20000" % (s(reg + 2), nb, s(reg + 3)))
    A("""
    s_lshr_b32 s55, s66, 4
    s_lshl_b32 s72, s55, 14
    s_and_b32 s55, s66, 3
    s_lshl_b32 s55, s55, 10
    s_add_u32 s72, s72, s55
    s_bfe_u32 s55, s66, 0x20002
    s_lshl_b32 s55, s55, 8
    s_add_u32 s72, s72, s55
    s_lshl_b32 s55, s3, 19
    s_add_u32 s72, s72, s55
    s_add_u32 s72, s72, %d
    s_add_u32 s73, s72, 0x40000
    v_lshlrev_b32 v63, 4, v2
    v_lshl_add_u32 v63, v4, 12, v63
    v_mov_b32 v64, -1
    v_mov_b32 v65, -1
    v_mov_b32 v66, -1
    v_mov_b32 v67, -1
    """ % HP)
    def hpfill():
        VM("buffer_store_dwordx4 v[64:67], v63, %s, s72 offen %s" % (WS, WT), "fill")
        VM("buffer_store_dwordx4 v[64:67], v63, %s, s73 offen %s" % (WS, WT), "fill")
    hpfill()
    if O('pw', 1):
        A("""
        v_and_b32 v13, 7, v1
        v_lshrrev_b32 v12, 3, v1
        v_mul_u32_u24 v12, %d, v12
        v_lshl_add_u32 v12, v13, 4, v12
        s_lshl_b32 s55, s2, 7
        s_add_u32 s55, s55, %d
        s_cmp_lg_u32 s3, 0
        s_cselect_b32 s55, %s, s55
        """ % (STR, ST, OOB))
        VM("buffer_store_dwordx4 v[40:43], v12, %s, s55 offen %s" % (WS, WT), "pw")
    A(ids)
    A("""
    v_and_b32 v6, 7, v1
    v_xor_b32 v5, s98, v6
    v_lshlrev_b32 v5, 4, v5
    v_lshl_add_u32 v5, v1, 7, v5
    s_lshl_b32 s55, s99, 3
    s_add_u32 s55, s55, %d
    v_add_u32 v5, s55, v5
    v_lshrrev_b32 v7, 3, v1
    s_mov_b32 s55, %d
    v_mul_lo_u32 v8, v7, s55
    v_lshl_add_u32 v8, v6, 4, v8
    v_xor_b32 v6, v6, v7
    v_lshlrev_b32 v6, 4, v6
    v_lshl_add_u32 v6, v7, 7, v6
    s_lshl_b32 s55, s3, 11
    s_add_u32 s55, s55, %d
    v_add_u32 v6, s55, v6
    v_xor_b32 v16, 32, v5
    v_xor_b32 v17, 64, v5
    v_xor_b32 v18, 0x60, v5
    """ % (L_TB, QSTR, L_TB))
    A("""
    s_mul_i32 s55, s3, %d
    s_add_u32 s55, s55, %d
    v_and_b32 v12, 7, v1
    v_lshl_add_u32 v12, v12, 4, s55
    ds_write_b128 v12, v[40:43]
    s_cmp_lg_u32 s99, 0
    s_cbranch_scc1 L_nohead
    v_and_b32 v12, 31, v1
    v_lshlrev_b32 v12, 4, v12
    v_lshrrev_b32 v13, 5, v1
    s_movk_i32 s56, %d
    v_mad_u32_u24 v12, v13, s56, v12
    s_mul_i32 s55, s98, %d
    s_add_u32 s55, s55, %d
    v_add_u32 v12, s55, v12
    ds_write_b128 v12, v[40:43]
    ds_write_b128 v12, v[40:43] offset:%d
    L_nohead:
    """ % (U_STR, L_U, KC_STR, 4 * KC_STR, L_KC, 2 * KC_STR))
    A("""
    s_mul_i32 s55, s3, %d
    s_lshl_b32 s56, s2, 7
    s_add_u32 s55, s55, s56
    s_add_u32 s95, s55, %d
    s_add_u32 s97, s95, %d
    s_movk_i32 s55, 0x2aab
    s_movk_i32 s56, 2752
    """ % (16 * QSTR, QP, 8 * QSTR))
    for i3 in range(3):
        A("""
        v_add_u32 v14, %d, v1
        v_mul_u32_u24 v3, s55, v14
        v_lshrrev_b32 v3, 16, v3
        v_mul_u32_u24 v13, 6, v3
        v_sub_u32 v14, v14, v13
        v_bfe_u32 v13, v3, 2, 2
        v_lshlrev_b32 v13, 3, v13
        v_lshrrev_b32 v12, 4, v3
        v_lshl_add_u32 v13, v12, 2, v13
        v_and_b32 v3, 3, v3
        v_add_u32 v13, v13, v3
        v_mul_u32_u24 v13, s56, v13
        v_lshl_add_u32 %s, v14, 4, v13
        """ % (64 * i3, v(60 + i3)))
    A("""
    s_waitcnt lgkmcnt(0)
    s_bitcmp1_b32 s3, 0
    s_cselect_b32 s48, s32, s28
    s_cselect_b32 s49, s33, s29
    s_add_u32 s69, s88, s98
    s_mul_i32 s70, s87, 88
    s_mul_i32 s76, s99, %d
    s_mul_i32 s56, s98, 3072
    s_add_u32 s76, s76, s56
    s_mul_i32 s56, s98, %d
    s_lshl_b32 s57, s99, 11
    s_add_u32 s56, s56, s57
    s_add_u32 s56, s56, %d
    v_add_u32 v44, s56, v9
    v_add_u32 v45, %d, v44
    v_add_u32 v46, %d, v44
    v_add_u32 v47, %d, v44
    v_mov_b32 v3, FLGA
    """.replace("FLGA", str(L_FLG)) % (L_WU, 4 * KC_STR, L_KC + 512 - 4, KC_STR - 4, 2 * KC_STR - 8, 3 * KC_STR - 12))
    ndma = [0]
    def w1dma(n):
        for _ in range(n):
            i = ndma[0]; ndma[0] += 1
            gi, i3 = divmod(i, 3)
            if i3 == 0: A("s_and_b32 s77, s69, 15\ns_mul_i32 s77, s77, 88064\ns_add_u32 s77, s77, s70\ns_add_u32 s69, s69, 2")
            A("s_add_u32 m0, s76, %d" % (gi * 6144 + i3 * 1024))
            VM("buffer_load_dwordx4 %s, %s, s77 offen %s lds" % (v(60 + i3), srd(S_T), "nt" if i < O('w1nt', 0) else ""), "dma")
    span = 88 * (32 // RBX)
    ntouch = ((span + 8 + 127 + 127) // 128 + 7) // 8
    def w1touch(pos):
        if O('w1tp', 9) != pos: return 0
        A("""
        v_lshrrev_b32 v12, 3, v1
        s_movk_i32 s55, 2752
        v_mul_lo_u32 v12, v12, s55
        v_and_b32 v13, 7, v1
        v_lshlrev_b32 v13, 7, v13
        s_lshl_b32 s55, s5, 1
        s_add_u32 s55, s55, s98
        s_mul_i32 s55, s55, 22016
        s_and_b32 s56, s4, %d
        s_mul_i32 s56, s56, %d
        s_add_u32 s55, s55, s56
        """ % (RBX - 1, span))
        for i in range(ntouch):
            A("v_add_u32 v14, %d, v13\nv_min_u32 v14, %d, v14\nv_add_u32 v14, v14, v12" % (1024 * i, span + 4))
            VM("buffer_load_dword v11, v14, %s, s55 offen %s" % (srd(S_T), "nt" if O('tnt', 0) else ""), "tch")
        return ntouch
    def hfill(pos):
        if O('hfp', 0) != pos: return
        A(haddr(["v68", "v69", "v70"], "v71", ("v12", "v13")))
        for ft in range(3):
            for g in range(2):
                VM("buffer_store_dwordx4 v[64:67], %s, %s, %s offen offset:%d %s" % (v(68 + ft), WS, "s90" if g else "s89", 1024 * ft, WT), "fill")
        VM("buffer_store_dwordx4 v[64:67], v71, %s, s91 offen %s" % (WS, WT), "fill")
        A("v_mov_b32 v13, 1")
    def w1mall(pos):
        if O('w1m', 0) != pos: return 0
        A("s_lshl_b32 s55, s2, 1\ns_add_u32 s55, s55, s98\ns_mul_i32 s55, s55, 2752\nv_lshlrev_b32 v12, 7, v1\ns_mov_b64 exec, 0x3fffff")
        VM("buffer_load_dword v11, v12, %s, s55 offen" % srd(S_T), "tch")
        A("s_mov_b64 exec, -1")
        return 1
    def wdtouch(pos):
        if O('wdtp', 1) != pos: return
        if O('wdtm', 1) == 1:
            A("s_lshl_b32 s55, s2, 2\ns_add_u32 s55, s55, s3\ns_mul_i32 s55, s55, 1408\nv_lshlrev_b32 v12, 7, v1\ns_mov_b64 exec, 0x7ff")
            VM("buffer_load_dword %s, v12, %s, s55 offen" % ("v63" if pos == 4 else "v11", srd(S_WD)), "tch")
            A("s_mov_b64 exec, -1")
        else:
            A("s_lshl_b32 s55, s5, 2\ns_add_u32 s55, s55, s3\ns_mul_i32 s55, s55, 11008\nv_lshlrev_b32 v12, 7, v1")
            VM("buffer_load_dword v11, v12, %s, s55 offen" % srd(S_WD), "tch")
            A("s_add_u32 s55, s55, 8192\ns_mov_b64 exec, 0x3fffff")
            VM("buffer_load_dword v11, v12, %s, s55 offen" % srd(S_WD), "tch")
            A("s_mov_b64 exec, -1")
    TSTAMP()
    w1mall(0); wdtouch(5)
    w1dma(O('nw1a', 0))
    A("v_mov_b32 v21, 0x3f803f80")
    vmwait("stat")
    TSTAMP()
    w1touch(1)
    for i in range(4): A("ds_write2_b32 %s, %s, %s offset0:0 offset1:1" % (("v5", "v16", "v17", "v18")[i], v(32 + i), v(36 + i)))
    A("v_mov_b32 v14, 1\ns_waitcnt lgkmcnt(0)\ns_mov_b64 exec, 1\nds_add_u32 v3, v14 offset:20\ns_mov_b64 exec, -1\ns_add_u32 s84, s84, 1\ns_or_b32 s84, s84, 0x80000000")
    for i in range(4):
        for e in range(2):
            A("v_dot2c_f32_bf16 %s, %s, v21" % (v(42 + e), v(32 + 4 * e + i)))
            A("v_dot2c_f32_bf16 %s, %s, %s" % (v(40 + e), v(32 + 4 * e + i), v(32 + 4 * e + i)))
    for m in ("row_shr:1", "row_shr:2", "row_shr:4", "row_shr:8", "row_bcast:15 row_mask:0xa", "row_bcast:31 row_mask:0xc"):
        for r in range(40, 44):
            A("v_add_f32_dpp %s, %s, %s %s" % (v(r), v(r), v(r), m))
    A("s_mov_b32 s56, 0x3b000000\ns_mov_b32 s57, 0x3727c5ac")
    for r in range(40, 44): A("v_mul_f32 %s, s56, %s" % (v(r), v(r)))
    for e in range(2): A("v_fma_f32 %s, -%s, %s, %s" % (v(40 + e), v(42 + e), v(42 + e), v(40 + e)))
    for e in range(2): A("v_max_f32 %s, 0, %s" % (v(40 + e), v(40 + e)))
    for e in range(2): A("v_add_f32 %s, s57, %s" % (v(40 + e), v(40 + e)))
    for e in range(2): A("v_rsq_f32 %s, %s" % (v(40 + e), v(40 + e)))
    for e in range(2): A("v_mul_f32_e64 %s, -%s, %s" % (v(42 + e), v(42 + e), v(40 + e)))
    A("v_mov_b32 v19, v6\nv_mov_b32 v20, v8")
    qw_txt = "ds_read2_b32 v[12:13], v3 offset0:%d offset1:5" % O('qwait', 5)
    qw_chk = "v_add_u32 v12, v12, v13\nv_cmp_ne_u32 vcc, 8, v12"
    A(qw_txt + "\ns_waitcnt lgkmcnt(0)\n" + qw_chk)
    retry("qw", "s_sleep 1\n" + qw_txt, qw_chk, wait="s_waitcnt lgkmcnt(0)")
    TSTAMP()
    A("ds_read_b128 v[48:51], v19\nds_read_b128 v[52:55], v19 offset:1024\ns_waitcnt lgkmcnt(1)")
    A("buffer_store_dwordx4 v[48:51], v20, %s, s95 offen %s\ns_waitcnt lgkmcnt(0)" % (WS, WT))
    A("buffer_store_dwordx4 v[52:55], v20, %s, s97 offen %s" % (WS, WT))
    vmq.extend(["st"] * 2)
    w1dma(O('nw1b', 0)); nyoung = O('nw1b', 0) + w1mall(1)
    vmwait("ssm")
    for i in range(2):
        b = 24 + 4 * i
        if i == 1: A("v_add_u32 v44, 0x400, v44\nv_add_u32 v46, 0x400, v46")
        for ad in ("v44", "v46"):
            A("ds_write2_b32 %s, %s, %s offset0:0 offset1:1" % (ad, v(b), v(b + 1)))
            A("ds_write2_b32 %s, %s, %s offset0:2 offset1:3" % (ad, v(b + 2), v(b + 3)))
        A("ds_write2_b64 v45, %s, %s offset0:%d offset1:%d" % (v(b, 2), v(b + 2, 2), 128 * i, 128 * i + 1))
        A("ds_write_b128 v47, %s offset:%d" % (v(b, 4), 1024 * i))
    A("v_mov_b32 v14, 1\ns_mov_b64 exec, 1\nds_add_u32 v3, v14 offset:40\ns_mov_b64 exec, -1")
    A("""
    s_lshl_b32 s55, s3, 4
    s_add_u32 s55, s55, %d
    v_mov_b32 v12, s55
    v_mov_b32 v13, %d
    v_mov_b32 v14, 1
    s_mov_b32 exec_lo, 0
    s_mov_b32 exec_hi, 0x80000000
    ds_write_b128 v12, v[40:43]
    s_waitcnt vmcnt(NYOUNG) lgkmcnt(0)
    ds_add_rtn_u32 v14, v13, v14 offset:8
    s_waitcnt lgkmcnt(0)
    v_readfirstlane_b32 s55, v14
    s_mov_b64 exec, -1
    s_cmp_lg_u32 s55, 3
    s_cbranch_scc1 L_nost
    v_and_b32 v12, 3, v1
    v_lshlrev_b32 v12, 4, v12
    ds_read_b128 v[40:43], v12 offset:%%d
    v_and_b32 v13, 7, v1
    v_cmp_lt_u32 vcc, 3, v13
    v_mov_b32 v14, s84
    v_cndmask_b32 v14, 0, v14, vcc
    v_lshrrev_b32 v12, 3, v1
    v_mul_u32_u24 v12, STRIDE, v12
    v_lshl_add_u32 v12, v13, 4, v12
    s_lshl_b32 s55, s2, 7
    s_add_u32 s55, s55, %d
    s_waitcnt lgkmcnt(0)
    v_xor_b32 v40, v14, v40
    v_xor_b32 v41, v14, v41
    v_xor_b32 v42, v14, v42
    v_xor_b32 v43, v14, v43
    s_mov_b64 exec, STEX
    buffer_store_dwordx4 v[40:43], v12, WS, s55 offen WT
    s_mov_b64 exec, -1
    L_nost:
    """.replace("STRIDE", str(STR)).replace("STEX", "-1" if O('strep', 1) else "0xff").replace("WS", WS).replace("WT", WT).replace("NYOUNG", str(nyoung)).replace("v_lshlrev_b32 v12, 4, v12\n    ds_read_b128 v[40:43], v12 offset:%%d", "v_lshlrev_b32 v12, 4, v12\n    v_add_u32 v12, STL, v12\n    ds_read_b128 v[40:43], v12").replace("STL", str(L_FLG + 64)) % (L_FLG + 64, L_FLG, ST)); vmq.clear()
    TSTAMP()
    w1mall(2); wdtouch(6)
    w1dma(O('nw1c', 0))
    A("""
    s_and_b32 s55, s54, 0xffff
    s_lshr_b32 s56, s54, 16
    v_mov_b32 v13, s55
    v_mov_b32 v14, s56
    v_lshl_add_u32 v12, v4, 2, 3
    v_sub_u32 v12, v12, v2
    """)
    for jj in range(4):
        A("v_cmp_eq_u32 vcc, %d, v12\nv_cndmask_b32 %s, 0, v13, vcc\nv_cndmask_b32 %s, 0, v14, vcc" % (jj, v(72 + jj), v(76 + jj)))
    A("""
    v_and_b32 v5, 1, v2
    s_movk_i32 s55, %d
    v_mul_lo_u32 v5, v5, s55
    v_lshrrev_b32 v14, 1, v2
    v_lshl_add_u32 v5, v14, 4, v5
    v_lshl_add_u32 v5, v4, 7, v5
    s_lshl_b32 s56, s3, 10
    s_add_u32 s56, s56, %d
    v_add_u32 v5, s56, v5
    s_lshl_b32 s56, s3, 11
    s_add_u32 s57, s56, %d
    v_add_u32 v6, s57, v9
    v_add_u32 v7, %d, v6
    s_lshr_b32 s68, s66, 2
    s_mul_i32 s68, s68, %d
    s_and_b32 s57, s66, 3
    s_lshl_b32 s57, s57, 5
    s_add_u32 s68, s68, s57
    s_lshl_b32 s58, s3, 13
    s_add_u32 s68, s68, s58
    s_add_u32 s68, s68, %d
    s_add_u32 s60, s68, 0x1000
    s_add_u32 s58, s58, %d
    s_mul_i32 s57, s4, STRX
    s_add_u32 s58, s58, s57
    s_add_u32 s59, s58, 0x1000
    v_lshrrev_b32 v8, 1, v1
    v_lshlrev_b32 v8, 7, v8
    v_and_b32 v14, 1, v1
    v_lshl_add_u32 v10, v14, 4, v8
    v_lshl_add_u32 v8, v14, 5, v8
    s_mul_i32 s61, s99, 49152
    s_lshl_b32 s57, s98, 13
    s_add_u32 s61, s61, s57
    s_add_u32 s61, s61, 0x8000
    v_lshlrev_b32 v14, 3, v1
    v_and_b32 v14, 0x70, v14
    v_xor_b32 v8, v8, v14
    v_add_u32 v8, s61, v8
    v_xor_b32 v57, 16, v8
    v_xor_b32 v58, 64, v8
    v_xor_b32 v59, 0x50, v8
    v_lshlrev_b32 v14, 1, v1
    v_and_b32 v14, 0x70, v14
    v_xor_b32 v56, v9, v14
    """.replace("STRX", str(STR if O('strep', 1) else 0)) % (U_STR, L_U + 8 * 16, L_REDA, L_REDB - L_REDA, QSTR, QP, ST))
    if O('nw1e', 6) or O('wdtp', 1) == 1:
        A("ds_read_b32 v12, v3 offset:24\ns_waitcnt lgkmcnt(0)\nv_cmp_ne_u32 vcc, 4, v12")
        retry("uw", "s_sleep 1\nds_read_b32 v12, v3 offset:24", "v_cmp_ne_u32 vcc, 4, v12", wait="s_waitcnt lgkmcnt(0)")
    st_dma = "s_mov_b32 m0, s61\n" + "\n".join("buffer_load_dwordx4 v56, %s, s58 offen offset:%d sc1 lds" % (WS, 1024 * i) for i in range(4)) + \
             "\ns_add_u32 m0, s61, 0x1000\n" + "\n".join("buffer_load_dwordx4 v56, %s, s59 offen offset:%d sc1 lds" % (WS, 1024 * i) for i in range(4))
    st_rd = "\n".join("ds_read_b128 %s, %s offset:%d" % (v(16 * (1 + cp) + 8 * e + 4 * h, 4), ("v8", "v57", "v58", "v59")[h + 2 * cp], 4096 * e)
                       for e in range(2) for h in range(2) for cp in range(2))
    st_chk = "\n".join(["v_bitop3_b32 %s, %s, %s, s84 bitop3:0x96" % (v(32 + i), v(32 + i), v(16 + i)) for i in range(16)] +
                       ["v_or3_b32 %s, %s, %s, %s" % (v(32 + i), v(32 + i), v(33 + i), v(34 + i)) for i in (0, 3, 6, 9, 12)] +
                       ["v_or3_b32 v32, v32, v35, v38", "v_or3_b32 v41, v41, v44, v47", "v_or_b32 v32, v32, v41", "v_cmp_ne_u32 vcc, 0, v32"])
    if O('stf', 0):
        A("ds_read_b32 v12, v3 offset:8\ns_waitcnt lgkmcnt(0)\nv_cmp_ne_u32 vcc, 4, v12")
        retry("s8", "ds_read_b32 v12, v3 offset:8", "v_cmp_ne_u32 vcc, 4, v12", wait="s_waitcnt lgkmcnt(0)")
        A(st_dma); vmq.extend(["stp"] * 8)
    w1dma(min(O('nw1e', 6), 15 - ndma[0]))
    wdtouch(1)
    A("ds_read_b32 v12, v3 offset:40\ns_waitcnt lgkmcnt(0)\nv_cmp_ne_u32 vcc, 8, v12")
    retry("b4b", "s_sleep 1\nds_read_b32 v12, v3 offset:40", "v_cmp_ne_u32 vcc, 8, v12", wait="s_waitcnt lgkmcnt(0)")
    TSTAMP()
    for e in range(2):
        for c in range(2):
            A("ds_read_b128 %s, v5 offset:%d" % (v(80 + 8 * e + 4 * c, 4), 2 * c * U_STR + 512 * e))
    hfill(1)
    w1dma(O('nw1d', 0))
    A("s_waitcnt lgkmcnt(0)")
    for e in range(2):
        for c in range(2):
            A("%s %s, %s, %s, 0" % (MF, v(96 + 8 * e + 4 * c, 4), v(72 + 4 * c, 4), v(80 + 8 * e + 4 * c, 4)))
    w1dma(O('nw1f', 0))
    if O('lpw', 1) and not O('stf', 0):
        A("ds_read_b32 v12, v3 offset:32\ns_waitcnt lgkmcnt(0)\nv_cmp_eq_u32 vcc, 0, v12")
        retry("lw", "s_sleep 1\nds_read_b32 v12, v3 offset:32", "v_cmp_eq_u32 vcc, 0, v12", wait="s_waitcnt lgkmcnt(0)")
    if not O('stf', 0): A(st_dma); vmq.extend(["stp"] * 8)
    w1dma(min(O('nw1i', 3), 15 - ndma[0]))
    vmwait("stp")
    A(st_rd + "\ns_waitcnt lgkmcnt(0)\n" + st_chk)
    retry("st", "s_sleep %d\n" % O('stsl', 4) + st_dma + "\ns_waitcnt vmcnt(0)\n" + st_rd, st_chk, wait="s_waitcnt lgkmcnt(0)")
    TSTAMP()
    VM("buffer_load_dwordx4 v[48:51], v10, %s, s68 offen sc1" % WS, "qp")
    VM("buffer_load_dwordx4 v[52:55], v10, %s, s60 offen sc1" % WS, "qp")
    wdtouch(2)
    hfill(2)
    w1dma(min(O('nw1g', 6), 15 - ndma[0]))
    if O('nw1z', 0):
        A("v_mov_b32 v14, 1\ns_mov_b64 exec, 1\nds_add_u32 v3, v14 offset:44\ns_mov_b64 exec, -1\nds_read_b32 v12, v3 offset:44\ns_waitcnt lgkmcnt(0)\nv_cmp_ne_u32 vcc, 4, v12")
        retry("sv", "ds_read_b32 v12, v3 offset:44", "v_cmp_ne_u32 vcc, 4, v12", wait="s_waitcnt lgkmcnt(0)")
        w1dma(min(O('nw1z', 0), 24 - ndma[0]))
    vmwait("qp")
    TSTAMP()
    for e in range(2):
        for j in range(4):
            A("v_lshlrev_b32 %s, 16, %s" % (v(112 + 8 * e + j), v(48 + 4 * e + j)))
            A("v_and_b32 %s, s65, %s" % (v(116 + 8 * e + j), v(48 + 4 * e + j)))
    for e in range(2):
        for c in range(2):
            for j in (0, 2):
                A("v_pk_fma_f32 %s, %s, %s, %s" % (v(128 + 8 * e + 4 * c + j, 2), v(112 + 8 * e + 4 * c + j, 2), v(16 + 8 * e + 2 * j, 2), v(18 + 8 * e + 2 * j, 2)))
    w1dma(O('nw1h', 0))
    TSTAMP()
    A("s_barrier")
    TSTAMP()
    for e in range(2):
        for src in range(4):
            A("ds_read_b128 %s, %s offset:%d" % (v(16 + 16 * e + 4 * src, 4), "v7" if src >= 2 else "v6", 8192 * (src & 1) + 1024 * e))
    for e in range(2):
        for c in range(2):
            A("s_waitcnt lgkmcnt(%d)" % (6 - 4 * e - 2 * c))
            for j in (0, 2):
                d = v(96 + 8 * e + 4 * c + j, 2)
                A("v_pk_add_f32 %s, %s, %s" % (d, d, v(16 + 16 * e + 8 * c + j, 2)))
            for j in (0, 2):
                d = v(96 + 8 * e + 4 * c + j, 2)
                A("v_pk_add_f32 %s, %s, %s" % (d, d, v(20 + 16 * e + 8 * c + j, 2)))
            for j in (0, 2):
                d = v(96 + 8 * e + 4 * c + j, 2)
                A("v_pk_fma_f32 %s, %s, %s, %s" % (d, d, v(128 + 8 * e + 4 * c + j, 2), v(112 + 8 * e + 4 * c + j, 2)))
        for j in range(4):
            A("v_cvt_pk_bf16_f32 %s, %s, %s" % (v(48 + 4 * e + j), v(96 + 8 * e + j), v(100 + 8 * e + j)))
        VM("buffer_store_dwordx4 %s, v63, %s, %s offen %s" % (v(48 + 4 * e, 4), WS, "s73" if e else "s72", WT), "hp")
    TSTAMP()
    NB6 = O('nb6', 15)
    wdtouch(3)
    hfill(3)
    w1dma(NB6 - ndma[0])
    A("""
    v_mov_b32 v56, 0x3f803f80
    v_mov_b32 v57, 0x3f803f80
    v_mov_b32 v58, 0x3f803f80
    v_mov_b32 v59, 0x3f803f80
    v_and_b32 v14, 31, v1
    v_mul_u32_u24 v14, 96, v14
    s_add_u32 s55, s76, 88
    v_add_u32 v14, s55, v14
    v_mov_b32 v3, %d
    v_mov_b32 v13, 1
    """ % L_FLG)
    vmwait("dma")
    for i in range(NB6 // 3): A("ds_write_b64 v14, v[56:57] offset:%d" % (6144 * i))
    A("s_waitcnt lgkmcnt(0)\ns_barrier")
    TSTAMP()
    def xtouch(pos):
        if O('xtp', 9) != pos: return
        A("""
        s_and_b32 s55, s87, %d
        s_lshl_b32 s55, s55, 2
        s_add_u32 s55, s55, s3
        s_lshl_b32 s55, s55, 7
        s_lshl_b32 s56, s86, 18
        s_add_u32 s55, s55, s56
        s_add_u32 s55, s55, %d
        v_lshlrev_b32 v12, 12, v1
        """ % (32 // RBX - 1, HP))
        VM("buffer_load_dword v63, v12, %s, s55 offen sc1" % WS, "tch")
    xtouch(0)
    w1dma(24 - NB6)
    xtouch(1)
    A("""
    s_and_b32 s72, s5, 7
    s_lshr_b32 s71, s5, 3
    s_mul_i32 s56, s71, %d
    s_mul_i32 s55, s72, %d
    s_add_u32 s55, s55, s56
    s_sub_u32 s56, s55, 11
    s_cmp_ge_u32 s55, 11
    s_cselect_b32 s55, s56, s55
    s_mul_i32 s56, s3, 11
    s_add_u32 s57, s56, 11
    s_add_u32 s55, s55, s56
    """ % (O('rot4', 0), O('rot3', 0)))
    for i in range(11):
        A("s_lshl_b32 %s, s55, 11\ns_add_u32 s55, s55, 1\ns_cmp_eq_u32 s55, s57\ns_cselect_b32 s55, s56, s55" % s(8 + i))
    A("""
    v_lshrrev_b32 v5, 3, v1
    v_and_b32 v6, 2, v5
    v_lshlrev_b32 v6, 1, v6
    v_and_b32 v7, 7, v1
    v_xor_b32 v6, v6, v7
    v_lshlrev_b32 v5, 10, v5
    v_lshl_add_u32 v5, v6, 4, v5
    s_mul_i32 s92, s3, 12288
    s_add_u32 s92, s92, %d
    v_lshrrev_b32 v6, 2, v1
    v_and_b32 v7, 2, v6
    v_lshlrev_b32 v7, 5, v7
    v_lshlrev_b32 v6, 7, v6
    v_and_b32 v8, 3, v1
    v_lshl_add_u32 v6, v8, 4, v6
    v_add_u32 v6, v6, v7
    s_lshl_b32 s55, s99, 6
    v_xor_b32 v7, s55, v6
    v_xor_b32 v6, 64, v7
    v_add_u32 v6, s92, v6
    v_add_u32 v7, s92, v7
    s_lshl_b32 s93, s72, 7
    v_lshrrev_b32 v10, 2, v1
    v_mul_u32_u24 v10, 96, v10
    v_lshl_add_u32 v10, v8, 3, v10
    s_lshl_b32 s56, s99, 5
    s_add_u32 s56, s56, %d
    v_add_u32 v11, s56, v10
    s_lshl_b32 s55, s3, 5
    s_cmp_eq_u32 s3, 3
    s_cselect_b32 s55, %d, s55
    v_add_u32 v10, s55, v10
    """ % (L_SG, L_WU + 32, L_WU))
    WDR = lambda i, tm: a(16 * i + 4 * tm, 4) if i < 4 else v(72 + 16 * (i - 4) + 4 * tm, 4)
    WDH = lambda i, tm, h: a(16 * i + 4 * tm + 2 * h, 2) if i < 4 else v(72 + 16 * (i - 4) + 4 * tm + 2 * h, 2)
    def wd_issue(i):
        if O('nowd', 0): A("s_mov_b32 s93, %s" % OOB)
        A("s_lshl_b32 s94, %s, 4\ns_add_u32 s94, s94, s93" % s(8 + i))
        for r in range(4):
            A("s_add_u32 m0, s92, %d" % (4096 * (i % 3) + 1024 * r))
            VM("buffer_load_dwordx4 v5, %s, s94 offen lds" % srd(S_WD), "wd%d" % i)
            if r < 3: A("s_add_u32 s94, s94, 0x2000")
    def wd_read(i):
        vmwait("wd%d" % i)
        for tm in range(4):
            for h in range(2):
                A("ds_read_b64_tr_b16 %s, %s offset:%d" % (WDH(i, tm, h), "v6" if tm < 2 else "v7", 4096 * (i % 3) + 2048 * h + 8 * (tm & 1)))
        A("s_waitcnt lgkmcnt(0)")
    def hflag():
        A("""
        s_lshl_b32 s55, s86, 2
        s_add_u32 s55, s55, s3
        s_lshl_b32 s55, s55, 5
        s_add_u32 s55, s55, s87
        s_lshl_b32 s55, s55, 7
        s_add_u32 s55, s55, %d
        v_mov_b32 v64, s84
        v_mov_b32 v65, s84
        v_mov_b32 v66, s84
        v_mov_b32 v67, s84
        s_mov_b64 exec, 0xff
        """ % FH)
        vmwait("fill")
        VM("buffer_store_dwordx4 v[64:67], v9, %s, s55 offen %s" % (WS, WT), "fhs")
        A("s_mov_b64 exec, -1")
    def colsum(k0, k1):
        for st in range(k0, k1 + 2):
            if st < k1:
                b = 16 + 8 * (st & 3)
                for h in range(2): A("ds_read_b64_tr_b16 %s, v10 offset:%d" % (v(b + 2 * h, 2), st * 3072 + h * 1536))
                for h in range(2): A("ds_read_b64_tr_b16 %s, v11 offset:%d" % (v(b + 4 + 2 * h, 2), st * 3072 + h * 1536))
            if st >= k0 + 2:
                pb = 16 + 8 * ((st - 2) & 3)
                A("s_waitcnt lgkmcnt(%d)" % (4 * (min(st, k1 - 1) - (st - 2))))
                A("%s v[48:51], v[56:59], %s, %s" % (MF, v(pb, 4), "v[48:51]" if st > 2 else "0"))
                A("%s v[52:55], v[56:59], %s, %s" % (MF, v(pb + 4, 4), "v[52:55]" if st > 2 else "0"))
    K1 = 2 * (NB6 // 3)
    NWD0 = O('nwd0', 1)
    colsum(0, K1)
    wdtouch(4)
    for i in range(NWD0): wd_issue(i)
    vmwait("dma")
    for i in range(NB6 // 3, 8): A("ds_write_b64 v14, v[56:57] offset:%d" % (6144 * i))
    A("s_waitcnt lgkmcnt(0)\ns_mov_b64 exec, 1\nds_add_u32 v3, v13\ns_mov_b64 exec, -1")
    TSTAMP()
    for i in range(NWD0): wd_read(i)
    A("ds_read_b32 v12, v3\ns_waitcnt lgkmcnt(0)\n" + flagchk)
    retry("fB", "ds_read_b32 v12, v3", flagchk, wait="s_waitcnt lgkmcnt(0)")
    if K1 < 16: colsum(K1, 16)
    HOLD = O('wdhold', 5); LATE = O('late', 3); NE = 11 - LATE
    A("""
    s_lshl_b32 s55, s72, 1
    s_add_u32 s55, s55, s99
    s_lshl_b32 s55, s55, 14
    s_lshl_b32 s56, s71, 12
    s_add_u32 s55, s55, s56
    s_lshl_b32 s56, s98, 3
    s_add_u32 s55, s55, s56
    s_lshl_b32 s56, s4, 18
    s_add_u32 s55, s55, s56
    s_add_u32 s95, s55, %d
    s_lshl_b32 s55, s4, 2
    s_add_u32 s55, s55, s71
    s_lshl_b32 s64, s55, 12
    s_add_u32 s64, s64, %d
    s_lshl_b32 s56, s55, 1
    s_add_u32 s57, s56, s98
    s_xor_b32 s56, s57, 1
    s_mul_i32 s68, s56, %d
    s_mul_i32 s69, s57, %d
    s_add_u32 s68, s68, %d
    s_add_u32 s69, s69, %d
    s_lshl_b32 s77, s55, 16
    s_lshl_b32 s56, s98, 12
    s_add_u32 s77, s77, s56
    s_lshl_b32 s56, s72, 7
    s_add_u32 s77, s77, s56
    s_lshl_b32 s56, s99, 6
    s_add_u32 s77, s77, s56
    s_lshl_b32 s67, s55, 8
    s_lshl_b32 s56, s98, 3
    s_add_u32 s67, s67, s56
    s_add_u32 s67, s67, %d
    s_mul_i32 s97, s3, 12288
    s_add_u32 s97, s97, 49152
    v_add_u32 v14, s97, v9
    s_lshl_b32 s56, s3, 3
    v_add_u32 v8, s56, v1
    v_cmp_lt_u32 vcc, 7, v1
    v_cndmask_b32 v8, v8, 31, vcc
    v_lshlrev_b32 v8, 7, v8
    """ % (HP, FH, HG, HG, HH, HH, R2))
    for i in range(11): A("s_min_u32 %s, %s, %d" % (s(20 + i), s(8 + i), 42 * 2048))
    for k in (1, 2, 3): A("s_xor_b32 s56, s3, %d\ns_mul_i32 s56, s56, 12288\ns_add_u32 %s, s56, %d" % (k, s(31 + k), L_RED3 + (k - 1) * 4096))
    def waitstep(k):
        chk = "v_cmp_gt_u32 vcc, %d, v12" % k
        A("ds_read_b32 v12, v3 offset:36\ns_waitcnt lgkmcnt(0)\n" + chk)
        retry("ws%d" % k, "s_sleep %d\n" % O('bsl', 2) + "ds_read_b32 v12, v3 offset:36", chk, wait="s_waitcnt lgkmcnt(0)")
    A(haddr(["v68", "v69", "v70"], "v71", ("v12", "v13")))
    A("v_mov_b32 v13, 1")
    fl = ["buffer_store_dwordx4 v[64:67], %s, %s, %s offen offset:%d %s" % (v(68 + ft), WS, "s90" if g else "s89", 1024 * ft, WT) for ft in range(3) for g in range(2)]
    fl.append("buffer_store_dwordx4 v[64:67], v71, %s, s91 offen %s" % (WS, WT))
    NP = O('np', 3)
    pieces = [(i, r) for i in range(NWD0, NWD0 + NP) for r in range(4)]
    P0 = O('p0', 1); PEND = O('pend', 13)
    nsteps = PEND - P0
    done_cs = False
    for k in range(P0, PEND):
        waitstep(k)
        if fl:
            VM(fl.pop(0), "fill")
            if len(fl) == 1: VM(fl.pop(0), "fill")
        elif not done_cs and k >= P0 + 7:
            hflag()
            A("""
    s_lshl_b32 s55, s3, 6
    s_add_u32 s55, s55, %d
    v_lshl_add_u32 v10, v2, 2, s55
    s_lshl_b32 s56, s99, 6
    s_add_u32 s56, s56, %d
    v_lshl_add_u32 v11, v2, 2, s56
    ds_write_b32 v10, v48
    ds_write_b32 v11, v52
    s_waitcnt lgkmcnt(0)
    s_mov_b64 exec, 1
    ds_add_u32 v3, v13 offset:4
    s_mov_b64 exec, -1
    """ % (L_CS, L_CS + 256))
            TSTAMP()
            done_cs = True
        want = (len(pieces) + (PEND - k) - 1) // (PEND - k) if (not fl or O('mix', 0)) else 0
        for _ in range(want):
            i, r = pieces.pop(0)
            if r == 0: A("s_lshl_b32 s94, %s, 4\ns_add_u32 s94, s94, s93" % s(8 + i))
            A("s_add_u32 m0, s92, %d" % (4096 * (i % 3) + 1024 * r))
            VM("buffer_load_dwordx4 v5, %s, s94 offen lds" % srd(S_WD), "wd%d" % i)
            if r < 3: A("s_add_u32 s94, s94, 0x2000")
    assert done_cs and not pieces
    TSTAMP()
    waitstep(PEND)
    VM("buffer_load_dword v10, v8, %s, s64 offen sc1" % WS, "fh")
    TSTAMP()
    nx = NWD0 + NP
    for i in range(NWD0, NE):
        wd_read(i)
        while nx < NE and nx <= i + 3: wd_issue(nx); nx += 1
    TSTAMP()
    A("s_waitcnt vmcnt(0)\nv_cmp_ne_u32 vcc, s84, v10")
    retry("fh", "buffer_load_dword v10, v8, %s, s64 offen sc1" % WS, "v_cmp_ne_u32 vcc, s84, v10")
    LB = O('lateb', 0)
    for i in range(NE, NE + LB): wd_issue(i)
    A("s_barrier")
    TSTAMP()
    for i in range(NE + LB, 11): wd_issue(i)
    def late_part():
        for i in range(NE, 11): wd_read(i)
        A("""
        v_lshrrev_b32 v5, 1, v2
        v_lshlrev_b32 v5, 13, v5
        v_and_b32 v12, 1, v2
        v_lshl_add_u32 v5, v12, 10, v5
        v_lshl_add_u32 v5, v4, 4, v5
        v_lshlrev_b32 v12, 4, v2
        v_subrev_u32 v10, 0xc000, v14
        v_add_u32 v6, s32, v9
        v_add_u32 v7, s33, v9
        v_add_u32 v8, s34, v9
        """)
    NR = 6
    HFR = lambda q, o, n: v(16 + 8 * (q % 3) + o, n)
    def acc3(grp, tm, e):
        t = 2 * (tm & 1) + e
        if grp == 1 and tm >= 2: return v(40 + 4 * t, 4)
        if tm < 2: return v(56 + 4 * t, 4)
        return v(40 + 4 * t, 4)
    def hdma_txt(q):
        grp, i = divmod(q, 11)
        return "s_add_u32 s96, %s, %s\ns_add_u32 m0, s97, %d\nbuffer_load_dwordx4 v9, %s, s96 offen sc1 lds\nbuffer_load_dwordx4 v9, %s, s96 offen offset:1024 sc1 lds" % (
            "s68" if grp == 0 else "s69", s(20 + i), 2048 * (q % NR), WS, WS)
    def hdma(q): A(hdma_txt(q)); vmq.extend(["h%d" % q] * 2)
    def hrd(q): return ["ds_read_b64 %s, %s offset:%d" % (HFR(q, 4 * e + 2 * aa, 2), "v14", 2048 * (q % NR) + 1024 * aa + 8 * e) for e in range(2) for aa in range(2)]
    def hchk(q): return "v_max_u32 v11, %s, %s\nv_cmp_eq_u32 vcc, -1, v11" % (HFR(q, 0, 1), HFR(q, 2, 1))
    def hretry(q):
        last = min(21, q + NR - 1) if O('hre', 1) else q
        if q == 0: last = O('nh0', 6) - 1
        n = 2 * (last - q) if q < 17 else 0
        retry("h%d" % q, "\n".join(hdma_txt(k) for k in range(q, last + 1)) + "\ns_waitcnt vmcnt(%d)\n" % n + "\n".join(hrd(q)), hchk(q), wait="s_waitcnt lgkmcnt(0)")
    NH0 = O('nh0', 6)
    for q in range(NH0): hdma(q)
    late_part()
    vmwait("h0"); A("\n".join(hrd(0))); A("s_waitcnt lgkmcnt(0)"); A(hchk(0)); hretry(0)
    TSTAMP()
    for q in range(NH0, NR): hdma(q)
    vmwait("h1"); A("\n".join(hrd(1)))
    for q in range(22):
        grp, i = divmod(q, 11)
        if q == 11:
            if O('psw', 1):
                for t in range(4): A("ds_write_b128 v7, %s offset:%d" % (v(40 + 4 * t, 4), 1024 * t))
            else:
                A("s_nop 7")
                for t in range(4): A("ds_write_b128 v8, %s offset:%d" % (v(56 + 4 * t, 4), 1024 * t))
                for t in range(4): A("ds_write_b128 v7, %s offset:%d" % (v(40 + 4 * t, 4), 1024 * t))
                A("s_waitcnt lgkmcnt(0)")
        rd = hrd(q + 2) if q + 2 < 22 else []
        if O('fine3', 0) and q % 2 == 0: TSTAMP()
        n = 0
        for tm in range(4):
            for e in range(2):
                sw = O('psw', 1) and q == 11
                if sw: A("s_waitcnt lgkmcnt(%d)" % (7 - n))
                A("%s %s, %s, %s, %s" % (MF, acc3(grp, tm, e), WDR(i, tm), HFR(q, 4 * e, 4), acc3(grp, tm, e) if i else "0"))
                if n == 0 and q + NR < 22: hdma(q + NR)
                if sw:
                    if n == 1: A(hchk(q + 1))
                    if n == 3: hretry(q + 1)
                    if n == 7:
                        vmwait("h%d" % (q + 2))
                        while rd: A(rd.pop(0))
                else:
                    if n == 1 and q < 21: A("s_waitcnt lgkmcnt(0)"); A(hchk(q + 1))
                    if n == 3 and q < 21: hretry(q + 1)
                    if n == 3 and rd: vmwait("h%d" % (q + 2))
                    if O('psw', 1) and q == 10:
                        if n == 3:
                            while rd: A(rd.pop(0))
                        if n >= 4: A("ds_write_b128 v8, %s offset:%d" % (v(56 + 4 * (n - 4), 4), 1024 * (n - 4)))
                    if n >= 3 and rd: A(rd.pop(0))
                if n == 2 and q == 17:
                    for j in range(4): A("buffer_load_dwordx2 %s, v9, %s, s95 offen offset:%d sc1" % (v(72 + 2 * j, 2), WS, 1024 * j))
                    A("buffer_load_dwordx2 v[80:81], v12, %s, s67 offen sc1" % WS); vmq.extend(["res"] * 5)
                n += 1
    if O('fine3', 0): TSTAMP()
    for t in range(4):
        A("ds_write_b128 v6, %s offset:%d" % (v(56 + 4 * t, 4), 1024 * t))
    A("s_waitcnt vmcnt(0)\nv_cmp_eq_u32 vcc, -1, v80")
    for j in range(4):
        for e in range(2):
            A("v_lshlrev_b32 %s, 16, %s\nv_and_b32 %s, s65, %s" % (v(88 + 8 * e + 2 * j), v(72 + 2 * j + e), v(89 + 8 * e + 2 * j), v(72 + 2 * j + e)))
    retry("r2", "buffer_load_dwordx2 v[80:81], v12, %s, s67 offen sc1" % WS, "v_cmp_eq_u32 vcc, -1, v80")
    if O('fine3', 0): TSTAMP()
    A("s_waitcnt lgkmcnt(0)\ns_barrier")
    TSTAMP()
    for sl in range(3):
        for t in range(4):
            A("ds_read_b128 %s, v10 offset:%d" % (v(112 + 16 * sl + 4 * t, 4), L_RED3 + 4096 * sl + 1024 * t))
    for sl in range(3):
        A("s_waitcnt lgkmcnt(%d)" % (8 - 4 * sl))
        for r in range(0, 16, 2):
            A("v_pk_add_f32 %s, %s, %s" % (v(40 + r, 2), v(40 + r, 2), v(112 + 16 * sl + r, 2)))
    for e in range(2):
        for mt in range(2):
            for j in (0, 2):
                d = v(40 + 8 * mt + 4 * e + j, 2)
                A("v_pk_fma_f32 %s, %s, v[80:81], %s op_sel:[0,%d,0] op_sel_hi:[1,%d,1]" % (d, d, v(88 + 8 * e + 4 * mt + j, 2), e, e))
        for mt in range(2):
            for j in (0, 2):
                A("v_cvt_pk_bf16_f32 %s, %s, %s" % (v(16 + 4 * e + 2 * mt + j // 2), v(40 + 8 * mt + 4 * e + j), v(41 + 8 * mt + 4 * e + j)))
        A("buffer_store_dwordx4 %s, v5, %s, s77 offen offset:%d %s" % (v(16 + 4 * e, 4), srd(S_OUT), 2048 * e, {0: "", 1: "sc0 sc1", 2: "nt"}[O('outf', 0)]))
    A("""
    s_or_b32 s55, s2, s3
    s_cmp_lg_u32 s55, 0
    s_cselect_b32 s55, %s, 0
    v_mov_b32 v14, s84
    s_mov_b64 exec, 1
    buffer_store_dword v14, v9, %s, s55 offen
    s_mov_b64 exec, -1
    """ % (OOB, WS))
    spin(1)
    dump(TS + 0x10000)
    A.label("L_end")
    A("s_endpgm")
    for st_ in stubs:
        A("s_nop 7")
        A(st_)
    A.label("L_codeend")
    A("s_endpgm")
    A.raw(""".section .rodata,"a"
.p2align 6
.amdhsa_kernel %s_kernel
  .amdhsa_next_free_vgpr 256
  .amdhsa_next_free_sgpr 102
  .amdhsa_accum_offset 184
  .amdhsa_group_segment_fixed_size 0
  .amdhsa_kernarg_size 104
  .amdhsa_user_sgpr_count 2
  .amdhsa_user_sgpr_kernarg_segment_ptr 1
  .amdhsa_system_sgpr_workgroup_id_x 1
  .amdhsa_float_denorm_mode_32 3
.end_amdhsa_kernel""" % NAME)
    return A.text()

def parse(args):
    kw = {}; opt = {}
    for x in args:
        k, val = x.split("=")
        if k in ("RBX", "ROT"): kw[k] = int(val)
        elif k in ("NT",): kw[k] = val
        else: opt[k] = int(val)
    return kw, opt

if __name__ == "__main__":
    out = sys.argv[1] if len(sys.argv) > 1 else "cdna_kernels/%s.s" % NAME
    stamp = len(sys.argv) > 2 and sys.argv[2] == "stamp"
    kw, opt = parse(sys.argv[3:])
    open(out, "w").write(gen(stamp, opt=opt, **kw))
    print("wrote", out)
```

```python
import sys
from asm import Asm, v, a, s

NAME = "sequential_preLN__ssm_conv_h3__glu_gated_reglu__prompt"
EP = 0x0; R2 = 0x8000; TS = 0x10000; ST = 0x80000; STR = 0x8100; FU = 0x50000; FH = 0x60000
UP = 0x100000; QP = 0x300000; QSTR = 33024; HP = 0x700000; HH = 0xB00000
WS_BYTES = 0x1400000
HG = 88064
L_WU = 49152
L_KC = 98304; KC_STR = 4640
L_U = L_KC + 8 * KC_STR; U_STR = 4224
L_CS = L_U + 4 * U_STR
L_FLG = L_CS + 384
L_TA = L_FLG + 128
LDS_BYTES = L_TA + 8192
L_TB = L_WU + 40960
L_REDA = L_KC; L_REDB = L_KC + 16384
L_SG = L_KC
L_RED3 = 0
S_K, S_V, S_Q, S_SK, S_SSM, S_WG, S_WU, S_WD, S_OUT, S_WS, S_T = 8, 12, 16, 20, 24, 28, 32, 36, 40, 44, 48
sDP = 52; sD = 54; sPC = 74
BUDGET = 200000
WS = s(S_WS, 4)
MF = "v_mfma_f32_16x16x32_bf16"
OOB = "0x40000000"
WT = "sc0 sc1"
def srd(i): return s(i, 4)
def lines(t): return [x.strip() for x in t.strip().split("\n") if x.strip()]

def gen(stamp=False, RBX=4, ROT=0, NT="", opt=None):
    opt = opt or {}
    O = lambda k, d: opt.get(k, d)
    A = Asm()
    stubs = []
    nst = [0]
    vmq = []
    def TSTAMP():
        if stamp:
            A("s_memtime s[80:81]\ns_waitcnt lgkmcnt(0)\ns_sub_u32 s80, s80, s78\nv_writelane_b32 v15, s80, %d" % nst[0]); nst[0] += 1
    def dump(off):
        if stamp:
            A("s_waitcnt vmcnt(0)"); TSTAMP()
            A("s_cmp_lg_u32 s3, %d\ns_cbranch_scc1 L_end" % O('dw', 0))
            A("s_memrealtime s[80:81]\ns_waitcnt lgkmcnt(0)\nv_writelane_b32 v15, s80, 62\nv_writelane_b32 v15, s82, 63\nv_writelane_b32 v15, s85, 61")
            A("s_lshl_b32 s55, s2, 8\ns_add_u32 s55, s55, %d\nv_lshlrev_b32 v14, 2, v1\nbuffer_store_dword v15, v14, %s, s55 offen" % (off, WS))
    def spin(role):
        if O('spinto', 0) and O('spinrole', 1) == role:
            A("s_cmp_lg_u32 s2, %d\ns_cbranch_scc1 L_nospin\ns_cmp_lg_u32 s3, 0\ns_cbranch_scc1 L_nospin" % O('spinwg', 0))
            if O('spinsel', -1) >= 0: A("v_readlane_b32 s96, v15, %d\ns_nop 3\ns_lshr_b32 s96, s96, 1\ns_add_u32 s96, s96, %d" % (O('spinsel', 0), O('spinto', 0)))
            else: A("s_mov_b32 s96, %d" % O('spinto', 0))
            A("L_spin:\ns_memrealtime s[80:81]\ns_waitcnt lgkmcnt(0)\ns_sub_u32 s80, s80, s82\ns_cmp_lt_u32 s80, s96\ns_cbranch_scc1 L_spin\nL_nospin:")
    def VM(txt, tag):
        A(txt); vmq.append(tag)
    def vmwait(tag, extra=""):
        tags = tag if isinstance(tag, tuple) else (tag,)
        idx = max(i for i, t in enumerate(vmq) if t in tags)
        A("s_waitcnt vmcnt(%d)%s" % (min(63, len(vmq) - 1 - idx), extra))
    def retry(name, reload_txt, chk_txt, wait="s_waitcnt vmcnt(0)"):
        A("s_cbranch_vccnz L_r%s" % name); A.label("L_o%s" % name)
        stubs.append("L_r%s:\ns_sub_u32 s85, s85, 1\ns_cbranch_scc1 L_x%s\n%s\n%s\n%s\ns_cbranch_vccnz L_r%s\ns_branch L_o%s\nL_x%s:\ns_mov_b32 s85, 0\ns_branch L_o%s"
                     % (name, name, reload_txt, wait, chk_txt, name, name, name, name))
    A.raw(open('cdna_kernels/%s.s.ref' % NAME).read().split('; @launch grid')[0].rstrip('\n'))
    A.raw("; @launch grid=(256,1,1) block=(512,1,1) lds=%d" % LDS_BYTES)
    A.raw('.amdgcn_target "amdgcn-amd-amdhsa--gfx950"\n.text\n.globl %s_kernel\n.p2align 8\n.type %s_kernel,@function\n%s_kernel:' % (NAME, NAME, NAME))
    LRB = {1: 0, 2: 1, 4: 2, 8: 3}[RBX]

    A("s_load_dwordx8 s[8:15], s[0:1], 0")
    if stamp: A("s_memtime s[78:79]\ns_memrealtime s[82:83]\nv_mov_b32 v15, 0"); nst[0] += 1
    A("s_cmpk_ge_u32 s2, 0x100\ns_cbranch_scc1 L_end")
    if O('perm', 0):
        A("s_lshr_b32 s4, s2, 3\ns_add_u32 s4, s4, s2\ns_and_b32 s4, s4, 7\ns_and_b32 s2, s2, 0xf8\ns_or_b32 s2, s2, s4")
    A("""
    v_readfirstlane_b32 s6, v0
    s_lshr_b32 s5, s2, 3
    s_and_b32 s4, s2, 7
    s_cmpk_lt_u32 s6, 0x100
    s_cbranch_scc1 L_A0
    s_getpc_b64 %s
    L_pc:
    s_lshl_b32 s55, s5, 11
    v_lshl_add_u32 v10, v0, 3, s55
    v_min_u32 v10, L_codeend-L_pc+2044, v10
    s_mov_b32 exec_lo, 0x10001
    s_mov_b32 exec_hi, exec_lo
    global_load_dword v11, v10, %s offset:-2048
    s_branch L_B0
    L_A0:
    s_lshl_b32 s55, s5, 9
    s_add_u32 s55, s55, s4
    s_lshl_b32 s55, s55, 7
    v_and_b32 v5, 0xb8, v0
    v_and_b32 v10, 7, v0
    v_and_b32 v7, 64, v0
    v_and_b32 v6, 56, v0
    v_add_lshl_u32 v5, v5, v6, 8
    v_lshl_add_u32 v5, v10, 3, v5
    v_add3_u32 v5, v5, v7, s55
    v_max_u32 v6, 0xc00, v5
    s_waitcnt lgkmcnt(0)
    """ % (s(sPC, 2), s(sPC, 2)))
    for j in range(4): VM("global_load_dwordx2 %s, v5, s[10:11] offset:%d %s" % (v(22 + 2 * j, 2), 1024 * j, NT), "k")
    for j in range(4): VM("global_load_dwordx2 %s, v5, s[12:13] offset:%d %s" % (v(30 + 2 * j, 2), 1024 * j, NT), "v")
    for i in range(3): VM("global_load_dwordx2 %s, v6, s[10:11] offset:%d %s" % (v(16 + 2 * i, 2), 1024 * i - 3072, NT), "k")
    A("v_and_b32 v10, 0x3ff, v5\nv_lshlrev_b32 v10, 2, v10")
    VM("global_load_dwordx4 v[48:51], v10, s[14:15]", "k")
    VM("global_load_dwordx4 v[52:55], v10, s[14:15] offset:16", "k")
    A("s_load_dwordx2 %s, s[0:1], 96\ns_barrier\ns_branch L_A" % s(S_WS, 2))
    common = """
    v_and_b32 v1, 63, v0
    v_and_b32 v2, 15, v0
    v_lshrrev_b32 v4, 4, v1
    v_lshlrev_b32 v9, 4, v1
    s_bfe_u32 s3, s6, 0x20006
    s_lshl_b32 s66, s4, 5
    s_add_u32 s66, s66, s5
    s_and_b32 s99, s3, 1
    s_lshr_b32 s98, s3, 1
    """
    common2 = "s_mov_b32 s85, %d\ns_mov_b32 s65, 0xffff0000\ns_mov_b32 %s, %d\ns_mov_b32 %s, 0x20000" % (BUDGET, s(S_WS + 2), WS_BYTES, s(S_WS + 3))
    A.label("L_B0")
    A("s_mov_b64 exec, -1\ns_load_dwordx4 s[16:19], s[0:1], 32\ns_load_dwordx2 %s, s[0:1], 96" % s(S_WS, 2))
    A(common)
    A("""
    v_mov_b32 v40, 0
    v_mov_b32 v41, 0
    v_mov_b32 v42, 0
    v_mov_b32 v43, 0
    v_and_b32 v12, 3, v1
    v_lshlrev_b32 v12, 4, v12
    v_add_u32 v12, %d, v12
    ds_write_b128 v12, v[40:43]
    s_lshl_b32 s57, s2, 13
    s_lshl_b32 s56, s99, 12
    s_add_u32 s57, s57, s56
    s_lshl_b32 s56, s98, 10
    s_add_u32 s57, s57, s56
    s_lshl_b32 s61, s66, 13
    s_lshl_b32 s56, s3, 11
    s_add_u32 s61, s61, s56
    v_add_u32 v5, s57, v9
    v_add_u32 v6, s61, v9
    s_waitcnt lgkmcnt(0)
    s_barrier
    global_load_dwordx4 v[32:35], v5, s[8:9] NT
    global_load_dwordx4 v[36:39], v5, s[8:9] offset:2048 NT
    global_load_dwordx4 v[24:27], v6, s[16:17] NT
    global_load_dwordx4 v[28:31], v6, s[16:17] offset:1024 NT
    s_branch L_B
    """.replace("NT", NT) % L_FLG)
    ids = """
    s_lshr_b32 s55, s4, %d
    s_lshl_b32 s55, s55, %d
    s_and_b32 s60, s5, %d
    s_add_u32 s86, s55, s60
    s_and_b32 s55, s4, %d
    s_mul_i32 s55, s55, %d
    s_lshr_b32 s56, s5, %d
    s_add_u32 s87, s55, s56
    s_mul_i32 s88, s56, %d
    s_mul_i32 s60, s60, %d
    s_add_u32 s88, s88, s60
    s_and_b32 s88, s88, 15
    """ % (LRB, LRB, RBX - 1, RBX - 1, 32 // RBX, LRB, ROT, O('rot2', 16 // RBX))
    def haddr(hv, r2v, tmp):
        return """
        s_lshl_b32 s55, s86, 2
        s_add_u32 s55, s55, s3
        s_mul_i32 s55, s55, %d
        s_mul_i32 s56, s87, 2816
        s_add_u32 s55, s55, s56
        s_add_u32 s89, s55, %d
        s_add_u32 s90, s89, %d
        v_mov_b32 T0, %s
        v_cmp_eq_u32 vcc, 3, v4
        v_cndmask_b32 T1, v9, T0, vcc
        s_cmp_eq_u32 s87, 31
        s_cselect_b64 vcc, -1, 0
        v_cndmask_b32 %s, v9, T1, vcc
        v_cndmask_b32 %s, v9, T0, vcc
        v_cndmask_b32 %s, T1, T0, vcc
        v_lshrrev_b32 T1, 2, v2
        v_lshlrev_b32 %s, 4, v2
        v_cmp_eq_u32 vcc, T1, v4
        v_cndmask_b32 %s, T0, %s, vcc
        s_lshl_b32 s55, s86, 10
        s_lshl_b32 s56, s3, 8
        s_add_u32 s55, s55, s56
        s_add_u32 s55, s55, %d
        s_cmp_eq_u32 s87, 31
        s_cselect_b32 s91, s55, %s
        """.replace("T0", tmp[0]).replace("T1", tmp[1]) % (2 * HG, HH, HG, OOB, hv[0], hv[1], hv[2], r2v, r2v, r2v, R2, OOB)
    def xpose_addr(wr, rd, gv, base):
        return """
        v_and_b32 RD, 7, v2
        v_xor_b32 WR, v4, RD
        v_lshl_add_u32 WR, v2, 3, 0
        v_or_b32 WR, WR, v4
        v_xor_b32 WR, WR, RD
        v_lshlrev_b32 WR, 4, WR
        s_lshl_b32 s55, s3, 11
        s_add_u32 s55, s55, %d
        v_add_u32 WR, s55, WR
        v_lshrrev_b32 RD, 3, v1
        v_xor_b32 RD, RD, v1
        v_lshlrev_b32 RD, 4, RD
        v_add_u32 RD, s55, RD
        v_lshrrev_b32 GV, 2, v1
        v_lshlrev_b32 GV, 13, GV
        v_and_b32 v14, 3, v1
        v_lshl_add_u32 GV, v14, 4, GV
        """.replace("WR", wr).replace("RD", rd).replace("GV", gv) % base

    A.label("L_A")
    A(common); A(common2); A("s_waitcnt lgkmcnt(0)")
    A("s_movk_i32 s55, 0x1000\nv_cmp_gt_u32 s[20:21], s55, v5")
    A("""
    v_and_b32 v133, 7, v1
    v_lshrrev_b32 v134, 3, v1
    v_xor_b32 v132, v134, v133
    v_lshl_add_u32 v132, v133, 4, v132
    v_lshlrev_b32 v132, 4, v132
    s_lshl_b32 s55, s3, 11
    s_add_u32 s55, s55, %d
    v_add_u32 v132, s55, v132
    v_lshlrev_b32 v134, 13, v134
    v_lshl_add_u32 v134, v133, 4, v134
    v_xor_b32 v133, v1, v4
    v_lshlrev_b32 v133, 4, v133
    v_add_u32 v133, s55, v133
    v_xor_b32 v136, 64, v133
    """ % L_TA)
    HV = ["v176", "v177", "v178"]
    A("""
    s_lshl_b32 s55, s4, 18
    s_lshl_b32 s56, s5, 8
    s_add_u32 s55, s55, s56
    s_lshl_b32 s56, s98, 7
    s_add_u32 s55, s55, s56
    s_lshl_b32 s56, s99, 17
    s_add_u32 s55, s55, s56
    s_add_u32 s95, s55, %d
    s_add_u32 s97, s95, 0x10000
    """ % UP)
    if O('pw', 1):
        A("""
        s_lshl_b32 s55, s66, 7
        s_add_u32 s55, s55, %d
        s_cmp_lg_u32 s3, 0
        s_cselect_b32 s55, %s, s55
        v_mov_b32 v140, 0
        v_mov_b32 v141, 0
        v_mov_b32 v142, 0
        v_mov_b32 v143, 0
        s_mov_b64 exec, 0xff
        """ % (FU, OOB))
        VM("buffer_store_dwordx4 v[140:143], v9, %s, s55 offen %s" % (WS, WT), "pw")
        A("s_mov_b64 exec, -1")
    TSTAMP()
    vmwait("k")
    TSTAMP()
    for r in range(16, 22): A("v_cndmask_b32 %s, %s, 0, s[20:21]" % (v(r), v(r)))
    for c in range(4):
        for tap in range(4):
            src = 48 + 2 * c + (tap >> 1); dst = 64 + 4 * tap + c
            A(("v_lshlrev_b32 %s, 16, %s" if tap % 2 == 0 else "v_and_b32 %s, s65, %s") % (v(dst), v(src)))
    for i in range(7):
        for e in range(2):
            src = 16 + 2 * i + e; dst = 80 + 4 * i + 2 * e
            A("v_lshlrev_b32 %s, 16, %s\nv_and_b32 %s, s65, %s" % (v(dst), v(src), v(dst + 1), v(src)))
    for tap in range(4):
        for j in range(4):
            for e in range(2):
                d = v(144 + 4 * j + 2 * e, 2); kk = v(80 + 4 * (j + 3 - tap) + 2 * e, 2); ww = v(64 + 4 * tap + 2 * e, 2)
                if tap == 0: A("v_pk_mul_f32 %s, %s, %s" % (d, kk, ww))
                else: A("v_pk_fma_f32 %s, %s, %s, %s" % (d, kk, ww, d))
    vmwait("v")
    for j in range(4):
        for e in range(2):
            src = 30 + 2 * j + e; dst = 108 + 4 * j + 2 * e
            A("v_lshlrev_b32 %s, 16, %s\nv_and_b32 %s, s65, %s" % (v(dst), v(src), v(dst + 1), v(src)))
    for j in range(4):
        for e in range(2):
            d = 144 + 4 * j + 2 * e
            A("v_pk_mul_f32 %s, %s, %s" % (v(d, 2), v(d, 2), v(108 + 4 * j + 2 * e, 2)))
    for e in range(2):
        for j in range(4):
            d = 144 + 4 * j + 2 * e
            A("v_cvt_pk_bf16_f32 %s, %s, %s" % (v(124 + 4 * e + j), v(d), v(d + 1)))
        A("ds_write_b128 v132, %s offset:%d" % (v(124 + 4 * e, 4), 128 * e))
    A("ds_read_b128 v[16:19], v133\nds_read_b128 v[20:23], v136 offset:1024")
    A("s_waitcnt lgkmcnt(1)")
    A("buffer_store_dwordx4 v[16:19], v134, %s, s95 offen %s" % (WS, WT))
    A("s_waitcnt lgkmcnt(0)")
    A("buffer_store_dwordx4 v[20:23], v134, %s, s97 offen %s" % (WS, WT))
    TSTAMP()
    A("s_load_dword s84, %s, 0" % s(S_WS, 2))
    A(ids)
    A(haddr(HV, "v179", ("v12", "v13")))
    A("""
    s_lshl_b32 s67, s66, 13
    s_lshl_b32 s56, s3, 11
    s_add_u32 s67, s67, s56
    s_add_u32 s67, s67, %d
    s_sub_u32 s59, s67, 4
    s_lshl_b32 s62, s66, 7
    s_add_u32 s62, s62, FUADDR
    s_lshl_b32 s63, s4, 12
    s_add_u32 s63, s63, FUADDR
    s_lshl_b32 s56, s3, 3
    s_sub_u32 s56, s56, 1
    v_add_u32 v8, s56, v1
    v_max_i32 v8, 0, v8
    v_lshlrev_b32 v8, 7, v8
    v_mov_b32 v3, FLGADDR
    s_lshl_b32 s56, s3, 7
    v_xor_b32 v7, 1, v1
    v_add_u32 v7, s56, v7
    v_lshlrev_b32 v7, 3, v7
    v_add_u32 v7, %d, v7
    v_cmp_eq_u32 s[100:101], 0, v0
    s_mov_b32 s64, 0x05040100
    s_mov_b32 s71, 0x07060302
    v_and_b32 v180, 3, v2
    s_movk_i32 s55, %d
    v_mul_lo_u32 v180, v180, s55
    v_lshrrev_b32 v14, 2, v2
    v_lshl_add_u32 v180, v14, 7, v180
    v_lshl_add_u32 v180, v4, 4, v180
    s_mul_i32 s56, s98, %d
    s_lshl_b32 s57, s99, 8
    s_add_u32 s56, s56, s57
    s_add_u32 s56, s56, %d
    v_add_u32 v180, s56, v180
    v_and_b32 v181, 1, v2
    s_movk_i32 s55, %d
    v_mul_lo_u32 v181, v181, s55
    v_lshrrev_b32 v14, 1, v2
    v_lshl_add_u32 v181, v14, 4, v181
    v_lshlrev_b32 v14, 4, v4
    v_sub_u32 v181, v181, v14
    s_mul_i32 s56, s98, %d
    s_sub_u32 s56, s56, s57
    s_add_u32 s56, s56, %d
    v_add_u32 v181, s56, v181
    s_mul_i32 s56, s98, %d
    s_lshl_b32 s57, s99, 13
    s_add_u32 s56, s56, s57
    s_add_u32 s56, s56, %d
    v_add_u32 v182, s56, v9
    """.replace("FUADDR", str(FU)).replace("FLGADDR", str(L_FLG)) % (UP, L_U + 8 * 16, KC_STR, 4 * KC_STR, L_KC + 7 * 16,
           U_STR, 2 * U_STR, L_U + 20 * 16, L_REDB - L_REDA, L_REDA))
    A("s_waitcnt lgkmcnt(0)\ns_add_u32 s84, s84, 1\ns_or_b32 s84, s84, 0x80000000")
    A("v_mov_b32 v24, s84\nv_mov_b32 v25, s84\nv_mov_b32 v26, s84\nv_mov_b32 v27, s84\nv_mov_b32 v14, 1")
    A("""
    s_mov_b64 exec, 1
    s_waitcnt vmcnt(0)
    ds_add_rtn_u32 v14, v3, v14 offset:12
    s_waitcnt lgkmcnt(0)
    v_readfirstlane_b32 s55, v14
    s_mov_b64 exec, 0xff
    s_cmp_lg_u32 s55, 3
    s_cselect_b32 s62, %s, s62
    buffer_store_dwordx4 v[24:27], v9, %s, s62 offen %s
    s_mov_b64 exec, 0x1ff
    """ % (OOB, WS, WT)); vmq.clear()
    TSTAMP()
    if O('fudelay', 0): A("s_sleep %d" % O('fudelay', 0))
    fu_txt = "buffer_load_dword v14, v8, %s, s63 offen sc1" % WS
    fu_chk = "v_cmp_ne_u32 vcc, s84, v14"
    A(fu_txt + "\ns_waitcnt vmcnt(0)\n" + fu_chk)
    retry("up", fu_txt, fu_chk)
    A("s_mov_b64 exec, -1")
    TSTAMP()
    UL = "sc1" if O('upsc', 0) else ""
    A("""buffer_load_dwordx4 v[32:35], v9, WS, s67 offen UL
    buffer_load_dwordx4 v[40:43], v9, WS, s67 offen offset:1024 UL
    buffer_load_dword v36, v9, WS, s59 offen UL
    buffer_load_dword v44, v9, WS, s59 offen offset:1024 UL
    v_mov_b32 v14, 1
    s_mov_b64 exec, 1
    ds_add_u32 v3, v14 offset:24
    s_mov_b64 exec, -1
    s_waitcnt vmcnt(0)""".replace("WS", WS).replace("UL", UL))
    TSTAMP()
    A("v_cndmask_b32 v36, v36, 0, s[100:101]")
    for h in range(2):
        b = 32 + 8 * h
        W_ = lambda i: v(b + 4) if i < 0 else v(b + i)
        for c in range(2):
            for pi in range(2):
                o = 64 + 8 * h + 2 * (2 * c + pi)
                for jj in range(2):
                    lo = 2 + pi - 2 * jj; hi = lo - 1
                    A("v_perm_b32 %s, %s, %s, %s" % (v(o + jj), W_(hi), W_(lo), "s64" if c == 0 else "s71"))
                A("ds_write_b64 v7, %s offset:%d" % (v(o, 2), (2 * c + pi) * U_STR + 512 * h))
    A("v_mov_b32 v14, 1\ns_mov_b64 exec, 1\nds_add_u32 v3, v14 offset:40\ns_mov_b64 exec, -1\nds_read_b32 v12, v3 offset:40\ns_waitcnt lgkmcnt(0)\nv_cmp_ne_u32 vcc, 8, v12")
    retry("b4a", "ds_read_b32 v12, v3 offset:40", "v_cmp_ne_u32 vcc, 8, v12", wait="s_waitcnt lgkmcnt(0)")
    TSTAMP()
    BF = lambda buf, ct: v(16 + 32 * buf + 4 * ct, 4)
    ACC = lambda t: v(80 + 4 * t, 4)
    KF = lambda ph, g: a(32 * (ph & 1) + 4 * g, 4)
    bread = lambda ph, ct: "ds_read_b128 %s, v181 offset:%d" % (BF(ph & 1, ct), 512 * ct + 64 * (3 - ph))
    kread = lambda ph, g: "ds_read_b128 %s, v180 offset:%d" % (KF(ph, g), 512 * g + 64 * ph)
    for i in range(7): A(kread(0, i)); A(bread(0, i))
    p2pre = lines("""v_lshrrev_b32 v5, 2, v1
    v_mul_u32_u24 v5, 96, v5
    v_and_b32 v14, 3, v1
    v_lshl_add_u32 v5, v14, 3, v5
    v_add_u32 v6, %d, v5
    s_lshl_b32 s55, s3, 12
    v_add_u32 v7, s55, v9
    s_lshl_b32 s67, s86, 18
    s_add_u32 s67, s67, %d
    v_lshlrev_b32 v8, 4, v4
    v_add_u32 v8, %d, v8
    v_mov_b32 v3, %d
    v_lshlrev_b32 v10, 2, v2
    v_add_u32 v10, 0xc0, v10""" % (L_WU, HP, L_CS, L_FLG))
    touched = set(); issued = 14
    for ph in range(4):
        if ph in (0, 3): order = [(t - ct, ct) for t in range(8) for ct in range(t + 1)]
        else: order = [(g, ct) for ct in range(8) for g in range(8 - ct)]
        nxt = [x for i in range(8) for x in (kread(ph + 1, i), bread(ph + 1, i))] if ph < 3 else []
        for idx, (g, ct) in enumerate(order):
            t = g + ct
            if ph == 0 and ct == 0:
                need = 2 * (t + 1)
                if t < 7 or True: A("s_waitcnt lgkmcnt(%d)" % min(15, issued - need))
            if ph > 0 and idx == 0: A("s_waitcnt lgkmcnt(0)")
            if 36 * ph + idx == O('lpi', 40): A("v_mov_b32 v14, 1\nds_write_b32 v3, v14 offset:32")
            if ph == 3 and idx == 0: A("v_mov_b32 v14, 1\ns_mov_b64 exec, 1\nds_add_u32 v3, v14 offset:16\ns_mov_b64 exec, -1")
            A("%s %s, %s, %s, %s" % (MF, ACC(t), KF(ph, g), BF(ph & 1, ct), ACC(t) if t in touched else "0"))
            touched.add(t)
            if ph == 3 and idx == 6: A("ds_read_b32 v12, v3 offset:16")
            if ph == 3 and idx == 12: A("s_waitcnt lgkmcnt(0)\nv_cmp_ne_u32 vcc, 4, v12")
            if ph == 3 and idx == 14: retry("kc", "ds_read_b32 v12, v3 offset:16", "v_cmp_ne_u32 vcc, 4, v12", wait="s_waitcnt lgkmcnt(0)")
            if ph == 3 and idx in (15, 17, 19, 21): A("ds_write_b128 v182, %s offset:%d" % (ACC((idx - 15) // 2), 1024 * ((idx - 15) // 2)))
            if ph == 0 and idx == 1: A(kread(0, 7)); A(bread(0, 7)); issued += 2
            if idx >= 16 and nxt:
                A(nxt.pop(0))
                if ph == 0: issued += 1
            if ph == 1 and p2pre: A(p2pre.pop(0))
            if ph == 3 and idx in (23, 28): A("ds_write_b128 v182, %s offset:%d" % (ACC(4 if idx == 23 else 5), 1024 * (4 if idx == 23 else 5)))
        assert not nxt
    A("ds_write_b128 v182, %s offset:%d" % (ACC(6), 1024 * 6))
    A("ds_write_b128 v182, %s offset:%d" % (ACC(7), 1024 * 7))
    A("s_waitcnt lgkmcnt(0)")
    TSTAMP()
    A("s_barrier")
    TSTAMP()
    A("s_barrier")
    TSTAMP()
    XS = lambda st: 16 + 16 * (st & 3)
    AC = lambda arr, ft, tau: v(80 + 48 * arr + 16 * ft + 4 * tau, 4)
    WF = lambda st, arr, ft: 24 * (st & 1) + 12 * arr + 4 * ft
    def xaddr(st): return ["s_add_u32 s55, s88, %d" % st, "s_and_b32 s55, s55, 15", "s_lshl_b32 s55, s55, 14", "s_add_u32 s96, s55, s67"]
    def xlds(st): return ["buffer_load_dwordx4 %s, v7, %s, s96 offen offset:%d sc1" % (v(XS(st) + 4 * j, 4), WS, 1024 * j) for j in range(4)]
    def xload_txt(st): return "\n".join(xaddr(st) + xlds(st)).replace("s96", "s97")
    def xload(st):
        A("\n".join(xaddr(st) + xlds(st))); vmq.extend(["x%d" % st] * 4)
    def xchk(st):
        b = XS(st)
        return ["v_max3_u32 v11, %s, %s, %s" % (v(b), v(b + 4), v(b + 8)), "v_max_u32 v11, v11, %s" % v(b + 12), "v_cmp_eq_u32 vcc, -1, v11"]
    def wreads(st):
        return ["ds_read_b64_tr_b16 %s, %s offset:%d" % (a(WF(st, arr, ft) + 2 * h, 2), "v6" if arr else "v5", st * 3072 + h * 1536 + ft * 32)
                for arr in range(2) for ft in range(3) for h in range(2)]
    def swaps(st):
        b = XS(st)
        return ["v_swap_b32 %s, %s" % (v(b + 4 * j + t), v(b + 4 * t + j)) for j in range(4) for t in range(j + 1, 4)]
    if O('xdelay', 0): A("s_sleep %d" % O('xdelay', 0))
    if O('x3', 0):
        xload(0); xload(1); xload(2)
        for r in wreads(0): A(r)
        vmwait("x0")
        for r in xchk(0): A(r)
        retry("xP", "\n".join(xload_txt(i) for i in range(3)), "\n".join(xchk(0)), wait="s_waitcnt vmcnt(8)")
        TSTAMP()
    else:
        xload(0)
        for r in wreads(0): A(r)
        vmwait("x0")
        for r in xchk(0): A(r)
        if O('xr3', 0):
            A("s_cbranch_vccnz L_rxP")
            xload(1); xload(2)
            A.label("L_oxP")
            stubs.append("L_rxP:\n%s\ns_waitcnt vmcnt(8)\n%s\ns_cbranch_vccz L_oxP\ns_sub_u32 s85, s85, 1\ns_cbranch_scc0 L_rxP\ns_mov_b32 s85, 0\ns_branch L_oxP"
                         % ("\n".join(xload_txt(i) for i in range(3)), "\n".join(xchk(0))))
            TSTAMP()
        else:
            retry("xP", xload_txt(0), "\n".join(xchk(0)))
            TSTAMP()
            xload(1); xload(2)
    for r in swaps(0): A(r)
    if O('aprio', 2): A("s_setprio %d" % O('aprio', 2))
    A("s_cmp_eq_u32 s87, 31\ns_cbranch_scc1 L_p2alt")
    def flagrd(k): return "ds_read_b32 v12, v3 offset:%d" % (4 * k)
    flagchk = "v_cmp_ne_u32 vcc, 4, v12"
    epi = []
    for ft in range(3):
        for g in range(2):
            o = (16, 24, 64)[ft] + 4 * g
            for e in range(2):
                tau = 2 * g + e
                gb = 80 + 16 * ft + 4 * tau; ub = gb + 48
                M = v(32 + 2 * tau, 2)
                for j in (0, 2): epi.append("v_pk_fma_f32 %s, %s, %s, %s op_sel_hi:[1,0,1]" % (v(gb + j, 2), v(40 + 4 * ft + j, 2), M, v(gb + j, 2)))
                for j in (0, 2): epi.append("v_pk_fma_f32 %s, %s, %s, %s op_sel_hi:[1,0,1]" % (v(ub + j, 2), v(52 + 4 * ft + j, 2), M, v(ub + j, 2)))
                for j in range(4): epi.append("v_max_f32 %s, 0, %s" % (v(gb + j), v(gb + j)))
                for j in (0, 2): epi.append("v_pk_mul_f32 %s, %s, %s" % (v(gb + j, 2), v(gb + j, 2), v(ub + j, 2)))
                for j in (0, 2): epi.append("v_cvt_pk_bf16_f32 %s, %s, %s" % (v(o + 2 * e + j // 2), v(gb + j), v(gb + j + 1)))
            epi.append("buffer_store_dwordx4 %s, %s, %s, %s offen offset:%d %s" % (v(o, 4), HV[ft], WS, "s90" if g else "s89", 1024 * ft, WT))
    NOV = O('nov', 16)
    def p2loop(alt):
        for st in range(16):
            ml = []
            ep = list(epi[:NOV])
            for arr, ft in ([(0, 2), (0, 0), (1, 0), (0, 1), (1, 1), (1, 2)] if st == 15 else [(x, y) for x in range(2) for y in range(3)]):
                if True:
                    for tau in range(4):
                        xf = v(XS(st) + 4 * tau, 4)
                        wf = a(WF(st, arr, ft), 4)
                        if alt and arr == 1 and ft == 2: wf = xf
                        ml.append("%s %s, %s, %s, %s" % (MF, AC(arr, ft, tau), wf, xf, AC(arr, ft, tau) if st else "0"))
            wr = wreads(st + 1) if st < 15 else ["ds_read_b128 %s, v8 offset:%d" % (v(40 + 4 * t, 4), 64 * t) for t in range(6)]
            if st in (8, 14): wr = wr + [flagrd(0 if st == 8 else 1)]
            sw = swaps(st + 1) if st < 15 else []
            ck = xchk(st + 1) if st < 15 else []
            xa = xaddr(st + 3) if st + 3 < 16 else []
            xl = xlds(st + 3) if st + 3 < 16 else []
            tg = "b" if alt else "a"
            if O('fine2', 0) and st > 0:
                if alt and st == 1: nst[0] -= 15
                TSTAMP()
            A("s_waitcnt lgkmcnt(0)")
            for i, m in enumerate(ml):
                if i == 0 and st in (9, 15): A(flagchk)
                A(m)
                if i == 1 and st in (9, 15): retry("f%s%d" % (tg, st), flagrd(0 if st == 9 else 1), flagchk, wait="s_waitcnt lgkmcnt(0)")
                if i < 2 and xa: A(xa.pop(0)); A(xa.pop(0))
                if i >= (2 if st in (9, 15) else O('wr0', 2)) and wr:
                    A(wr.pop(0))
                    if O('wr2', 0) and i % 2 == 1 and wr: A(wr.pop(0))
                if i in (2, 4, 6, 8) and xl: VM(xl.pop(0).replace(" sc1", "" if O('xplain', 0) else " sc1"), "x%d" % (st + 3))
                if st <= 12 and i == O('pgi', 15) - 6: A("v_mov_b32 v13, %d" % (st + 1))
                if st <= 12 and i == O('pgi', 15): A("ds_write_b32 v3, v13 offset:36")
                if i == 12 and sw: vmwait("x%d" % (st + 1))
                if i >= 12 and ck:
                    x = ck.pop(0)
                    if not O('nochk', 0): A(x)
                if i == 16 and sw and not O('nochk', 0): retry("x%s%d" % (tg, st + 1), xload_txt(st + 1), "\n".join(xchk(st + 1)))
                if i >= 16 and sw:
                    x = sw.pop(0)
                    if not O('nosw', 0): A(x)
                if st == 15:
                    if 8 <= i < 12: A("ds_bpermute_b32 %s, v10, %s" % (v(32 + 2 * (i - 8)), v(80 + 32 + 4 * (i - 8))))
                    if i == 14: A("s_mov_b32 s57, 0xbb000000\ns_waitcnt lgkmcnt(0)")
                    if i in (14, 15):
                        for tau in (2 * (i - 14), 2 * (i - 14) + 1): A("v_mul_f32 %s, s57, %s" % (v(32 + 2 * tau), v(32 + 2 * tau)))
                    if i >= 16:
                        for _ in range(2):
                            if ep: A(ep.pop(0))
            assert not wr and not sw and not xl
            if st == 15: assert not ep
    sv = list(vmq)
    p2loop(False)
    A.label("L_p2join")
    TSTAMP()
    for x in epi[NOV:]: A(x)
    TSTAMP()
    A("s_barrier")
    if O('spinto', 0) and O('spinrole', 1) == 0: A("s_barrier")
    spin(0)
    dump(TS)
    A("s_endpgm")
    A.label("L_p2alt")
    vmq[:] = sv
    p2loop(True)
    A("s_nop 7")
    A("v_and_b32 v10, 3, v2")
    for tau in range(4): A("v_mov_b32 %s, %s" % (v(72 + tau), v(80 + 48 + 32 + 4 * tau)))
    for j in range(1, 4):
        A("v_cmp_eq_u32 vcc, %d, v10" % j)
        for tau in range(4):
            A("v_cndmask_b32 %s, %s, %s, vcc" % (v(72 + tau), v(72 + tau), v(80 + 48 + 32 + 4 * tau + j)))
    A("s_mov_b32 s56, 0x3b000000\ns_mov_b32 s57, 0x3727c5ac")
    for tau in range(4): A("v_mul_f32 %s, s56, %s" % (v(72 + tau), v(72 + tau)))
    for tau in range(4): A("v_fma_f32 %s, -%s, %s, %s" % (v(72 + tau), v(32 + 2 * tau), v(32 + 2 * tau), v(72 + tau)))
    for tau in range(4): A("v_max_f32 %s, 0, %s" % (v(72 + tau), v(72 + tau)))
    for tau in range(4): A("v_add_f32 %s, s57, %s" % (v(72 + tau), v(72 + tau)))
    for tau in range(4): A("v_rcp_f32 %s, %s" % (v(72 + tau), v(72 + tau)))
    A("s_nop 0\nbuffer_store_dwordx4 v[72:75], v179, %s, s91 offen %s" % (WS, WT))
    A("s_branch L_p2join")

    A.label("L_B")
    vmq.clear(); nst[0] = 1; vmq.extend(["stat", "stat", "ssm", "ssm"])
    if O('bprio', 1): A("s_setprio %d" % O('bprio', 1))
    A("s_load_dword s84, %s, 0\ns_lshl_b32 s56, s66, 2\ns_load_dword %s, s[18:19], s56" % (s(S_WS, 2), s(sD)))
    for reg, off in ((S_WD, 72), (S_WG, 56), (S_WU, 64), (S_OUT, 80)):
        A("s_load_dwordx2 %s, s[0:1], %d" % (s(reg, 2), off))
    A(common2)
    for reg, nb in ((S_WD, 1376 * 1024), (S_OUT, 2097152), (S_T, 512 * 2752)):
        A("s_mov_b32 %s, %d\ns_mov_b32 %s, 0x20000" % (s(reg + 2), nb, s(reg + 3)))
    A("""
    s_lshr_b32 s55, s66, 4
    s_lshl_b32 s72, s55, 14
    s_and_b32 s55, s66, 3
    s_lshl_b32 s55, s55, 10
    s_add_u32 s72, s72, s55
    s_bfe_u32 s55, s66, 0x20002
    s_lshl_b32 s55, s55, 8
    s_add_u32 s72, s72, s55
    s_lshl_b32 s55, s3, 19
    s_add_u32 s72, s72, s55
    s_add_u32 s72, s72, %d
    s_add_u32 s73, s72, 0x40000
    v_lshlrev_b32 v63, 4, v2
    v_lshl_add_u32 v63, v4, 12, v63
    v_mov_b32 v64, -1
    v_mov_b32 v65, -1
    v_mov_b32 v66, -1
    v_mov_b32 v67, -1
    """ % HP)
    def hpfill():
        VM("buffer_store_dwordx4 v[64:67], v63, %s, s72 offen %s" % (WS, WT), "fill")
        VM("buffer_store_dwordx4 v[64:67], v63, %s, s73 offen %s" % (WS, WT), "fill")
    hpfill()
    if O('pw', 1):
        A("""
        v_and_b32 v13, 7, v1
        v_lshrrev_b32 v12, 3, v1
        v_mul_u32_u24 v12, %d, v12
        v_lshl_add_u32 v12, v13, 4, v12
        s_lshl_b32 s55, s2, 7
        s_add_u32 s55, s55, %d
        s_cmp_lg_u32 s3, 0
        s_cselect_b32 s55, %s, s55
        """ % (STR, ST, OOB))
        VM("buffer_store_dwordx4 v[40:43], v12, %s, s55 offen %s" % (WS, WT), "pw")
    A(ids)
    A("""
    v_and_b32 v6, 7, v1
    v_xor_b32 v5, s98, v6
    v_lshlrev_b32 v5, 4, v5
    v_lshl_add_u32 v5, v1, 7, v5
    s_lshl_b32 s55, s99, 3
    s_add_u32 s55, s55, %d
    v_add_u32 v5, s55, v5
    v_lshrrev_b32 v7, 3, v1
    s_mov_b32 s55, %d
    v_mul_lo_u32 v8, v7, s55
    v_lshl_add_u32 v8, v6, 4, v8
    v_xor_b32 v6, v6, v7
    v_lshlrev_b32 v6, 4, v6
    v_lshl_add_u32 v6, v7, 7, v6
    s_lshl_b32 s55, s3, 11
    s_add_u32 s55, s55, %d
    v_add_u32 v6, s55, v6
    v_xor_b32 v16, 32, v5
    v_xor_b32 v17, 64, v5
    v_xor_b32 v18, 0x60, v5
    """ % (L_TB, QSTR, L_TB))
    A("""
    s_mul_i32 s55, s3, %d
    s_add_u32 s55, s55, %d
    v_and_b32 v12, 7, v1
    v_lshl_add_u32 v12, v12, 4, s55
    ds_write_b128 v12, v[40:43]
    s_cmp_lg_u32 s99, 0
    s_cbranch_scc1 L_nohead
    v_and_b32 v12, 31, v1
    v_lshlrev_b32 v12, 4, v12
    v_lshrrev_b32 v13, 5, v1
    s_movk_i32 s56, %d
    v_mad_u32_u24 v12, v13, s56, v12
    s_mul_i32 s55, s98, %d
    s_add_u32 s55, s55, %d
    v_add_u32 v12, s55, v12
    ds_write_b128 v12, v[40:43]
    ds_write_b128 v12, v[40:43] offset:%d
    L_nohead:
    """ % (U_STR, L_U, KC_STR, 4 * KC_STR, L_KC, 2 * KC_STR))
    A("""
    s_mul_i32 s55, s3, %d
    s_lshl_b32 s56, s2, 7
    s_add_u32 s55, s55, s56
    s_add_u32 s95, s55, %d
    s_add_u32 s97, s95, %d
    s_movk_i32 s55, 0x2aab
    s_movk_i32 s56, 2752
    """ % (16 * QSTR, QP, 8 * QSTR))
    for i3 in range(3):
        A("""
        v_add_u32 v14, %d, v1
        v_mul_u32_u24 v3, s55, v14
        v_lshrrev_b32 v3, 16, v3
        v_mul_u32_u24 v13, 6, v3
        v_sub_u32 v14, v14, v13
        v_bfe_u32 v13, v3, 2, 2
        v_lshlrev_b32 v13, 3, v13
        v_lshrrev_b32 v12, 4, v3
        v_lshl_add_u32 v13, v12, 2, v13
        v_and_b32 v3, 3, v3
        v_add_u32 v13, v13, v3
        v_mul_u32_u24 v13, s56, v13
        v_lshl_add_u32 %s, v14, 4, v13
        """ % (64 * i3, v(60 + i3)))
    A("""
    s_waitcnt lgkmcnt(0)
    s_bitcmp1_b32 s3, 0
    s_cselect_b32 s48, s32, s28
    s_cselect_b32 s49, s33, s29
    s_add_u32 s69, s88, s98
    s_mul_i32 s70, s87, 88
    s_mul_i32 s76, s99, %d
    s_mul_i32 s56, s98, 3072
    s_add_u32 s76, s76, s56
    s_mul_i32 s56, s98, %d
    s_lshl_b32 s57, s99, 11
    s_add_u32 s56, s56, s57
    s_add_u32 s56, s56, %d
    v_add_u32 v44, s56, v9
    v_add_u32 v45, %d, v44
    v_add_u32 v46, %d, v44
    v_add_u32 v47, %d, v44
    v_mov_b32 v3, FLGA
    """.replace("FLGA", str(L_FLG)) % (L_WU, 4 * KC_STR, L_KC + 512 - 4, KC_STR - 4, 2 * KC_STR - 8, 3 * KC_STR - 12))
    ndma = [0]
    def w1dma(n):
        for _ in range(n):
            i = ndma[0]; ndma[0] += 1
            gi, i3 = divmod(i, 3)
            if i3 == 0: A("s_and_b32 s77, s69, 15\ns_mul_i32 s77, s77, 88064\ns_add_u32 s77, s77, s70\ns_add_u32 s69, s69, 2")
            A("s_add_u32 m0, s76, %d" % (gi * 6144 + i3 * 1024))
            VM("buffer_load_dwordx4 %s, %s, s77 offen %s lds" % (v(60 + i3), srd(S_T), "nt" if i < O('w1nt', 0) else ""), "dma")
    span = 88 * (32 // RBX)
    ntouch = ((span + 8 + 127 + 127) // 128 + 7) // 8
    def w1touch(pos):
        if O('w1tp', 9) != pos: return 0
        A("""
        v_lshrrev_b32 v12, 3, v1
        s_movk_i32 s55, 2752
        v_mul_lo_u32 v12, v12, s55
        v_and_b32 v13, 7, v1
        v_lshlrev_b32 v13, 7, v13
        s_lshl_b32 s55, s5, 1
        s_add_u32 s55, s55, s98
        s_mul_i32 s55, s55, 22016
        s_and_b32 s56, s4, %d
        s_mul_i32 s56, s56, %d
        s_add_u32 s55, s55, s56
        """ % (RBX - 1, span))
        for i in range(ntouch):
            A("v_add_u32 v14, %d, v13\nv_min_u32 v14, %d, v14\nv_add_u32 v14, v14, v12" % (1024 * i, span + 4))
            VM("buffer_load_dword v11, v14, %s, s55 offen %s" % (srd(S_T), "nt" if O('tnt', 0) else ""), "tch")
        return ntouch
    def hfill(pos):
        if O('hfp', 0) != pos: return
        A(haddr(["v68", "v69", "v70"], "v71", ("v12", "v13")))
        for ft in range(3):
            for g in range(2):
                VM("buffer_store_dwordx4 v[64:67], %s, %s, %s offen offset:%d %s" % (v(68 + ft), WS, "s90" if g else "s89", 1024 * ft, WT), "fill")
        VM("buffer_store_dwordx4 v[64:67], v71, %s, s91 offen %s" % (WS, WT), "fill")
        A("v_mov_b32 v13, 1")
    def w1mall(pos):
        if O('w1m', 0) != pos: return 0
        A("s_lshl_b32 s55, s2, 1\ns_add_u32 s55, s55, s98\ns_mul_i32 s55, s55, 2752\nv_lshlrev_b32 v12, 7, v1\ns_mov_b64 exec, 0x3fffff")
        VM("buffer_load_dword v11, v12, %s, s55 offen" % srd(S_T), "tch")
        A("s_mov_b64 exec, -1")
        return 1
    def wdtouch(pos):
        if O('wdtp', 1) != pos: return
        if O('wdtm', 1) == 1:
            A("s_lshl_b32 s55, s2, 2\ns_add_u32 s55, s55, s3\ns_mul_i32 s55, s55, 1408\nv_lshlrev_b32 v12, 7, v1\ns_mov_b64 exec, 0x7ff")
            VM("buffer_load_dword %s, v12, %s, s55 offen" % ("v63" if pos == 4 else "v11", srd(S_WD)), "tch")
            A("s_mov_b64 exec, -1")
        else:
            A("s_lshl_b32 s55, s5, 2\ns_add_u32 s55, s55, s3\ns_mul_i32 s55, s55, 11008\nv_lshlrev_b32 v12, 7, v1")
            VM("buffer_load_dword v11, v12, %s, s55 offen" % srd(S_WD), "tch")
            A("s_add_u32 s55, s55, 8192\ns_mov_b64 exec, 0x3fffff")
            VM("buffer_load_dword v11, v12, %s, s55 offen" % srd(S_WD), "tch")
            A("s_mov_b64 exec, -1")
    TSTAMP()
    w1mall(0); wdtouch(5)
    w1dma(O('nw1a', 0))
    A("v_mov_b32 v21, 0x3f803f80")
    vmwait("stat")
    TSTAMP()
    w1touch(1)
    for i in range(4): A("ds_write2_b32 %s, %s, %s offset0:0 offset1:1" % (("v5", "v16", "v17", "v18")[i], v(32 + i), v(36 + i)))
    A("v_mov_b32 v14, 1\ns_waitcnt lgkmcnt(0)\ns_mov_b64 exec, 1\nds_add_u32 v3, v14 offset:20\ns_mov_b64 exec, -1\ns_add_u32 s84, s84, 1\ns_or_b32 s84, s84, 0x80000000")
    for i in range(4):
        for e in range(2):
            A("v_dot2c_f32_bf16 %s, %s, v21" % (v(42 + e), v(32 + 4 * e + i)))
            A("v_dot2c_f32_bf16 %s, %s, %s" % (v(40 + e), v(32 + 4 * e + i), v(32 + 4 * e + i)))
    for m in ("row_shr:1", "row_shr:2", "row_shr:4", "row_shr:8", "row_bcast:15 row_mask:0xa", "row_bcast:31 row_mask:0xc"):
        for r in range(40, 44):
            A("v_add_f32_dpp %s, %s, %s %s" % (v(r), v(r), v(r), m))
    A("s_mov_b32 s56, 0x3b000000\ns_mov_b32 s57, 0x3727c5ac")
    for r in range(40, 44): A("v_mul_f32 %s, s56, %s" % (v(r), v(r)))
    for e in range(2): A("v_fma_f32 %s, -%s, %s, %s" % (v(40 + e), v(42 + e), v(42 + e), v(40 + e)))
    for e in range(2): A("v_max_f32 %s, 0, %s" % (v(40 + e), v(40 + e)))
    for e in range(2): A("v_add_f32 %s, s57, %s" % (v(40 + e), v(40 + e)))
    for e in range(2): A("v_rsq_f32 %s, %s" % (v(40 + e), v(40 + e)))
    for e in range(2): A("v_mul_f32_e64 %s, -%s, %s" % (v(42 + e), v(42 + e), v(40 + e)))
    A("v_mov_b32 v19, v6\nv_mov_b32 v20, v8")
    qw_txt = "ds_read2_b32 v[12:13], v3 offset0:%d offset1:5" % O('qwait', 5)
    qw_chk = "v_add_u32 v12, v12, v13\nv_cmp_ne_u32 vcc, 8, v12"
    A(qw_txt + "\ns_waitcnt lgkmcnt(0)\n" + qw_chk)
    retry("qw", "s_sleep 1\n" + qw_txt, qw_chk, wait="s_waitcnt lgkmcnt(0)")
    TSTAMP()
    A("ds_read_b128 v[48:51], v19\nds_read_b128 v[52:55], v19 offset:1024\ns_waitcnt lgkmcnt(1)")
    A("buffer_store_dwordx4 v[48:51], v20, %s, s95 offen %s\ns_waitcnt lgkmcnt(0)" % (WS, WT))
    A("buffer_store_dwordx4 v[52:55], v20, %s, s97 offen %s" % (WS, WT))
    vmq.extend(["st"] * 2)
    w1dma(O('nw1b', 0)); nyoung = O('nw1b', 0) + w1mall(1)
    vmwait("ssm")
    for i in range(2):
        b = 24 + 4 * i
        if i == 1: A("v_add_u32 v44, 0x400, v44\nv_add_u32 v46, 0x400, v46")
        for ad in ("v44", "v46"):
            A("ds_write2_b32 %s, %s, %s offset0:0 offset1:1" % (ad, v(b), v(b + 1)))
            A("ds_write2_b32 %s, %s, %s offset0:2 offset1:3" % (ad, v(b + 2), v(b + 3)))
        A("ds_write2_b64 v45, %s, %s offset0:%d offset1:%d" % (v(b, 2), v(b + 2, 2), 128 * i, 128 * i + 1))
        A("ds_write_b128 v47, %s offset:%d" % (v(b, 4), 1024 * i))
    A("v_mov_b32 v14, 1\ns_mov_b64 exec, 1\nds_add_u32 v3, v14 offset:40\ns_mov_b64 exec, -1")
    A("""
    s_lshl_b32 s55, s3, 4
    s_add_u32 s55, s55, %d
    v_mov_b32 v12, s55
    v_mov_b32 v13, %d
    v_mov_b32 v14, 1
    s_mov_b32 exec_lo, 0
    s_mov_b32 exec_hi, 0x80000000
    ds_write_b128 v12, v[40:43]
    s_waitcnt vmcnt(NYOUNG) lgkmcnt(0)
    ds_add_rtn_u32 v14, v13, v14 offset:8
    s_waitcnt lgkmcnt(0)
    v_readfirstlane_b32 s55, v14
    s_mov_b64 exec, -1
    s_cmp_lg_u32 s55, 3
    s_cbranch_scc1 L_nost
    v_and_b32 v12, 3, v1
    v_lshlrev_b32 v12, 4, v12
    ds_read_b128 v[40:43], v12 offset:%%d
    v_and_b32 v13, 7, v1
    v_cmp_lt_u32 vcc, 3, v13
    v_mov_b32 v14, s84
    v_cndmask_b32 v14, 0, v14, vcc
    v_lshrrev_b32 v12, 3, v1
    v_mul_u32_u24 v12, STRIDE, v12
    v_lshl_add_u32 v12, v13, 4, v12
    s_lshl_b32 s55, s2, 7
    s_add_u32 s55, s55, %d
    s_waitcnt lgkmcnt(0)
    v_xor_b32 v40, v14, v40
    v_xor_b32 v41, v14, v41
    v_xor_b32 v42, v14, v42
    v_xor_b32 v43, v14, v43
    s_mov_b64 exec, STEX
    buffer_store_dwordx4 v[40:43], v12, WS, s55 offen WT
    s_mov_b64 exec, -1
    L_nost:
    """.replace("STRIDE", str(STR)).replace("STEX", "-1" if O('strep', 1) else "0xff").replace("WS", WS).replace("WT", WT).replace("NYOUNG", str(nyoung)).replace("v_lshlrev_b32 v12, 4, v12\n    ds_read_b128 v[40:43], v12 offset:%%d", "v_lshlrev_b32 v12, 4, v12\n    v_add_u32 v12, STL, v12\n    ds_read_b128 v[40:43], v12").replace("STL", str(L_FLG + 64)) % (L_FLG + 64, L_FLG, ST)); vmq.clear()
    TSTAMP()
    w1mall(2); wdtouch(6)
    w1dma(O('nw1c', 0))
    A("""
    s_and_b32 s55, s54, 0xffff
    s_lshr_b32 s56, s54, 16
    v_mov_b32 v13, s55
    v_mov_b32 v14, s56
    v_lshl_add_u32 v12, v4, 2, 3
    v_sub_u32 v12, v12, v2
    """)
    for jj in range(4):
        A("v_cmp_eq_u32 vcc, %d, v12\nv_cndmask_b32 %s, 0, v13, vcc\nv_cndmask_b32 %s, 0, v14, vcc" % (jj, v(72 + jj), v(76 + jj)))
    A("""
    v_and_b32 v5, 1, v2
    s_movk_i32 s55, %d
    v_mul_lo_u32 v5, v5, s55
    v_lshrrev_b32 v14, 1, v2
    v_lshl_add_u32 v5, v14, 4, v5
    v_lshl_add_u32 v5, v4, 7, v5
    s_lshl_b32 s56, s3, 10
    s_add_u32 s56, s56, %d
    v_add_u32 v5, s56, v5
    s_lshl_b32 s56, s3, 11
    s_add_u32 s57, s56, %d
    v_add_u32 v6, s57, v9
    v_add_u32 v7, %d, v6
    s_lshr_b32 s68, s66, 2
    s_mul_i32 s68, s68, %d
    s_and_b32 s57, s66, 3
    s_lshl_b32 s57, s57, 5
    s_add_u32 s68, s68, s57
    s_lshl_b32 s58, s3, 13
    s_add_u32 s68, s68, s58
    s_add_u32 s68, s68, %d
    s_add_u32 s60, s68, 0x1000
    s_add_u32 s58, s58, %d
    s_mul_i32 s57, s4, STRX
    s_add_u32 s58, s58, s57
    s_add_u32 s59, s58, 0x1000
    v_lshrrev_b32 v8, 1, v1
    v_lshlrev_b32 v8, 7, v8
    v_and_b32 v14, 1, v1
    v_lshl_add_u32 v10, v14, 4, v8
    v_lshl_add_u32 v8, v14, 5, v8
    s_mul_i32 s61, s99, 49152
    s_lshl_b32 s57, s98, 13
    s_add_u32 s61, s61, s57
    s_add_u32 s61, s61, 0x8000
    v_lshlrev_b32 v14, 3, v1
    v_and_b32 v14, 0x70, v14
    v_xor_b32 v8, v8, v14
    v_add_u32 v8, s61, v8
    v_xor_b32 v57, 16, v8
    v_xor_b32 v58, 64, v8
    v_xor_b32 v59, 0x50, v8
    v_lshlrev_b32 v14, 1, v1
    v_and_b32 v14, 0x70, v14
    v_xor_b32 v56, v9, v14
    """.replace("STRX", str(STR if O('strep', 1) else 0)) % (U_STR, L_U + 8 * 16, L_REDA, L_REDB - L_REDA, QSTR, QP, ST))
    if O('nw1e', 6) or O('wdtp', 1) == 1:
        A("ds_read_b32 v12, v3 offset:24\ns_waitcnt lgkmcnt(0)\nv_cmp_ne_u32 vcc, 4, v12")
        retry("uw", "s_sleep 1\nds_read_b32 v12, v3 offset:24", "v_cmp_ne_u32 vcc, 4, v12", wait="s_waitcnt lgkmcnt(0)")
    st_dma = "s_mov_b32 m0, s61\n" + "\n".join("buffer_load_dwordx4 v56, %s, s58 offen offset:%d sc1 lds" % (WS, 1024 * i) for i in range(4)) + \
             "\ns_add_u32 m0, s61, 0x1000\n" + "\n".join("buffer_load_dwordx4 v56, %s, s59 offen offset:%d sc1 lds" % (WS, 1024 * i) for i in range(4))
    st_rd = "\n".join("ds_read_b128 %s, %s offset:%d" % (v(16 * (1 + cp) + 8 * e + 4 * h, 4), ("v8", "v57", "v58", "v59")[h + 2 * cp], 4096 * e)
                       for e in range(2) for h in range(2) for cp in range(2))
    st_chk = "\n".join(["v_bitop3_b32 %s, %s, %s, s84 bitop3:0x96" % (v(32 + i), v(32 + i), v(16 + i)) for i in range(16)] +
                       ["v_or3_b32 %s, %s, %s, %s" % (v(32 + i), v(32 + i), v(33 + i), v(34 + i)) for i in (0, 3, 6, 9, 12)] +
                       ["v_or3_b32 v32, v32, v35, v38", "v_or3_b32 v41, v41, v44, v47", "v_or_b32 v32, v32, v41", "v_cmp_ne_u32 vcc, 0, v32"])
    if O('stf', 0):
        A("ds_read_b32 v12, v3 offset:8\ns_waitcnt lgkmcnt(0)\nv_cmp_ne_u32 vcc, 4, v12")
        retry("s8", "ds_read_b32 v12, v3 offset:8", "v_cmp_ne_u32 vcc, 4, v12", wait="s_waitcnt lgkmcnt(0)")
        A(st_dma); vmq.extend(["stp"] * 8)
    w1dma(min(O('nw1e', 6), 15 - ndma[0]))
    wdtouch(1)
    A("ds_read_b32 v12, v3 offset:40\ns_waitcnt lgkmcnt(0)\nv_cmp_ne_u32 vcc, 8, v12")
    retry("b4b", "s_sleep 1\nds_read_b32 v12, v3 offset:40", "v_cmp_ne_u32 vcc, 8, v12", wait="s_waitcnt lgkmcnt(0)")
    TSTAMP()
    for e in range(2):
        for c in range(2):
            A("ds_read_b128 %s, v5 offset:%d" % (v(80 + 8 * e + 4 * c, 4), 2 * c * U_STR + 512 * e))
    hfill(1)
    w1dma(O('nw1d', 0))
    A("s_waitcnt lgkmcnt(0)")
    for e in range(2):
        for c in range(2):
            A("%s %s, %s, %s, 0" % (MF, v(96 + 8 * e + 4 * c, 4), v(72 + 4 * c, 4), v(80 + 8 * e + 4 * c, 4)))
    w1dma(O('nw1f', 0))
    if O('lpw', 1) and not O('stf', 0):
        A("ds_read_b32 v12, v3 offset:32\ns_waitcnt lgkmcnt(0)\nv_cmp_eq_u32 vcc, 0, v12")
        retry("lw", "s_sleep 1\nds_read_b32 v12, v3 offset:32", "v_cmp_eq_u32 vcc, 0, v12", wait="s_waitcnt lgkmcnt(0)")
    if not O('stf', 0): A(st_dma); vmq.extend(["stp"] * 8)
    w1dma(min(O('nw1i', 3), 15 - ndma[0]))
    vmwait("stp")
    A(st_rd + "\ns_waitcnt lgkmcnt(0)\n" + st_chk)
    retry("st", "s_sleep %d\n" % O('stsl', 4) + st_dma + "\ns_waitcnt vmcnt(0)\n" + st_rd, st_chk, wait="s_waitcnt lgkmcnt(0)")
    TSTAMP()
    VM("buffer_load_dwordx4 v[48:51], v10, %s, s68 offen sc1" % WS, "qp")
    VM("buffer_load_dwordx4 v[52:55], v10, %s, s60 offen sc1" % WS, "qp")
    wdtouch(2)
    hfill(2)
    w1dma(min(O('nw1g', 6), 15 - ndma[0]))
    if O('nw1z', 0):
        A("v_mov_b32 v14, 1\ns_mov_b64 exec, 1\nds_add_u32 v3, v14 offset:44\ns_mov_b64 exec, -1\nds_read_b32 v12, v3 offset:44\ns_waitcnt lgkmcnt(0)\nv_cmp_ne_u32 vcc, 4, v12")
        retry("sv", "ds_read_b32 v12, v3 offset:44", "v_cmp_ne_u32 vcc, 4, v12", wait="s_waitcnt lgkmcnt(0)")
        w1dma(min(O('nw1z', 0), 24 - ndma[0]))
    vmwait("qp")
    TSTAMP()
    for e in range(2):
        for j in range(4):
            A("v_lshlrev_b32 %s, 16, %s" % (v(112 + 8 * e + j), v(48 + 4 * e + j)))
            A("v_and_b32 %s, s65, %s" % (v(116 + 8 * e + j), v(48 + 4 * e + j)))
    for e in range(2):
        for c in range(2):
            for j in (0, 2):
                A("v_pk_fma_f32 %s, %s, %s, %s" % (v(128 + 8 * e + 4 * c + j, 2), v(112 + 8 * e + 4 * c + j, 2), v(16 + 8 * e + 2 * j, 2), v(18 + 8 * e + 2 * j, 2)))
    w1dma(O('nw1h', 0))
    TSTAMP()
    A("s_barrier")
    TSTAMP()
    for e in range(2):
        for src in range(4):
            A("ds_read_b128 %s, %s offset:%d" % (v(16 + 16 * e + 4 * src, 4), "v7" if src >= 2 else "v6", 8192 * (src & 1) + 1024 * e))
    for e in range(2):
        for c in range(2):
            A("s_waitcnt lgkmcnt(%d)" % (6 - 4 * e - 2 * c))
            for j in (0, 2):
                d = v(96 + 8 * e + 4 * c + j, 2)
                A("v_pk_add_f32 %s, %s, %s" % (d, d, v(16 + 16 * e + 8 * c + j, 2)))
            for j in (0, 2):
                d = v(96 + 8 * e + 4 * c + j, 2)
                A("v_pk_add_f32 %s, %s, %s" % (d, d, v(20 + 16 * e + 8 * c + j, 2)))
            for j in (0, 2):
                d = v(96 + 8 * e + 4 * c + j, 2)
                A("v_pk_fma_f32 %s, %s, %s, %s" % (d, d, v(128 + 8 * e + 4 * c + j, 2), v(112 + 8 * e + 4 * c + j, 2)))
        for j in range(4):
            A("v_cvt_pk_bf16_f32 %s, %s, %s" % (v(48 + 4 * e + j), v(96 + 8 * e + j), v(100 + 8 * e + j)))
        VM("buffer_store_dwordx4 %s, v63, %s, %s offen %s" % (v(48 + 4 * e, 4), WS, "s73" if e else "s72", WT), "hp")
    TSTAMP()
    NB6 = O('nb6', 15)
    wdtouch(3)
    hfill(3)
    w1dma(NB6 - ndma[0])
    A("""
    v_mov_b32 v56, 0x3f803f80
    v_mov_b32 v57, 0x3f803f80
    v_mov_b32 v58, 0x3f803f80
    v_mov_b32 v59, 0x3f803f80
    v_and_b32 v14, 31, v1
    v_mul_u32_u24 v14, 96, v14
    s_add_u32 s55, s76, 88
    v_add_u32 v14, s55, v14
    v_mov_b32 v3, %d
    v_mov_b32 v13, 1
    """ % L_FLG)
    vmwait("dma")
    for i in range(NB6 // 3): A("ds_write_b64 v14, v[56:57] offset:%d" % (6144 * i))
    A("s_waitcnt lgkmcnt(0)\ns_barrier")
    TSTAMP()
    def xtouch(pos):
        if O('xtp', 9) != pos: return
        A("""
        s_and_b32 s55, s87, %d
        s_lshl_b32 s55, s55, 2
        s_add_u32 s55, s55, s3
        s_lshl_b32 s55, s55, 7
        s_lshl_b32 s56, s86, 18
        s_add_u32 s55, s55, s56
        s_add_u32 s55, s55, %d
        v_lshlrev_b32 v12, 12, v1
        """ % (32 // RBX - 1, HP))
        VM("buffer_load_dword v63, v12, %s, s55 offen sc1" % WS, "tch")
    xtouch(0)
    w1dma(24 - NB6)
    xtouch(1)
    A("""
    s_and_b32 s72, s5, 7
    s_lshr_b32 s71, s5, 3
    s_mul_i32 s56, s71, %d
    s_mul_i32 s55, s72, %d
    s_add_u32 s55, s55, s56
    s_sub_u32 s56, s55, 11
    s_cmp_ge_u32 s55, 11
    s_cselect_b32 s55, s56, s55
    s_mul_i32 s56, s3, 11
    s_add_u32 s57, s56, 11
    s_add_u32 s55, s55, s56
    """ % (O('rot4', 0), O('rot3', 0)))
    for i in range(11):
        A("s_lshl_b32 %s, s55, 11\ns_add_u32 s55, s55, 1\ns_cmp_eq_u32 s55, s57\ns_cselect_b32 s55, s56, s55" % s(8 + i))
    A("""
    v_lshrrev_b32 v5, 3, v1
    v_and_b32 v6, 2, v5
    v_lshlrev_b32 v6, 1, v6
    v_and_b32 v7, 7, v1
    v_xor_b32 v6, v6, v7
    v_lshlrev_b32 v5, 10, v5
    v_lshl_add_u32 v5, v6, 4, v5
    s_mul_i32 s92, s3, 12288
    s_add_u32 s92, s92, %d
    v_lshrrev_b32 v6, 2, v1
    v_and_b32 v7, 2, v6
    v_lshlrev_b32 v7, 5, v7
    v_lshlrev_b32 v6, 7, v6
    v_and_b32 v8, 3, v1
    v_lshl_add_u32 v6, v8, 4, v6
    v_add_u32 v6, v6, v7
    s_lshl_b32 s55, s99, 6
    v_xor_b32 v7, s55, v6
    v_xor_b32 v6, 64, v7
    v_add_u32 v6, s92, v6
    v_add_u32 v7, s92, v7
    s_lshl_b32 s93, s72, 7
    v_lshrrev_b32 v10, 2, v1
    v_mul_u32_u24 v10, 96, v10
    v_lshl_add_u32 v10, v8, 3, v10
    s_lshl_b32 s56, s99, 5
    s_add_u32 s56, s56, %d
    v_add_u32 v11, s56, v10
    s_lshl_b32 s55, s3, 5
    s_cmp_eq_u32 s3, 3
    s_cselect_b32 s55, %d, s55
    v_add_u32 v10, s55, v10
    """ % (L_SG, L_WU + 32, L_WU))
    WDR = lambda i, tm: a(16 * i + 4 * tm, 4) if i < 4 else v(72 + 16 * (i - 4) + 4 * tm, 4)
    WDH = lambda i, tm, h: a(16 * i + 4 * tm + 2 * h, 2) if i < 4 else v(72 + 16 * (i - 4) + 4 * tm + 2 * h, 2)
    def wd_issue(i):
        if O('nowd', 0): A("s_mov_b32 s93, %s" % OOB)
        A("s_lshl_b32 s94, %s, 4\ns_add_u32 s94, s94, s93" % s(8 + i))
        for r in range(4):
            A("s_add_u32 m0, s92, %d" % (4096 * (i % 3) + 1024 * r))
            VM("buffer_load_dwordx4 v5, %s, s94 offen lds" % srd(S_WD), "wd%d" % i)
            if r < 3: A("s_add_u32 s94, s94, 0x2000")
    def wd_read(i):
        vmwait("wd%d" % i)
        for tm in range(4):
            for h in range(2):
                A("ds_read_b64_tr_b16 %s, %s offset:%d" % (WDH(i, tm, h), "v6" if tm < 2 else "v7", 4096 * (i % 3) + 2048 * h + 8 * (tm & 1)))
        A("s_waitcnt lgkmcnt(0)")
    def hflag():
        A("""
        s_lshl_b32 s55, s86, 2
        s_add_u32 s55, s55, s3
        s_lshl_b32 s55, s55, 5
        s_add_u32 s55, s55, s87
        s_lshl_b32 s55, s55, 7
        s_add_u32 s55, s55, %d
        v_mov_b32 v64, s84
        v_mov_b32 v65, s84
        v_mov_b32 v66, s84
        v_mov_b32 v67, s84
        s_mov_b64 exec, 0xff
        """ % FH)
        vmwait("fill")
        VM("buffer_store_dwordx4 v[64:67], v9, %s, s55 offen %s" % (WS, WT), "fhs")
        A("s_mov_b64 exec, -1")
    def colsum(k0, k1):
        for st in range(k0, k1 + 2):
            if st < k1:
                b = 16 + 8 * (st & 3)
                for h in range(2): A("ds_read_b64_tr_b16 %s, v10 offset:%d" % (v(b + 2 * h, 2), st * 3072 + h * 1536))
                for h in range(2): A("ds_read_b64_tr_b16 %s, v11 offset:%d" % (v(b + 4 + 2 * h, 2), st * 3072 + h * 1536))
            if st >= k0 + 2:
                pb = 16 + 8 * ((st - 2) & 3)
                A("s_waitcnt lgkmcnt(%d)" % (4 * (min(st, k1 - 1) - (st - 2))))
                A("%s v[48:51], v[56:59], %s, %s" % (MF, v(pb, 4), "v[48:51]" if st > 2 else "0"))
                A("%s v[52:55], v[56:59], %s, %s" % (MF, v(pb + 4, 4), "v[52:55]" if st > 2 else "0"))
    K1 = 2 * (NB6 // 3)
    NWD0 = O('nwd0', 1)
    colsum(0, K1)
    wdtouch(4)
    for i in range(NWD0): wd_issue(i)
    vmwait("dma")
    for i in range(NB6 // 3, 8): A("ds_write_b64 v14, v[56:57] offset:%d" % (6144 * i))
    A("s_waitcnt lgkmcnt(0)\ns_mov_b64 exec, 1\nds_add_u32 v3, v13\ns_mov_b64 exec, -1")
    TSTAMP()
    for i in range(NWD0): wd_read(i)
    A("ds_read_b32 v12, v3\ns_waitcnt lgkmcnt(0)\n" + flagchk)
    retry("fB", "ds_read_b32 v12, v3", flagchk, wait="s_waitcnt lgkmcnt(0)")
    if K1 < 16: colsum(K1, 16)
    HOLD = O('wdhold', 5); LATE = O('late', 3); NE = 11 - LATE
    A("""
    s_lshl_b32 s55, s72, 1
    s_add_u32 s55, s55, s99
    s_lshl_b32 s55, s55, 14
    s_lshl_b32 s56, s71, 12
    s_add_u32 s55, s55, s56
    s_lshl_b32 s56, s98, 3
    s_add_u32 s55, s55, s56
    s_lshl_b32 s56, s4, 18
    s_add_u32 s55, s55, s56
    s_add_u32 s95, s55, %d
    s_lshl_b32 s55, s4, 2
    s_add_u32 s55, s55, s71
    s_lshl_b32 s64, s55, 12
    s_add_u32 s64, s64, %d
    s_lshl_b32 s56, s55, 1
    s_add_u32 s57, s56, s98
    s_xor_b32 s56, s57, 1
    s_mul_i32 s68, s56, %d
    s_mul_i32 s69, s57, %d
    s_add_u32 s68, s68, %d
    s_add_u32 s69, s69, %d
    s_lshl_b32 s77, s55, 16
    s_lshl_b32 s56, s98, 12
    s_add_u32 s77, s77, s56
    s_lshl_b32 s56, s72, 7
    s_add_u32 s77, s77, s56
    s_lshl_b32 s56, s99, 6
    s_add_u32 s77, s77, s56
    s_lshl_b32 s67, s55, 8
    s_lshl_b32 s56, s98, 3
    s_add_u32 s67, s67, s56
    s_add_u32 s67, s67, %d
    s_mul_i32 s97, s3, 12288
    s_add_u32 s97, s97, 49152
    v_add_u32 v14, s97, v9
    s_lshl_b32 s56, s3, 3
    v_add_u32 v8, s56, v1
    v_cmp_lt_u32 vcc, 7, v1
    v_cndmask_b32 v8, v8, 31, vcc
    v_lshlrev_b32 v8, 7, v8
    """ % (HP, FH, HG, HG, HH, HH, R2))
    for i in range(11): A("s_min_u32 %s, %s, %d" % (s(20 + i), s(8 + i), 42 * 2048))
    for k in (1, 2, 3): A("s_xor_b32 s56, s3, %d\ns_mul_i32 s56, s56, 12288\ns_add_u32 %s, s56, %d" % (k, s(31 + k), L_RED3 + (k - 1) * 4096))
    def waitstep(k):
        chk = "v_cmp_gt_u32 vcc, %d, v12" % k
        A("ds_read_b32 v12, v3 offset:36\ns_waitcnt lgkmcnt(0)\n" + chk)
        retry("ws%d" % k, "s_sleep %d\n" % O('bsl', 2) + "ds_read_b32 v12, v3 offset:36", chk, wait="s_waitcnt lgkmcnt(0)")
    A(haddr(["v68", "v69", "v70"], "v71", ("v12", "v13")))
    A("v_mov_b32 v13, 1")
    fl = ["buffer_store_dwordx4 v[64:67], %s, %s, %s offen offset:%d %s" % (v(68 + ft), WS, "s90" if g else "s89", 1024 * ft, WT) for ft in range(3) for g in range(2)]
    fl.append("buffer_store_dwordx4 v[64:67], v71, %s, s91 offen %s" % (WS, WT))
    NP = O('np', 3)
    pieces = [(i, r) for i in range(NWD0, NWD0 + NP) for r in range(4)]
    P0 = O('p0', 1); PEND = O('pend', 13)
    nsteps = PEND - P0
    done_cs = False
    for k in range(P0, PEND):
        waitstep(k)
        if fl:
            VM(fl.pop(0), "fill")
            if len(fl) == 1: VM(fl.pop(0), "fill")
        elif not done_cs and k >= P0 + 7:
            hflag()
            A("""
    s_lshl_b32 s55, s3, 6
    s_add_u32 s55, s55, %d
    v_lshl_add_u32 v10, v2, 2, s55
    s_lshl_b32 s56, s99, 6
    s_add_u32 s56, s56, %d
    v_lshl_add_u32 v11, v2, 2, s56
    ds_write_b32 v10, v48
    ds_write_b32 v11, v52
    s_waitcnt lgkmcnt(0)
    s_mov_b64 exec, 1
    ds_add_u32 v3, v13 offset:4
    s_mov_b64 exec, -1
    """ % (L_CS, L_CS + 256))
            TSTAMP()
            done_cs = True
        want = (len(pieces) + (PEND - k) - 1) // (PEND - k) if (not fl or O('mix', 0)) else 0
        for _ in range(want):
            i, r = pieces.pop(0)
            if r == 0: A("s_lshl_b32 s94, %s, 4\ns_add_u32 s94, s94, s93" % s(8 + i))
            A("s_add_u32 m0, s92, %d" % (4096 * (i % 3) + 1024 * r))
            VM("buffer_load_dwordx4 v5, %s, s94 offen lds" % srd(S_WD), "wd%d" % i)
            if r < 3: A("s_add_u32 s94, s94, 0x2000")
    assert done_cs and not pieces
    TSTAMP()
    waitstep(PEND)
    VM("buffer_load_dword v10, v8, %s, s64 offen sc1" % WS, "fh")
    TSTAMP()
    nx = NWD0 + NP
    for i in range(NWD0, NE):
        wd_read(i)
        while nx < NE and nx <= i + 3: wd_issue(nx); nx += 1
    TSTAMP()
    A("s_waitcnt vmcnt(0)\nv_cmp_ne_u32 vcc, s84, v10")
    retry("fh", "buffer_load_dword v10, v8, %s, s64 offen sc1" % WS, "v_cmp_ne_u32 vcc, s84, v10")
    LB = O('lateb', 0)
    for i in range(NE, NE + LB): wd_issue(i)
    A("s_barrier")
    TSTAMP()
    for i in range(NE + LB, 11): wd_issue(i)
    def late_part():
        for i in range(NE, 11): wd_read(i)
        A("""
        v_lshrrev_b32 v5, 1, v2
        v_lshlrev_b32 v5, 13, v5
        v_and_b32 v12, 1, v2
        v_lshl_add_u32 v5, v12, 10, v5
        v_lshl_add_u32 v5, v4, 4, v5
        v_lshlrev_b32 v12, 4, v2
        v_subrev_u32 v10, 0xc000, v14
        v_add_u32 v6, s32, v9
        v_add_u32 v7, s33, v9
        v_add_u32 v8, s34, v9
        """)
    NR = 6
    HFR = lambda q, o, n: v(16 + 8 * (q % 3) + o, n)
    def acc3(grp, tm, e):
        t = 2 * (tm & 1) + e
        if grp == 1 and tm >= 2: return v(40 + 4 * t, 4)
        if tm < 2: return v(56 + 4 * t, 4)
        return v(40 + 4 * t, 4)
    def hdma_txt(q):
        grp, i = divmod(q, 11)
        return ("s_add_u32 m0, s97, RING\ns_add_u32 s96, %s, %s\nbuffer_load_dwordx4 v9, %s, s96 offen sc1 lds\nbuffer_load_dwordx4 v9, %s, s96 offen offset:1024 sc1 lds" % (
            "s68" if grp == 0 else "s69", s(20 + i), WS, WS)).replace("RING", str(2048 * (q % NR)))
    def hdma(q): A(hdma_txt(q)); vmq.extend(["h%d" % q] * 2)
    def hrd(q): return ["ds_read_b64 %s, %s offset:%d" % (HFR(q, 4 * e + 2 * aa, 2), "v14", 2048 * (q % NR) + 1024 * aa + 8 * e) for e in range(2) for aa in range(2)]
    def hchk(q): return "v_max_u32 v11, %s, %s\nv_cmp_eq_u32 vcc, -1, v11" % (HFR(q, 0, 1), HFR(q, 2, 1))
    def hretry(q):
        last = min(21, q + NR - 1) if O('hre', 1) else q
        if q == 0: last = O('nh0', 6) - 1
        n = 2 * (last - q) if q < 17 else 0
        retry("h%d" % q, "\n".join(hdma_txt(k) for k in range(q, last + 1)) + "\ns_waitcnt vmcnt(%d)\n" % n + "\n".join(hrd(q)), hchk(q), wait="s_waitcnt lgkmcnt(0)")
    NH0 = O('nh0', 6)
    for q in range(NH0): hdma(q)
    late_part()
    vmwait("h0"); A("\n".join(hrd(0))); A("s_waitcnt lgkmcnt(0)"); A(hchk(0)); hretry(0)
    TSTAMP()
    for q in range(NH0, NR): hdma(q)
    vmwait("h1"); A("\n".join(hrd(1)))
    for q in range(22):
        grp, i = divmod(q, 11)
        if q == 11:
            if O('psw', 1):
                for t in range(4): A("ds_write_b128 v7, %s offset:%d" % (v(40 + 4 * t, 4), 1024 * t))
            else:
                A("s_nop 7")
                for t in range(4): A("ds_write_b128 v8, %s offset:%d" % (v(56 + 4 * t, 4), 1024 * t))
                for t in range(4): A("ds_write_b128 v7, %s offset:%d" % (v(40 + 4 * t, 4), 1024 * t))
                A("s_waitcnt lgkmcnt(0)")
        rd = hrd(q + 2) if q + 2 < 22 else []
        if q == 16: A("s_barrier")
        ex = []
        if q == 20: rd = ["ds_read_b128 %s, v10 offset:%d" % (v(104 + 4 * t, 4), L_RED3 + 4096 + 1024 * t) for t in range(8)]
        if q == 21:
            ex = ["v_lshlrev_b32 %s, 16, %s\nv_and_b32 %s, s65, %s" % (v(88 + 8 * e + 2 * j), v(72 + 2 * j + e), v(89 + 8 * e + 2 * j), v(72 + 2 * j + e)) for j in range(4) for e in range(2)]
            A("s_waitcnt vmcnt(0)")
        if O('fine3', 0) and q % 2 == 0: TSTAMP()
        n = 0
        for tm in range(4):
            for e in range(2):
                sw = O('psw', 1) and q == 11
                if sw: A("s_waitcnt lgkmcnt(%d)" % (7 - n))
                A("%s %s, %s, %s, %s" % (MF, acc3(grp, tm, e), WDR(i, tm), HFR(q, 4 * e, 4), acc3(grp, tm, e) if i else "0"))
                if n == 0 and q + NR < 22: hdma(q + NR)
                if sw:
                    if n == 1: A(hchk(q + 1))
                    if n == 3: hretry(q + 1)
                    if n == 7:
                        vmwait("h%d" % (q + 2))
                        while rd: A(rd.pop(0))
                else:
                    if n == 1 and q < 21: A("s_waitcnt lgkmcnt(0)"); A(hchk(q + 1))
                    if n == 3 and q < 21: hretry(q + 1)
                    if n == 3 and rd and q < 20: vmwait("h%d" % (q + 2))
                    if q == 20 and n >= 4 and rd: A(rd.pop(0))
                    if q == 21:
                        A(ex.pop(0))
                        if n >= 4: A("ds_write_b128 v6, %s offset:%d" % (v(56 + 4 * (n - 4), 4), 1024 * (n - 4)))
                    if O('psw', 1) and q == 10:
                        if n == 3:
                            while rd: A(rd.pop(0))
                        if n >= 4: A("ds_write_b128 v8, %s offset:%d" % (v(56 + 4 * (n - 4), 4), 1024 * (n - 4)))
                    if n >= 3 and rd: A(rd.pop(0))
                if n == 2 and q == 17:
                    for j in range(4): A("buffer_load_dwordx2 %s, v9, %s, s95 offen offset:%d sc1" % (v(72 + 2 * j, 2), WS, 1024 * j))
                    A("buffer_load_dwordx2 v[80:81], v12, %s, s67 offen sc1" % WS); vmq.extend(["res"] * 5)
                n += 1
    if O('fine3', 0): TSTAMP()
    A("v_cmp_eq_u32 vcc, -1, v80\ns_waitcnt lgkmcnt(0)")
    retry("r2", "buffer_load_dwordx2 v[80:81], v12, %s, s67 offen sc1" % WS, "v_cmp_eq_u32 vcc, -1, v80")
    if O('fine3', 0): TSTAMP()
    A("s_barrier")
    TSTAMP()
    for t in range(4): A("ds_read_b128 %s, v10 offset:%d" % (v(136 + 4 * t, 4), L_RED3 + 1024 * t))
    for r in range(0, 16, 2): A("v_pk_add_f32 %s, %s, %s" % (v(104 + r, 2), v(104 + r, 2), v(120 + r, 2)))
    for r in range(0, 16, 2): A("v_pk_add_f32 %s, %s, %s" % (v(40 + r, 2), v(40 + r, 2), v(104 + r, 2)))
    A("s_waitcnt lgkmcnt(0)")
    for r in range(0, 16, 2): A("v_pk_add_f32 %s, %s, %s" % (v(40 + r, 2), v(40 + r, 2), v(136 + r, 2)))
    for e in range(2):
        for mt in range(2):
            for j in (0, 2):
                d = v(40 + 8 * mt + 4 * e + j, 2)
                A("v_pk_fma_f32 %s, %s, v[80:81], %s op_sel:[0,%d,0] op_sel_hi:[1,%d,1]" % (d, d, v(88 + 8 * e + 4 * mt + j, 2), e, e))
        for mt in range(2):
            for j in (0, 2):
                A("v_cvt_pk_bf16_f32 %s, %s, %s" % (v(16 + 4 * e + 2 * mt + j // 2), v(40 + 8 * mt + 4 * e + j), v(41 + 8 * mt + 4 * e + j)))
        A("buffer_store_dwordx4 %s, v5, %s, s77 offen offset:%d %s" % (v(16 + 4 * e, 4), srd(S_OUT), 2048 * e, {0: "", 1: "sc0 sc1", 2: "nt"}[O('outf', 0)]))
    A("""
    s_or_b32 s55, s2, s3
    s_cmp_lg_u32 s55, 0
    s_cselect_b32 s55, %s, 0
    v_mov_b32 v14, s84
    s_mov_b64 exec, 1
    buffer_store_dword v14, v9, %s, s55 offen
    s_mov_b64 exec, -1
    """ % (OOB, WS))
    spin(1)
    dump(TS + 0x10000)
    A.label("L_end")
    A("s_endpgm")
    for st_ in stubs:
        A("s_nop 7")
        A(st_)
    A.label("L_codeend")
    A("s_endpgm")
    A.raw(""".section .rodata,"a"
.p2align 6
.amdhsa_kernel %s_kernel
  .amdhsa_next_free_vgpr 256
  .amdhsa_next_free_sgpr 102
  .amdhsa_accum_offset 184
  .amdhsa_group_segment_fixed_size 0
  .amdhsa_kernarg_size 104
  .amdhsa_user_sgpr_count 2
  .amdhsa_user_sgpr_kernarg_segment_ptr 1
  .amdhsa_system_sgpr_workgroup_id_x 1
  .amdhsa_float_denorm_mode_32 3
.end_amdhsa_kernel""" % NAME)
    return A.text()

def parse(args):
    kw = {}; opt = {}
    for x in args:
        k, val = x.split("=")
        if k in ("RBX", "ROT"): kw[k] = int(val)
        elif k in ("NT",): kw[k] = val
        else: opt[k] = int(val)
    return kw, opt

if __name__ == "__main__":
    out = sys.argv[1] if len(sys.argv) > 1 else "cdna_kernels/%s.s" % NAME
    stamp = len(sys.argv) > 2 and sys.argv[2] == "stamp"
    kw, opt = parse(sys.argv[3:])
    open(out, "w").write(gen(stamp, opt=opt, **kw))
    print("wrote", out)
```

```python
import sys
from asm import Asm, v, a, s

NAME = "sequential_preLN__ssm_conv_h3__glu_gated_reglu__prompt"
EP = 0x0; R2 = 0x8000; TS = 0x10000; ST = 0x80000; STR = 0x8100; FU = 0x50000; FH = 0x60000
UP = 0x100000; QP = 0x300000; QSTR = 33024; HP = 0x700000; HH = 0xB00000
WS_BYTES = 0x1400000
HG = 88064
L_WU = 49152
L_KC = 98304; KC_STR = 4640
L_U = L_KC + 8 * KC_STR; U_STR = 4224
L_CS = L_U + 4 * U_STR
L_FLG = L_CS + 384
L_TA = L_FLG + 128
LDS_BYTES = L_TA + 8192
L_TB = L_WU + 40960
L_REDA = L_KC; L_REDB = L_KC + 16384
L_SG = L_KC
L_RED3 = 0
S_K, S_V, S_Q, S_SK, S_SSM, S_WG, S_WU, S_WD, S_OUT, S_WS, S_T = 8, 12, 16, 20, 24, 28, 32, 36, 40, 44, 48
sDP = 52; sD = 54; sPC = 74
BUDGET = 200000
WS = s(S_WS, 4)
MF = "v_mfma_f32_16x16x32_bf16"
OOB = "0x40000000"
WT = "sc0 sc1"
def srd(i): return s(i, 4)
def lines(t): return [x.strip() for x in t.strip().split("\n") if x.strip()]

def gen(stamp=False, RBX=4, ROT=0, NT="", opt=None):
    opt = opt or {}
    O = lambda k, d: opt.get(k, d)
    A = Asm()
    stubs = []
    nst = [0]
    vmq = []
    def TSTAMP():
        if stamp:
            A("s_memtime s[80:81]\ns_waitcnt lgkmcnt(0)\ns_sub_u32 s80, s80, s78\nv_writelane_b32 v15, s80, %d" % nst[0]); nst[0] += 1
    def dump(off):
        if stamp:
            A("s_waitcnt vmcnt(0)"); TSTAMP()
            A("s_cmp_lg_u32 s3, %d\ns_cbranch_scc1 L_end" % O('dw', 0))
            A("s_memrealtime s[80:81]\ns_waitcnt lgkmcnt(0)\nv_writelane_b32 v15, s80, 62\nv_writelane_b32 v15, s82, 63\nv_writelane_b32 v15, s85, 61")
            A("s_lshl_b32 s55, s2, 8\ns_add_u32 s55, s55, %d\nv_lshlrev_b32 v14, 2, v1\nbuffer_store_dword v15, v14, %s, s55 offen" % (off, WS))
    def spin(role):
        if O('spinto', 0) and O('spinrole', 1) == role:
            A("s_cmp_lg_u32 s2, %d\ns_cbranch_scc1 L_nospin\ns_cmp_lg_u32 s3, 0\ns_cbranch_scc1 L_nospin" % O('spinwg', 0))
            if O('spinsel', -1) >= 0: A("v_readlane_b32 s96, v15, %d\ns_nop 3\ns_lshr_b32 s96, s96, 1\ns_add_u32 s96, s96, %d" % (O('spinsel', 0), O('spinto', 0)))
            else: A("s_mov_b32 s96, %d" % O('spinto', 0))
            A("L_spin:\ns_memrealtime s[80:81]\ns_waitcnt lgkmcnt(0)\ns_sub_u32 s80, s80, s82\ns_cmp_lt_u32 s80, s96\ns_cbranch_scc1 L_spin\nL_nospin:")
    def VM(txt, tag):
        A(txt); vmq.append(tag)
    def vmwait(tag, extra=""):
        tags = tag if isinstance(tag, tuple) else (tag,)
        idx = max(i for i, t in enumerate(vmq) if t in tags)
        A("s_waitcnt vmcnt(%d)%s" % (min(63, len(vmq) - 1 - idx), extra))
    def retry(name, reload_txt, chk_txt, wait="s_waitcnt vmcnt(0)"):
        A("s_cbranch_vccnz L_r%s" % name); A.label("L_o%s" % name)
        stubs.append("L_r%s:\ns_sub_u32 s85, s85, 1\ns_cbranch_scc1 L_x%s\n%s\n%s\n%s\ns_cbranch_vccnz L_r%s\ns_branch L_o%s\nL_x%s:\ns_mov_b32 s85, 0\ns_branch L_o%s"
                     % (name, name, reload_txt, wait, chk_txt, name, name, name, name))
    A.raw(open('cdna_kernels/%s.s.ref' % NAME).read().split('; @launch grid')[0].rstrip('\n'))
    A.raw("; @launch grid=(256,1,1) block=(512,1,1) lds=%d" % LDS_BYTES)
    A.raw('.amdgcn_target "amdgcn-amd-amdhsa--gfx950"\n.text\n.globl %s_kernel\n.p2align 8\n.type %s_kernel,@function\n%s_kernel:' % (NAME, NAME, NAME))
    LRB = {1: 0, 2: 1, 4: 2, 8: 3}[RBX]
    for ln in """One persistent launch, 256 workgroups (one per CU), 8 waves each.
Waves 0-3 (A): u = shortconv(k)*v + transposition, long conv as Toeplitz MFMA, GEMM1 (gate/up, LN2 mean folded in, ReGLU).
Waves 4-7 (B): LN1 stats, q transposition, ssm_k/weight staging, conv epilogue (h), GEMM2 + rstd^2 scale + residual.
Cross-workgroup hand-offs go through d_ws with write-through stores and are validated by the data itself
(sentinel pre-fill) or by flag lines carrying a per-launch tag derived from ws[0]; every wait is bounded.""".split("\n"): A.comment(ln)

    A("s_load_dwordx8 s[8:15], s[0:1], 0")
    if stamp: A("s_memtime s[78:79]\ns_memrealtime s[82:83]\nv_mov_b32 v15, 0"); nst[0] += 1
    A("s_cmpk_ge_u32 s2, 0x100\ns_cbranch_scc1 L_end")
    if O('perm', 0):
        A("s_lshr_b32 s4, s2, 3\ns_add_u32 s4, s4, s2\ns_and_b32 s4, s4, 7\ns_and_b32 s2, s2, 0xf8\ns_or_b32 s2, s2, s4")
    A("""
    v_readfirstlane_b32 s6, v0
    s_lshr_b32 s5, s2, 3
    s_and_b32 s4, s2, 7
    s_cmpk_lt_u32 s6, 0x100
    s_cbranch_scc1 L_A0
    s_getpc_b64 %s
    L_pc:
    s_lshl_b32 s55, s5, 11
    v_lshl_add_u32 v10, v0, 3, s55
    v_min_u32 v10, L_codeend-L_pc+2044, v10
    s_mov_b32 exec_lo, 0x10001
    s_mov_b32 exec_hi, exec_lo
    global_load_dword v11, v10, %s offset:-2048
    s_branch L_B0
    L_A0:
    s_lshl_b32 s55, s5, 9
    s_add_u32 s55, s55, s4
    s_lshl_b32 s55, s55, 7
    v_and_b32 v5, 0xb8, v0
    v_and_b32 v10, 7, v0
    v_and_b32 v7, 64, v0
    v_and_b32 v6, 56, v0
    v_add_lshl_u32 v5, v5, v6, 8
    v_lshl_add_u32 v5, v10, 3, v5
    v_add3_u32 v5, v5, v7, s55
    v_max_u32 v6, 0xc00, v5
    s_waitcnt lgkmcnt(0)
    """ % (s(sPC, 2), s(sPC, 2)))
    for j in range(4): VM("global_load_dwordx2 %s, v5, s[10:11] offset:%d %s" % (v(22 + 2 * j, 2), 1024 * j, NT), "k")
    for j in range(4): VM("global_load_dwordx2 %s, v5, s[12:13] offset:%d %s" % (v(30 + 2 * j, 2), 1024 * j, NT), "v")
    for i in range(3): VM("global_load_dwordx2 %s, v6, s[10:11] offset:%d %s" % (v(16 + 2 * i, 2), 1024 * i - 3072, NT), "k")
    A("v_and_b32 v10, 0x3ff, v5\nv_lshlrev_b32 v10, 2, v10")
    VM("global_load_dwordx4 v[48:51], v10, s[14:15]", "k")
    VM("global_load_dwordx4 v[52:55], v10, s[14:15] offset:16", "k")
    A("s_load_dwordx2 %s, s[0:1], 96\ns_barrier\ns_branch L_A" % s(S_WS, 2))
    common = """
    v_and_b32 v1, 63, v0
    v_and_b32 v2, 15, v0
    v_lshrrev_b32 v4, 4, v1
    v_lshlrev_b32 v9, 4, v1
    s_bfe_u32 s3, s6, 0x20006
    s_lshl_b32 s66, s4, 5
    s_add_u32 s66, s66, s5
    s_and_b32 s99, s3, 1
    s_lshr_b32 s98, s3, 1
    """
    common2 = "s_mov_b32 s85, %d\ns_mov_b32 s65, 0xffff0000\ns_mov_b32 %s, %d\ns_mov_b32 %s, 0x20000" % (BUDGET, s(S_WS + 2), WS_BYTES, s(S_WS + 3))
    A.label("L_B0")
    A("s_mov_b64 exec, -1\ns_load_dwordx4 s[16:19], s[0:1], 32\ns_load_dwordx2 %s, s[0:1], 96" % s(S_WS, 2))
    A(common)
    A("""
    v_mov_b32 v40, 0
    v_mov_b32 v41, 0
    v_mov_b32 v42, 0
    v_mov_b32 v43, 0
    v_and_b32 v12, 3, v1
    v_lshlrev_b32 v12, 4, v12
    v_add_u32 v12, %d, v12
    ds_write_b128 v12, v[40:43]
    s_lshl_b32 s57, s2, 13
    s_lshl_b32 s56, s99, 12
    s_add_u32 s57, s57, s56
    s_lshl_b32 s56, s98, 10
    s_add_u32 s57, s57, s56
    s_lshl_b32 s61, s66, 13
    s_lshl_b32 s56, s3, 11
    s_add_u32 s61, s61, s56
    v_add_u32 v5, s57, v9
    v_add_u32 v6, s61, v9
    s_waitcnt lgkmcnt(0)
    s_barrier
    global_load_dwordx4 v[32:35], v5, s[8:9] NT
    global_load_dwordx4 v[36:39], v5, s[8:9] offset:2048 NT
    global_load_dwordx4 v[24:27], v6, s[16:17] NT
    global_load_dwordx4 v[28:31], v6, s[16:17] offset:1024 NT
    s_branch L_B
    """.replace("NT", NT) % L_FLG)
    ids = """
    s_lshr_b32 s55, s4, %d
    s_lshl_b32 s55, s55, %d
    s_and_b32 s60, s5, %d
    s_add_u32 s86, s55, s60
    s_and_b32 s55, s4, %d
    s_mul_i32 s55, s55, %d
    s_lshr_b32 s56, s5, %d
    s_add_u32 s87, s55, s56
    s_mul_i32 s88, s56, %d
    s_mul_i32 s60, s60, %d
    s_add_u32 s88, s88, s60
    s_and_b32 s88, s88, 15
    """ % (LRB, LRB, RBX - 1, RBX - 1, 32 // RBX, LRB, ROT, O('rot2', 16 // RBX))
    def haddr(hv, r2v, tmp):
        return """
        s_lshl_b32 s55, s86, 2
        s_add_u32 s55, s55, s3
        s_mul_i32 s55, s55, %d
        s_mul_i32 s56, s87, 2816
        s_add_u32 s55, s55, s56
        s_add_u32 s89, s55, %d
        s_add_u32 s90, s89, %d
        v_mov_b32 T0, %s
        v_cmp_eq_u32 vcc, 3, v4
        v_cndmask_b32 T1, v9, T0, vcc
        s_cmp_eq_u32 s87, 31
        s_cselect_b64 vcc, -1, 0
        v_cndmask_b32 %s, v9, T1, vcc
        v_cndmask_b32 %s, v9, T0, vcc
        v_cndmask_b32 %s, T1, T0, vcc
        v_lshrrev_b32 T1, 2, v2
        v_lshlrev_b32 %s, 4, v2
        v_cmp_eq_u32 vcc, T1, v4
        v_cndmask_b32 %s, T0, %s, vcc
        s_lshl_b32 s55, s86, 10
        s_lshl_b32 s56, s3, 8
        s_add_u32 s55, s55, s56
        s_add_u32 s55, s55, %d
        s_cmp_eq_u32 s87, 31
        s_cselect_b32 s91, s55, %s
        """.replace("T0", tmp[0]).replace("T1", tmp[1]) % (2 * HG, HH, HG, OOB, hv[0], hv[1], hv[2], r2v, r2v, r2v, R2, OOB)
    def xpose_addr(wr, rd, gv, base):
        return """
        v_and_b32 RD, 7, v2
        v_xor_b32 WR, v4, RD
        v_lshl_add_u32 WR, v2, 3, 0
        v_or_b32 WR, WR, v4
        v_xor_b32 WR, WR, RD
        v_lshlrev_b32 WR, 4, WR
        s_lshl_b32 s55, s3, 11
        s_add_u32 s55, s55, %d
        v_add_u32 WR, s55, WR
        v_lshrrev_b32 RD, 3, v1
        v_xor_b32 RD, RD, v1
        v_lshlrev_b32 RD, 4, RD
        v_add_u32 RD, s55, RD
        v_lshrrev_b32 GV, 2, v1
        v_lshlrev_b32 GV, 13, GV
        v_and_b32 v14, 3, v1
        v_lshl_add_u32 GV, v14, 4, GV
        """.replace("WR", wr).replace("RD", rd).replace("GV", gv) % base

    A.label("L_A")
    A(common); A(common2); A("s_waitcnt lgkmcnt(0)")
    A("s_movk_i32 s55, 0x1000\nv_cmp_gt_u32 s[20:21], s55, v5")
    A("""
    v_and_b32 v133, 7, v1
    v_lshrrev_b32 v134, 3, v1
    v_xor_b32 v132, v134, v133
    v_lshl_add_u32 v132, v133, 4, v132
    v_lshlrev_b32 v132, 4, v132
    s_lshl_b32 s55, s3, 11
    s_add_u32 s55, s55, %d
    v_add_u32 v132, s55, v132
    v_lshlrev_b32 v134, 13, v134
    v_lshl_add_u32 v134, v133, 4, v134
    v_xor_b32 v133, v1, v4
    v_lshlrev_b32 v133, 4, v133
    v_add_u32 v133, s55, v133
    v_xor_b32 v136, 64, v133
    """ % L_TA)
    HV = ["v176", "v177", "v178"]
    A("""
    s_lshl_b32 s55, s4, 18
    s_lshl_b32 s56, s5, 8
    s_add_u32 s55, s55, s56
    s_lshl_b32 s56, s98, 7
    s_add_u32 s55, s55, s56
    s_lshl_b32 s56, s99, 17
    s_add_u32 s55, s55, s56
    s_add_u32 s95, s55, %d
    s_add_u32 s97, s95, 0x10000
    """ % UP)
    if O('pw', 1):
        A("""
        s_lshl_b32 s55, s66, 7
        s_add_u32 s55, s55, %d
        s_cmp_lg_u32 s3, 0
        s_cselect_b32 s55, %s, s55
        v_mov_b32 v140, 0
        v_mov_b32 v141, 0
        v_mov_b32 v142, 0
        v_mov_b32 v143, 0
        s_mov_b64 exec, 0xff
        """ % (FU, OOB))
        VM("buffer_store_dwordx4 v[140:143], v9, %s, s55 offen %s" % (WS, WT), "pw")
        A("s_mov_b64 exec, -1")
    TSTAMP()
    vmwait("k")
    TSTAMP()
    for r in range(16, 22): A("v_cndmask_b32 %s, %s, 0, s[20:21]" % (v(r), v(r)))
    for c in range(4):
        for tap in range(4):
            src = 48 + 2 * c + (tap >> 1); dst = 64 + 4 * tap + c
            A(("v_lshlrev_b32 %s, 16, %s" if tap % 2 == 0 else "v_and_b32 %s, s65, %s") % (v(dst), v(src)))
    for i in range(7):
        for e in range(2):
            src = 16 + 2 * i + e; dst = 80 + 4 * i + 2 * e
            A("v_lshlrev_b32 %s, 16, %s\nv_and_b32 %s, s65, %s" % (v(dst), v(src), v(dst + 1), v(src)))
    for tap in range(4):
        for j in range(4):
            for e in range(2):
                d = v(144 + 4 * j + 2 * e, 2); kk = v(80 + 4 * (j + 3 - tap) + 2 * e, 2); ww = v(64 + 4 * tap + 2 * e, 2)
                if tap == 0: A("v_pk_mul_f32 %s, %s, %s" % (d, kk, ww))
                else: A("v_pk_fma_f32 %s, %s, %s, %s" % (d, kk, ww, d))
    vmwait("v")
    for j in range(4):
        for e in range(2):
            src = 30 + 2 * j + e; dst = 108 + 4 * j + 2 * e
            A("v_lshlrev_b32 %s, 16, %s\nv_and_b32 %s, s65, %s" % (v(dst), v(src), v(dst + 1), v(src)))
    for j in range(4):
        for e in range(2):
            d = 144 + 4 * j + 2 * e
            A("v_pk_mul_f32 %s, %s, %s" % (v(d, 2), v(d, 2), v(108 + 4 * j + 2 * e, 2)))
    for e in range(2):
        for j in range(4):
            d = 144 + 4 * j + 2 * e
            A("v_cvt_pk_bf16_f32 %s, %s, %s" % (v(124 + 4 * e + j), v(d), v(d + 1)))
        A("ds_write_b128 v132, %s offset:%d" % (v(124 + 4 * e, 4), 128 * e))
    A("ds_read_b128 v[16:19], v133\nds_read_b128 v[20:23], v136 offset:1024")
    A("s_waitcnt lgkmcnt(1)")
    A("buffer_store_dwordx4 v[16:19], v134, %s, s95 offen %s" % (WS, WT))
    A("s_waitcnt lgkmcnt(0)")
    A("buffer_store_dwordx4 v[20:23], v134, %s, s97 offen %s" % (WS, WT))
    TSTAMP()
    A("s_load_dword s84, %s, 0" % s(S_WS, 2))
    A(ids)
    A(haddr(HV, "v179", ("v12", "v13")))
    A("""
    s_lshl_b32 s67, s66, 13
    s_lshl_b32 s56, s3, 11
    s_add_u32 s67, s67, s56
    s_add_u32 s67, s67, %d
    s_sub_u32 s59, s67, 4
    s_lshl_b32 s62, s66, 7
    s_add_u32 s62, s62, FUADDR
    s_lshl_b32 s63, s4, 12
    s_add_u32 s63, s63, FUADDR
    s_lshl_b32 s56, s3, 3
    s_sub_u32 s56, s56, 1
    v_add_u32 v8, s56, v1
    v_max_i32 v8, 0, v8
    v_lshlrev_b32 v8, 7, v8
    v_mov_b32 v3, FLGADDR
    s_lshl_b32 s56, s3, 7
    v_xor_b32 v7, 1, v1
    v_add_u32 v7, s56, v7
    v_lshlrev_b32 v7, 3, v7
    v_add_u32 v7, %d, v7
    v_cmp_eq_u32 s[100:101], 0, v0
    s_mov_b32 s64, 0x05040100
    s_mov_b32 s71, 0x07060302
    v_and_b32 v180, 3, v2
    s_movk_i32 s55, %d
    v_mul_lo_u32 v180, v180, s55
    v_lshrrev_b32 v14, 2, v2
    v_lshl_add_u32 v180, v14, 7, v180
    v_lshl_add_u32 v180, v4, 4, v180
    s_mul_i32 s56, s98, %d
    s_lshl_b32 s57, s99, 8
    s_add_u32 s56, s56, s57
    s_add_u32 s56, s56, %d
    v_add_u32 v180, s56, v180
    v_and_b32 v181, 1, v2
    s_movk_i32 s55, %d
    v_mul_lo_u32 v181, v181, s55
    v_lshrrev_b32 v14, 1, v2
    v_lshl_add_u32 v181, v14, 4, v181
    v_lshlrev_b32 v14, 4, v4
    v_sub_u32 v181, v181, v14
    s_mul_i32 s56, s98, %d
    s_sub_u32 s56, s56, s57
    s_add_u32 s56, s56, %d
    v_add_u32 v181, s56, v181
    s_mul_i32 s56, s98, %d
    s_lshl_b32 s57, s99, 13
    s_add_u32 s56, s56, s57
    s_add_u32 s56, s56, %d
    v_add_u32 v182, s56, v9
    """.replace("FUADDR", str(FU)).replace("FLGADDR", str(L_FLG)) % (UP, L_U + 8 * 16, KC_STR, 4 * KC_STR, L_KC + 7 * 16,
           U_STR, 2 * U_STR, L_U + 20 * 16, L_REDB - L_REDA, L_REDA))
    A("s_waitcnt lgkmcnt(0)\ns_add_u32 s84, s84, 1\ns_or_b32 s84, s84, 0x80000000")
    A("v_mov_b32 v24, s84\nv_mov_b32 v25, s84\nv_mov_b32 v26, s84\nv_mov_b32 v27, s84\nv_mov_b32 v14, 1")
    A("""
    s_mov_b64 exec, 1
    s_waitcnt vmcnt(0)
    ds_add_rtn_u32 v14, v3, v14 offset:12
    s_waitcnt lgkmcnt(0)
    v_readfirstlane_b32 s55, v14
    s_mov_b64 exec, 0xff
    s_cmp_lg_u32 s55, 3
    s_cselect_b32 s62, %s, s62
    buffer_store_dwordx4 v[24:27], v9, %s, s62 offen %s
    s_mov_b64 exec, 0x1ff
    """ % (OOB, WS, WT)); vmq.clear()
    TSTAMP()
    if O('fudelay', 0): A("s_sleep %d" % O('fudelay', 0))
    fu_txt = "buffer_load_dword v14, v8, %s, s63 offen sc1" % WS
    fu_chk = "v_cmp_ne_u32 vcc, s84, v14"
    A(fu_txt + "\ns_waitcnt vmcnt(0)\n" + fu_chk)
    retry("up", fu_txt, fu_chk)
    A("s_mov_b64 exec, -1")
    TSTAMP()
    UL = "sc1" if O('upsc', 0) else ""
    A("""buffer_load_dwordx4 v[32:35], v9, WS, s67 offen UL
    buffer_load_dwordx4 v[40:43], v9, WS, s67 offen offset:1024 UL
    buffer_load_dword v36, v9, WS, s59 offen UL
    buffer_load_dword v44, v9, WS, s59 offen offset:1024 UL
    v_mov_b32 v14, 1
    s_mov_b64 exec, 1
    ds_add_u32 v3, v14 offset:24
    s_mov_b64 exec, -1
    s_waitcnt vmcnt(0)""".replace("WS", WS).replace("UL", UL))
    TSTAMP()
    A("v_cndmask_b32 v36, v36, 0, s[100:101]")
    for h in range(2):
        b = 32 + 8 * h
        W_ = lambda i: v(b + 4) if i < 0 else v(b + i)
        for c in range(2):
            for pi in range(2):
                o = 64 + 8 * h + 2 * (2 * c + pi)
                for jj in range(2):
                    lo = 2 + pi - 2 * jj; hi = lo - 1
                    A("v_perm_b32 %s, %s, %s, %s" % (v(o + jj), W_(hi), W_(lo), "s64" if c == 0 else "s71"))
                A("ds_write_b64 v7, %s offset:%d" % (v(o, 2), (2 * c + pi) * U_STR + 512 * h))
    A("v_mov_b32 v14, 1\ns_mov_b64 exec, 1\nds_add_u32 v3, v14 offset:40\ns_mov_b64 exec, -1\nds_read_b32 v12, v3 offset:40\ns_waitcnt lgkmcnt(0)\nv_cmp_ne_u32 vcc, 8, v12")
    retry("b4a", "ds_read_b32 v12, v3 offset:40", "v_cmp_ne_u32 vcc, 8, v12", wait="s_waitcnt lgkmcnt(0)")
    TSTAMP()
    BF = lambda buf, ct: v(16 + 32 * buf + 4 * ct, 4)
    ACC = lambda t: v(80 + 4 * t, 4)
    KF = lambda ph, g: a(32 * (ph & 1) + 4 * g, 4)
    bread = lambda ph, ct: "ds_read_b128 %s, v181 offset:%d" % (BF(ph & 1, ct), 512 * ct + 64 * (3 - ph))
    kread = lambda ph, g: "ds_read_b128 %s, v180 offset:%d" % (KF(ph, g), 512 * g + 64 * ph)
    for i in range(7): A(kread(0, i)); A(bread(0, i))
    p2pre = lines("""v_lshrrev_b32 v5, 2, v1
    v_mul_u32_u24 v5, 96, v5
    v_and_b32 v14, 3, v1
    v_lshl_add_u32 v5, v14, 3, v5
    v_add_u32 v6, %d, v5
    s_lshl_b32 s55, s3, 12
    v_add_u32 v7, s55, v9
    s_lshl_b32 s67, s86, 18
    s_add_u32 s67, s67, %d
    v_lshlrev_b32 v8, 4, v4
    v_add_u32 v8, %d, v8
    v_mov_b32 v3, %d
    v_lshlrev_b32 v10, 2, v2
    v_add_u32 v10, 0xc0, v10""" % (L_WU, HP, L_CS, L_FLG))
    touched = set(); issued = 14
    for ph in range(4):
        if ph in (0, 3): order = [(t - ct, ct) for t in range(8) for ct in range(t + 1)]
        else: order = [(g, ct) for ct in range(8) for g in range(8 - ct)]
        nxt = [x for i in range(8) for x in (kread(ph + 1, i), bread(ph + 1, i))] if ph < 3 else []
        for idx, (g, ct) in enumerate(order):
            t = g + ct
            if ph == 0 and ct == 0:
                need = 2 * (t + 1)
                if t < 7 or True: A("s_waitcnt lgkmcnt(%d)" % min(15, issued - need))
            if ph > 0 and idx == 0: A("s_waitcnt lgkmcnt(0)")
            if 36 * ph + idx == O('lpi', 40): A("v_mov_b32 v14, 1\nds_write_b32 v3, v14 offset:32")
            if ph == 3 and idx == 0: A("v_mov_b32 v14, 1\ns_mov_b64 exec, 1\nds_add_u32 v3, v14 offset:16\ns_mov_b64 exec, -1")
            A("%s %s, %s, %s, %s" % (MF, ACC(t), KF(ph, g), BF(ph & 1, ct), ACC(t) if t in touched else "0"))
            touched.add(t)
            if ph == 3 and idx == 6: A("ds_read_b32 v12, v3 offset:16")
            if ph == 3 and idx == 12: A("s_waitcnt lgkmcnt(0)\nv_cmp_ne_u32 vcc, 4, v12")
            if ph == 3 and idx == 14: retry("kc", "ds_read_b32 v12, v3 offset:16", "v_cmp_ne_u32 vcc, 4, v12", wait="s_waitcnt lgkmcnt(0)")
            if ph == 3 and idx in (15, 17, 19, 21): A("ds_write_b128 v182, %s offset:%d" % (ACC((idx - 15) // 2), 1024 * ((idx - 15) // 2)))
            if ph == 0 and idx == 1: A(kread(0, 7)); A(bread(0, 7)); issued += 2
            if idx >= 16 and nxt:
                A(nxt.pop(0))
                if ph == 0: issued += 1
            if ph == 1 and p2pre: A(p2pre.pop(0))
            if ph == 3 and idx in (23, 28): A("ds_write_b128 v182, %s offset:%d" % (ACC(4 if idx == 23 else 5), 1024 * (4 if idx == 23 else 5)))
        assert not nxt
    A("ds_write_b128 v182, %s offset:%d" % (ACC(6), 1024 * 6))
    A("ds_write_b128 v182, %s offset:%d" % (ACC(7), 1024 * 7))
    A("s_waitcnt lgkmcnt(0)")
    TSTAMP()
    A("s_barrier")
    TSTAMP()
    A("s_barrier")
    TSTAMP()
    XS = lambda st: 16 + 16 * (st & 3)
    AC = lambda arr, ft, tau: v(80 + 48 * arr + 16 * ft + 4 * tau, 4)
    WF = lambda st, arr, ft: 24 * (st & 1) + 12 * arr + 4 * ft
    def xaddr(st): return ["s_add_u32 s55, s88, %d" % st, "s_and_b32 s55, s55, 15", "s_lshl_b32 s55, s55, 14", "s_add_u32 s96, s55, s67"]
    def xlds(st): return ["buffer_load_dwordx4 %s, v7, %s, s96 offen offset:%d sc1" % (v(XS(st) + 4 * j, 4), WS, 1024 * j) for j in range(4)]
    def xload_txt(st): return "\n".join(xaddr(st) + xlds(st)).replace("s96", "s97")
    def xload(st):
        A("\n".join(xaddr(st) + xlds(st))); vmq.extend(["x%d" % st] * 4)
    def xchk(st):
        b = XS(st)
        return ["v_max3_u32 v11, %s, %s, %s" % (v(b), v(b + 4), v(b + 8)), "v_max_u32 v11, v11, %s" % v(b + 12), "v_cmp_eq_u32 vcc, -1, v11"]
    def wreads(st):
        return ["ds_read_b64_tr_b16 %s, %s offset:%d" % (a(WF(st, arr, ft) + 2 * h, 2), "v6" if arr else "v5", st * 3072 + h * 1536 + ft * 32)
                for arr in range(2) for ft in range(3) for h in range(2)]
    def swaps(st):
        b = XS(st)
        return ["v_swap_b32 %s, %s" % (v(b + 4 * j + t), v(b + 4 * t + j)) for j in range(4) for t in range(j + 1, 4)]
    if O('xdelay', 0): A("s_sleep %d" % O('xdelay', 0))
    if O('x3', 0):
        xload(0); xload(1); xload(2)
        for r in wreads(0): A(r)
        vmwait("x0")
        for r in xchk(0): A(r)
        retry("xP", "\n".join(xload_txt(i) for i in range(3)), "\n".join(xchk(0)), wait="s_waitcnt vmcnt(8)")
        TSTAMP()
    else:
        xload(0)
        for r in wreads(0): A(r)
        vmwait("x0")
        for r in xchk(0): A(r)
        if O('xr3', 0):
            A("s_cbranch_vccnz L_rxP")
            xload(1); xload(2)
            A.label("L_oxP")
            stubs.append("L_rxP:\n%s\ns_waitcnt vmcnt(8)\n%s\ns_cbranch_vccz L_oxP\ns_sub_u32 s85, s85, 1\ns_cbranch_scc0 L_rxP\ns_mov_b32 s85, 0\ns_branch L_oxP"
                         % ("\n".join(xload_txt(i) for i in range(3)), "\n".join(xchk(0))))
            TSTAMP()
        else:
            retry("xP", xload_txt(0), "\n".join(xchk(0)))
            TSTAMP()
            xload(1); xload(2)
    for r in swaps(0): A(r)
    if O('aprio', 2): A("s_setprio %d" % O('aprio', 2))
    A("s_cmp_eq_u32 s87, 31\ns_cbranch_scc1 L_p2alt")
    def flagrd(k): return "ds_read_b32 v12, v3 offset:%d" % (4 * k)
    flagchk = "v_cmp_ne_u32 vcc, 4, v12"
    epi = []
    for ft in range(3):
        for g in range(2):
            o = (16, 24, 64)[ft] + 4 * g
            for e in range(2):
                tau = 2 * g + e
                gb = 80 + 16 * ft + 4 * tau; ub = gb + 48
                M = v(32 + 2 * tau, 2)
                for j in (0, 2): epi.append("v_pk_fma_f32 %s, %s, %s, %s op_sel_hi:[1,0,1]" % (v(gb + j, 2), v(40 + 4 * ft + j, 2), M, v(gb + j, 2)))
                for j in (0, 2): epi.append("v_pk_fma_f32 %s, %s, %s, %s op_sel_hi:[1,0,1]" % (v(ub + j, 2), v(52 + 4 * ft + j, 2), M, v(ub + j, 2)))
                for j in range(4): epi.append("v_max_f32 %s, 0, %s" % (v(gb + j), v(gb + j)))
                for j in (0, 2): epi.append("v_pk_mul_f32 %s, %s, %s" % (v(gb + j, 2), v(gb + j, 2), v(ub + j, 2)))
                for j in (0, 2): epi.append("v_cvt_pk_bf16_f32 %s, %s, %s" % (v(o + 2 * e + j // 2), v(gb + j), v(gb + j + 1)))
            epi.append("buffer_store_dwordx4 %s, %s, %s, %s offen offset:%d %s" % (v(o, 4), HV[ft], WS, "s90" if g else "s89", 1024 * ft, WT))
    NOV = O('nov', 16)
    def p2loop(alt):
        for st in range(16):
            ml = []
            ep = list(epi[:NOV])
            for arr, ft in ([(0, 2), (0, 0), (1, 0), (0, 1), (1, 1), (1, 2)] if st == 15 else [(x, y) for x in range(2) for y in range(3)]):
                if True:
                    for tau in range(4):
                        xf = v(XS(st) + 4 * tau, 4)
                        wf = a(WF(st, arr, ft), 4)
                        if alt and arr == 1 and ft == 2: wf = xf
                        ml.append("%s %s, %s, %s, %s" % (MF, AC(arr, ft, tau), wf, xf, AC(arr, ft, tau) if st else "0"))
            wr = wreads(st + 1) if st < 15 else ["ds_read_b128 %s, v8 offset:%d" % (v(40 + 4 * t, 4), 64 * t) for t in range(6)]
            if st in (8, 14): wr = wr + [flagrd(0 if st == 8 else 1)]
            sw = swaps(st + 1) if st < 15 else []
            ck = xchk(st + 1) if st < 15 else []
            xa = xaddr(st + 3) if st + 3 < 16 else []
            xl = xlds(st + 3) if st + 3 < 16 else []
            tg = "b" if alt else "a"
            if O('fine2', 0) and st > 0:
                if alt and st == 1: nst[0] -= 15
                TSTAMP()
            A("s_waitcnt lgkmcnt(0)")
            for i, m in enumerate(ml):
                if i == 0 and st in (9, 15): A(flagchk)
                A(m)
                if i == 1 and st in (9, 15): retry("f%s%d" % (tg, st), flagrd(0 if st == 9 else 1), flagchk, wait="s_waitcnt lgkmcnt(0)")
                if i < 2 and xa: A(xa.pop(0)); A(xa.pop(0))
                if i >= (2 if st in (9, 15) else O('wr0', 2)) and wr:
                    A(wr.pop(0))
                    if O('wr2', 0) and i % 2 == 1 and wr: A(wr.pop(0))
                if i in (2, 4, 6, 8) and xl: VM(xl.pop(0).replace(" sc1", "" if O('xplain', 0) else " sc1"), "x%d" % (st + 3))
                if st <= 12 and i == O('pgi', 15) - 6: A("v_mov_b32 v13, %d" % (st + 1))
                if st <= 12 and i == O('pgi', 15): A("ds_write_b32 v3, v13 offset:36")
                if i == 12 and sw: vmwait("x%d" % (st + 1))
                if i >= 12 and ck:
                    x = ck.pop(0)
                    if not O('nochk', 0): A(x)
                if i == 16 and sw and not O('nochk', 0): retry("x%s%d" % (tg, st + 1), xload_txt(st + 1), "\n".join(xchk(st + 1)))
                if i >= 16 and sw:
                    x = sw.pop(0)
                    if not O('nosw', 0): A(x)
                if st == 15:
                    if 8 <= i < 12: A("ds_bpermute_b32 %s, v10, %s" % (v(32 + 2 * (i - 8)), v(80 + 32 + 4 * (i - 8))))
                    if i == 14: A("s_mov_b32 s57, 0xbb000000\ns_waitcnt lgkmcnt(0)")
                    if i in (14, 15):
                        for tau in (2 * (i - 14), 2 * (i - 14) + 1): A("v_mul_f32 %s, s57, %s" % (v(32 + 2 * tau), v(32 + 2 * tau)))
                    if i >= 16:
                        for _ in range(2):
                            if ep: A(ep.pop(0))
            assert not wr and not sw and not xl
            if st == 15: assert not ep
    sv = list(vmq)
    p2loop(False)
    A.label("L_p2join")
    TSTAMP()
    for x in epi[NOV:]: A(x)
    TSTAMP()
    A("s_barrier")
    if O('spinto', 0) and O('spinrole', 1) == 0: A("s_barrier")
    spin(0)
    dump(TS)
    A("s_endpgm")
    A.label("L_p2alt")
    vmq[:] = sv
    p2loop(True)
    A("s_nop 7")
    A("v_and_b32 v10, 3, v2")
    for tau in range(4): A("v_mov_b32 %s, %s" % (v(72 + tau), v(80 + 48 + 32 + 4 * tau)))
    for j in range(1, 4):
        A("v_cmp_eq_u32 vcc, %d, v10" % j)
        for tau in range(4):
            A("v_cndmask_b32 %s, %s, %s, vcc" % (v(72 + tau), v(72 + tau), v(80 + 48 + 32 + 4 * tau + j)))
    A("s_mov_b32 s56, 0x3b000000\ns_mov_b32 s57, 0x3727c5ac")
    for tau in range(4): A("v_mul_f32 %s, s56, %s" % (v(72 + tau), v(72 + tau)))
    for tau in range(4): A("v_fma_f32 %s, -%s, %s, %s" % (v(72 + tau), v(32 + 2 * tau), v(32 + 2 * tau), v(72 + tau)))
    for tau in range(4): A("v_max_f32 %s, 0, %s" % (v(72 + tau), v(72 + tau)))
    for tau in range(4): A("v_add_f32 %s, s57, %s" % (v(72 + tau), v(72 + tau)))
    for tau in range(4): A("v_rcp_f32 %s, %s" % (v(72 + tau), v(72 + tau)))
    A("s_nop 0\nbuffer_store_dwordx4 v[72:75], v179, %s, s91 offen %s" % (WS, WT))
    A("s_branch L_p2join")

    A.label("L_B")
    vmq.clear(); nst[0] = 1; vmq.extend(["stat", "stat", "ssm", "ssm"])
    if O('bprio', 1): A("s_setprio %d" % O('bprio', 1))
    A("s_load_dword s84, %s, 0\ns_lshl_b32 s56, s66, 2\ns_load_dword %s, s[18:19], s56" % (s(S_WS, 2), s(sD)))
    for reg, off in ((S_WD, 72), (S_WG, 56), (S_WU, 64), (S_OUT, 80)):
        A("s_load_dwordx2 %s, s[0:1], %d" % (s(reg, 2), off))
    A(common2)
    for reg, nb in ((S_WD, 1376 * 1024), (S_OUT, 2097152), (S_T, 512 * 2752)):
        A("s_mov_b32 %s, %d\ns_mov_b32 %s, 0x20000" % (s(reg + 2), nb, s(reg + 3)))
    A("""
    s_lshr_b32 s55, s66, 4
    s_lshl_b32 s72, s55, 14
    s_and_b32 s55, s66, 3
    s_lshl_b32 s55, s55, 10
    s_add_u32 s72, s72, s55
    s_bfe_u32 s55, s66, 0x20002
    s_lshl_b32 s55, s55, 8
    s_add_u32 s72, s72, s55
    s_lshl_b32 s55, s3, 19
    s_add_u32 s72, s72, s55
    s_add_u32 s72, s72, %d
    s_add_u32 s73, s72, 0x40000
    v_lshlrev_b32 v63, 4, v2
    v_lshl_add_u32 v63, v4, 12, v63
    v_mov_b32 v64, -1
    v_mov_b32 v65, -1
    v_mov_b32 v66, -1
    v_mov_b32 v67, -1
    """ % HP)
    def hpfill():
        VM("buffer_store_dwordx4 v[64:67], v63, %s, s72 offen %s" % (WS, WT), "fill")
        VM("buffer_store_dwordx4 v[64:67], v63, %s, s73 offen %s" % (WS, WT), "fill")
    hpfill()
    if O('pw', 1):
        A("""
        v_and_b32 v13, 7, v1
        v_lshrrev_b32 v12, 3, v1
        v_mul_u32_u24 v12, %d, v12
        v_lshl_add_u32 v12, v13, 4, v12
        s_lshl_b32 s55, s2, 7
        s_add_u32 s55, s55, %d
        s_cmp_lg_u32 s3, 0
        s_cselect_b32 s55, %s, s55
        """ % (STR, ST, OOB))
        VM("buffer_store_dwordx4 v[40:43], v12, %s, s55 offen %s" % (WS, WT), "pw")
    A(ids)
    A("""
    v_and_b32 v6, 7, v1
    v_xor_b32 v5, s98, v6
    v_lshlrev_b32 v5, 4, v5
    v_lshl_add_u32 v5, v1, 7, v5
    s_lshl_b32 s55, s99, 3
    s_add_u32 s55, s55, %d
    v_add_u32 v5, s55, v5
    v_lshrrev_b32 v7, 3, v1
    s_mov_b32 s55, %d
    v_mul_lo_u32 v8, v7, s55
    v_lshl_add_u32 v8, v6, 4, v8
    v_xor_b32 v6, v6, v7
    v_lshlrev_b32 v6, 4, v6
    v_lshl_add_u32 v6, v7, 7, v6
    s_lshl_b32 s55, s3, 11
    s_add_u32 s55, s55, %d
    v_add_u32 v6, s55, v6
    v_xor_b32 v16, 32, v5
    v_xor_b32 v17, 64, v5
    v_xor_b32 v18, 0x60, v5
    """ % (L_TB, QSTR, L_TB))
    A("""
    s_mul_i32 s55, s3, %d
    s_add_u32 s55, s55, %d
    v_and_b32 v12, 7, v1
    v_lshl_add_u32 v12, v12, 4, s55
    ds_write_b128 v12, v[40:43]
    s_cmp_lg_u32 s99, 0
    s_cbranch_scc1 L_nohead
    v_and_b32 v12, 31, v1
    v_lshlrev_b32 v12, 4, v12
    v_lshrrev_b32 v13, 5, v1
    s_movk_i32 s56, %d
    v_mad_u32_u24 v12, v13, s56, v12
    s_mul_i32 s55, s98, %d
    s_add_u32 s55, s55, %d
    v_add_u32 v12, s55, v12
    ds_write_b128 v12, v[40:43]
    ds_write_b128 v12, v[40:43] offset:%d
    L_nohead:
    """ % (U_STR, L_U, KC_STR, 4 * KC_STR, L_KC, 2 * KC_STR))
    A("""
    s_mul_i32 s55, s3, %d
    s_lshl_b32 s56, s2, 7
    s_add_u32 s55, s55, s56
    s_add_u32 s95, s55, %d
    s_add_u32 s97, s95, %d
    s_movk_i32 s55, 0x2aab
    s_movk_i32 s56, 2752
    """ % (16 * QSTR, QP, 8 * QSTR))
    for i3 in range(3):
        A("""
        v_add_u32 v14, %d, v1
        v_mul_u32_u24 v3, s55, v14
        v_lshrrev_b32 v3, 16, v3
        v_mul_u32_u24 v13, 6, v3
        v_sub_u32 v14, v14, v13
        v_bfe_u32 v13, v3, 2, 2
        v_lshlrev_b32 v13, 3, v13
        v_lshrrev_b32 v12, 4, v3
        v_lshl_add_u32 v13, v12, 2, v13
        v_and_b32 v3, 3, v3
        v_add_u32 v13, v13, v3
        v_mul_u32_u24 v13, s56, v13
        v_lshl_add_u32 %s, v14, 4, v13
        """ % (64 * i3, v(60 + i3)))
    A("""
    s_waitcnt lgkmcnt(0)
    s_bitcmp1_b32 s3, 0
    s_cselect_b32 s48, s32, s28
    s_cselect_b32 s49, s33, s29
    s_add_u32 s69, s88, s98
    s_mul_i32 s70, s87, 88
    s_mul_i32 s76, s99, %d
    s_mul_i32 s56, s98, 3072
    s_add_u32 s76, s76, s56
    s_mul_i32 s56, s98, %d
    s_lshl_b32 s57, s99, 11
    s_add_u32 s56, s56, s57
    s_add_u32 s56, s56, %d
    v_add_u32 v44, s56, v9
    v_add_u32 v45, %d, v44
    v_add_u32 v46, %d, v44
    v_add_u32 v47, %d, v44
    v_mov_b32 v3, FLGA
    """.replace("FLGA", str(L_FLG)) % (L_WU, 4 * KC_STR, L_KC + 512 - 4, KC_STR - 4, 2 * KC_STR - 8, 3 * KC_STR - 12))
    ndma = [0]
    def w1dma(n):
        for _ in range(n):
            i = ndma[0]; ndma[0] += 1
            gi, i3 = divmod(i, 3)
            if i3 == 0: A("s_and_b32 s77, s69, 15\ns_mul_i32 s77, s77, 88064\ns_add_u32 s77, s77, s70\ns_add_u32 s69, s69, 2")
            A("s_add_u32 m0, s76, %d" % (gi * 6144 + i3 * 1024))
            VM("buffer_load_dwordx4 %s, %s, s77 offen %s lds" % (v(60 + i3), srd(S_T), "nt" if i < O('w1nt', 0) else ""), "dma")
    span = 88 * (32 // RBX)
    ntouch = ((span + 8 + 127 + 127) // 128 + 7) // 8
    def w1touch(pos):
        if O('w1tp', 9) != pos: return 0
        A("""
        v_lshrrev_b32 v12, 3, v1
        s_movk_i32 s55, 2752
        v_mul_lo_u32 v12, v12, s55
        v_and_b32 v13, 7, v1
        v_lshlrev_b32 v13, 7, v13
        s_lshl_b32 s55, s5, 1
        s_add_u32 s55, s55, s98
        s_mul_i32 s55, s55, 22016
        s_and_b32 s56, s4, %d
        s_mul_i32 s56, s56, %d
        s_add_u32 s55, s55, s56
        """ % (RBX - 1, span))
        for i in range(ntouch):
            A("v_add_u32 v14, %d, v13\nv_min_u32 v14, %d, v14\nv_add_u32 v14, v14, v12" % (1024 * i, span + 4))
            VM("buffer_load_dword v11, v14, %s, s55 offen %s" % (srd(S_T), "nt" if O('tnt', 0) else ""), "tch")
        return ntouch
    def hfill(pos):
        if O('hfp', 0) != pos: return
        A(haddr(["v68", "v69", "v70"], "v71", ("v12", "v13")))
        for ft in range(3):
            for g in range(2):
                VM("buffer_store_dwordx4 v[64:67], %s, %s, %s offen offset:%d %s" % (v(68 + ft), WS, "s90" if g else "s89", 1024 * ft, WT), "fill")
        VM("buffer_store_dwordx4 v[64:67], v71, %s, s91 offen %s" % (WS, WT), "fill")
        A("v_mov_b32 v13, 1")
    def w1mall(pos):
        if O('w1m', 0) != pos: return 0
        A("s_lshl_b32 s55, s2, 1\ns_add_u32 s55, s55, s98\ns_mul_i32 s55, s55, 2752\nv_lshlrev_b32 v12, 7, v1\ns_mov_b64 exec, 0x3fffff")
        VM("buffer_load_dword v11, v12, %s, s55 offen" % srd(S_T), "tch")
        A("s_mov_b64 exec, -1")
        return 1
    def wdtouch(pos):
        if O('wdtp', 1) != pos: return
        if O('wdtm', 1) == 1:
            A("s_lshl_b32 s55, s2, 2\ns_add_u32 s55, s55, s3\ns_mul_i32 s55, s55, 1408\nv_lshlrev_b32 v12, 7, v1\ns_mov_b64 exec, 0x7ff")
            VM("buffer_load_dword %s, v12, %s, s55 offen" % ("v63" if pos == 4 else "v11", srd(S_WD)), "tch")
            A("s_mov_b64 exec, -1")
        else:
            A("s_lshl_b32 s55, s5, 2\ns_add_u32 s55, s55, s3\ns_mul_i32 s55, s55, 11008\nv_lshlrev_b32 v12, 7, v1")
            VM("buffer_load_dword v11, v12, %s, s55 offen" % srd(S_WD), "tch")
            A("s_add_u32 s55, s55, 8192\ns_mov_b64 exec, 0x3fffff")
            VM("buffer_load_dword v11, v12, %s, s55 offen" % srd(S_WD), "tch")
            A("s_mov_b64 exec, -1")
    TSTAMP()
    w1mall(0); wdtouch(5); w1touch(0)
    w1dma(O('nw1a', 0))
    A("v_mov_b32 v21, 0x3f803f80")
    vmwait("stat")
    TSTAMP()
    w1touch(1)
    for i in range(4): A("ds_write2_b32 %s, %s, %s offset0:0 offset1:1" % (("v5", "v16", "v17", "v18")[i], v(32 + i), v(36 + i)))
    A("v_mov_b32 v14, 1\ns_waitcnt lgkmcnt(0)\ns_mov_b64 exec, 1\nds_add_u32 v3, v14 offset:20\ns_mov_b64 exec, -1\ns_add_u32 s84, s84, 1\ns_or_b32 s84, s84, 0x80000000")
    for i in range(4):
        for e in range(2):
            A("v_dot2c_f32_bf16 %s, %s, v21" % (v(42 + e), v(32 + 4 * e + i)))
            A("v_dot2c_f32_bf16 %s, %s, %s" % (v(40 + e), v(32 + 4 * e + i), v(32 + 4 * e + i)))
    for m in ("row_shr:1", "row_shr:2", "row_shr:4", "row_shr:8", "row_bcast:15 row_mask:0xa", "row_bcast:31 row_mask:0xc"):
        for r in range(40, 44):
            A("v_add_f32_dpp %s, %s, %s %s" % (v(r), v(r), v(r), m))
    A("s_mov_b32 s56, 0x3b000000\ns_mov_b32 s57, 0x3727c5ac")
    for r in range(40, 44): A("v_mul_f32 %s, s56, %s" % (v(r), v(r)))
    for e in range(2): A("v_fma_f32 %s, -%s, %s, %s" % (v(40 + e), v(42 + e), v(42 + e), v(40 + e)))
    for e in range(2): A("v_max_f32 %s, 0, %s" % (v(40 + e), v(40 + e)))
    for e in range(2): A("v_add_f32 %s, s57, %s" % (v(40 + e), v(40 + e)))
    for e in range(2): A("v_rsq_f32 %s, %s" % (v(40 + e), v(40 + e)))
    for e in range(2): A("v_mul_f32_e64 %s, -%s, %s" % (v(42 + e), v(42 + e), v(40 + e)))
    A("v_mov_b32 v19, v6\nv_mov_b32 v20, v8")
    qw_txt = "ds_read2_b32 v[12:13], v3 offset0:%d offset1:5" % O('qwait', 5)
    qw_chk = "v_add_u32 v12, v12, v13\nv_cmp_ne_u32 vcc, 8, v12"
    A(qw_txt + "\ns_waitcnt lgkmcnt(0)\n" + qw_chk)
    retry("qw", "s_sleep 1\n" + qw_txt, qw_chk, wait="s_waitcnt lgkmcnt(0)")
    TSTAMP()
    A("ds_read_b128 v[48:51], v19\nds_read_b128 v[52:55], v19 offset:1024\ns_waitcnt lgkmcnt(1)")
    A("buffer_store_dwordx4 v[48:51], v20, %s, s95 offen %s\ns_waitcnt lgkmcnt(0)" % (WS, WT))
    A("buffer_store_dwordx4 v[52:55], v20, %s, s97 offen %s" % (WS, WT))
    vmq.extend(["st"] * 2)
    w1dma(O('nw1b', 0)); nyoung = O('nw1b', 0) + w1mall(1)
    vmwait("ssm")
    for i in range(2):
        b = 24 + 4 * i
        if i == 1: A("v_add_u32 v44, 0x400, v44\nv_add_u32 v46, 0x400, v46")
        for ad in ("v44", "v46"):
            A("ds_write2_b32 %s, %s, %s offset0:0 offset1:1" % (ad, v(b), v(b + 1)))
            A("ds_write2_b32 %s, %s, %s offset0:2 offset1:3" % (ad, v(b + 2), v(b + 3)))
        A("ds_write2_b64 v45, %s, %s offset0:%d offset1:%d" % (v(b, 2), v(b + 2, 2), 128 * i, 128 * i + 1))
        A("ds_write_b128 v47, %s offset:%d" % (v(b, 4), 1024 * i))
    A("v_mov_b32 v14, 1\ns_mov_b64 exec, 1\nds_add_u32 v3, v14 offset:40\ns_mov_b64 exec, -1")
    A("""
    s_lshl_b32 s55, s3, 4
    s_add_u32 s55, s55, %d
    v_mov_b32 v12, s55
    v_mov_b32 v13, %d
    v_mov_b32 v14, 1
    s_mov_b32 exec_lo, 0
    s_mov_b32 exec_hi, 0x80000000
    ds_write_b128 v12, v[40:43]
    s_waitcnt vmcnt(NYOUNG) lgkmcnt(0)
    ds_add_rtn_u32 v14, v13, v14 offset:8
    s_waitcnt lgkmcnt(0)
    v_readfirstlane_b32 s55, v14
    s_mov_b64 exec, -1
    s_cmp_lg_u32 s55, 3
    s_cbranch_scc1 L_nost
    v_and_b32 v12, 3, v1
    v_lshlrev_b32 v12, 4, v12
    ds_read_b128 v[40:43], v12 offset:%%d
    v_and_b32 v13, 7, v1
    v_cmp_lt_u32 vcc, 3, v13
    v_mov_b32 v14, s84
    v_cndmask_b32 v14, 0, v14, vcc
    v_lshrrev_b32 v12, 3, v1
    v_mul_u32_u24 v12, STRIDE, v12
    v_lshl_add_u32 v12, v13, 4, v12
    s_lshl_b32 s55, s2, 7
    s_add_u32 s55, s55, %d
    s_waitcnt lgkmcnt(0)
    v_xor_b32 v40, v14, v40
    v_xor_b32 v41, v14, v41
    v_xor_b32 v42, v14, v42
    v_xor_b32 v43, v14, v43
    s_mov_b64 exec, STEX
    buffer_store_dwordx4 v[40:43], v12, WS, s55 offen WT
    s_mov_b64 exec, -1
    L_nost:
    """.replace("STRIDE", str(STR)).replace("STEX", "-1" if O('strep', 1) else "0xff").replace("WS", WS).replace("WT", WT).replace("NYOUNG", str(nyoung)).replace("v_lshlrev_b32 v12, 4, v12\n    ds_read_b128 v[40:43], v12 offset:%%d", "v_lshlrev_b32 v12, 4, v12\n    v_add_u32 v12, STL, v12\n    ds_read_b128 v[40:43], v12").replace("STL", str(L_FLG + 64)) % (L_FLG + 64, L_FLG, ST)); vmq.clear()
    TSTAMP()
    w1mall(2); wdtouch(6)
    w1dma(O('nw1c', 0))
    A("""
    s_and_b32 s55, s54, 0xffff
    s_lshr_b32 s56, s54, 16
    v_mov_b32 v13, s55
    v_mov_b32 v14, s56
    v_lshl_add_u32 v12, v4, 2, 3
    v_sub_u32 v12, v12, v2
    """)
    for jj in range(4):
        A("v_cmp_eq_u32 vcc, %d, v12\nv_cndmask_b32 %s, 0, v13, vcc\nv_cndmask_b32 %s, 0, v14, vcc" % (jj, v(72 + jj), v(76 + jj)))
    A("""
    v_and_b32 v5, 1, v2
    s_movk_i32 s55, %d
    v_mul_lo_u32 v5, v5, s55
    v_lshrrev_b32 v14, 1, v2
    v_lshl_add_u32 v5, v14, 4, v5
    v_lshl_add_u32 v5, v4, 7, v5
    s_lshl_b32 s56, s3, 10
    s_add_u32 s56, s56, %d
    v_add_u32 v5, s56, v5
    s_lshl_b32 s56, s3, 11
    s_add_u32 s57, s56, %d
    v_add_u32 v6, s57, v9
    v_add_u32 v7, %d, v6
    s_lshr_b32 s68, s66, 2
    s_mul_i32 s68, s68, %d
    s_and_b32 s57, s66, 3
    s_lshl_b32 s57, s57, 5
    s_add_u32 s68, s68, s57
    s_lshl_b32 s58, s3, 13
    s_add_u32 s68, s68, s58
    s_add_u32 s68, s68, %d
    s_add_u32 s60, s68, 0x1000
    s_add_u32 s58, s58, %d
    s_mul_i32 s57, s4, STRX
    s_add_u32 s58, s58, s57
    s_add_u32 s59, s58, 0x1000
    v_lshrrev_b32 v8, 1, v1
    v_lshlrev_b32 v8, 7, v8
    v_and_b32 v14, 1, v1
    v_lshl_add_u32 v10, v14, 4, v8
    v_lshl_add_u32 v8, v14, 5, v8
    s_mul_i32 s61, s99, 49152
    s_lshl_b32 s57, s98, 13
    s_add_u32 s61, s61, s57
    s_add_u32 s61, s61, 0x8000
    v_lshlrev_b32 v14, 3, v1
    v_and_b32 v14, 0x70, v14
    v_xor_b32 v8, v8, v14
    v_add_u32 v8, s61, v8
    v_xor_b32 v57, 16, v8
    v_xor_b32 v58, 64, v8
    v_xor_b32 v59, 0x50, v8
    v_lshlrev_b32 v14, 1, v1
    v_and_b32 v14, 0x70, v14
    v_xor_b32 v56, v9, v14
    """.replace("STRX", str(STR if O('strep', 1) else 0)) % (U_STR, L_U + 8 * 16, L_REDA, L_REDB - L_REDA, QSTR, QP, ST))
    if O('nw1e', 6) or O('wdtp', 1) == 1:
        A("ds_read_b32 v12, v3 offset:24\ns_waitcnt lgkmcnt(0)\nv_cmp_ne_u32 vcc, 4, v12")
        retry("uw", "s_sleep 1\nds_read_b32 v12, v3 offset:24", "v_cmp_ne_u32 vcc, 4, v12", wait="s_waitcnt lgkmcnt(0)")
    st_dma = "s_mov_b32 m0, s61\n" + "\n".join("buffer_load_dwordx4 v56, %s, s58 offen offset:%d sc1 lds" % (WS, 1024 * i) for i in range(4)) + \
             "\ns_add_u32 m0, s61, 0x1000\n" + "\n".join("buffer_load_dwordx4 v56, %s, s59 offen offset:%d sc1 lds" % (WS, 1024 * i) for i in range(4))
    st_rd = "\n".join("ds_read_b128 %s, %s offset:%d" % (v(16 * (1 + cp) + 8 * e + 4 * h, 4), ("v8", "v57", "v58", "v59")[h + 2 * cp], 4096 * e)
                       for e in range(2) for h in range(2) for cp in range(2))
    st_chk = "\n".join(["v_bitop3_b32 %s, %s, %s, s84 bitop3:0x96" % (v(32 + i), v(32 + i), v(16 + i)) for i in range(16)] +
                       ["v_or3_b32 %s, %s, %s, %s" % (v(32 + i), v(32 + i), v(33 + i), v(34 + i)) for i in (0, 3, 6, 9, 12)] +
                       ["v_or3_b32 v32, v32, v35, v38", "v_or3_b32 v41, v41, v44, v47", "v_or_b32 v32, v32, v41", "v_cmp_ne_u32 vcc, 0, v32"])
    if O('stf', 0):
        A("ds_read_b32 v12, v3 offset:8\ns_waitcnt lgkmcnt(0)\nv_cmp_ne_u32 vcc, 4, v12")
        retry("s8", "ds_read_b32 v12, v3 offset:8", "v_cmp_ne_u32 vcc, 4, v12", wait="s_waitcnt lgkmcnt(0)")
        A(st_dma); vmq.extend(["stp"] * 8)
    w1dma(min(O('nw1e', 6), 15 - ndma[0]))
    wdtouch(1)
    A("ds_read_b32 v12, v3 offset:40\ns_waitcnt lgkmcnt(0)\nv_cmp_ne_u32 vcc, 8, v12")
    retry("b4b", "s_sleep 1\nds_read_b32 v12, v3 offset:40", "v_cmp_ne_u32 vcc, 8, v12", wait="s_waitcnt lgkmcnt(0)")
    TSTAMP()
    for e in range(2):
        for c in range(2):
            A("ds_read_b128 %s, v5 offset:%d" % (v(80 + 8 * e + 4 * c, 4), 2 * c * U_STR + 512 * e))
    hfill(1)
    w1dma(O('nw1d', 0))
    A("s_waitcnt lgkmcnt(0)")
    for e in range(2):
        for c in range(2):
            A("%s %s, %s, %s, 0" % (MF, v(96 + 8 * e + 4 * c, 4), v(72 + 4 * c, 4), v(80 + 8 * e + 4 * c, 4)))
    w1dma(O('nw1f', 0))
    if O('lpw', 1) and not O('stf', 0):
        A("ds_read_b32 v12, v3 offset:32\ns_waitcnt lgkmcnt(0)\nv_cmp_eq_u32 vcc, 0, v12")
        retry("lw", "s_sleep 1\nds_read_b32 v12, v3 offset:32", "v_cmp_eq_u32 vcc, 0, v12", wait="s_waitcnt lgkmcnt(0)")
    if not O('stf', 0): A(st_dma); vmq.extend(["stp"] * 8)
    w1dma(min(O('nw1i', 3), 15 - ndma[0]))
    vmwait("stp")
    A(st_rd + "\ns_waitcnt lgkmcnt(0)\n" + st_chk)
    retry("st", "s_sleep %d\n" % O('stsl', 4) + st_dma + "\ns_waitcnt vmcnt(0)\n" + st_rd, st_chk, wait="s_waitcnt lgkmcnt(0)")
    TSTAMP()
    VM("buffer_load_dwordx4 v[48:51], v10, %s, s68 offen sc1" % WS, "qp")
    VM("buffer_load_dwordx4 v[52:55], v10, %s, s60 offen sc1" % WS, "qp")
    wdtouch(2)
    hfill(2)
    w1dma(min(O('nw1g', 6), 15 - ndma[0]))
    if O('nw1z', 0):
        A("v_mov_b32 v14, 1\ns_mov_b64 exec, 1\nds_add_u32 v3, v14 offset:44\ns_mov_b64 exec, -1\nds_read_b32 v12, v3 offset:44\ns_waitcnt lgkmcnt(0)\nv_cmp_ne_u32 vcc, 4, v12")
        retry("sv", "ds_read_b32 v12, v3 offset:44", "v_cmp_ne_u32 vcc, 4, v12", wait="s_waitcnt lgkmcnt(0)")
        w1dma(min(O('nw1z', 0), 24 - ndma[0]))
    vmwait("qp")
    TSTAMP()
    for e in range(2):
        for j in range(4):
            A("v_lshlrev_b32 %s, 16, %s" % (v(112 + 8 * e + j), v(48 + 4 * e + j)))
            A("v_and_b32 %s, s65, %s" % (v(116 + 8 * e + j), v(48 + 4 * e + j)))
    for e in range(2):
        for c in range(2):
            for j in (0, 2):
                A("v_pk_fma_f32 %s, %s, %s, %s" % (v(128 + 8 * e + 4 * c + j, 2), v(112 + 8 * e + 4 * c + j, 2), v(16 + 8 * e + 2 * j, 2), v(18 + 8 * e + 2 * j, 2)))
    w1dma(O('nw1h', 0))
    TSTAMP()
    A("s_barrier")
    TSTAMP()
    for e in range(2):
        for src in range(4):
            A("ds_read_b128 %s, %s offset:%d" % (v(16 + 16 * e + 4 * src, 4), "v7" if src >= 2 else "v6", 8192 * (src & 1) + 1024 * e))
    for e in range(2):
        for c in range(2):
            A("s_waitcnt lgkmcnt(%d)" % (6 - 4 * e - 2 * c))
            for j in (0, 2):
                d = v(96 + 8 * e + 4 * c + j, 2)
                A("v_pk_add_f32 %s, %s, %s" % (d, d, v(16 + 16 * e + 8 * c + j, 2)))
            for j in (0, 2):
                d = v(96 + 8 * e + 4 * c + j, 2)
                A("v_pk_add_f32 %s, %s, %s" % (d, d, v(20 + 16 * e + 8 * c + j, 2)))
            for j in (0, 2):
                d = v(96 + 8 * e + 4 * c + j, 2)
                A("v_pk_fma_f32 %s, %s, %s, %s" % (d, d, v(128 + 8 * e + 4 * c + j, 2), v(112 + 8 * e + 4 * c + j, 2)))
        for j in range(4):
            A("v_cvt_pk_bf16_f32 %s, %s, %s" % (v(48 + 4 * e + j), v(96 + 8 * e + j), v(100 + 8 * e + j)))
        VM("buffer_store_dwordx4 %s, v63, %s, %s offen %s" % (v(48 + 4 * e, 4), WS, "s73" if e else "s72", WT), "hp")
    TSTAMP()
    NB6 = O('nb6', 15)
    wdtouch(3)
    hfill(3)
    w1dma(NB6 - ndma[0])
    A("""
    v_mov_b32 v56, 0x3f803f80
    v_mov_b32 v57, 0x3f803f80
    v_mov_b32 v58, 0x3f803f80
    v_mov_b32 v59, 0x3f803f80
    v_and_b32 v14, 31, v1
    v_mul_u32_u24 v14, 96, v14
    s_add_u32 s55, s76, 88
    v_add_u32 v14, s55, v14
    v_mov_b32 v3, %d
    v_mov_b32 v13, 1
    """ % L_FLG)
    vmwait("dma")
    for i in range(NB6 // 3): A("ds_write_b64 v14, v[56:57] offset:%d" % (6144 * i))
    A("s_waitcnt lgkmcnt(0)\ns_barrier")
    TSTAMP()
    def xtouch(pos):
        if O('xtp', 9) != pos: return
        A("""
        s_and_b32 s55, s87, %d
        s_lshl_b32 s55, s55, 2
        s_add_u32 s55, s55, s3
        s_lshl_b32 s55, s55, 7
        s_lshl_b32 s56, s86, 18
        s_add_u32 s55, s55, s56
        s_add_u32 s55, s55, %d
        v_lshlrev_b32 v12, 12, v1
        """ % (32 // RBX - 1, HP))
        VM("buffer_load_dword v63, v12, %s, s55 offen sc1" % WS, "tch")
    xtouch(0)
    w1dma(24 - NB6)
    xtouch(1)
    A("""
    s_and_b32 s72, s5, 7
    s_lshr_b32 s71, s5, 3
    s_mul_i32 s56, s71, %d
    s_mul_i32 s55, s72, %d
    s_add_u32 s55, s55, s56
    s_sub_u32 s56, s55, 11
    s_cmp_ge_u32 s55, 11
    s_cselect_b32 s55, s56, s55
    s_mul_i32 s56, s3, 11
    s_add_u32 s57, s56, 11
    s_add_u32 s55, s55, s56
    """ % (O('rot4', 0), O('rot3', 0)))
    for i in range(11):
        A("s_lshl_b32 %s, s55, 11\ns_add_u32 s55, s55, 1\ns_cmp_eq_u32 s55, s57\ns_cselect_b32 s55, s56, s55" % s(8 + i))
    A("""
    v_lshrrev_b32 v5, 3, v1
    v_and_b32 v6, 2, v5
    v_lshlrev_b32 v6, 1, v6
    v_and_b32 v7, 7, v1
    v_xor_b32 v6, v6, v7
    v_lshlrev_b32 v5, 10, v5
    v_lshl_add_u32 v5, v6, 4, v5
    s_mul_i32 s92, s3, 12288
    s_add_u32 s92, s92, %d
    v_lshrrev_b32 v6, 2, v1
    v_and_b32 v7, 2, v6
    v_lshlrev_b32 v7, 5, v7
    v_lshlrev_b32 v6, 7, v6
    v_and_b32 v8, 3, v1
    v_lshl_add_u32 v6, v8, 4, v6
    v_add_u32 v6, v6, v7
    s_lshl_b32 s55, s99, 6
    v_xor_b32 v7, s55, v6
    v_xor_b32 v6, 64, v7
    v_add_u32 v6, s92, v6
    v_add_u32 v7, s92, v7
    s_lshl_b32 s93, s72, 7
    v_lshrrev_b32 v10, 2, v1
    v_mul_u32_u24 v10, 96, v10
    v_lshl_add_u32 v10, v8, 3, v10
    s_lshl_b32 s56, s99, 5
    s_add_u32 s56, s56, %d
    v_add_u32 v11, s56, v10
    s_lshl_b32 s55, s3, 5
    s_cmp_eq_u32 s3, 3
    s_cselect_b32 s55, %d, s55
    v_add_u32 v10, s55, v10
    """ % (L_SG, L_WU + 32, L_WU))
    WDR = lambda i, tm: a(16 * i + 4 * tm, 4) if i < 4 else v(72 + 16 * (i - 4) + 4 * tm, 4)
    WDH = lambda i, tm, h: a(16 * i + 4 * tm + 2 * h, 2) if i < 4 else v(72 + 16 * (i - 4) + 4 * tm + 2 * h, 2)
    def wd_issue(i):
        if O('nowd', 0): A("s_mov_b32 s93, %s" % OOB)
        A("s_lshl_b32 s94, %s, 4\ns_add_u32 s94, s94, s93" % s(8 + i))
        for r in range(4):
            A("s_add_u32 m0, s92, %d" % (4096 * (i % 3) + 1024 * r))
            VM("buffer_load_dwordx4 v5, %s, s94 offen lds" % srd(S_WD), "wd%d" % i)
            if r < 3: A("s_add_u32 s94, s94, 0x2000")
    def wd_read(i):
        vmwait("wd%d" % i)
        for tm in range(4):
            for h in range(2):
                A("ds_read_b64_tr_b16 %s, %s offset:%d" % (WDH(i, tm, h), "v6" if tm < 2 else "v7", 4096 * (i % 3) + 2048 * h + 8 * (tm & 1)))
        A("s_waitcnt lgkmcnt(0)")
    def hflag():
        A("""
        s_lshl_b32 s55, s86, 2
        s_add_u32 s55, s55, s3
        s_lshl_b32 s55, s55, 5
        s_add_u32 s55, s55, s87
        s_lshl_b32 s55, s55, 7
        s_add_u32 s55, s55, %d
        v_mov_b32 v64, s84
        v_mov_b32 v65, s84
        v_mov_b32 v66, s84
        v_mov_b32 v67, s84
        s_mov_b64 exec, 0xff
        """ % FH)
        vmwait("fill")
        VM("buffer_store_dwordx4 v[64:67], v9, %s, s55 offen %s" % (WS, WT), "fhs")
        A("s_mov_b64 exec, -1")
    def colsum(k0, k1):
        for st in range(k0, k1 + 2):
            if st < k1:
                b = 16 + 8 * (st & 3)
                for h in range(2): A("ds_read_b64_tr_b16 %s, v10 offset:%d" % (v(b + 2 * h, 2), st * 3072 + h * 1536))
                for h in range(2): A("ds_read_b64_tr_b16 %s, v11 offset:%d" % (v(b + 4 + 2 * h, 2), st * 3072 + h * 1536))
            if st >= k0 + 2:
                pb = 16 + 8 * ((st - 2) & 3)
                A("s_waitcnt lgkmcnt(%d)" % (4 * (min(st, k1 - 1) - (st - 2))))
                A("%s v[48:51], v[56:59], %s, %s" % (MF, v(pb, 4), "v[48:51]" if st > 2 else "0"))
                A("%s v[52:55], v[56:59], %s, %s" % (MF, v(pb + 4, 4), "v[52:55]" if st > 2 else "0"))
    K1 = 2 * (NB6 // 3)
    NWD0 = O('nwd0', 1)
    colsum(0, K1)
    wdtouch(4)
    for i in range(NWD0): wd_issue(i)
    vmwait("dma")
    for i in range(NB6 // 3, 8): A("ds_write_b64 v14, v[56:57] offset:%d" % (6144 * i))
    A("s_waitcnt lgkmcnt(0)\ns_mov_b64 exec, 1\nds_add_u32 v3, v13\ns_mov_b64 exec, -1")
    TSTAMP()
    for i in range(NWD0): wd_read(i)
    A("ds_read_b32 v12, v3\ns_waitcnt lgkmcnt(0)\n" + flagchk)
    retry("fB", "ds_read_b32 v12, v3", flagchk, wait="s_waitcnt lgkmcnt(0)")
    if K1 < 16: colsum(K1, 16)
    HOLD = O('wdhold', 5); LATE = O('late', 3); NE = 11 - LATE
    A("""
    s_lshl_b32 s55, s72, 1
    s_add_u32 s55, s55, s99
    s_lshl_b32 s55, s55, 14
    s_lshl_b32 s56, s71, 12
    s_add_u32 s55, s55, s56
    s_lshl_b32 s56, s98, 3
    s_add_u32 s55, s55, s56
    s_lshl_b32 s56, s4, 18
    s_add_u32 s55, s55, s56
    s_add_u32 s95, s55, %d
    s_lshl_b32 s55, s4, 2
    s_add_u32 s55, s55, s71
    s_lshl_b32 s64, s55, 12
    s_add_u32 s64, s64, %d
    s_lshl_b32 s56, s55, 1
    s_add_u32 s57, s56, s98
    s_xor_b32 s56, s57, 1
    s_mul_i32 s68, s56, %d
    s_mul_i32 s69, s57, %d
    s_add_u32 s68, s68, %d
    s_add_u32 s69, s69, %d
    s_lshl_b32 s77, s55, 16
    s_lshl_b32 s56, s98, 12
    s_add_u32 s77, s77, s56
    s_lshl_b32 s56, s72, 7
    s_add_u32 s77, s77, s56
    s_lshl_b32 s56, s99, 6
    s_add_u32 s77, s77, s56
    s_lshl_b32 s67, s55, 8
    s_lshl_b32 s56, s98, 3
    s_add_u32 s67, s67, s56
    s_add_u32 s67, s67, %d
    s_mul_i32 s97, s3, 12288
    s_add_u32 s97, s97, 49152
    v_add_u32 v14, s97, v9
    s_lshl_b32 s56, s3, 3
    v_add_u32 v8, s56, v1
    v_cmp_lt_u32 vcc, 7, v1
    v_cndmask_b32 v8, v8, 31, vcc
    v_lshlrev_b32 v8, 7, v8
    """ % (HP, FH, HG, HG, HH, HH, R2))
    for i in range(11): A("s_min_u32 %s, %s, %d" % (s(20 + i), s(8 + i), 42 * 2048))
    for k in (1, 2, 3): A("s_xor_b32 s56, s3, %d\ns_mul_i32 s56, s56, 12288\ns_add_u32 %s, s56, %d" % (k, s(31 + k), L_RED3 + (k - 1) * 4096))
    def waitstep(k):
        chk = "v_cmp_gt_u32 vcc, %d, v12" % k
        A("ds_read_b32 v12, v3 offset:36\ns_waitcnt lgkmcnt(0)\n" + chk)
        retry("ws%d" % k, "s_sleep %d\n" % O('bsl', 2) + "ds_read_b32 v12, v3 offset:36", chk, wait="s_waitcnt lgkmcnt(0)")
    A(haddr(["v68", "v69", "v70"], "v71", ("v12", "v13")))
    A("v_mov_b32 v13, 1")
    fl = ["buffer_store_dwordx4 v[64:67], %s, %s, %s offen offset:%d %s" % (v(68 + ft), WS, "s90" if g else "s89", 1024 * ft, WT) for ft in range(3) for g in range(2)]
    fl.append("buffer_store_dwordx4 v[64:67], v71, %s, s91 offen %s" % (WS, WT))
    NP = O('np', 3)
    pieces = [(i, r) for i in range(NWD0, NWD0 + NP) for r in range(4)]
    P0 = O('p0', 1); PEND = O('pend', 13)
    nsteps = PEND - P0
    done_cs = False
    for k in range(P0, PEND):
        waitstep(k)
        if fl:
            VM(fl.pop(0), "fill")
            if len(fl) == 1: VM(fl.pop(0), "fill")
        elif not done_cs and k >= P0 + 7:
            hflag()
            A("""
    s_lshl_b32 s55, s3, 6
    s_add_u32 s55, s55, %d
    v_lshl_add_u32 v10, v2, 2, s55
    s_lshl_b32 s56, s99, 6
    s_add_u32 s56, s56, %d
    v_lshl_add_u32 v11, v2, 2, s56
    ds_write_b32 v10, v48
    ds_write_b32 v11, v52
    s_waitcnt lgkmcnt(0)
    s_mov_b64 exec, 1
    ds_add_u32 v3, v13 offset:4
    s_mov_b64 exec, -1
    """ % (L_CS, L_CS + 256))
            TSTAMP()
            done_cs = True
        want = (len(pieces) + (PEND - k) - 1) // (PEND - k) if (not fl or O('mix', 0)) else 0
        for _ in range(want):
            i, r = pieces.pop(0)
            if r == 0: A("s_lshl_b32 s94, %s, 4\ns_add_u32 s94, s94, s93" % s(8 + i))
            A("s_add_u32 m0, s92, %d" % (4096 * (i % 3) + 1024 * r))
            VM("buffer_load_dwordx4 v5, %s, s94 offen lds" % srd(S_WD), "wd%d" % i)
            if r < 3: A("s_add_u32 s94, s94, 0x2000")
    assert done_cs and not pieces
    TSTAMP()
    waitstep(PEND)
    VM("buffer_load_dword v10, v8, %s, s64 offen sc1" % WS, "fh")
    TSTAMP()
    nx = NWD0 + NP
    for i in range(NWD0, NE):
        wd_read(i)
        while nx < NE and nx <= i + 3: wd_issue(nx); nx += 1
    TSTAMP()
    A("s_waitcnt vmcnt(0)\nv_cmp_ne_u32 vcc, s84, v10")
    retry("fh", "buffer_load_dword v10, v8, %s, s64 offen sc1" % WS, "v_cmp_ne_u32 vcc, s84, v10")
    LB = O('lateb', 0)
    for i in range(NE, NE + LB): wd_issue(i)
    A("s_barrier")
    TSTAMP()
    for i in range(NE + LB, 11): wd_issue(i)
    def late_part():
        for i in range(NE, 11): wd_read(i)
        A("""
        v_lshrrev_b32 v5, 1, v2
        v_lshlrev_b32 v5, 13, v5
        v_and_b32 v12, 1, v2
        v_lshl_add_u32 v5, v12, 10, v5
        v_lshl_add_u32 v5, v4, 4, v5
        v_lshlrev_b32 v12, 4, v2
        v_subrev_u32 v10, 0xc000, v14
        v_add_u32 v6, s32, v9
        v_add_u32 v7, s33, v9
        v_add_u32 v8, s34, v9
        """)
    NR = 6
    HFR = lambda q, o, n: v(16 + 8 * (q % 3) + o, n)
    def acc3(grp, tm, e):
        t = 2 * (tm & 1) + e
        if grp == 1 and tm >= 2: return v(40 + 4 * t, 4)
        if tm < 2: return v(56 + 4 * t, 4)
        return v(40 + 4 * t, 4)
    def hdma_txt(q):
        grp, i = divmod(q, 11)
        return ("s_add_u32 m0, s97, RING\ns_add_u32 s96, %s, %s\nbuffer_load_dwordx4 v9, %s, s96 offen sc1 lds\nbuffer_load_dwordx4 v9, %s, s96 offen offset:1024 sc1 lds" % (
            "s68" if grp == 0 else "s69", s(20 + i), WS, WS)).replace("RING", str(2048 * (q % NR)))
    def hdma(q): A(hdma_txt(q)); vmq.extend(["h%d" % q] * 2)
    def hrd(q): return ["ds_read_b64 %s, %s offset:%d" % (HFR(q, 4 * e + 2 * aa, 2), "v14", 2048 * (q % NR) + 1024 * aa + 8 * e) for e in range(2) for aa in range(2)]
    def hchk(q): return "v_max_u32 v11, %s, %s\nv_cmp_eq_u32 vcc, -1, v11" % (HFR(q, 0, 1), HFR(q, 2, 1))
    def hretry(q):
        last = min(21, q + NR - 1) if O('hre', 1) else q
        if q == 0: last = O('nh0', 6) - 1
        n = 2 * (last - q) if q < 17 else 0
        retry("h%d" % q, "\n".join(hdma_txt(k) for k in range(q, last + 1)) + "\ns_waitcnt vmcnt(%d)\n" % n + "\n".join(hrd(q)), hchk(q), wait="s_waitcnt lgkmcnt(0)")
    NH0 = O('nh0', 6)
    for q in range(NH0): hdma(q)
    late_part()
    vmwait("h0"); A("\n".join(hrd(0))); A("s_waitcnt lgkmcnt(0)"); A(hchk(0)); hretry(0)
    TSTAMP()
    for q in range(NH0, NR): hdma(q)
    vmwait("h1"); A("\n".join(hrd(1)))
    for q in range(22):
        grp, i = divmod(q, 11)
        if q == 11:
            if O('psw', 1):
                for t in range(4): A("ds_write_b128 v7, %s offset:%d" % (v(40 + 4 * t, 4), 1024 * t))
            else:
                A("s_nop 7")
                for t in range(4): A("ds_write_b128 v8, %s offset:%d" % (v(56 + 4 * t, 4), 1024 * t))
                for t in range(4): A("ds_write_b128 v7, %s offset:%d" % (v(40 + 4 * t, 4), 1024 * t))
                A("s_waitcnt lgkmcnt(0)")
        rd = hrd(q + 2) if q + 2 < 22 else []
        if q == 16: A("s_barrier")
        ex = []
        if q == 20: rd = ["ds_read_b128 %s, v10 offset:%d" % (v(104 + 4 * t, 4), L_RED3 + 4096 + 1024 * t) for t in range(8)]
        if q == 21:
            ex = ["v_lshlrev_b32 %s, 16, %s\nv_and_b32 %s, s65, %s" % (v(88 + 8 * e + 2 * j), v(72 + 2 * j + e), v(89 + 8 * e + 2 * j), v(72 + 2 * j + e)) for j in range(4) for e in range(2)]
            A("s_waitcnt vmcnt(0)")
        if O('fine3', 0) and q % 2 == 0: TSTAMP()
        n = 0
        for tm in range(4):
            for e in range(2):
                sw = O('psw', 1) and q == 11
                if sw: A("s_waitcnt lgkmcnt(%d)" % (7 - n))
                A("%s %s, %s, %s, %s" % (MF, acc3(grp, tm, e), WDR(i, tm), HFR(q, 4 * e, 4), acc3(grp, tm, e) if i else "0"))
                if n == 0 and q + NR < 22: hdma(q + NR)
                if sw:
                    if n == 1: A(hchk(q + 1))
                    if n == 3: hretry(q + 1)
                    if n == 7:
                        vmwait("h%d" % (q + 2))
                        while rd: A(rd.pop(0))
                else:
                    if n == 1 and q < 21: A("s_waitcnt lgkmcnt(0)"); A(hchk(q + 1))
                    if n == 3 and q < 21: hretry(q + 1)
                    if n == 3 and rd and q < 20: vmwait("h%d" % (q + 2))
                    if q == 20 and n >= 4 and rd: A(rd.pop(0))
                    if q == 21:
                        A(ex.pop(0))
                        if n >= 4: A("ds_write_b128 v6, %s offset:%d" % (v(56 + 4 * (n - 4), 4), 1024 * (n - 4)))
                    if O('psw', 1) and q == 10:
                        if n == 3:
                            while rd: A(rd.pop(0))
                        if n >= 4: A("ds_write_b128 v8, %s offset:%d" % (v(56 + 4 * (n - 4), 4), 1024 * (n - 4)))
                    if n >= 3 and rd: A(rd.pop(0))
                if n == 2 and q == 17:
                    for j in range(4): A("buffer_load_dwordx2 %s, v9, %s, s95 offen offset:%d sc1" % (v(72 + 2 * j, 2), WS, 1024 * j))
                    A("buffer_load_dwordx2 v[80:81], v12, %s, s67 offen sc1" % WS); vmq.extend(["res"] * 5)
                n += 1
    if O('fine3', 0): TSTAMP()
    A("v_cmp_eq_u32 vcc, -1, v80\ns_waitcnt lgkmcnt(0)")
    retry("r2", "buffer_load_dwordx2 v[80:81], v12, %s, s67 offen sc1" % WS, "v_cmp_eq_u32 vcc, -1, v80")
    if O('fine3', 0): TSTAMP()
    A("s_barrier")
    TSTAMP()
    for t in range(4): A("ds_read_b128 %s, v10 offset:%d" % (v(136 + 4 * t, 4), L_RED3 + 1024 * t))
    for r in range(0, 16, 2): A("v_pk_add_f32 %s, %s, %s" % (v(104 + r, 2), v(104 + r, 2), v(120 + r, 2)))
    for r in range(0, 16, 2): A("v_pk_add_f32 %s, %s, %s" % (v(40 + r, 2), v(40 + r, 2), v(104 + r, 2)))
    A("s_waitcnt lgkmcnt(0)")
    for r in range(0, 16, 2): A("v_pk_add_f32 %s, %s, %s" % (v(40 + r, 2), v(40 + r, 2), v(136 + r, 2)))
    for e in range(2):
        for mt in range(2):
            for j in (0, 2):
                d = v(40 + 8 * mt + 4 * e + j, 2)
                A("v_pk_fma_f32 %s, %s, v[80:81], %s op_sel:[0,%d,0] op_sel_hi:[1,%d,1]" % (d, d, v(88 + 8 * e + 4 * mt + j, 2), e, e))
        for mt in range(2):
            for j in (0, 2):
                A("v_cvt_pk_bf16_f32 %s, %s, %s" % (v(16 + 4 * e + 2 * mt + j // 2), v(40 + 8 * mt + 4 * e + j), v(41 + 8 * mt + 4 * e + j)))
        A("buffer_store_dwordx4 %s, v5, %s, s77 offen offset:%d %s" % (v(16 + 4 * e, 4), srd(S_OUT), 2048 * e, {0: "", 1: "sc0 sc1", 2: "nt"}[O('outf', 0)]))
    A("""
    s_or_b32 s55, s2, s3
    s_cmp_lg_u32 s55, 0
    s_cselect_b32 s55, %s, 0
    v_mov_b32 v14, s84
    s_mov_b64 exec, 1
    buffer_store_dword v14, v9, %s, s55 offen
    s_mov_b64 exec, -1
    """ % (OOB, WS))
    spin(1)
    dump(TS + 0x10000)
    A.label("L_end")
    A("s_endpgm")
    for st_ in stubs:
        A("s_nop 7")
        A(st_)
    A.label("L_codeend")
    A("s_endpgm")
    A.raw(""".section .rodata,"a"
.p2align 6
.amdhsa_kernel %s_kernel
  .amdhsa_next_free_vgpr 256
  .amdhsa_next_free_sgpr 102
  .amdhsa_accum_offset 184
  .amdhsa_group_segment_fixed_size 0
  .amdhsa_kernarg_size 104
  .amdhsa_user_sgpr_count 2
  .amdhsa_user_sgpr_kernarg_segment_ptr 1
  .amdhsa_system_sgpr_workgroup_id_x 1
  .amdhsa_float_denorm_mode_32 3
.end_amdhsa_kernel""" % NAME)
    return A.text()

def parse(args):
    kw = {}; opt = {}
    for x in args:
        k, val = x.split("=")
        if k in ("RBX", "ROT"): kw[k] = int(val)
        elif k in ("NT",): kw[k] = val
        else: opt[k] = int(val)
    return kw, opt

if __name__ == "__main__":
    out = sys.argv[1] if len(sys.argv) > 1 else "cdna_kernels/%s.s" % NAME
    stamp = len(sys.argv) > 2 and sys.argv[2] == "stamp"
    kw, opt = parse(sys.argv[3:])
    open(out, "w").write(gen(stamp, opt=opt, **kw))
    print("wrote", out)
```

```python
import sys
from asm import Asm, v, a, s

NAME = "sequential_preLN__ssm_conv_h3__glu_gated_reglu__prompt"
EP = 0x0; R2 = 0x8000; TS = 0x10000; ST = 0x80000; STR = 0x8100; FU = 0x50000; FH = 0x60000
UP = 0x100000; QP = 0x300000; QSTR = 33024; HP = 0x700000; HH = 0xB00000
WS_BYTES = 0x1400000
HG = 88064
L_WU = 49152
L_KC = 98304; KC_STR = 4640
L_U = L_KC + 8 * KC_STR; U_STR = 4224
L_CS = L_U + 4 * U_STR
L_FLG = L_CS + 384
L_TA = L_FLG + 128
LDS_BYTES = L_TA + 8192
L_TB = L_WU + 40960
L_REDA = L_KC; L_REDB = L_KC + 16384
L_SG = L_KC
L_RED3 = 0
S_K, S_V, S_Q, S_SK, S_SSM, S_WG, S_WU, S_WD, S_OUT, S_WS, S_T = 8, 12, 16, 20, 24, 28, 32, 36, 40, 44, 48
sDP = 52; sD = 54; sPC = 74
BUDGET = 200000
WS = s(S_WS, 4)
MF = "v_mfma_f32_16x16x32_bf16"
OOB = "0x40000000"
WT = "sc0 sc1"
def srd(i): return s(i, 4)
def lines(t): return [x.strip() for x in t.strip().split("\n") if x.strip()]

def gen(stamp=False, RBX=4, ROT=0, NT="", opt=None):
    opt = opt or {}
    O = lambda k, d: opt.get(k, d)
    A = Asm()
    stubs = []
    nst = [0]
    vmq = []
    def TSTAMP():
        if stamp:
            A("s_memtime s[80:81]\ns_waitcnt lgkmcnt(0)\ns_sub_u32 s80, s80, s78\nv_writelane_b32 v15, s80, %d" % nst[0]); nst[0] += 1
    def dump(off):
        if stamp:
            A("s_waitcnt vmcnt(0)"); TSTAMP()
            A("s_cmp_lg_u32 s3, %d\ns_cbranch_scc1 L_end" % O('dw', 0))
            A("s_memrealtime s[80:81]\ns_waitcnt lgkmcnt(0)\nv_writelane_b32 v15, s80, 62\nv_writelane_b32 v15, s82, 63\nv_writelane_b32 v15, s85, 61")
            A("s_lshl_b32 s55, s2, 8\ns_add_u32 s55, s55, %d\nv_lshlrev_b32 v14, 2, v1\nbuffer_store_dword v15, v14, %s, s55 offen" % (off, WS))
    def spin(role):
        if O('spinto', 0) and O('spinrole', 1) == role:
            A("s_cmp_lg_u32 s2, %d\ns_cbranch_scc1 L_nospin\ns_cmp_lg_u32 s3, 0\ns_cbranch_scc1 L_nospin" % O('spinwg', 0))
            if O('spinsel', -1) >= 0: A("v_readlane_b32 s96, v15, %d\ns_nop 3\ns_lshr_b32 s96, s96, 1\ns_add_u32 s96, s96, %d" % (O('spinsel', 0), O('spinto', 0)))
            else: A("s_mov_b32 s96, %d" % O('spinto', 0))
            A("L_spin:\ns_memrealtime s[80:81]\ns_waitcnt lgkmcnt(0)\ns_sub_u32 s80, s80, s82\ns_cmp_lt_u32 s80, s96\ns_cbranch_scc1 L_spin\nL_nospin:")
    def VM(txt, tag):
        A(txt); vmq.append(tag)
    def vmwait(tag, extra=""):
        tags = tag if isinstance(tag, tuple) else (tag,)
        idx = max(i for i, t in enumerate(vmq) if t in tags)
        A("s_waitcnt vmcnt(%d)%s" % (min(63, len(vmq) - 1 - idx), extra))
    def retry(name, reload_txt, chk_txt, wait="s_waitcnt vmcnt(0)"):
        A("s_cbranch_vccnz L_r%s" % name); A.label("L_o%s" % name)
        stubs.append("L_r%s:\ns_sub_u32 s85, s85, 1\ns_cbranch_scc1 L_x%s\n%s\n%s\n%s\ns_cbranch_vccnz L_r%s\ns_branch L_o%s\nL_x%s:\ns_mov_b32 s85, 0\ns_branch L_o%s"
                     % (name, name, reload_txt, wait, chk_txt, name, name, name, name))
    A.raw(open('cdna_kernels/%s.s.ref' % NAME).read().split('; @launch grid')[0].rstrip('\n'))
    A.raw("; @launch grid=(256,1,1) block=(512,1,1) lds=%d" % LDS_BYTES)
    A.raw('.amdgcn_target "amdgcn-amd-amdhsa--gfx950"\n.text\n.globl %s_kernel\n.p2align 8\n.type %s_kernel,@function\n%s_kernel:' % (NAME, NAME, NAME))
    LRB = {1: 0, 2: 1, 4: 2, 8: 3}[RBX]
    for ln in """One persistent launch, 256 workgroups (one per CU), 8 waves each.
Waves 0-3 (A): u = shortconv(k)*v + transposition, long conv as Toeplitz MFMA, GEMM1 (gate/up, LN2 mean folded in, ReGLU).
Waves 4-7 (B): LN1 stats, q transposition, ssm_k/weight staging, conv epilogue (h), GEMM2 + rstd^2 scale + residual.
Cross-workgroup hand-offs go through d_ws with write-through stores and are validated by the data itself
(sentinel pre-fill) or by flag lines carrying a per-launch tag derived from ws[0]; every wait is bounded.""".split("\n"): A.comment(ln)

    A("s_load_dwordx8 s[8:15], s[0:1], 0")
    if stamp: A("s_memtime s[78:79]\ns_memrealtime s[82:83]\nv_mov_b32 v15, 0"); nst[0] += 1
    A("s_cmpk_ge_u32 s2, 0x100\ns_cbranch_scc1 L_end")
    if O('perm', 0):
        A("s_lshr_b32 s4, s2, 3\ns_add_u32 s4, s4, s2\ns_and_b32 s4, s4, 7\ns_and_b32 s2, s2, 0xf8\ns_or_b32 s2, s2, s4")
    A("""
    v_readfirstlane_b32 s6, v0
    s_lshr_b32 s5, s2, 3
    s_and_b32 s4, s2, 7
    s_cmpk_lt_u32 s6, 0x100
    s_cbranch_scc1 L_A0
    s_getpc_b64 %s
    L_pc:
    s_lshl_b32 s55, s5, 11
    v_lshl_add_u32 v10, v0, 3, s55
    v_min_u32 v10, L_codeend-L_pc+2044, v10
    s_mov_b32 exec_lo, 0x10001
    s_mov_b32 exec_hi, exec_lo
    global_load_dword v11, v10, %s offset:-2048
    s_branch L_B0
    L_A0:
    s_lshl_b32 s55, s5, 9
    s_add_u32 s55, s55, s4
    s_lshl_b32 s55, s55, 7
    v_and_b32 v5, 0xb8, v0
    v_and_b32 v10, 7, v0
    v_and_b32 v7, 64, v0
    v_and_b32 v6, 56, v0
    v_add_lshl_u32 v5, v5, v6, 8
    v_lshl_add_u32 v5, v10, 3, v5
    v_add3_u32 v5, v5, v7, s55
    v_max_u32 v6, 0xc00, v5
    s_waitcnt lgkmcnt(0)
    """ % (s(sPC, 2), s(sPC, 2)))
    for j in range(4): VM("global_load_dwordx2 %s, v5, s[10:11] offset:%d %s" % (v(22 + 2 * j, 2), 1024 * j, NT), "k")
    for j in range(4): VM("global_load_dwordx2 %s, v5, s[12:13] offset:%d %s" % (v(30 + 2 * j, 2), 1024 * j, NT), "v")
    for i in range(3): VM("global_load_dwordx2 %s, v6, s[10:11] offset:%d %s" % (v(16 + 2 * i, 2), 1024 * i - 3072, NT), "k")
    A("v_and_b32 v10, 0x3ff, v5\nv_lshlrev_b32 v10, 2, v10")
    VM("global_load_dwordx4 v[48:51], v10, s[14:15]", "k")
    VM("global_load_dwordx4 v[52:55], v10, s[14:15] offset:16", "k")
    A("s_load_dwordx2 %s, s[0:1], 96\ns_barrier\ns_branch L_A" % s(S_WS, 2))
    common = """
    v_and_b32 v1, 63, v0
    v_and_b32 v2, 15, v0
    v_lshrrev_b32 v4, 4, v1
    v_lshlrev_b32 v9, 4, v1
    s_bfe_u32 s3, s6, 0x20006
    s_lshl_b32 s66, s4, 5
    s_add_u32 s66, s66, s5
    s_and_b32 s99, s3, 1
    s_lshr_b32 s98, s3, 1
    """
    common2 = "s_mov_b32 s85, %d\ns_mov_b32 s65, 0xffff0000\ns_mov_b32 %s, %d\ns_mov_b32 %s, 0x20000" % (BUDGET, s(S_WS + 2), WS_BYTES, s(S_WS + 3))
    A.label("L_B0")
    A("s_mov_b64 exec, -1\ns_load_dwordx4 s[16:19], s[0:1], 32\ns_load_dwordx2 %s, s[0:1], 96" % s(S_WS, 2))
    A(common)
    A("""
    v_mov_b32 v40, 0
    v_mov_b32 v41, 0
    v_mov_b32 v42, 0
    v_mov_b32 v43, 0
    v_and_b32 v12, 3, v1
    v_lshlrev_b32 v12, 4, v12
    v_add_u32 v12, %d, v12
    ds_write_b128 v12, v[40:43]
    s_lshl_b32 s57, s2, 13
    s_lshl_b32 s56, s99, 12
    s_add_u32 s57, s57, s56
    s_lshl_b32 s56, s98, 10
    s_add_u32 s57, s57, s56
    s_lshl_b32 s61, s66, 13
    s_lshl_b32 s56, s3, 11
    s_add_u32 s61, s61, s56
    v_add_u32 v5, s57, v9
    v_add_u32 v6, s61, v9
    s_waitcnt lgkmcnt(0)
    s_barrier
    global_load_dwordx4 v[32:35], v5, s[8:9] NT
    global_load_dwordx4 v[36:39], v5, s[8:9] offset:2048 NT
    global_load_dwordx4 v[24:27], v6, s[16:17] NT
    global_load_dwordx4 v[28:31], v6, s[16:17] offset:1024 NT
    s_branch L_B
    """.replace("NT", NT) % L_FLG)
    ids = """
    s_lshr_b32 s55, s4, %d
    s_lshl_b32 s55, s55, %d
    s_and_b32 s60, s5, %d
    s_add_u32 s86, s55, s60
    s_and_b32 s55, s4, %d
    s_mul_i32 s55, s55, %d
    s_lshr_b32 s56, s5, %d
    s_add_u32 s87, s55, s56
    s_mul_i32 s88, s56, %d
    s_mul_i32 s60, s60, %d
    s_add_u32 s88, s88, s60
    s_and_b32 s88, s88, 15
    """ % (LRB, LRB, RBX - 1, RBX - 1, 32 // RBX, LRB, ROT, O('rot2', 16 // RBX))
    def haddr(hv, r2v, tmp):
        return """
        s_lshl_b32 s55, s86, 2
        s_add_u32 s55, s55, s3
        s_mul_i32 s55, s55, %d
        s_mul_i32 s56, s87, 2816
        s_add_u32 s55, s55, s56
        s_add_u32 s89, s55, %d
        s_add_u32 s90, s89, %d
        v_mov_b32 T0, %s
        v_cmp_eq_u32 vcc, 3, v4
        v_cndmask_b32 T1, v9, T0, vcc
        s_cmp_eq_u32 s87, 31
        s_cselect_b64 vcc, -1, 0
        v_cndmask_b32 %s, v9, T1, vcc
        v_cndmask_b32 %s, v9, T0, vcc
        v_cndmask_b32 %s, T1, T0, vcc
        v_lshrrev_b32 T1, 2, v2
        v_lshlrev_b32 %s, 4, v2
        v_cmp_eq_u32 vcc, T1, v4
        v_cndmask_b32 %s, T0, %s, vcc
        s_lshl_b32 s55, s86, 10
        s_lshl_b32 s56, s3, 8
        s_add_u32 s55, s55, s56
        s_add_u32 s55, s55, %d
        s_cmp_eq_u32 s87, 31
        s_cselect_b32 s91, s55, %s
        """.replace("T0", tmp[0]).replace("T1", tmp[1]) % (2 * HG, HH, HG, OOB, hv[0], hv[1], hv[2], r2v, r2v, r2v, R2, OOB)
    def xpose_addr(wr, rd, gv, base):
        return """
        v_and_b32 RD, 7, v2
        v_xor_b32 WR, v4, RD
        v_lshl_add_u32 WR, v2, 3, 0
        v_or_b32 WR, WR, v4
        v_xor_b32 WR, WR, RD
        v_lshlrev_b32 WR, 4, WR
        s_lshl_b32 s55, s3, 11
        s_add_u32 s55, s55, %d
        v_add_u32 WR, s55, WR
        v_lshrrev_b32 RD, 3, v1
        v_xor_b32 RD, RD, v1
        v_lshlrev_b32 RD, 4, RD
        v_add_u32 RD, s55, RD
        v_lshrrev_b32 GV, 2, v1
        v_lshlrev_b32 GV, 13, GV
        v_and_b32 v14, 3, v1
        v_lshl_add_u32 GV, v14, 4, GV
        """.replace("WR", wr).replace("RD", rd).replace("GV", gv) % base

    A.label("L_A")
    A(common); A(common2); A("s_waitcnt lgkmcnt(0)")
    A("s_movk_i32 s55, 0x1000\nv_cmp_gt_u32 s[20:21], s55, v5")
    A("""
    v_and_b32 v133, 7, v1
    v_lshrrev_b32 v134, 3, v1
    v_xor_b32 v132, v134, v133
    v_lshl_add_u32 v132, v133, 4, v132
    v_lshlrev_b32 v132, 4, v132
    s_lshl_b32 s55, s3, 11
    s_add_u32 s55, s55, %d
    v_add_u32 v132, s55, v132
    v_lshlrev_b32 v134, 13, v134
    v_lshl_add_u32 v134, v133, 4, v134
    v_xor_b32 v133, v1, v4
    v_lshlrev_b32 v133, 4, v133
    v_add_u32 v133, s55, v133
    v_xor_b32 v136, 64, v133
    """ % L_TA)
    HV = ["v176", "v177", "v178"]
    A("""
    s_lshl_b32 s55, s4, 18
    s_lshl_b32 s56, s5, 8
    s_add_u32 s55, s55, s56
    s_lshl_b32 s56, s98, 7
    s_add_u32 s55, s55, s56
    s_lshl_b32 s56, s99, 17
    s_add_u32 s55, s55, s56
    s_add_u32 s95, s55, %d
    s_add_u32 s97, s95, 0x10000
    """ % UP)
    if O('pw', 1):
        A("""
        s_lshl_b32 s55, s66, 7
        s_add_u32 s55, s55, %d
        s_cmp_lg_u32 s3, 0
        s_cselect_b32 s55, %s, s55
        v_mov_b32 v140, 0
        v_mov_b32 v141, 0
        v_mov_b32 v142, 0
        v_mov_b32 v143, 0
        s_mov_b64 exec, 0xff
        """ % (FU, OOB))
        VM("buffer_store_dwordx4 v[140:143], v9, %s, s55 offen %s" % (WS, WT), "pw")
        A("s_mov_b64 exec, -1")
    TSTAMP()
    vmwait("k")
    TSTAMP()
    for r in range(16, 22): A("v_cndmask_b32 %s, %s, 0, s[20:21]" % (v(r), v(r)))
    for c in range(4):
        for tap in range(4):
            src = 48 + 2 * c + (tap >> 1); dst = 64 + 4 * tap + c
            A(("v_lshlrev_b32 %s, 16, %s" if tap % 2 == 0 else "v_and_b32 %s, s65, %s") % (v(dst), v(src)))
    for i in range(7):
        for e in range(2):
            src = 16 + 2 * i + e; dst = 80 + 4 * i + 2 * e
            A("v_lshlrev_b32 %s, 16, %s\nv_and_b32 %s, s65, %s" % (v(dst), v(src), v(dst + 1), v(src)))
    for tap in range(4):
        for j in range(4):
            for e in range(2):
                d = v(144 + 4 * j + 2 * e, 2); kk = v(80 + 4 * (j + 3 - tap) + 2 * e, 2); ww = v(64 + 4 * tap + 2 * e, 2)
                if tap == 0: A("v_pk_mul_f32 %s, %s, %s" % (d, kk, ww))
                else: A("v_pk_fma_f32 %s, %s, %s, %s" % (d, kk, ww, d))
    vmwait("v")
    for j in range(4):
        for e in range(2):
            src = 30 + 2 * j + e; dst = 108 + 4 * j + 2 * e
            A("v_lshlrev_b32 %s, 16, %s\nv_and_b32 %s, s65, %s" % (v(dst), v(src), v(dst + 1), v(src)))
    for j in range(4):
        for e in range(2):
            d = 144 + 4 * j + 2 * e
            A("v_pk_mul_f32 %s, %s, %s" % (v(d, 2), v(d, 2), v(108 + 4 * j + 2 * e, 2)))
    for e in range(2):
        for j in range(4):
            d = 144 + 4 * j + 2 * e
            A("v_cvt_pk_bf16_f32 %s, %s, %s" % (v(124 + 4 * e + j), v(d), v(d + 1)))
        A("ds_write_b128 v132, %s offset:%d" % (v(124 + 4 * e, 4), 128 * e))
    A("ds_read_b128 v[16:19], v133\nds_read_b128 v[20:23], v136 offset:1024")
    A("s_waitcnt lgkmcnt(1)")
    A("buffer_store_dwordx4 v[16:19], v134, %s, s95 offen %s" % (WS, WT))
    A("s_waitcnt lgkmcnt(0)")
    A("buffer_store_dwordx4 v[20:23], v134, %s, s97 offen %s" % (WS, WT))
    TSTAMP()
    A("s_load_dword s84, %s, 0" % s(S_WS, 2))
    A(ids)
    A(haddr(HV, "v179", ("v12", "v13")))
    A("""
    s_lshl_b32 s67, s66, 13
    s_lshl_b32 s56, s3, 11
    s_add_u32 s67, s67, s56
    s_add_u32 s67, s67, %d
    s_sub_u32 s59, s67, 4
    s_lshl_b32 s62, s66, 7
    s_add_u32 s62, s62, FUADDR
    s_lshl_b32 s63, s4, 12
    s_add_u32 s63, s63, FUADDR
    s_lshl_b32 s56, s3, 3
    s_sub_u32 s56, s56, 1
    v_add_u32 v8, s56, v1
    v_max_i32 v8, 0, v8
    v_lshlrev_b32 v8, 7, v8
    v_mov_b32 v3, FLGADDR
    s_lshl_b32 s56, s3, 7
    v_xor_b32 v7, 1, v1
    v_add_u32 v7, s56, v7
    v_lshlrev_b32 v7, 3, v7
    v_add_u32 v7, %d, v7
    v_cmp_eq_u32 s[100:101], 0, v0
    s_mov_b32 s64, 0x05040100
    s_mov_b32 s71, 0x07060302
    v_and_b32 v180, 3, v2
    s_movk_i32 s55, %d
    v_mul_lo_u32 v180, v180, s55
    v_lshrrev_b32 v14, 2, v2
    v_lshl_add_u32 v180, v14, 7, v180
    v_lshl_add_u32 v180, v4, 4, v180
    s_mul_i32 s56, s98, %d
    s_lshl_b32 s57, s99, 8
    s_add_u32 s56, s56, s57
    s_add_u32 s56, s56, %d
    v_add_u32 v180, s56, v180
    v_and_b32 v181, 1, v2
    s_movk_i32 s55, %d
    v_mul_lo_u32 v181, v181, s55
    v_lshrrev_b32 v14, 1, v2
    v_lshl_add_u32 v181, v14, 4, v181
    v_lshlrev_b32 v14, 4, v4
    v_sub_u32 v181, v181, v14
    s_mul_i32 s56, s98, %d
    s_sub_u32 s56, s56, s57
    s_add_u32 s56, s56, %d
    v_add_u32 v181, s56, v181
    s_mul_i32 s56, s98, %d
    s_lshl_b32 s57, s99, 13
    s_add_u32 s56, s56, s57
    s_add_u32 s56, s56, %d
    v_add_u32 v182, s56, v9
    """.replace("FUADDR", str(FU)).replace("FLGADDR", str(L_FLG)) % (UP, L_U + 8 * 16, KC_STR, 4 * KC_STR, L_KC + 7 * 16,
           U_STR, 2 * U_STR, L_U + 20 * 16, L_REDB - L_REDA, L_REDA))
    A("s_waitcnt lgkmcnt(0)\ns_add_u32 s84, s84, 1\ns_or_b32 s84, s84, 0x80000000")
    A("v_mov_b32 v24, s84\nv_mov_b32 v25, s84\nv_mov_b32 v26, s84\nv_mov_b32 v27, s84\nv_mov_b32 v14, 1")
    A("""
    s_mov_b64 exec, 1
    s_waitcnt vmcnt(0)
    ds_add_rtn_u32 v14, v3, v14 offset:12
    s_waitcnt lgkmcnt(0)
    v_readfirstlane_b32 s55, v14
    s_mov_b64 exec, 0xff
    s_cmp_lg_u32 s55, 3
    s_cselect_b32 s62, %s, s62
    buffer_store_dwordx4 v[24:27], v9, %s, s62 offen %s
    s_mov_b64 exec, 0x1ff
    """ % (OOB, WS, WT)); vmq.clear()
    TSTAMP()
    if O('fudelay', 0): A("s_sleep %d" % O('fudelay', 0))
    fu_txt = "buffer_load_dword v14, v8, %s, s63 offen sc1" % WS
    fu_chk = "v_cmp_ne_u32 vcc, s84, v14"
    A(fu_txt + "\ns_waitcnt vmcnt(0)\n" + fu_chk)
    retry("up", fu_txt, fu_chk)
    A("s_mov_b64 exec, -1")
    TSTAMP()
    UL = "sc1" if O('upsc', 0) else ""
    A("""buffer_load_dwordx4 v[32:35], v9, WS, s67 offen UL
    buffer_load_dwordx4 v[40:43], v9, WS, s67 offen offset:1024 UL
    buffer_load_dword v36, v9, WS, s59 offen UL
    buffer_load_dword v44, v9, WS, s59 offen offset:1024 UL
    v_mov_b32 v14, 1
    s_mov_b64 exec, 1
    ds_add_u32 v3, v14 offset:24
    s_mov_b64 exec, -1
    s_waitcnt vmcnt(0)""".replace("WS", WS).replace("UL", UL))
    TSTAMP()
    A("v_cndmask_b32 v36, v36, 0, s[100:101]")
    for h in range(2):
        b = 32 + 8 * h
        W_ = lambda i: v(b + 4) if i < 0 else v(b + i)
        for c in range(2):
            for pi in range(2):
                o = 64 + 8 * h + 2 * (2 * c + pi)
                for jj in range(2):
                    lo = 2 + pi - 2 * jj; hi = lo - 1
                    A("v_perm_b32 %s, %s, %s, %s" % (v(o + jj), W_(hi), W_(lo), "s64" if c == 0 else "s71"))
                A("ds_write_b64 v7, %s offset:%d" % (v(o, 2), (2 * c + pi) * U_STR + 512 * h))
    A("v_mov_b32 v14, 1\ns_mov_b64 exec, 1\nds_add_u32 v3, v14 offset:40\ns_mov_b64 exec, -1\nds_read_b32 v12, v3 offset:40\ns_waitcnt lgkmcnt(0)\nv_cmp_ne_u32 vcc, 8, v12")
    retry("b4a", "ds_read_b32 v12, v3 offset:40", "v_cmp_ne_u32 vcc, 8, v12", wait="s_waitcnt lgkmcnt(0)")
    TSTAMP()
    BF = lambda buf, ct: v(16 + 32 * buf + 4 * ct, 4)
    ACC = lambda t: v(80 + 4 * t, 4)
    KF = lambda ph, g: a(32 * (ph & 1) + 4 * g, 4)
    bread = lambda ph, ct: "ds_read_b128 %s, v181 offset:%d" % (BF(ph & 1, ct), 512 * ct + 64 * (3 - ph))
    kread = lambda ph, g: "ds_read_b128 %s, v180 offset:%d" % (KF(ph, g), 512 * g + 64 * ph)
    for i in range(7): A(kread(0, i)); A(bread(0, i))
    p2pre = lines("""v_lshrrev_b32 v5, 2, v1
    v_mul_u32_u24 v5, 96, v5
    v_and_b32 v14, 3, v1
    v_lshl_add_u32 v5, v14, 3, v5
    v_add_u32 v6, %d, v5
    s_lshl_b32 s55, s3, 12
    v_add_u32 v7, s55, v9
    s_lshl_b32 s67, s86, 18
    s_add_u32 s67, s67, %d
    v_lshlrev_b32 v8, 4, v4
    v_add_u32 v8, %d, v8
    v_mov_b32 v3, %d
    v_lshlrev_b32 v10, 2, v2
    v_add_u32 v10, 0xc0, v10""" % (L_WU, HP, L_CS, L_FLG))
    touched = set(); issued = 14
    for ph in range(4):
        if ph in (0, 3): order = [(t - ct, ct) for t in range(8) for ct in range(t + 1)]
        else: order = [(g, ct) for ct in range(8) for g in range(8 - ct)]
        nxt = [x for i in range(8) for x in (kread(ph + 1, i), bread(ph + 1, i))] if ph < 3 else []
        for idx, (g, ct) in enumerate(order):
            t = g + ct
            if ph == 0 and ct == 0:
                need = 2 * (t + 1)
                if t < 7 or True: A("s_waitcnt lgkmcnt(%d)" % min(15, issued - need))
            if ph > 0 and idx == 0: A("s_waitcnt lgkmcnt(0)")
            if 36 * ph + idx == O('lpi', 40): A("v_mov_b32 v14, 1\nds_write_b32 v3, v14 offset:32")
            if ph == 3 and idx == 0: A("v_mov_b32 v14, 1\ns_mov_b64 exec, 1\nds_add_u32 v3, v14 offset:16\ns_mov_b64 exec, -1")
            A("%s %s, %s, %s, %s" % (MF, ACC(t), KF(ph, g), BF(ph & 1, ct), ACC(t) if t in touched else "0"))
            touched.add(t)
            if ph == 3 and idx == 6: A("ds_read_b32 v12, v3 offset:16")
            if ph == 3 and idx == 12: A("s_waitcnt lgkmcnt(0)\nv_cmp_ne_u32 vcc, 4, v12")
            if ph == 3 and idx == 14: retry("kc", "ds_read_b32 v12, v3 offset:16", "v_cmp_ne_u32 vcc, 4, v12", wait="s_waitcnt lgkmcnt(0)")
            if ph == 3 and idx in (15, 17, 19, 21): A("ds_write_b128 v182, %s offset:%d" % (ACC((idx - 15) // 2), 1024 * ((idx - 15) // 2)))
            if ph == 0 and idx == 1: A(kread(0, 7)); A(bread(0, 7)); issued += 2
            if idx >= 16 and nxt:
                A(nxt.pop(0))
                if ph == 0: issued += 1
            if ph == 1 and p2pre: A(p2pre.pop(0))
            if ph == 3 and idx in (23, 28): A("ds_write_b128 v182, %s offset:%d" % (ACC(4 if idx == 23 else 5), 1024 * (4 if idx == 23 else 5)))
        assert not nxt
    A("ds_write_b128 v182, %s offset:%d" % (ACC(6), 1024 * 6))
    A("ds_write_b128 v182, %s offset:%d" % (ACC(7), 1024 * 7))
    A("s_waitcnt lgkmcnt(0)")
    TSTAMP()
    A("s_barrier")
    TSTAMP()
    A("s_barrier")
    TSTAMP()
    XS = lambda st: 16 + 16 * (st & 3)
    AC = lambda arr, ft, tau: v(80 + 48 * arr + 16 * ft + 4 * tau, 4)
    WF = lambda st, arr, ft: 24 * (st & 1) + 12 * arr + 4 * ft
    def xaddr(st): return ["s_add_u32 s55, s88, %d" % st, "s_and_b32 s55, s55, 15", "s_lshl_b32 s55, s55, 14", "s_add_u32 s96, s55, s67"]
    def xlds(st): return ["buffer_load_dwordx4 %s, v7, %s, s96 offen offset:%d sc1" % (v(XS(st) + 4 * j, 4), WS, 1024 * j) for j in range(4)]
    def xload_txt(st): return "\n".join(xaddr(st) + xlds(st)).replace("s96", "s97")
    def xload(st):
        A("\n".join(xaddr(st) + xlds(st))); vmq.extend(["x%d" % st] * 4)
    def xchk(st):
        b = XS(st)
        return ["v_max3_u32 v11, %s, %s, %s" % (v(b), v(b + 4), v(b + 8)), "v_max_u32 v11, v11, %s" % v(b + 12), "v_cmp_eq_u32 vcc, -1, v11"]
    def wreads(st):
        return ["ds_read_b64_tr_b16 %s, %s offset:%d" % (a(WF(st, arr, ft) + 2 * h, 2), "v6" if arr else "v5", st * 3072 + h * 1536 + ft * 32)
                for arr in range(2) for ft in range(3) for h in range(2)]
    def swaps(st):
        b = XS(st)
        return ["v_swap_b32 %s, %s" % (v(b + 4 * j + t), v(b + 4 * t + j)) for j in range(4) for t in range(j + 1, 4)]
    if O('xdelay', 0): A("s_sleep %d" % O('xdelay', 0))
    if O('x3', 0):
        xload(0); xload(1); xload(2)
        for r in wreads(0): A(r)
        vmwait("x0")
        for r in xchk(0): A(r)
        retry("xP", "\n".join(xload_txt(i) for i in range(3)), "\n".join(xchk(0)), wait="s_waitcnt vmcnt(8)")
        TSTAMP()
    else:
        xload(0)
        for r in wreads(0): A(r)
        vmwait("x0")
        for r in xchk(0): A(r)
        if O('xr3', 0):
            A("s_cbranch_vccnz L_rxP")
            xload(1); xload(2)
            A.label("L_oxP")
            stubs.append("L_rxP:\n%s\ns_waitcnt vmcnt(8)\n%s\ns_cbranch_vccz L_oxP\ns_sub_u32 s85, s85, 1\ns_cbranch_scc0 L_rxP\ns_mov_b32 s85, 0\ns_branch L_oxP"
                         % ("\n".join(xload_txt(i) for i in range(3)), "\n".join(xchk(0))))
            TSTAMP()
        else:
            retry("xP", xload_txt(0), "\n".join(xchk(0)))
            TSTAMP()
            xload(1); xload(2)
    for r in swaps(0): A(r)
    if O('aprio', 2): A("s_setprio %d" % O('aprio', 2))
    A("s_cmp_eq_u32 s87, 31\ns_cbranch_scc1 L_p2alt")
    def flagrd(k): return "ds_read_b32 v12, v3 offset:%d" % (4 * k)
    flagchk = "v_cmp_ne_u32 vcc, 4, v12"
    epi = []
    for ft in range(3):
        for g in range(2):
            o = (16, 24, 64)[ft] + 4 * g
            for e in range(2):
                tau = 2 * g + e
                gb = 80 + 16 * ft + 4 * tau; ub = gb + 48
                M = v(32 + 2 * tau, 2)
                for j in (0, 2): epi.append("v_pk_fma_f32 %s, %s, %s, %s op_sel_hi:[1,0,1]" % (v(gb + j, 2), v(40 + 4 * ft + j, 2), M, v(gb + j, 2)))
                for j in (0, 2): epi.append("v_pk_fma_f32 %s, %s, %s, %s op_sel_hi:[1,0,1]" % (v(ub + j, 2), v(52 + 4 * ft + j, 2), M, v(ub + j, 2)))
                for j in range(4): epi.append("v_max_f32 %s, 0, %s" % (v(gb + j), v(gb + j)))
                for j in (0, 2): epi.append("v_pk_mul_f32 %s, %s, %s" % (v(gb + j, 2), v(gb + j, 2), v(ub + j, 2)))
                for j in (0, 2): epi.append("v_cvt_pk_bf16_f32 %s, %s, %s" % (v(o + 2 * e + j // 2), v(gb + j), v(gb + j + 1)))
            epi.append("buffer_store_dwordx4 %s, %s, %s, %s offen offset:%d %s" % (v(o, 4), HV[ft], WS, "s90" if g else "s89", 1024 * ft, WT))
    NOV = O('nov', 16)
    def p2loop(alt):
        for st in range(16):
            ml = []
            ep = list(epi[:NOV])
            for arr, ft in ([(0, 2), (0, 0), (1, 0), (0, 1), (1, 1), (1, 2)] if st == 15 else [(x, y) for x in range(2) for y in range(3)]):
                if True:
                    for tau in range(4):
                        xf = v(XS(st) + 4 * tau, 4)
                        wf = a(WF(st, arr, ft), 4)
                        if alt and arr == 1 and ft == 2: wf = xf
                        ml.append("%s %s, %s, %s, %s" % (MF, AC(arr, ft, tau), wf, xf, AC(arr, ft, tau) if st else "0"))
            wr = wreads(st + 1) if st < 15 else ["ds_read_b128 %s, v8 offset:%d" % (v(40 + 4 * t, 4), 64 * t) for t in range(6)]
            if st in (8, 14): wr = wr + [flagrd(0 if st == 8 else 1)]
            sw = swaps(st + 1) if st < 15 else []
            ck = xchk(st + 1) if st < 15 else []
            xa = xaddr(st + 3) if st + 3 < 16 else []
            xl = xlds(st + 3) if st + 3 < 16 else []
            tg = "b" if alt else "a"
            if O('fine2', 0) and st > 0:
                if alt and st == 1: nst[0] -= 15
                TSTAMP()
            A("s_waitcnt lgkmcnt(0)")
            for i, m in enumerate(ml):
                if i == 0 and st in (9, 15): A(flagchk)
                A(m)
                if i == 1 and st in (9, 15): retry("f%s%d" % (tg, st), flagrd(0 if st == 9 else 1), flagchk, wait="s_waitcnt lgkmcnt(0)")
                if i < 2 and xa: A(xa.pop(0)); A(xa.pop(0))
                if i >= (2 if st in (9, 15) else O('wr0', 2)) and wr:
                    A(wr.pop(0))
                    if O('wr2', 0) and i % 2 == 1 and wr: A(wr.pop(0))
                if i in (2, 4, 6, 8) and xl: VM(xl.pop(0).replace(" sc1", "" if O('xplain', 0) else " sc1"), "x%d" % (st + 3))
                if st <= 12 and i == O('pgi', 15) - 6: A("v_mov_b32 v13, %d" % (st + 1))
                if st <= 12 and i == O('pgi', 15): A("ds_write_b32 v3, v13 offset:36")
                if i == 12 and sw: vmwait("x%d" % (st + 1))
                if i >= 12 and ck:
                    x = ck.pop(0)
                    if not O('nochk', 0): A(x)
                if i == 16 and sw and not O('nochk', 0): retry("x%s%d" % (tg, st + 1), xload_txt(st + 1), "\n".join(xchk(st + 1)))
                if i >= 16 and sw:
                    x = sw.pop(0)
                    if not O('nosw', 0): A(x)
                if st == 15:
                    if 8 <= i < 12: A("ds_bpermute_b32 %s, v10, %s" % (v(32 + 2 * (i - 8)), v(80 + 32 + 4 * (i - 8))))
                    if i == 14: A("s_mov_b32 s57, 0xbb000000\ns_waitcnt lgkmcnt(0)")
                    if i in (14, 15):
                        for tau in (2 * (i - 14), 2 * (i - 14) + 1): A("v_mul_f32 %s, s57, %s" % (v(32 + 2 * tau), v(32 + 2 * tau)))
                    if i >= 16:
                        for _ in range(2):
                            if ep: A(ep.pop(0))
            assert not wr and not sw and not xl
            if st == 15: assert not ep
    sv = list(vmq)
    p2loop(False)
    A.label("L_p2join")
    TSTAMP()
    for x in epi[NOV:]: A(x)
    TSTAMP()
    A("s_barrier")
    if O('spinto', 0) and O('spinrole', 1) == 0: A("s_barrier")
    spin(0)
    dump(TS)
    A("s_endpgm")
    A.label("L_p2alt")
    vmq[:] = sv
    p2loop(True)
    A("s_nop 7")
    A("v_and_b32 v10, 3, v2")
    for tau in range(4): A("v_mov_b32 %s, %s" % (v(72 + tau), v(80 + 48 + 32 + 4 * tau)))
    for j in range(1, 4):
        A("v_cmp_eq_u32 vcc, %d, v10" % j)
        for tau in range(4):
            A("v_cndmask_b32 %s, %s, %s, vcc" % (v(72 + tau), v(72 + tau), v(80 + 48 + 32 + 4 * tau + j)))
    A("s_mov_b32 s56, 0x3b000000\ns_mov_b32 s57, 0x3727c5ac")
    for tau in range(4): A("v_mul_f32 %s, s56, %s" % (v(72 + tau), v(72 + tau)))
    for tau in range(4): A("v_fma_f32 %s, -%s, %s, %s" % (v(72 + tau), v(32 + 2 * tau), v(32 + 2 * tau), v(72 + tau)))
    for tau in range(4): A("v_max_f32 %s, 0, %s" % (v(72 + tau), v(72 + tau)))
    for tau in range(4): A("v_add_f32 %s, s57, %s" % (v(72 + tau), v(72 + tau)))
    for tau in range(4): A("v_rcp_f32 %s, %s" % (v(72 + tau), v(72 + tau)))
    A("s_nop 0\nbuffer_store_dwordx4 v[72:75], v179, %s, s91 offen %s" % (WS, WT))
    A("s_branch L_p2join")

    A.label("L_B")
    vmq.clear(); nst[0] = 1; vmq.extend(["stat", "stat", "ssm", "ssm"])
    if O('bprio', 1): A("s_setprio %d" % O('bprio', 1))
    A("s_load_dword s84, %s, 0\ns_lshl_b32 s56, s66, 2\ns_load_dword %s, s[18:19], s56" % (s(S_WS, 2), s(sD)))
    for reg, off in ((S_WD, 72), (S_WG, 56), (S_WU, 64), (S_OUT, 80)):
        A("s_load_dwordx2 %s, s[0:1], %d" % (s(reg, 2), off))
    A(common2)
    for reg, nb in ((S_WD, 1376 * 1024), (S_OUT, 2097152), (S_T, 512 * 2752)):
        A("s_mov_b32 %s, %d\ns_mov_b32 %s, 0x20000" % (s(reg + 2), nb, s(reg + 3)))
    A("""
    s_lshr_b32 s55, s66, 4
    s_lshl_b32 s72, s55, 14
    s_and_b32 s55, s66, 3
    s_lshl_b32 s55, s55, 10
    s_add_u32 s72, s72, s55
    s_bfe_u32 s55, s66, 0x20002
    s_lshl_b32 s55, s55, 8
    s_add_u32 s72, s72, s55
    s_lshl_b32 s55, s3, 19
    s_add_u32 s72, s72, s55
    s_add_u32 s72, s72, %d
    s_add_u32 s73, s72, 0x40000
    v_lshlrev_b32 v63, 4, v2
    v_lshl_add_u32 v63, v4, 12, v63
    v_mov_b32 v64, -1
    v_mov_b32 v65, -1
    v_mov_b32 v66, -1
    v_mov_b32 v67, -1
    """ % HP)
    def hpfill():
        VM("buffer_store_dwordx4 v[64:67], v63, %s, s72 offen %s" % (WS, WT), "fill")
        VM("buffer_store_dwordx4 v[64:67], v63, %s, s73 offen %s" % (WS, WT), "fill")
    hpfill()
    if O('pw', 1):
        A("""
        v_and_b32 v13, 7, v1
        v_lshrrev_b32 v12, 3, v1
        v_mul_u32_u24 v12, %d, v12
        v_lshl_add_u32 v12, v13, 4, v12
        s_lshl_b32 s55, s2, 7
        s_add_u32 s55, s55, %d
        s_cmp_lg_u32 s3, 0
        s_cselect_b32 s55, %s, s55
        """ % (STR, ST, OOB))
        VM("buffer_store_dwordx4 v[40:43], v12, %s, s55 offen %s" % (WS, WT), "pw")
    A(ids)
    A("""
    v_and_b32 v6, 7, v1
    v_xor_b32 v5, s98, v6
    v_lshlrev_b32 v5, 4, v5
    v_lshl_add_u32 v5, v1, 7, v5
    s_lshl_b32 s55, s99, 3
    s_add_u32 s55, s55, %d
    v_add_u32 v5, s55, v5
    v_lshrrev_b32 v7, 3, v1
    s_mov_b32 s55, %d
    v_mul_lo_u32 v8, v7, s55
    v_lshl_add_u32 v8, v6, 4, v8
    v_xor_b32 v6, v6, v7
    v_lshlrev_b32 v6, 4, v6
    v_lshl_add_u32 v6, v7, 7, v6
    s_lshl_b32 s55, s3, 11
    s_add_u32 s55, s55, %d
    v_add_u32 v6, s55, v6
    v_xor_b32 v16, 32, v5
    v_xor_b32 v17, 64, v5
    v_xor_b32 v18, 0x60, v5
    """ % (L_TB, QSTR, L_TB))
    A("""
    s_mul_i32 s55, s3, %d
    s_add_u32 s55, s55, %d
    v_and_b32 v12, 7, v1
    v_lshl_add_u32 v12, v12, 4, s55
    ds_write_b128 v12, v[40:43]
    s_cmp_lg_u32 s99, 0
    s_cbranch_scc1 L_nohead
    v_and_b32 v12, 31, v1
    v_lshlrev_b32 v12, 4, v12
    v_lshrrev_b32 v13, 5, v1
    s_movk_i32 s56, %d
    v_mad_u32_u24 v12, v13, s56, v12
    s_mul_i32 s55, s98, %d
    s_add_u32 s55, s55, %d
    v_add_u32 v12, s55, v12
    ds_write_b128 v12, v[40:43]
    ds_write_b128 v12, v[40:43] offset:%d
    L_nohead:
    """ % (U_STR, L_U, KC_STR, 4 * KC_STR, L_KC, 2 * KC_STR))
    A("""
    s_mul_i32 s55, s3, %d
    s_lshl_b32 s56, s2, 7
    s_add_u32 s55, s55, s56
    s_add_u32 s95, s55, %d
    s_add_u32 s97, s95, %d
    s_movk_i32 s55, 0x2aab
    s_movk_i32 s56, 2752
    """ % (16 * QSTR, QP, 8 * QSTR))
    for i3 in range(3):
        A("""
        v_add_u32 v14, %d, v1
        v_mul_u32_u24 v3, s55, v14
        v_lshrrev_b32 v3, 16, v3
        v_mul_u32_u24 v13, 6, v3
        v_sub_u32 v14, v14, v13
        v_bfe_u32 v13, v3, 2, 2
        v_lshlrev_b32 v13, 3, v13
        v_lshrrev_b32 v12, 4, v3
        v_lshl_add_u32 v13, v12, 2, v13
        v_and_b32 v3, 3, v3
        v_add_u32 v13, v13, v3
        v_mul_u32_u24 v13, s56, v13
        v_lshl_add_u32 %s, v14, 4, v13
        """ % (64 * i3, v(60 + i3)))
    A("""
    s_waitcnt lgkmcnt(0)
    s_bitcmp1_b32 s3, 0
    s_cselect_b32 s48, s32, s28
    s_cselect_b32 s49, s33, s29
    s_add_u32 s69, s88, s98
    s_mul_i32 s70, s87, 88
    s_mul_i32 s76, s99, %d
    s_mul_i32 s56, s98, 3072
    s_add_u32 s76, s76, s56
    s_mul_i32 s56, s98, %d
    s_lshl_b32 s57, s99, 11
    s_add_u32 s56, s56, s57
    s_add_u32 s56, s56, %d
    v_add_u32 v44, s56, v9
    v_add_u32 v45, %d, v44
    v_add_u32 v46, %d, v44
    v_add_u32 v47, %d, v44
    v_mov_b32 v3, FLGA
    """.replace("FLGA", str(L_FLG)) % (L_WU, 4 * KC_STR, L_KC + 512 - 4, KC_STR - 4, 2 * KC_STR - 8, 3 * KC_STR - 12))
    ndma = [0]
    def w1dma(n):
        for _ in range(n):
            i = ndma[0]; ndma[0] += 1
            gi, i3 = divmod(i, 3)
            if i3 == 0: A("s_and_b32 s77, s69, 15\ns_mul_i32 s77, s77, 88064\ns_add_u32 s77, s77, s70\ns_add_u32 s69, s69, 2")
            A("s_add_u32 m0, s76, %d" % (gi * 6144 + i3 * 1024))
            VM("buffer_load_dwordx4 %s, %s, s77 offen %s lds" % (v(60 + i3), srd(S_T), "nt" if i < O('w1nt', 0) else ""), "dma")
    span = 88 * (32 // RBX)
    ntouch = ((span + 8 + 127 + 127) // 128 + 7) // 8
    def w1touch(pos):
        if O('w1tp', 9) != pos: return 0
        A("""
        v_lshrrev_b32 v12, 3, v1
        s_movk_i32 s55, 2752
        v_mul_lo_u32 v12, v12, s55
        v_and_b32 v13, 7, v1
        v_lshlrev_b32 v13, 7, v13
        s_lshl_b32 s55, s5, 1
        s_add_u32 s55, s55, s98
        s_mul_i32 s55, s55, 22016
        s_and_b32 s56, s4, %d
        s_mul_i32 s56, s56, %d
        s_add_u32 s55, s55, s56
        """ % (RBX - 1, span))
        for i in range(ntouch):
            A("v_add_u32 v14, %d, v13\nv_min_u32 v14, %d, v14\nv_add_u32 v14, v14, v12" % (1024 * i, span + 4))
            VM("buffer_load_dword v11, v14, %s, s55 offen %s" % (srd(S_T), "nt" if O('tnt', 0) else ""), "tch")
        return ntouch
    def hfill(pos):
        if O('hfp', 0) != pos: return
        A(haddr(["v68", "v69", "v70"], "v71", ("v12", "v13")))
        for ft in range(3):
            for g in range(2):
                VM("buffer_store_dwordx4 v[64:67], %s, %s, %s offen offset:%d %s" % (v(68 + ft), WS, "s90" if g else "s89", 1024 * ft, WT), "fill")
        VM("buffer_store_dwordx4 v[64:67], v71, %s, s91 offen %s" % (WS, WT), "fill")
        A("v_mov_b32 v13, 1")
    def w1mall(pos):
        if O('w1m', 0) != pos: return 0
        A("s_lshl_b32 s55, s2, 1\ns_add_u32 s55, s55, s98\ns_mul_i32 s55, s55, 2752\nv_lshlrev_b32 v12, 7, v1\ns_mov_b64 exec, 0x3fffff")
        VM("buffer_load_dword v11, v12, %s, s55 offen" % srd(S_T), "tch")
        A("s_mov_b64 exec, -1")
        return 1
    def wdtouch(pos):
        if O('wdtp', 1) != pos: return
        if O('wdtm', 1) == 1:
            A("s_lshl_b32 s55, s2, 2\ns_add_u32 s55, s55, s3\ns_mul_i32 s55, s55, 1408\nv_lshlrev_b32 v12, 7, v1\ns_mov_b64 exec, 0x7ff")
            VM("buffer_load_dword %s, v12, %s, s55 offen" % ("v63" if pos == 4 else "v11", srd(S_WD)), "tch")
            A("s_mov_b64 exec, -1")
        else:
            A("s_lshl_b32 s55, s5, 2\ns_add_u32 s55, s55, s3\ns_mul_i32 s55, s55, 11008\nv_lshlrev_b32 v12, 7, v1")
            VM("buffer_load_dword v11, v12, %s, s55 offen" % srd(S_WD), "tch")
            A("s_add_u32 s55, s55, 8192\ns_mov_b64 exec, 0x3fffff")
            VM("buffer_load_dword v11, v12, %s, s55 offen" % srd(S_WD), "tch")
            A("s_mov_b64 exec, -1")
    TSTAMP()
    w1mall(0); wdtouch(5); w1touch(0)
    w1dma(O('nw1a', 0))
    A("v_mov_b32 v21, 0x3f803f80")
    vmwait("stat")
    TSTAMP()
    w1touch(1)
    for i in range(4): A("ds_write2_b32 %s, %s, %s offset0:0 offset1:1" % (("v5", "v16", "v17", "v18")[i], v(32 + i), v(36 + i)))
    A("v_mov_b32 v14, 1\ns_waitcnt lgkmcnt(0)\ns_mov_b64 exec, 1\nds_add_u32 v3, v14 offset:20\ns_mov_b64 exec, -1\ns_add_u32 s84, s84, 1\ns_or_b32 s84, s84, 0x80000000")
    for i in range(4):
        for e in range(2):
            A("v_dot2c_f32_bf16 %s, %s, v21" % (v(42 + e), v(32 + 4 * e + i)))
            A("v_dot2c_f32_bf16 %s, %s, %s" % (v(40 + e), v(32 + 4 * e + i), v(32 + 4 * e + i)))
    for m in ("row_shr:1", "row_shr:2", "row_shr:4", "row_shr:8", "row_bcast:15 row_mask:0xa", "row_bcast:31 row_mask:0xc"):
        for r in range(40, 44):
            A("v_add_f32_dpp %s, %s, %s %s" % (v(r), v(r), v(r), m))
    A("s_mov_b32 s56, 0x3b000000\ns_mov_b32 s57, 0x3727c5ac")
    for r in range(40, 44): A("v_mul_f32 %s, s56, %s" % (v(r), v(r)))
    for e in range(2): A("v_fma_f32 %s, -%s, %s, %s" % (v(40 + e), v(42 + e), v(42 + e), v(40 + e)))
    for e in range(2): A("v_max_f32 %s, 0, %s" % (v(40 + e), v(40 + e)))
    for e in range(2): A("v_add_f32 %s, s57, %s" % (v(40 + e), v(40 + e)))
    for e in range(2): A("v_rsq_f32 %s, %s" % (v(40 + e), v(40 + e)))
    for e in range(2): A("v_mul_f32_e64 %s, -%s, %s" % (v(42 + e), v(42 + e), v(40 + e)))
    A("v_mov_b32 v19, v6\nv_mov_b32 v20, v8")
    qw_txt = "ds_read2_b32 v[12:13], v3 offset0:%d offset1:5" % O('qwait', 5)
    qw_chk = "v_add_u32 v12, v12, v13\nv_cmp_ne_u32 vcc, 8, v12"
    A(qw_txt + "\ns_waitcnt lgkmcnt(0)\n" + qw_chk)
    retry("qw", "s_sleep 1\n" + qw_txt, qw_chk, wait="s_waitcnt lgkmcnt(0)")
    TSTAMP()
    A("ds_read_b128 v[48:51], v19\nds_read_b128 v[52:55], v19 offset:1024\ns_waitcnt lgkmcnt(1)")
    A("buffer_store_dwordx4 v[48:51], v20, %s, s95 offen %s\ns_waitcnt lgkmcnt(0)" % (WS, WT))
    A("buffer_store_dwordx4 v[52:55], v20, %s, s97 offen %s" % (WS, WT))
    vmq.extend(["st"] * 2)
    w1dma(O('nw1b', 0)); nyoung = O('nw1b', 0) + w1mall(1)
    vmwait("ssm")
    for i in range(2):
        b = 24 + 4 * i
        if i == 1: A("v_add_u32 v44, 0x400, v44\nv_add_u32 v46, 0x400, v46")
        for ad in ("v44", "v46"):
            A("ds_write2_b32 %s, %s, %s offset0:0 offset1:1" % (ad, v(b), v(b + 1)))
            A("ds_write2_b32 %s, %s, %s offset0:2 offset1:3" % (ad, v(b + 2), v(b + 3)))
        A("ds_write2_b64 v45, %s, %s offset0:%d offset1:%d" % (v(b, 2), v(b + 2, 2), 128 * i, 128 * i + 1))
        A("ds_write_b128 v47, %s offset:%d" % (v(b, 4), 1024 * i))
    A("v_mov_b32 v14, 1\ns_mov_b64 exec, 1\nds_add_u32 v3, v14 offset:40\ns_mov_b64 exec, -1")
    A("""
    s_lshl_b32 s55, s3, 4
    s_add_u32 s55, s55, %d
    v_mov_b32 v12, s55
    v_mov_b32 v13, %d
    v_mov_b32 v14, 1
    s_mov_b32 exec_lo, 0
    s_mov_b32 exec_hi, 0x80000000
    ds_write_b128 v12, v[40:43]
    s_waitcnt vmcnt(NYOUNG) lgkmcnt(0)
    ds_add_rtn_u32 v14, v13, v14 offset:8
    s_waitcnt lgkmcnt(0)
    v_readfirstlane_b32 s55, v14
    s_mov_b64 exec, -1
    s_cmp_lg_u32 s55, 3
    s_cbranch_scc1 L_nost
    v_and_b32 v12, 3, v1
    v_lshlrev_b32 v12, 4, v12
    ds_read_b128 v[40:43], v12 offset:%%d
    v_and_b32 v13, 7, v1
    v_cmp_lt_u32 vcc, 3, v13
    v_mov_b32 v14, s84
    v_cndmask_b32 v14, 0, v14, vcc
    v_lshrrev_b32 v12, 3, v1
    v_mul_u32_u24 v12, STRIDE, v12
    v_lshl_add_u32 v12, v13, 4, v12
    s_lshl_b32 s55, s2, 7
    s_add_u32 s55, s55, %d
    s_waitcnt lgkmcnt(0)
    v_xor_b32 v40, v14, v40
    v_xor_b32 v41, v14, v41
    v_xor_b32 v42, v14, v42
    v_xor_b32 v43, v14, v43
    s_mov_b64 exec, STEX
    buffer_store_dwordx4 v[40:43], v12, WS, s55 offen WT
    s_mov_b64 exec, -1
    L_nost:
    """.replace("STRIDE", str(STR)).replace("STEX", "-1" if O('strep', 1) else "0xff").replace("WS", WS).replace("WT", WT).replace("NYOUNG", str(nyoung)).replace("v_lshlrev_b32 v12, 4, v12\n    ds_read_b128 v[40:43], v12 offset:%%d", "v_lshlrev_b32 v12, 4, v12\n    v_add_u32 v12, STL, v12\n    ds_read_b128 v[40:43], v12").replace("STL", str(L_FLG + 64)) % (L_FLG + 64, L_FLG, ST)); vmq.clear()
    TSTAMP()
    w1mall(2); wdtouch(6)
    w1dma(O('nw1c', 0))
    A("""
    s_and_b32 s55, s54, 0xffff
    s_lshr_b32 s56, s54, 16
    v_mov_b32 v13, s55
    v_mov_b32 v14, s56
    v_lshl_add_u32 v12, v4, 2, 3
    v_sub_u32 v12, v12, v2
    """)
    for jj in range(4):
        A("v_cmp_eq_u32 vcc, %d, v12\nv_cndmask_b32 %s, 0, v13, vcc\nv_cndmask_b32 %s, 0, v14, vcc" % (jj, v(72 + jj), v(76 + jj)))
    A("""
    v_and_b32 v5, 1, v2
    s_movk_i32 s55, %d
    v_mul_lo_u32 v5, v5, s55
    v_lshrrev_b32 v14, 1, v2
    v_lshl_add_u32 v5, v14, 4, v5
    v_lshl_add_u32 v5, v4, 7, v5
    s_lshl_b32 s56, s3, 10
    s_add_u32 s56, s56, %d
    v_add_u32 v5, s56, v5
    s_lshl_b32 s56, s3, 11
    s_add_u32 s57, s56, %d
    v_add_u32 v6, s57, v9
    v_add_u32 v7, %d, v6
    s_lshr_b32 s68, s66, 2
    s_mul_i32 s68, s68, %d
    s_and_b32 s57, s66, 3
    s_lshl_b32 s57, s57, 5
    s_add_u32 s68, s68, s57
    s_lshl_b32 s58, s3, 13
    s_add_u32 s68, s68, s58
    s_add_u32 s68, s68, %d
    s_add_u32 s60, s68, 0x1000
    s_add_u32 s58, s58, %d
    s_mul_i32 s57, s4, STRX
    s_add_u32 s58, s58, s57
    s_add_u32 s59, s58, 0x1000
    v_lshrrev_b32 v8, 1, v1
    v_lshlrev_b32 v8, 7, v8
    v_and_b32 v14, 1, v1
    v_lshl_add_u32 v10, v14, 4, v8
    v_lshl_add_u32 v8, v14, 5, v8
    s_mul_i32 s61, s99, 49152
    s_lshl_b32 s57, s98, 13
    s_add_u32 s61, s61, s57
    s_add_u32 s61, s61, 0x8000
    v_lshlrev_b32 v14, 3, v1
    v_and_b32 v14, 0x70, v14
    v_xor_b32 v8, v8, v14
    v_add_u32 v8, s61, v8
    v_xor_b32 v57, 16, v8
    v_xor_b32 v58, 64, v8
    v_xor_b32 v59, 0x50, v8
    v_lshlrev_b32 v14, 1, v1
    v_and_b32 v14, 0x70, v14
    v_xor_b32 v56, v9, v14
    """.replace("STRX", str(STR if O('strep', 1) else 0)) % (U_STR, L_U + 8 * 16, L_REDA, L_REDB - L_REDA, QSTR, QP, ST))
    if O('nw1e', 6) or O('wdtp', 1) == 1:
        A("ds_read_b32 v12, v3 offset:24\ns_waitcnt lgkmcnt(0)\nv_cmp_ne_u32 vcc, 4, v12")
        retry("uw", "s_sleep 1\nds_read_b32 v12, v3 offset:24", "v_cmp_ne_u32 vcc, 4, v12", wait="s_waitcnt lgkmcnt(0)")
    st_dma = "s_mov_b32 m0, s61\n" + "\n".join("buffer_load_dwordx4 v56, %s, s58 offen offset:%d sc1 lds" % (WS, 1024 * i) for i in range(4)) + \
             "\ns_add_u32 m0, s61, 0x1000\n" + "\n".join("buffer_load_dwordx4 v56, %s, s59 offen offset:%d sc1 lds" % (WS, 1024 * i) for i in range(4))
    st_rd = "\n".join("ds_read_b128 %s, %s offset:%d" % (v(16 * (1 + cp) + 8 * e + 4 * h, 4), ("v8", "v57", "v58", "v59")[h + 2 * cp], 4096 * e)
                       for e in range(2) for h in range(2) for cp in range(2))
    st_chk = "\n".join(["v_bitop3_b32 %s, %s, %s, s84 bitop3:0x96" % (v(32 + i), v(32 + i), v(16 + i)) for i in range(16)] +
                       ["v_or3_b32 %s, %s, %s, %s" % (v(32 + i), v(32 + i), v(33 + i), v(34 + i)) for i in (0, 3, 6, 9, 12)] +
                       ["v_or3_b32 v32, v32, v35, v38", "v_or3_b32 v41, v41, v44, v47", "v_or_b32 v32, v32, v41", "v_cmp_ne_u32 vcc, 0, v32"])
    if O('stf', 0):
        A("ds_read_b32 v12, v3 offset:8\ns_waitcnt lgkmcnt(0)\nv_cmp_ne_u32 vcc, 4, v12")
        retry("s8", "ds_read_b32 v12, v3 offset:8", "v_cmp_ne_u32 vcc, 4, v12", wait="s_waitcnt lgkmcnt(0)")
        A(st_dma); vmq.extend(["stp"] * 8)
    w1dma(min(O('nw1e', 6), 15 - ndma[0]))
    wdtouch(1)
    A("ds_read_b32 v12, v3 offset:40\ns_waitcnt lgkmcnt(0)\nv_cmp_ne_u32 vcc, 8, v12")
    retry("b4b", "s_sleep 1\nds_read_b32 v12, v3 offset:40", "v_cmp_ne_u32 vcc, 8, v12", wait="s_waitcnt lgkmcnt(0)")
    TSTAMP()
    for e in range(2):
        for c in range(2):
            A("ds_read_b128 %s, v5 offset:%d" % (v(80 + 8 * e + 4 * c, 4), 2 * c * U_STR + 512 * e))
    hfill(1)
    w1dma(O('nw1d', 0))
    A("s_waitcnt lgkmcnt(0)")
    for e in range(2):
        for c in range(2):
            A("%s %s, %s, %s, 0" % (MF, v(96 + 8 * e + 4 * c, 4), v(72 + 4 * c, 4), v(80 + 8 * e + 4 * c, 4)))
    w1dma(O('nw1f', 0))
    if O('lpw', 0) and not O('stf', 0):
        A("ds_read_b32 v12, v3 offset:32\ns_waitcnt lgkmcnt(0)\nv_cmp_eq_u32 vcc, 0, v12")
        retry("lw", "s_sleep 1\nds_read_b32 v12, v3 offset:32", "v_cmp_eq_u32 vcc, 0, v12", wait="s_waitcnt lgkmcnt(0)")
    if not O('stf', 0): A(st_dma); vmq.extend(["stp"] * 8)
    w1dma(min(O('nw1i', 3), 15 - ndma[0]))
    vmwait("stp")
    A(st_rd + "\ns_waitcnt lgkmcnt(0)\n" + st_chk)
    retry("st", "s_sleep %d\n" % O('stsl', 4) + st_dma + "\ns_waitcnt vmcnt(0)\n" + st_rd, st_chk, wait="s_waitcnt lgkmcnt(0)")
    TSTAMP()
    VM("buffer_load_dwordx4 v[48:51], v10, %s, s68 offen sc1" % WS, "qp")
    VM("buffer_load_dwordx4 v[52:55], v10, %s, s60 offen sc1" % WS, "qp")
    wdtouch(2)
    hfill(2)
    w1dma(min(O('nw1g', 6), 15 - ndma[0]))
    if O('nw1z', 0):
        A("v_mov_b32 v14, 1\ns_mov_b64 exec, 1\nds_add_u32 v3, v14 offset:44\ns_mov_b64 exec, -1\nds_read_b32 v12, v3 offset:44\ns_waitcnt lgkmcnt(0)\nv_cmp_ne_u32 vcc, 4, v12")
        retry("sv", "ds_read_b32 v12, v3 offset:44", "v_cmp_ne_u32 vcc, 4, v12", wait="s_waitcnt lgkmcnt(0)")
        w1dma(min(O('nw1z', 0), 24 - ndma[0]))
    vmwait("qp")
    TSTAMP()
    for e in range(2):
        for j in range(4):
            A("v_lshlrev_b32 %s, 16, %s" % (v(112 + 8 * e + j), v(48 + 4 * e + j)))
            A("v_and_b32 %s, s65, %s" % (v(116 + 8 * e + j), v(48 + 4 * e + j)))
    for e in range(2):
        for c in range(2):
            for j in (0, 2):
                A("v_pk_fma_f32 %s, %s, %s, %s" % (v(128 + 8 * e + 4 * c + j, 2), v(112 + 8 * e + 4 * c + j, 2), v(16 + 8 * e + 2 * j, 2), v(18 + 8 * e + 2 * j, 2)))
    w1dma(O('nw1h', 0))
    TSTAMP()
    A("s_barrier")
    TSTAMP()
    for e in range(2):
        for src in range(4):
            A("ds_read_b128 %s, %s offset:%d" % (v(16 + 16 * e + 4 * src, 4), "v7" if src >= 2 else "v6", 8192 * (src & 1) + 1024 * e))
    for e in range(2):
        for c in range(2):
            A("s_waitcnt lgkmcnt(%d)" % (6 - 4 * e - 2 * c))
            for j in (0, 2):
                d = v(96 + 8 * e + 4 * c + j, 2)
                A("v_pk_add_f32 %s, %s, %s" % (d, d, v(16 + 16 * e + 8 * c + j, 2)))
            for j in (0, 2):
                d = v(96 + 8 * e + 4 * c + j, 2)
                A("v_pk_add_f32 %s, %s, %s" % (d, d, v(20 + 16 * e + 8 * c + j, 2)))
            for j in (0, 2):
                d = v(96 + 8 * e + 4 * c + j, 2)
                A("v_pk_fma_f32 %s, %s, %s, %s" % (d, d, v(128 + 8 * e + 4 * c + j, 2), v(112 + 8 * e + 4 * c + j, 2)))
        for j in range(4):
            A("v_cvt_pk_bf16_f32 %s, %s, %s" % (v(48 + 4 * e + j), v(96 + 8 * e + j), v(100 + 8 * e + j)))
        VM("buffer_store_dwordx4 %s, v63, %s, %s offen %s" % (v(48 + 4 * e, 4), WS, "s73" if e else "s72", WT), "hp")
    TSTAMP()
    NB6 = O('nb6', 15)
    wdtouch(3)
    hfill(3)
    w1dma(NB6 - ndma[0])
    A("""
    v_mov_b32 v56, 0x3f803f80
    v_mov_b32 v57, 0x3f803f80
    v_mov_b32 v58, 0x3f803f80
    v_mov_b32 v59, 0x3f803f80
    v_and_b32 v14, 31, v1
    v_mul_u32_u24 v14, 96, v14
    s_add_u32 s55, s76, 88
    v_add_u32 v14, s55, v14
    v_mov_b32 v3, %d
    v_mov_b32 v13, 1
    """ % L_FLG)
    vmwait("dma")
    for i in range(NB6 // 3): A("ds_write_b64 v14, v[56:57] offset:%d" % (6144 * i))
    A("s_waitcnt lgkmcnt(0)\ns_barrier")
    TSTAMP()
    def xtouch(pos):
        if O('xtp', 9) != pos: return
        A("""
        s_and_b32 s55, s87, %d
        s_lshl_b32 s55, s55, 2
        s_add_u32 s55, s55, s3
        s_lshl_b32 s55, s55, 7
        s_lshl_b32 s56, s86, 18
        s_add_u32 s55, s55, s56
        s_add_u32 s55, s55, %d
        v_lshlrev_b32 v12, 12, v1
        """ % (32 // RBX - 1, HP))
        VM("buffer_load_dword v63, v12, %s, s55 offen sc1" % WS, "tch")
    xtouch(0)
    w1dma(24 - NB6)
    xtouch(1)
    A(haddr(["v68", "v69", "v70"], "v71", ("v12", "v13")))
    A("v_mov_b32 v13, 1")
    fl = ["buffer_store_dwordx4 v[64:67], %s, %s, %s offen offset:%d %s" % (v(68 + ft), WS, "s90" if g else "s89", 1024 * ft, WT) for ft in range(3) for g in range(2)]
    fl.append("buffer_store_dwordx4 v[64:67], v71, %s, s91 offen %s" % (WS, WT))
    for _ in range(O('nf0', 0)): VM(fl.pop(0), "fill")
    A("""
    s_and_b32 s72, s5, 7
    s_lshr_b32 s71, s5, 3
    s_mul_i32 s56, s71, %d
    s_mul_i32 s55, s72, %d
    s_add_u32 s55, s55, s56
    s_sub_u32 s56, s55, 11
    s_cmp_ge_u32 s55, 11
    s_cselect_b32 s55, s56, s55
    s_mul_i32 s56, s3, 11
    s_add_u32 s57, s56, 11
    s_add_u32 s55, s55, s56
    """ % (O('rot4', 0), O('rot3', 0)))
    for i in range(11):
        A("s_lshl_b32 %s, s55, 11\ns_add_u32 s55, s55, 1\ns_cmp_eq_u32 s55, s57\ns_cselect_b32 s55, s56, s55" % s(8 + i))
    A("""
    v_lshrrev_b32 v5, 3, v1
    v_and_b32 v6, 2, v5
    v_lshlrev_b32 v6, 1, v6
    v_and_b32 v7, 7, v1
    v_xor_b32 v6, v6, v7
    v_lshlrev_b32 v5, 10, v5
    v_lshl_add_u32 v5, v6, 4, v5
    s_mul_i32 s92, s3, 12288
    s_add_u32 s92, s92, %d
    v_lshrrev_b32 v6, 2, v1
    v_and_b32 v7, 2, v6
    v_lshlrev_b32 v7, 5, v7
    v_lshlrev_b32 v6, 7, v6
    v_and_b32 v8, 3, v1
    v_lshl_add_u32 v6, v8, 4, v6
    v_add_u32 v6, v6, v7
    s_lshl_b32 s55, s99, 6
    v_xor_b32 v7, s55, v6
    v_xor_b32 v6, 64, v7
    v_add_u32 v6, s92, v6
    v_add_u32 v7, s92, v7
    s_lshl_b32 s93, s72, 7
    v_lshrrev_b32 v10, 2, v1
    v_mul_u32_u24 v10, 96, v10
    v_lshl_add_u32 v10, v8, 3, v10
    s_lshl_b32 s56, s99, 5
    s_add_u32 s56, s56, %d
    v_add_u32 v11, s56, v10
    s_lshl_b32 s55, s3, 5
    s_cmp_eq_u32 s3, 3
    s_cselect_b32 s55, %d, s55
    v_add_u32 v10, s55, v10
    """ % (L_SG, L_WU + 32, L_WU))
    WDR = lambda i, tm: a(16 * i + 4 * tm, 4) if i < 4 else v(72 + 16 * (i - 4) + 4 * tm, 4)
    WDH = lambda i, tm, h: a(16 * i + 4 * tm + 2 * h, 2) if i < 4 else v(72 + 16 * (i - 4) + 4 * tm + 2 * h, 2)
    def wd_issue(i):
        if O('nowd', 0): A("s_mov_b32 s93, %s" % OOB)
        A("s_lshl_b32 s94, %s, 4\ns_add_u32 s94, s94, s93" % s(8 + i))
        for r in range(4):
            A("s_add_u32 m0, s92, %d" % (4096 * (i % 3) + 1024 * r))
            VM("buffer_load_dwordx4 v5, %s, s94 offen lds" % srd(S_WD), "wd%d" % i)
            if r < 3: A("s_add_u32 s94, s94, 0x2000")
    def wd_read(i):
        vmwait("wd%d" % i)
        for tm in range(4):
            for h in range(2):
                A("ds_read_b64_tr_b16 %s, %s offset:%d" % (WDH(i, tm, h), "v6" if tm < 2 else "v7", 4096 * (i % 3) + 2048 * h + 8 * (tm & 1)))
        A("s_waitcnt lgkmcnt(0)")
    def hflag():
        A("""
        s_lshl_b32 s55, s86, 2
        s_add_u32 s55, s55, s3
        s_lshl_b32 s55, s55, 5
        s_add_u32 s55, s55, s87
        s_lshl_b32 s55, s55, 7
        s_add_u32 s55, s55, %d
        v_mov_b32 v64, s84
        v_mov_b32 v65, s84
        v_mov_b32 v66, s84
        v_mov_b32 v67, s84
        s_mov_b64 exec, 0xff
        """ % FH)
        vmwait("fill")
        VM("buffer_store_dwordx4 v[64:67], v9, %s, s55 offen %s" % (WS, WT), "fhs")
        A("s_mov_b64 exec, -1")
    def colsum(k0, k1):
        for st in range(k0, k1 + 2):
            if st < k1:
                b = 16 + 8 * (st & 3)
                for h in range(2): A("ds_read_b64_tr_b16 %s, v10 offset:%d" % (v(b + 2 * h, 2), st * 3072 + h * 1536))
                for h in range(2): A("ds_read_b64_tr_b16 %s, v11 offset:%d" % (v(b + 4 + 2 * h, 2), st * 3072 + h * 1536))
            if st >= k0 + 2:
                pb = 16 + 8 * ((st - 2) & 3)
                A("s_waitcnt lgkmcnt(%d)" % (4 * (min(st, k1 - 1) - (st - 2))))
                A("%s v[48:51], v[56:59], %s, %s" % (MF, v(pb, 4), "v[48:51]" if st > 2 else "0"))
                A("%s v[52:55], v[56:59], %s, %s" % (MF, v(pb + 4, 4), "v[52:55]" if st > 2 else "0"))
    K1 = 2 * (NB6 // 3)
    NWD0 = O('nwd0', 1)
    colsum(0, K1)
    wdtouch(4)
    for i in range(NWD0): wd_issue(i)
    vmwait("dma")
    for i in range(NB6 // 3, 8): A("ds_write_b64 v14, v[56:57] offset:%d" % (6144 * i))
    A("s_waitcnt lgkmcnt(0)\ns_mov_b64 exec, 1\nds_add_u32 v3, v13\ns_mov_b64 exec, -1")
    TSTAMP()
    for i in range(NWD0): wd_read(i)
    A("ds_read_b32 v12, v3\ns_waitcnt lgkmcnt(0)\n" + flagchk)
    retry("fB", "ds_read_b32 v12, v3", flagchk, wait="s_waitcnt lgkmcnt(0)")
    if K1 < 16: colsum(K1, 16)
    HOLD = O('wdhold', 5); LATE = O('late', 3); NE = 11 - LATE
    A("""
    s_lshl_b32 s55, s72, 1
    s_add_u32 s55, s55, s99
    s_lshl_b32 s55, s55, 14
    s_lshl_b32 s56, s71, 12
    s_add_u32 s55, s55, s56
    s_lshl_b32 s56, s98, 3
    s_add_u32 s55, s55, s56
    s_lshl_b32 s56, s4, 18
    s_add_u32 s55, s55, s56
    s_add_u32 s95, s55, %d
    s_lshl_b32 s55, s4, 2
    s_add_u32 s55, s55, s71
    s_lshl_b32 s64, s55, 12
    s_add_u32 s64, s64, %d
    s_lshl_b32 s56, s55, 1
    s_add_u32 s57, s56, s98
    s_xor_b32 s56, s57, 1
    s_mul_i32 s68, s56, %d
    s_mul_i32 s69, s57, %d
    s_add_u32 s68, s68, %d
    s_add_u32 s69, s69, %d
    s_lshl_b32 s77, s55, 16
    s_lshl_b32 s56, s98, 12
    s_add_u32 s77, s77, s56
    s_lshl_b32 s56, s72, 7
    s_add_u32 s77, s77, s56
    s_lshl_b32 s56, s99, 6
    s_add_u32 s77, s77, s56
    s_lshl_b32 s67, s55, 8
    s_lshl_b32 s56, s98, 3
    s_add_u32 s67, s67, s56
    s_add_u32 s67, s67, %d
    s_mul_i32 s97, s3, 12288
    s_add_u32 s97, s97, 49152
    v_add_u32 v14, s97, v9
    s_lshl_b32 s56, s3, 3
    v_add_u32 v8, s56, v1
    v_cmp_lt_u32 vcc, 7, v1
    v_cndmask_b32 v8, v8, 31, vcc
    v_lshlrev_b32 v8, 7, v8
    """ % (HP, FH, HG, HG, HH, HH, R2))
    for i in range(11): A("s_min_u32 %s, %s, %d" % (s(20 + i), s(8 + i), 42 * 2048))
    for k in (1, 2, 3): A("s_xor_b32 s56, s3, %d\ns_mul_i32 s56, s56, 12288\ns_add_u32 %s, s56, %d" % (k, s(31 + k), L_RED3 + (k - 1) * 4096))
    def waitstep(k):
        chk = "v_cmp_gt_u32 vcc, %d, v12" % k
        A("ds_read_b32 v12, v3 offset:36\ns_waitcnt lgkmcnt(0)\n" + chk)
        retry("ws%d" % k, "s_sleep %d\n" % O('bsl', 2) + "ds_read_b32 v12, v3 offset:36", chk, wait="s_waitcnt lgkmcnt(0)")
    NP = O('np', 3)
    pieces = [(i, r) for i in range(NWD0, NWD0 + NP) for r in range(4)]
    P0 = O('p0', 1); PEND = O('pend', 13)
    nsteps = PEND - P0
    done_cs = False
    for k in range(P0, PEND):
        waitstep(k)
        if fl:
            VM(fl.pop(0), "fill")
            if len(fl) == 1: VM(fl.pop(0), "fill")
        elif not done_cs and k >= P0 + 7:
            hflag()
            A("""
    s_lshl_b32 s55, s3, 6
    s_add_u32 s55, s55, %d
    v_lshl_add_u32 v10, v2, 2, s55
    s_lshl_b32 s56, s99, 6
    s_add_u32 s56, s56, %d
    v_lshl_add_u32 v11, v2, 2, s56
    ds_write_b32 v10, v48
    ds_write_b32 v11, v52
    s_waitcnt lgkmcnt(0)
    s_mov_b64 exec, 1
    ds_add_u32 v3, v13 offset:4
    s_mov_b64 exec, -1
    """ % (L_CS, L_CS + 256))
            TSTAMP()
            done_cs = True
        want = (len(pieces) + (PEND - k) - 1) // (PEND - k) if (not fl or O('mix', 0)) else 0
        for _ in range(want):
            i, r = pieces.pop(0)
            if r == 0: A("s_lshl_b32 s94, %s, 4\ns_add_u32 s94, s94, s93" % s(8 + i))
            A("s_add_u32 m0, s92, %d" % (4096 * (i % 3) + 1024 * r))
            VM("buffer_load_dwordx4 v5, %s, s94 offen lds" % srd(S_WD), "wd%d" % i)
            if r < 3: A("s_add_u32 s94, s94, 0x2000")
    assert done_cs and not pieces
    TSTAMP()
    waitstep(PEND)
    VM("buffer_load_dword v10, v8, %s, s64 offen sc1" % WS, "fh")
    TSTAMP()
    nx = NWD0 + NP
    for i in range(NWD0, NE):
        wd_read(i)
        while nx < NE and nx <= i + 3: wd_issue(nx); nx += 1
    TSTAMP()
    A("s_waitcnt vmcnt(0)\nv_cmp_ne_u32 vcc, s84, v10")
    retry("fh", "buffer_load_dword v10, v8, %s, s64 offen sc1" % WS, "v_cmp_ne_u32 vcc, s84, v10")
    LB = O('lateb', 0)
    for i in range(NE, NE + LB): wd_issue(i)
    A("s_barrier")
    TSTAMP()
    for i in range(NE + LB, 11): wd_issue(i)
    def late_part():
        for i in range(NE, 11): wd_read(i)
        A("""
        v_lshrrev_b32 v5, 1, v2
        v_lshlrev_b32 v5, 13, v5
        v_and_b32 v12, 1, v2
        v_lshl_add_u32 v5, v12, 10, v5
        v_lshl_add_u32 v5, v4, 4, v5
        v_lshlrev_b32 v12, 4, v2
        v_subrev_u32 v10, 0xc000, v14
        v_add_u32 v6, s32, v9
        v_add_u32 v7, s33, v9
        v_add_u32 v8, s34, v9
        """)
    NR = 6
    HFR = lambda q, o, n: v(16 + 8 * (q % 3) + o, n)
    def acc3(grp, tm, e):
        t = 2 * (tm & 1) + e
        if grp == 1 and tm >= 2: return v(40 + 4 * t, 4)
        if tm < 2: return v(56 + 4 * t, 4)
        return v(40 + 4 * t, 4)
    def hdma_txt(q):
        grp, i = divmod(q, 11)
        return ("s_add_u32 m0, s97, RING\ns_add_u32 s96, %s, %s\nbuffer_load_dwordx4 v9, %s, s96 offen sc1 lds\nbuffer_load_dwordx4 v9, %s, s96 offen offset:1024 sc1 lds" % (
            "s68" if grp == 0 else "s69", s(20 + i), WS, WS)).replace("RING", str(2048 * (q % NR)))
    def hdma(q): A(hdma_txt(q)); vmq.extend(["h%d" % q] * 2)
    def hrd(q): return ["ds_read_b64 %s, %s offset:%d" % (HFR(q, 4 * e + 2 * aa, 2), "v14", 2048 * (q % NR) + 1024 * aa + 8 * e) for e in range(2) for aa in range(2)]
    def hchk(q): return "v_max_u32 v11, %s, %s\nv_cmp_eq_u32 vcc, -1, v11" % (HFR(q, 0, 1), HFR(q, 2, 1))
    def hretry(q):
        last = min(21, q + NR - 1) if O('hre', 1) else q
        if q == 0: last = O('nh0', 6) - 1
        n = 2 * (last - q) if q < 17 else 0
        retry("h%d" % q, "\n".join(hdma_txt(k) for k in range(q, last + 1)) + "\ns_waitcnt vmcnt(%d)\n" % n + "\n".join(hrd(q)), hchk(q), wait="s_waitcnt lgkmcnt(0)")
    NH0 = O('nh0', 6)
    for q in range(NH0): hdma(q)
    late_part()
    vmwait("h0"); A("\n".join(hrd(0))); A("s_waitcnt lgkmcnt(0)"); A(hchk(0)); hretry(0)
    TSTAMP()
    for q in range(NH0, NR): hdma(q)
    vmwait("h1"); A("\n".join(hrd(1)))
    for q in range(22):
        grp, i = divmod(q, 11)
        if q == 11:
            if O('psw', 1):
                for t in range(4): A("ds_write_b128 v7, %s offset:%d" % (v(40 + 4 * t, 4), 1024 * t))
            else:
                A("s_nop 7")
                for t in range(4): A("ds_write_b128 v8, %s offset:%d" % (v(56 + 4 * t, 4), 1024 * t))
                for t in range(4): A("ds_write_b128 v7, %s offset:%d" % (v(40 + 4 * t, 4), 1024 * t))
                A("s_waitcnt lgkmcnt(0)")
        rd = hrd(q + 2) if q + 2 < 22 else []
        if q == 16: A("s_barrier")
        ex = []
        if q == 20: rd = ["ds_read_b128 %s, v10 offset:%d" % (v(104 + 4 * t, 4), L_RED3 + 4096 + 1024 * t) for t in range(8)]
        if q == 21:
            ex = ["v_lshlrev_b32 %s, 16, %s\nv_and_b32 %s, s65, %s" % (v(88 + 8 * e + 2 * j), v(72 + 2 * j + e), v(89 + 8 * e + 2 * j), v(72 + 2 * j + e)) for j in range(4) for e in range(2)]
            A("s_waitcnt vmcnt(0)")
        if O('fine3', 0) and q % 2 == 0: TSTAMP()
        n = 0
        for tm in range(4):
            for e in range(2):
                sw = O('psw', 1) and q == 11
                if sw: A("s_waitcnt lgkmcnt(%d)" % (7 - n))
                A("%s %s, %s, %s, %s" % (MF, acc3(grp, tm, e), WDR(i, tm), HFR(q, 4 * e, 4), acc3(grp, tm, e) if i else "0"))
                if n == 0 and q + NR < 22: hdma(q + NR)
                if sw:
                    if n == 1: A(hchk(q + 1))
                    if n == 3: hretry(q + 1)
                    if n == 7:
                        vmwait("h%d" % (q + 2))
                        while rd: A(rd.pop(0))
                else:
                    if n == 1 and q < 21: A("s_waitcnt lgkmcnt(0)"); A(hchk(q + 1))
                    if n == 3 and q < 21: hretry(q + 1)
                    if n == 3 and rd and q < 20: vmwait("h%d" % (q + 2))
                    if q == 20 and n >= 4 and rd: A(rd.pop(0))
                    if q == 21:
                        A(ex.pop(0))
                        if n >= 4: A("ds_write_b128 v6, %s offset:%d" % (v(56 + 4 * (n - 4), 4), 1024 * (n - 4)))
                    if O('psw', 1) and q == 10:
                        if n == 3:
                            while rd: A(rd.pop(0))
                        if n >= 4: A("ds_write_b128 v8, %s offset:%d" % (v(56 + 4 * (n - 4), 4), 1024 * (n - 4)))
                    if n >= 3 and rd: A(rd.pop(0))
                if n == 2 and q == 17:
                    for j in range(4): A("buffer_load_dwordx2 %s, v9, %s, s95 offen offset:%d sc1" % (v(72 + 2 * j, 2), WS, 1024 * j))
                    A("buffer_load_dwordx2 v[80:81], v12, %s, s67 offen sc1" % WS); vmq.extend(["res"] * 5)
                n += 1
    if O('fine3', 0): TSTAMP()
    A("v_cmp_eq_u32 vcc, -1, v80\ns_waitcnt lgkmcnt(0)")
    retry("r2", "buffer_load_dwordx2 v[80:81], v12, %s, s67 offen sc1" % WS, "v_cmp_eq_u32 vcc, -1, v80")
    if O('fine3', 0): TSTAMP()
    A("s_barrier")
    TSTAMP()
    for t in range(4): A("ds_read_b128 %s, v10 offset:%d" % (v(136 + 4 * t, 4), L_RED3 + 1024 * t))
    for r in range(0, 16, 2): A("v_pk_add_f32 %s, %s, %s" % (v(104 + r, 2), v(104 + r, 2), v(120 + r, 2)))
    for r in range(0, 16, 2): A("v_pk_add_f32 %s, %s, %s" % (v(40 + r, 2), v(40 + r, 2), v(104 + r, 2)))
    A("s_waitcnt lgkmcnt(0)")
    for r in range(0, 16, 2): A("v_pk_add_f32 %s, %s, %s" % (v(40 + r, 2), v(40 + r, 2), v(136 + r, 2)))
    for e in range(2):
        for mt in range(2):
            for j in (0, 2):
                d = v(40 + 8 * mt + 4 * e + j, 2)
                A("v_pk_fma_f32 %s, %s, v[80:81], %s op_sel:[0,%d,0] op_sel_hi:[1,%d,1]" % (d, d, v(88 + 8 * e + 4 * mt + j, 2), e, e))
        for mt in range(2):
            for j in (0, 2):
                A("v_cvt_pk_bf16_f32 %s, %s, %s" % (v(16 + 4 * e + 2 * mt + j // 2), v(40 + 8 * mt + 4 * e + j), v(41 + 8 * mt + 4 * e + j)))
        A("buffer_store_dwordx4 %s, v5, %s, s77 offen offset:%d %s" % (v(16 + 4 * e, 4), srd(S_OUT), 2048 * e, {0: "", 1: "sc0 sc1", 2: "nt"}[O('outf', 0)]))
    A("""
    s_or_b32 s55, s2, s3
    s_cmp_lg_u32 s55, 0
    s_cselect_b32 s55, %s, 0
    v_mov_b32 v14, s84
    s_mov_b64 exec, 1
    buffer_store_dword v14, v9, %s, s55 offen
    s_mov_b64 exec, -1
    """ % (OOB, WS))
    spin(1)
    dump(TS + 0x10000)
    A.label("L_end")
    A("s_endpgm")
    for st_ in stubs:
        A("s_nop 7")
        A(st_)
    A.label("L_codeend")
    A("s_endpgm")
    A.raw(""".section .rodata,"a"
.p2align 6
.amdhsa_kernel %s_kernel
  .amdhsa_next_free_vgpr 256
  .amdhsa_next_free_sgpr 102
  .amdhsa_accum_offset 184
  .amdhsa_group_segment_fixed_size 0
  .amdhsa_kernarg_size 104
  .amdhsa_user_sgpr_count 2
  .amdhsa_user_sgpr_kernarg_segment_ptr 1
  .amdhsa_system_sgpr_workgroup_id_x 1
  .amdhsa_float_denorm_mode_32 3
.end_amdhsa_kernel""" % NAME)
    return A.text()

def parse(args):
    kw = {}; opt = {}
    for x in args:
        k, val = x.split("=")
        if k in ("RBX", "ROT"): kw[k] = int(val)
        elif k in ("NT",): kw[k] = val
        else: opt[k] = int(val)
    return kw, opt

if __name__ == "__main__":
    out = sys.argv[1] if len(sys.argv) > 1 else "cdna_kernels/%s.s" % NAME
    stamp = len(sys.argv) > 2 and sys.argv[2] == "stamp"
    kw, opt = parse(sys.argv[3:])
    open(out, "w").write(gen(stamp, opt=opt, **kw))
    print("wrote", out)
```
